```python
import torch

def _softmax(x, axis=-1):
    return torch.softmax(x, dim=axis)

def _gelu(x):
    return torch.nn.functional.gelu(x, approximate='tanh')

def _silu(x):
    return torch.nn.functional.silu(x)

def _sigmoid(x):
    return torch.sigmoid(x)

def _layernorm(x, axis=-1, eps=1e-05):
    m = x.mean(dim=axis, keepdim=True)
    v = x.var(dim=axis, keepdim=True, unbiased=False)
    return (x - m) / torch.sqrt(v + eps)

def _scatter_add(tgt, idx, src, axis=0):
    return tgt.clone().index_add_(axis, idx, src)

def _segment_sum(src, seg, n):
    out = torch.zeros((n,) + src.shape[1:], dtype=src.dtype)
    return out.index_add_(0, seg, src)

def _pad(x, pw):
    flat = tuple((v for pair in reversed(pw) for v in pair))
    return torch.nn.functional.pad(x, flat)
kernel_name = 'adaLN_cond__compressed_kv_cla__dense_activation_mish__prompt'

def setup_inputs():

    _w = lambda a: (lambda t: t.to(torch.bfloat16) if t.is_floating_point() else t)(torch.as_tensor(a))

    def _A_setup():
        B, H, Sq, Sk, D, M = (1, 32, 2048, 2048, 128, 512)
        Dc = 4 * D
        return {'x': _w((lambda *s: torch.randn(*s, dtype=torch.bfloat16) * 0.05)(B, Sq, M)), 'c_kv': _w((lambda *s: torch.randn(*s, dtype=torch.bfloat16) * 0.4)(B, Sk, Dc)), 'w_q': _w((lambda *s: torch.randn(*s, dtype=torch.bfloat16) * 3.2)(M, H, D) * M ** (-0.5)), 'w_uk': _w((lambda *s: torch.randn(*s, dtype=torch.bfloat16) * 3.2)(Dc, H, D) * Dc ** (-0.5)), 'w_uv': _w((lambda *s: torch.randn(*s, dtype=torch.bfloat16) * 0.4)(Dc, H, D) * Dc ** (-0.5)), 'w_o': _w((lambda *s: torch.randn(*s, dtype=torch.bfloat16) * 0.4)(H, D, M) * (H * D) ** (-0.5))}
    _A_in = _A_setup()

    def _B_setup():
        B, S, D, F = (1, 2048, 512, 1792)
        return {'x': _w((lambda *s: torch.randn(*s, dtype=torch.bfloat16) * 0.05)(B, S, D)), 'w1': _w((lambda *s: torch.randn(*s, dtype=torch.bfloat16) * 0.8)(D, F) * D ** (-0.5)), 'b1': _w((lambda *s: torch.randn(*s, dtype=torch.bfloat16) * 0.2)(F)), 'w2': _w((lambda *s: torch.randn(*s, dtype=torch.bfloat16) * 0.1)(F, D) * F ** (-0.5))}
    _B_in = _B_setup()
    return {'A_x': _A_in['x'], 'A_c_kv': _A_in['c_kv'], 'A_w_q': _A_in['w_q'], 'A_w_uk': _A_in['w_uk'], 'A_w_uv': _A_in['w_uv'], 'A_w_o': _A_in['w_o'], 'B_x': _B_in['x'], 'B_w1': _B_in['w1'], 'B_b1': _B_in['b1'], 'B_w2': _B_in['w2'], 'c': _w((lambda *s: torch.randn(*s, dtype=torch.bfloat16) * 0.1)(1, 512) * 8.0), 'w_mod': _w((lambda *s: torch.randn(*s, dtype=torch.bfloat16) * 0.1)(512, 6 * 512) * 512 ** (-0.5) * 8.0)}

def reference(A_x, A_c_kv, A_w_q, A_w_uk, A_w_uv, A_w_o, B_x, B_w1, B_b1, B_w2, c, w_mod):

    def _A_ref(x, c_kv, w_q, w_uk, w_uv, w_o):
        B, Sq, M = (x.shape[0], x.shape[1], x.shape[2])
        Sk = c_kv.shape[1]
        H, D = (w_q.shape[1], w_q.shape[2])
        q = torch.einsum('bqm,mhd->bhqd', x, w_q)
        k = torch.einsum('bkc,chd->bhkd', c_kv, w_uk)
        v = torch.einsum('bkc,chd->bhkd', c_kv, w_uv)
        scores = torch.einsum('bhqd,bhkd->bhqk', q, k) * D ** (-0.5)
        off = Sk - Sq
        qi = torch.arange(Sq)[:, None]
        kj = torch.arange(Sk)[None, :]
        cmask = kj <= qi + off
        scores = torch.where(cmask[None, None], scores, -1000000000.0)
        p = _softmax(scores, axis=-1)
        ctx = torch.einsum('bhqk,bhkd->bhqd', p, v)
        return torch.einsum('bhqd,hdm->bqm', ctx, w_o)

    def _B_ref(x, w1, b1, w2):
        h = torch.einsum('bsd,df->bsf', x, w1) + b1
        sp = torch.log1p(torch.exp(-torch.abs(h))) + torch.where(h > 0, h, torch.zeros_like(h))
        act = h * torch.tanh(sp)
        return torch.einsum('bsf,fd->bsd', act, w2)
    x = A_x
    mod = (_silu(c) @ w_mod).reshape(c.shape[0], 6, 1, -1)
    sa, ca, ga, sb, cb, gb = (mod[:, 0].clone(), mod[:, 1].clone(), mod[:, 2].clone(), mod[:, 3].clone(), mod[:, 4].clone(), mod[:, 5].clone())
    h = _layernorm(x, axis=-1) * (1 + ca) + sa
    x = x + ga * _A_ref(h, A_c_kv, A_w_q, A_w_uk, A_w_uv, A_w_o)
    h = _layernorm(x, axis=-1) * (1 + cb) + sb
    x = x + gb * _B_ref(h, B_w1, B_b1, B_w2)
    return x
```

```python
class Asm:
    def __init__(self):
        self.lines = []
        self._uid = 0
    def __call__(self, s):
        for l in s.split("\n"):
            l = l.strip()
            if l:
                self.lines.append(l if l.endswith(":") else "  " + l)
    def ext(self, lst):
        for s in lst:
            self(s)
    def label(self, name):
        self.lines.append(name + ":")
    def uid(self, p="L"):
        self._uid += 1
        return f"{p}_{self._uid}"
    def text(self):
        return "\n".join(self.lines) + "\n"

def vr(b, n=1):
    return f"v{b}" if n == 1 else f"v[{b}:{b+n-1}]"
def ar(b, n=1):
    return f"a{b}" if n == 1 else f"a[{b}:{b+n-1}]"
def sr(b, n=1):
    return f"s{b}" if n == 1 else f"s[{b}:{b+n-1}]"

def mfma(d, a, b, c):
    return f"v_mfma_f32_32x32x16_bf16 {d}, {a}, {b}, {c}"

def srd(A, s, base_lo, base_hi, nbytes):
    A(f"s_mov_b32 s{s}, s{base_lo}")
    A(f"s_mov_b32 s{s+1}, s{base_hi}")
    A(f"s_mov_b32 s{s+2}, {nbytes}")
    A(f"s_mov_b32 s{s+3}, 0x00020000")

def srd_off(A, s, base_lo, base_hi, off, nbytes):
    A(f"s_add_u32 s{s}, s{base_lo}, {off}")
    A(f"s_addc_u32 s{s+1}, s{base_hi}, 0")
    A(f"s_mov_b32 s{s+2}, {nbytes}")
    A(f"s_mov_b32 s{s+3}, 0x00020000")

def kernel_header(name):
    return f""".globl {name}
.p2align 8
.type {name},@function
{name}:
"""

def kernel_desc(name, vgpr, agpr, sgpr=102):
    acc = (vgpr + 3) // 4 * 4
    nfv = acc + agpr if agpr else vgpr
    return f""".p2align 6
.amdhsa_kernel {name}
  .amdhsa_next_free_vgpr {nfv}
  .amdhsa_next_free_sgpr {sgpr}
  .amdhsa_accum_offset {acc}
  .amdhsa_group_segment_fixed_size 0
  .amdhsa_kernarg_size 120
  .amdhsa_user_sgpr_count 2
  .amdhsa_user_sgpr_kernarg_segment_ptr 1
  .amdhsa_system_sgpr_workgroup_id_x 1
  .amdhsa_float_denorm_mode_32 3
  .amdhsa_float_denorm_mode_16_64 3
.end_amdhsa_kernel
"""

def cost(ins):
    op = ins.split()[0]
    if op.startswith("v_exp") or op.startswith("v_rcp") or op.startswith("v_rsq") or op.startswith("v_log") or op.startswith("v_sqrt"):
        return 8
    if op.startswith("buffer_") or op.startswith("global_"):
        return 8
    if op == "s_nop":
        return 4 * (int(ins.split()[1]) + 1)
    return 4

def is_mem(ins):
    op = ins.split()[0]
    return op.startswith("ds_") or op.startswith("buffer_") or op.startswith("global_")

def weave(A, mfmas, gaps):
    assert len(mfmas) == len(gaps)
    for m, g in zip(mfmas, gaps):
        A(m)
        for i in g:
            A(i)

KA = dict(x=0, ckv=8, wq=16, wuk=24, wuv=32, wo=40, bx=48, w1=56, b1=64, w2=72, c=80, wmod=88, out=96, dbg=104, ws=112)

MB = 1 << 20
WS_MOD = 0
WS_G = 64 * 1024
WS_STAT = 256 * 1024
WS_H1 = 1 * MB
WS_X2 = 4 * MB
WS_U = 6 * MB
WS_ACT = 8 * MB
WS_KF = 16 * MB
WS_VF = 32 * MB
WS_CTX = 48 * MB
WS_END = 64 * MB

import os
STAMPS = os.environ.get("STAMPS", "") != ""
WS_STAMP = 128 * MB
class Stamper:
    def __init__(self, A, kidx, base=72):
        self.A = A; self.n = 0; self.kidx = kidx; self.base = base
    def stamp(self):
        if not STAMPS: return
        b = self.base + 2 * self.n
        assert b + 1 < 100
        self.A(f"s_memtime s[{b}:{b+1}]")
        if self.n == 0:
            self.A("s_memrealtime s[66:67]")
        self.n += 1
    def flush(self, nwaves, s_wave, vtmp, nst=None):
        if not STAMPS: return
        A = self.A
        n = self.n if nst is None else nst
        A(f"s_load_dwordx2 s[68:69], s[0:1], {KA['ws']}")
        A(f"s_memrealtime s[100:101]")
        A("s_waitcnt lgkmcnt(0)")
        A(f"v_mov_b32 v{vtmp+1}, s100")
        A(f"v_mov_b32 v{vtmp+2}, s66")
        A(f"s_mov_b32 s70, {256*MB}")
        A("s_mov_b32 s71, 0x00020000")
        A(f"s_mul_i32 s100, s2, {nwaves}")
        A(f"s_add_u32 s100, s100, {s_wave}")
        A(f"s_lshl_b32 s100, s100, 6")
        A(f"s_add_u32 s100, s100, {WS_STAMP + self.kidx * MB}")
        A(f"v_mov_b32 v{vtmp}, 0")
        A(f"buffer_store_dword v{vtmp+1}, v{vtmp}, s[68:71], s100 offen offset:60")
        A(f"buffer_store_dword v{vtmp+2}, v{vtmp}, s[68:71], s100 offen offset:56")
        for i in range(n):
            A(f"v_mov_b32 v{vtmp+1}, s{self.base+2*i}")
            A(f"buffer_store_dword v{vtmp+1}, v{vtmp}, s[68:71], s100 offen offset:{4*i}")
            A("s_nop 1")
```

```python
from asmlib import *

LOG2E = 0x3fb8aa3b

def allreduce_sum(A, regs, tmps):
    n = len(regs)
    pad = max(0, 2 - (n - 1))
    def nop():
        if pad == 1: A("s_nop 0")
        elif pad == 2: A("s_nop 1")
    A("s_nop 1")
    for ror in (8, 4, 2, 1):
        for r in regs:
            A(f"v_add_f32_dpp v{r}, v{r}, v{r} row_ror:{ror} row_mask:0xf bank_mask:0xf")
        nop()
    for sw in ("v_permlane16_swap_b32", "v_permlane32_swap_b32"):
        for r, t in zip(regs, tmps):
            A(f"v_mov_b32 v{t}, v{r}")
        A("s_nop 1")
        for r, t in zip(regs, tmps):
            A(f"{sw} v{r}, v{t}")
        A("s_nop 1")
        for r, t in zip(regs, tmps):
            A(f"v_add_f32 v{r}, v{r}, v{t}")

def gen_k0():
    A = Asm()
    name = "k0mod_kernel"
    A.lines.append(kernel_header(name))
    A(f"""
    s_cmp_ge_u32 s2, 48
    s_cbranch_scc1 K0_END
    s_load_dwordx4 s[4:7], s[0:1], {KA['c']}
    s_load_dwordx2 s[8:9], s[0:1], {KA['ws']}
    v_and_b32 v1, 7, v0
    v_lshrrev_b32 v2, 3, v0
    v_mul_u32_u24 v3, 6144, v2
    v_lshl_add_u32 v3, v1, 4, v3
    v_lshlrev_b32 v4, 1, v2
    s_lshl_b32 s3, s2, 7
    s_waitcnt lgkmcnt(0)
    """)
    srd(A, 12, 4, 5, 1024)
    srd(A, 16, 6, 7, 512 * 6144)
    srd(A, 20, 8, 9, 3072 * 4)
    for it in range(16):
        A(f"buffer_load_ushort v{80+it}, v4, s[12:15], 0 offen offset:{it*64}")
    for it in range(16):
        A(f"s_add_u32 s24, s3, {it*196608}")
        A(f"buffer_load_dwordx4 v[{16+4*it}:{19+4*it}], v3, s[16:19], s24 offen")
    for i in range(8):
        A(f"v_mov_b32 v{8+i}, 0")
    A(f"s_mov_b32 s25, {LOG2E}")
    A("s_waitcnt vmcnt(16)")
    for it in range(16):
        A(f"v_lshlrev_b32 v{80+it}, 16, v{80+it}")
    for it in range(16):
        A(f"v_mul_f32 v{96+it}, s25, v{80+it}")
    for it in range(16):
        A(f"v_exp_f32 v{96+it}, -v{96+it}")
    for it in range(16):
        A(f"v_add_f32 v{96+it}, 1.0, v{96+it}")
    for it in range(16):
        A(f"v_rcp_f32 v{96+it}, v{96+it}")
    for it in range(16):
        A(f"v_mul_f32 v{80+it}, v{80+it}, v{96+it}")
    for it in range(16):
        A(f"v_cvt_pk_bf16_f32 v{80+it}, v{80+it}, v{80+it}")
    for it in range(16):
        A(f"v_lshlrev_b32 v{80+it}, 16, v{80+it}")
    for it in range(16):
        A(f"s_waitcnt vmcnt({15-it})")
        for q in range(4):
            w = 16 + 4 * it + q
            A(f"v_lshlrev_b32 v5, 16, v{w}")
            A(f"v_and_b32 v6, 0xffff0000, v{w}")
            A(f"v_fmac_f32 v{8+2*q}, v{80+it}, v5")
            A(f"v_fmac_f32 v{9+2*q}, v{80+it}, v6")
    A("""
    v_lshlrev_b32 v5, 5, v0
    ds_write_b128 v5, v[8:11]
    ds_write_b128 v5, v[12:15] offset:16
    s_waitcnt lgkmcnt(0)
    s_barrier
    v_cmp_gt_u32 vcc, 64, v0
    s_and_saveexec_b64 s[26:27], vcc
    s_cbranch_execz K0_END
    v_lshlrev_b32 v5, 2, v0
    """)
    for r in range(32):
        A(f"ds_read_b32 v{16+r}, v5 offset:{r*256}")
    A("s_waitcnt lgkmcnt(0)")
    st = 16
    while st >= 1:
        for r in range(st):
            A(f"v_add_f32 v{16+r}, v{16+r}, v{16+r+st}")
        st //= 2
    A("""
    v_cvt_pk_bf16_f32 v16, v16, v16
    v_lshlrev_b32 v16, 16, v16
    s_lshl_b32 s3, s2, 8
    buffer_store_dword v16, v5, s[20:23], s3 offen
    K0_END:
    s_endpgm
    """)
    return name, A.text(), kernel_desc(name, 112, 0), "grid=(48,1,1) block=(256,1,1) lds=8192"


def gen_k1():
    A = Asm()
    name = "k1kv_kernel"
    A.lines.append(kernel_header(name))
    VOT = 8
    VOW = 16
    VT = 24
    VW = 28
    FR = 32
    X0 = 96
    S_T, S_W, S_O = 12, 16, 20
    A(f"""
    s_cmp_ge_u32 s2, 256
    s_cbranch_scc1 K1_END
    """)
    ST = Stamper(A, 1)
    ST.stamp()
    A(f"""
    s_load_dwordx4 s[4:7], s[0:1], {KA['x']}
    s_load_dwordx4 s[24:27], s[0:1], {KA['wuk']}
    s_load_dwordx2 s[8:9], s[0:1], {KA['ws']}
    s_load_dwordx2 s[10:11], s[0:1], {KA['w1']}
    v_lshrrev_b32 v1, 6, v0
    v_and_b32 v2, 63, v0
    v_readfirstlane_b32 s30, v1
    s_and_b32 s31, s2, 7
    s_lshr_b32 s32, s2, 3
    s_and_b32 s33, s32, 3
    s_lshl_b32 s31, s31, 2
    s_add_u32 s33, s33, s31
    s_lshr_b32 s34, s32, 2
    s_and_b32 s35, s30, 1
    s_lshr_b32 s36, s30, 1
    """)
    A("""
    v_lshrrev_b32 v3, 3, v2
    v_lshrrev_b32 v4, 4, v2
    v_and_b32 v5, 7, v2
    v_xor_b32 v5, v5, v4
    v_lshlrev_b32 v5, 4, v5
    v_lshl_add_u32 v5, v3, 10, v5
    s_lshl_b32 s37, s30, 16
    v_add_u32 v5, s37, v5
    """)
    for i in range(8):
        off = 8 * i * 1024 - (i % 4) * 1024
        A(f"v_add_u32 v{VOT+i}, {off}, v5")
        if i % 2 == 1:
            A(f"v_xor_b32 v{VOT+i}, 64, v{VOT+i}")
    A("""
    v_and_b32 v5, 15, v2
    v_lshlrev_b32 v6, 2, v4
    v_xor_b32 v5, v5, v6
    v_lshlrev_b32 v5, 4, v5
    v_lshl_add_u32 v5, v4, 13, v5
    s_lshl_b32 s37, s35, 18
    v_add_u32 v5, s37, v5
    """)
    for i in range(8):
        off = 4 * i * 8192 - (i % 4) * 1024
        A(f"v_add_u32 v{VOW+i}, {off}, v5")
    A("s_waitcnt lgkmcnt(0)")
    ST.stamp()
    A(f"""
    s_lshl_b32 s37, s34, 18
    s_add_u32 s{S_T}, s6, s37
    s_addc_u32 s{S_T+1}, s7, 0
    s_mov_b32 s{S_T+2}, 0x40000
    s_mov_b32 s{S_T+3}, 0x00020000
    s_cmp_eq_u32 s36, 0
    s_cselect_b32 s{S_W}, s24, s26
    s_cselect_b32 s{S_W+1}, s25, s27
    s_lshl_b32 s37, s33, 8
    s_add_u32 s{S_W}, s{S_W}, s37
    s_addc_u32 s{S_W+1}, s{S_W+1}, 0
    s_mov_b32 s{S_W+2}, {511*8192+256}
    s_mov_b32 s{S_W+3}, 0x00020000
    """)
    srd(A, 40, 4, 5, 2048 * 1024)
    srd(A, 44, 8, 9, WS_END)
    srd(A, 48, 10, 11, 512 * 3584)
    XR = X0
    CA = X0 + 8
    SA = X0 + 16
    GW = X0 + 24
    GC = X0 + 32
    A(f"""
    s_lshl_b32 s37, s2, 13
    s_lshl_b32 s38, s30, 11
    s_add_u32 s37, s37, s38
    v_lshlrev_b32 v6, 4, v2
    buffer_load_dwordx4 v[{XR}:{XR+3}], v6, s[40:43], s37 offen
    buffer_load_dwordx4 v[{XR+4}:{XR+7}], v6, s[40:43], s37 offen offset:1024
    v_lshlrev_b32 v7, 5, v2
    buffer_load_dwordx4 v[{SA}:{SA+3}], v7, s[44:47], 0 offen
    buffer_load_dwordx4 v[{SA+4}:{SA+7}], v7, s[44:47], 0 offen offset:16
    buffer_load_dwordx4 v[{CA}:{CA+3}], v7, s[44:47], 0 offen offset:2048
    buffer_load_dwordx4 v[{CA+4}:{CA+7}], v7, s[44:47], 0 offen offset:2064
    """)
    A(f"""
    s_mul_i32 s52, s2, 9363
    s_lshr_b32 s52, s52, 18
    s_mul_i32 s53, s52, 28
    s_sub_u32 s53, s2, s53
    v_lshrrev_b32 v3, 3, v0
    v_and_b32 v4, 7, v0
    v_mul_u32_u24 v5, 3584, v3
    v_lshl_add_u32 v5, v4, 4, v5
    s_mul_i32 s54, s52, {64*3584}
    s_lshl_b32 s55, s53, 7
    s_add_u32 s54, s54, s55
    s_add_u32 s55, s54, {32*3584}
    buffer_load_dwordx4 v[{GW}:{GW+3}], v5, s[48:51], s54 offen
    buffer_load_dwordx4 v[{GW+4}:{GW+7}], v5, s[48:51], s55 offen
    v_lshlrev_b32 v5, 2, v3
    s_lshl_b32 s54, s52, 8
    s_add_u32 s55, s54, {3*2048}
    s_add_u32 s54, s54, {4*2048}
    buffer_load_dword v{GC}, v5, s[44:47], s54 offen
    buffer_load_dword v{GC+1}, v5, s[44:47], s54 offen offset:128
    buffer_load_dword v{GC+2}, v5, s[44:47], s55 offen
    buffer_load_dword v{GC+3}, v5, s[44:47], s55 offen offset:128
    """)
    ST.stamp()
    A("s_lshl_b32 s56, s30, 13")
    def dma_stage_instrs(sT, sW, m0base):
        L = []
        for grp in range(2):
            L.append(f"s_add_u32 m0, {m0base}, {grp*4096}")
            for i in range(4 * grp, 4 * grp + 4):
                L.append(f"buffer_load_dwordx4 v{VOT+i}, s[{S_T}:{S_T+3}], {sT} offen offset:{(i%4)*1024} lds")
        for grp in range(2):
            L.append(f"s_add_u32 m0, {m0base}, {32768+grp*4096}")
            for i in range(4 * grp, 4 * grp + 4):
                L.append(f"buffer_load_dwordx4 v{VOW+i}, s[{S_W}:{S_W+3}], {sW} offen offset:{(i%4)*1024} lds")
        return L
    def with_m0_nops(L):
        out = []
        for ins in L:
            out.append(ins)
            if "m0" in ins.split(",")[0]:
                out.append("s_nop 0")
        return out
    A("s_mov_b32 s57, 0")
    A("s_mov_b32 s58, 0")
    A.ext(with_m0_nops(dma_stage_instrs("s57", "s58", "s56")))
    ST.stamp()
    A("s_mov_b32 s57, 128")
    A("s_mov_b32 s58, 524288")
    A("s_add_u32 s59, s56, 65536")
    A.ext(with_m0_nops(dma_stage_instrs("s57", "s58", "s59")))
    ST.stamp()
    A(f"""
    v_and_b32 v3, 31, v2
    v_lshrrev_b32 v4, 5, v2
    v_bfe_u32 v5, v2, 1, 3
    s_lshl_b32 s37, s35, 14
    v_lshlrev_b32 v6, 7, v3
    v_add_u32 v6, s37, v6
    """)
    for ks in range(4):
        A(f"v_add_u32 v7, {2*ks}, v4")
        A(f"v_xor_b32 v7, v7, v5")
        A(f"v_lshl_add_u32 v{VT+ks}, v7, 4, v6")
    A(f"""
    v_bfe_u32 v3, v2, 2, 2
    v_and_b32 v5, 3, v2
    v_bfe_u32 v6, v2, 4, 1
    v_lshl_add_u32 v7, v4, 3, v3
    v_lshlrev_b32 v7, 8, v7
    v_lshl_add_u32 v7, v6, 5, v7
    v_lshl_add_u32 v7, v5, 3, v7
    s_lshl_b32 s37, s36, 14
    s_add_u32 s37, s37, 32768
    v_add_u32 v7, s37, v7
    """)
    for nt in range(4):
        A(f"v_xor_b32 v5, {nt}, v3")
        A(f"v_lshl_add_u32 v{VW+nt}, v5, 6, v7")
    for i in range(256):
        A(f"v_accvgpr_write_b32 a{i}, 0")
    F = X0 + 40
    T = X0 + 56
    ST.stamp()
    A("s_waitcnt vmcnt(38)")
    ST.stamp()
    for rr in range(2):
        for q in range(4):
            A(f"v_lshlrev_b32 v{F+8*rr+2*q}, 16, v{XR+4*rr+q}")
            A(f"v_and_b32 v{F+8*rr+2*q+1}, 0xffff0000, v{XR+4*rr+q}")
    for rr in range(2):
        A(f"v_add_f32 v{T+rr}, v{F+8*rr}, v{F+8*rr+1}")
    for e in range(2, 8):
        for rr in range(2):
            A(f"v_add_f32 v{T+rr}, v{T+rr}, v{F+8*rr+e}")
    allreduce_sum(A, [T, T + 1], [T + 2, T + 3])
    A(f"s_mov_b32 s37, 0x3b000000")
    for rr in range(2):
        A(f"v_mul_f32 v{T+rr}, s37, v{T+rr}")
    for rr in range(2):
        for e in range(8):
            A(f"v_sub_f32 v{F+8*rr+e}, v{F+8*rr+e}, v{T+rr}")
    for rr in range(2):
        A(f"v_mul_f32 v{T+rr}, v{F+8*rr}, v{F+8*rr}")
    for e in range(1, 8):
        for rr in range(2):
            A(f"v_fmac_f32 v{T+rr}, v{F+8*rr+e}, v{F+8*rr+e}")
    allreduce_sum(A, [T, T + 1], [T + 2, T + 3])
    A(f"v_mov_b32 v{T+2}, 0x3727c5ac")
    for rr in range(2):
        A(f"v_fma_f32 v{T+rr}, v{T+rr}, s37, v{T+2}")
    for rr in range(2):
        A(f"v_rsq_f32 v{T+rr}, v{T+rr}")
    for e in range(8):
        A(f"v_add_f32 v{CA+e}, 1.0, v{CA+e}")
    for e in range(8):
        A(f"v_cvt_pk_bf16_f32 v{CA+e}, v{CA+e}, v{CA+e}")
    for e in range(8):
        A(f"v_lshlrev_b32 v{CA+e}, 16, v{CA+e}")
    for rr in range(2):
        for e in range(8):
            A(f"v_mul_f32 v{F+8*rr+e}, v{F+8*rr+e}, v{T+rr}")
    for rr in range(2):
        for e in range(8):
            A(f"v_fma_f32 v{F+8*rr+e}, v{F+8*rr+e}, v{CA+e}, v{SA+e}")
    for rr in range(2):
        for q in range(4):
            A(f"v_cvt_pk_bf16_f32 v{XR+4*rr+q}, v{F+8*rr+2*q}, v{F+8*rr+2*q+1}")
    A(f"""
    s_lshl_b32 s37, s2, 3
    s_lshl_b32 s38, s30, 1
    s_add_u32 s37, s37, s38
    s_lshr_b32 s38, s37, 5
    s_lshl_b32 s38, s38, 15
    s_and_b32 s37, s37, 31
    s_lshl_b32 s37, s37, 4
    s_add_u32 s37, s37, s38
    s_add_u32 s37, s37, {WS_H1}
    v_lshlrev_b32 v3, 9, v2
    buffer_store_dwordx4 v[{XR}:{XR+3}], v3, s[44:47], s37 offen
    buffer_store_dwordx4 v[{XR+4}:{XR+7}], v3, s[44:47], s37 offen offset:16
    """)
    G = X0 + 64
    A("s_waitcnt vmcnt(34)")
    for rr in range(2):
        A(f"v_add_f32 v{GC+rr}, 1.0, v{GC+rr}")
    for rr in range(2):
        A(f"v_cvt_pk_bf16_f32 v{GC+rr}, v{GC+rr}, v{GC+rr}")
    for rr in range(2):
        A(f"v_lshlrev_b32 v{GC+rr}, 16, v{GC+rr}")
    for rr in range(2):
        for q in range(4):
            A(f"v_lshlrev_b32 v{F+8*rr+2*q}, 16, v{GW+4*rr+q}")
            A(f"v_and_b32 v{F+8*rr+2*q+1}, 0xffff0000, v{GW+4*rr+q}")
    for e in range(8):
        A(f"v_mul_f32 v{G+e}, v{F+e}, v{GC}")
        A(f"v_mul_f32 v{G+8+e}, v{F+e}, v{GC+2}")
    for e in range(8):
        A(f"v_fmac_f32 v{G+e}, v{F+8+e}, v{GC+1}")
        A(f"v_fmac_f32 v{G+8+e}, v{F+8+e}, v{GC+3}")
    A(f"""
    v_lshrrev_b32 v3, 3, v0
    v_and_b32 v4, 7, v0
    v_lshlrev_b32 v3, 9, v3
    v_lshl_add_u32 v3, v4, 5, v3
    v_add_u32 v3, 0x20000, v3
    ds_write_b128 v3, v[{G}:{G+3}]
    ds_write_b128 v3, v[{G+4}:{G+7}] offset:16
    ds_write_b128 v3, v[{G+8}:{G+11}] offset:256
    ds_write_b128 v3, v[{G+12}:{G+15}] offset:272
    s_waitcnt lgkmcnt(0)
    s_barrier
    s_cmp_ge_u32 s30, 2
    s_cbranch_scc1 K1_GDONE
    s_cmp_ge_u32 s2, 224
    s_cbranch_scc1 K1_GDONE
    v_lshlrev_b32 v3, 2, v0
    v_add_u32 v4, 0x20000, v3
    """)
    for r in range(32):
        A(f"ds_read_b32 v{X0+r}, v4 offset:{r*512}")
    A("s_waitcnt lgkmcnt(0)")
    st = 16
    while st >= 1:
        for r in range(st):
            A(f"v_add_f32 v{X0+r}, v{X0+r}, v{X0+r+st}")
        st //= 2
    A(f"""
    s_lshl_b32 s37, s52, 1
    s_add_u32 s37, s37, s30
    s_mul_i32 s37, s37, 7168
    s_lshl_b32 s38, s53, 8
    s_add_u32 s37, s37, s38
    s_add_u32 s37, s37, {WS_G}
    v_lshlrev_b32 v3, 2, v2
    buffer_store_dword v{X0}, v3, s[44:47], s37 offen
    K1_GDONE:
    """)
    def reads(s, ks):
        L = []
        for tt in range(4):
            L.append(f"ds_read_b128 v[{FR+32*s+4*tt}:{FR+32*s+4*tt+3}], v{VT+ks} offset:{tt*4096}")
        for nt in range(4):
            for e in range(2):
                b = FR + 32 * s + 16 + 4 * nt + 2 * e
                L.append(f"ds_read_b64_tr_b16 v[{b}:{b+1}], v{VW+nt} offset:{ks*4096+e*1024}")
        return L
    ST.stamp()
    A("s_waitcnt vmcnt(16)")
    A("s_barrier")
    ST.stamp()
    A.ext(reads(0, 0))
    A("s_mov_b32 s60, 0")
    A("s_cmp_eq_u32 s36, 0")
    A("s_cbranch_scc0 K1_LOOP_V")
    for kind in ("K", "V"):
        A.label(f"K1_LOOP_{kind}")
        for ks in range(4):
            s = ks & 1
            mf = []
            for tt in range(4):
                for nt in range(4):
                    acc = ar(16 * (tt * 4 + nt), 16)
                    tok = vr(FR + 32 * s + 4 * tt, 4)
                    wf = vr(FR + 32 * s + 16 + 4 * nt, 4)
                    mf.append(mfma(acc, wf, tok, acc) if kind == "K" else mfma(acc, tok, wf, acc))
            gaps = [[] for _ in range(16)]
            if ks < 3:
                A("s_waitcnt lgkmcnt(0)")
                rd = reads(1 - s, ks + 1)
                for i, r in enumerate(rd):
                    gaps[i].append(r)
                if ks == 2:
                    gaps[12] += ["s_add_u32 s57, s57, 128", "s_add_u32 s58, s58, 524288", "s_add_u32 s60, s60, 1"]
                    gaps[13] += ["s_cmp_ge_u32 s60, 7", "s_cselect_b32 s61, 0x80000000, s57", "s_cselect_b32 s62, 0x80000000, s58"]
                    gaps[14] += [f"v_xor_b32 v{VT+i}, 0x10000, v{VT+i}" for i in range(4)]
                    gaps[15] += [f"v_xor_b32 v{VW+i}, 0x10000, v{VW+i}" for i in range(4)]
            else:
                A("s_waitcnt vmcnt(0) lgkmcnt(0)")
                A("s_barrier")
                rd = reads(1 - s, 0)
                for i, r in enumerate(rd):
                    gaps[i].append(r)
                dm = dma_stage_instrs("s61", "s62", "s56")
                gi = 0
                pend = None
                first = True
                for ins in dm:
                    if ins.startswith("s_add_u32 m0"):
                        if first:
                            A(ins)
                            first = False
                        else:
                            gaps[gi - 1].append(ins)
                    else:
                        gaps[gi].append(ins)
                        gi += 1
                gaps[15] += ["s_xor_b32 s56, s56, 0x10000", "s_cmp_lt_u32 s60, 8"]
            weave(A, mf, gaps)
        A(f"s_cbranch_scc1 K1_LOOP_{kind}")
        ST.n = 9
        ST.stamp()
        base = WS_KF if kind == "K" else WS_VF
        A(f"""
        s_lshl_b32 s37, s33, 19
        s_lshl_b32 s38, s34, 16
        s_add_u32 s37, s37, s38
        s_lshl_b32 s38, s35, 15
        s_add_u32 s37, s37, s38
        s_add_u32 s37, s37, {base}
        v_lshlrev_b32 v3, 4, v2
        s_nop 7
        s_nop 3
        """)
        n = 0
        for tt in range(4):
            for nt in range(4):
                for j in range(2):
                    fi = (2 * nt + j) if kind == "K" else (4 * j + nt)
                    tmp = X0 + 16 * (n % 8)
                    a0 = 16 * (tt * 4 + nt) + 8 * j
                    for e in range(8):
                        A(f"v_accvgpr_read_b32 v{tmp+4+e}, a{a0+e}")
                    for q in range(4):
                        A(f"v_cvt_pk_bf16_f32 v{tmp+q}, v{tmp+4+2*q}, v{tmp+5+2*q}")
                    off = tt * 8192 + fi * 1024
                    A(f"s_add_u32 s38, s37, {off & ~4095}")
                    A(f"buffer_store_dwordx4 v[{tmp}:{tmp+3}], v3, s[44:47], s38 offen offset:{off & 4095}")
                    n += 1
        ST.stamp()
        if STAMPS: A("s_waitcnt vmcnt(0)")
        ST.stamp()
        ST.flush(4, "s30", 4)
        A("s_endpgm")
    A("K1_END:")
    A("s_endpgm")
    return name, A.text(), kernel_desc(name, 256, 256), "grid=(256,1,1) block=(256,1,1) lds=147456"
```

```python
from asmlib import *

QSCALE = 0x3e0293ee
import struct, math
QSCALE = struct.unpack("<I", struct.pack("<f", math.log2(math.e) / math.sqrt(128.0)))[0]
THR = struct.unpack("<I", struct.pack("<f", 2.0 ** 40))[0]
NEGBIG = struct.unpack("<I", struct.pack("<f", -1e30))[0]

AO, AQ, AK, AV = 0, 128, 192, 224
V_LANE16 = 1
V_KADDR = 2
V_VADDR = 3
V_DMA = 4
V_NINF = 5
V_LIM = 6
V_QA = 10
V_T0 = 12
VS = 16
VP = 80
VN = 112
VL = 144
VE = 148
VX = 156
def S(par, q, e=None):
    b = VS + 32 * par + 16 * q
    return vr(b, 16) if e is None else f"v{b+e}"
def P(par, q, ks=None, i=None):
    b = VP + 16 * par + 8 * q
    if i is not None: return f"v{b+i}"
    return vr(b + 4 * ks, 4)
def L(par, q): return f"v{VL+2*par+q}"
def O(q, dt): return ar(AO + 64 * q + 16 * dt, 16)

S_K, S_V, S_WS, S_WQ = 12, 16, 20, 24
sW, sR, sP_, sHD, sPR = 30, 31, 32, 33, 34
sKOFF, sKEND, sN2B, sKDST, sVOFF = 36, 37, 38, 39, 40
sCNT, sTHR, sBLK, sQB, sN = 41, 42, 43, 44, 45
sT0, sT1, sT2 = 46, 47, 48
MASKP = [52, 54, 56, 58]

def kdma():
    pre = [f"s_and_b32 m0, s{sKDST}, 0xffff"]
    d = [f"buffer_load_dwordx4 v{V_DMA}, s[{S_K}:{S_K+3}], s{sKOFF} offen offset:{i*1024} lds" for i in range(4)]
    post = [f"s_add_u32 s{sKDST}, s{sKDST}, 16384",
            f"s_add_u32 s{sKOFF}, s{sKOFF}, 16384",
            f"s_cmp_eq_u32 s{sKOFF}, s{sKEND}",
            f"s_cselect_b32 s{sKOFF}, 0, s{sKOFF}",
            f"s_cselect_b32 s{S_K+2}, s{sN2B}, s{S_K+2}"]
    return pre, d, post
def vdma():
    pre = [f"s_and_b32 s{sT2}, s{sVOFF}, 0xffff", f"s_or_b32 m0, s{sT2}, 0x10000"]
    d = [f"buffer_load_dwordx4 v{V_LANE16}, s[{S_V}:{S_V+3}], s{sVOFF} offen offset:{i*1024} lds" for i in range(4)]
    post = [f"s_add_u32 s{sVOFF}, s{sVOFF}, 16384"]
    return pre, d, post

def kread(kk, odd):
    return f"ds_read_b128 {ar(AK+4*kk,4)}, v{V_KADDR} offset:{odd*16384+kk*1024}"
def vread(f, odd):
    return f"ds_read_b128 {ar(AV+4*f,4)}, v{V_VADDR} offset:{odd*16384+f*1024}"

def qk_mfmas(dst_par, czero=False):
    out = []
    for kk in range(8):
        for q in range(2):
            c = S(dst_par, q) if kk else ("0" if czero else vr(VN + 16 * q, 16))
            out.append(mfma(S(dst_par, q), ar(AK + 4 * kk, 4), ar(AQ + 32 * q + 4 * kk, 4), c))
    return out
def pv_mfmas(src_par, qmajor=False):
    out = []
    if qmajor:
        for q in (1, 0):
            for f in range(8):
                ks, dt = f // 4, f % 4
                out.append(mfma(O(q, dt), ar(AV + 4 * f, 4), P(src_par, q, ks), O(q, dt)))
    else:
        for f in range(8):
            ks, dt = f // 4, f % 4
            for q in range(2):
                out.append(mfma(O(q, dt), ar(AV + 4 * f, 4), P(src_par, q, ks), O(q, dt)))
    return out

def rho(e):
    return 8 * (e >> 2) + (e & 3)

def mask_stream(par, z):
    out = []
    els = [(q, e) for q in range(2) for e in range(16)]
    def cmp(i):
        q, e = els[i]
        mp = MASKP[i % 4]
        return f"v_cmp_le_i32 s[{mp}:{mp+1}], {rho(e)}, v{V_LIM+2*z+q}"
    def cnd(i):
        q, e = els[i]
        mp = MASKP[i % 4]
        return f"v_cndmask_b32 {S(par,q,e)}, v{V_NINF}, {S(par,q,e)}, s[{mp}:{mp+1}]"
    out += [cmp(0), cmp(1), cmp(2)]
    for i in range(32):
        out.append(cnd(i))
        if i + 3 < 32: out.append(cmp(i + 3))
    return out

def sm_stream(par, z=None):
    out = []
    els = [(q, e) for q in range(2) for e in range(16)]
    def cmp(i):
        q, e = els[i]
        mp = MASKP[i % 4]
        return f"v_cmp_le_i32 s[{mp}:{mp+1}], {rho(e)}, v{V_LIM+2*z+q}"
    def cnd(i):
        q, e = els[i]
        mp = MASKP[i % 4]
        return f"v_cndmask_b32 {S(par,q,e)}, v{V_NINF}, {S(par,q,e)}, s[{mp}:{mp+1}]"
    def ex(i):
        q, e = els[i]
        return f"v_exp_f32 v{VE+i%8}, {S(par,q,e)}"
    def add(i):
        q, e = els[i]
        src = L(1 - par, q) if e == 0 else L(par, q)
        return f"v_add_f32 {L(par,q)}, {src}, v{VE+i%8}"
    def cvt(i):
        q, e = els[i]
        return f"v_cvt_pk_bf16_f32 {P(par,q,i=e//2)}, v{VE+(i-1)%8}, v{VE+i%8}"
    if z is not None:
        out += [cmp(0), cmp(1), cmp(2), cnd(0)]
    for i in range(32):
        if z is not None:
            if i + 3 < 32: out.append(cmp(i + 3))
            if i + 1 < 32: out.append(cnd(i + 1))
        out.append(ex(i))
        if i >= 1:
            out.append(add(i - 1))
            if (i - 1) % 2 == 1:
                out.append(cvt(i - 1))
    out.append("s_nop 0")
    out.append(add(31))
    out.append(cvt(31))
    return out

def check_stream(par, label):
    return [f"v_add_f32 v{V_T0}, {L(par,0)}, {L(par,1)}",
            f"v_cmp_nle_f32 vcc, v{V_T0}, v{V_T0+1}",
            f"s_cbranch_vccnz {label}",
            f"{label}_ret:"]

def pack(ngaps, fixed, stream, last_gap, cap=24):
    gaps = [list(fixed.get(g, [])) for g in range(ngaps)]
    used = [sum(cost(i) for i in g) for g in gaps]
    total = sum(cost(i) for i in stream)
    while True:
        u = list(used); placed = [[] for _ in range(ngaps)]
        g = 0; ok = True
        for ins in stream:
            c = cost(ins)
            while g <= last_gap and u[g] + c > cap:
                g += 1
            if g > last_gap:
                ok = False; break
            placed[g].append(ins); u[g] += c
        if ok: break
        cap += 4
    res = []
    for g in range(ngaps):
        mem = [i for i in gaps[g] if is_mem(i) or i.startswith("s_barrier")]
        oth = [i for i in gaps[g] if not (is_mem(i) or i.startswith("s_barrier"))]
        res.append(mem + placed[g] + oth)
    return res, cap

def add_fixed(fx, g, ins):
    fx.setdefault(g, [])
    if isinstance(ins, list): fx[g] += ins
    else: fx[g].append(ins)

def place_dma(fx, grp, gaps4):
    pre, d, post = grp
    add_fixed(fx, gaps4[0] - 1, pre)
    for g, i in zip(gaps4, d):
        add_fixed(fx, g, i)
    g = gaps4[3]
    if len(post) == 5:
        add_fixed(fx, g, post[:2]); add_fixed(fx, g + 1, post[2:])
    else:
        add_fixed(fx, g, post)

rare_sites = []

def gen_rare(A, label, par, has_next):
    A.label(label)
    A("s_nop 15"); A("s_nop 7")
    T, T2 = VX, VX + 1
    for q in range(2):
        A(f"v_max3_f32 v{T}, {S(par,q,0)}, {S(par,q,1)}, {S(par,q,2)}")
        for e in range(3, 15, 2):
            A(f"v_max3_f32 v{T}, v{T}, {S(par,q,e)}, {S(par,q,e+1)}")
        A(f"v_max3_f32 v{T}, v{T}, {S(par,q,15)}, 0")
        A(f"v_mov_b32 v{T2}, v{T}")
        A("s_nop 1")
        A(f"v_permlane32_swap_b32 v{T}, v{T2}")
        A("s_nop 1")
        A(f"v_max_f32 v{T}, v{T}, v{T2}")
        A(f"v_exp_f32 v{T2}, -v{T}")
        for e in range(16):
            A(f"v_sub_f32 v{VN+16*q+e}, v{VN+16*q+e}, v{T}")
            A(f"v_sub_f32 {S(par,q,e)}, {S(par,q,e)}, v{T}")
            if has_next:
                A(f"v_sub_f32 {S(1-par,q,e)}, {S(1-par,q,e)}, v{T}")
        A(f"v_mul_f32 {L(1-par,q)}, {L(1-par,q)}, v{T2}")
        for i in range(0, 64, 4):
            for j in range(4):
                A(f"v_accvgpr_read_b32 v{VX+2+j}, a{AO+64*q+i+j}")
            for j in range(4):
                A(f"v_mul_f32 v{VX+2+j}, v{VX+2+j}, v{T2}")
            for j in range(4):
                A(f"v_accvgpr_write_b32 a{AO+64*q+i+j}, v{VX+2+j}")
    A.ext(sm_stream(par))
    A("s_nop 3")
    A(f"s_branch {label}_ret")

def gen_k2():
    global rare_sites
    rare_sites = []
    A = Asm()
    name = "k2attn_kernel"
    A.lines.append(kernel_header(name))
    A("""
    s_cmp_ge_u32 s2, 256
    s_cbranch_scc1 K2_END
    """)
    ST = Stamper(A, 1)
    ST.stamp()
    A(f"""
    s_load_dwordx2 s[4:5], s[0:1], {KA['wq']}
    s_load_dwordx2 s[8:9], s[0:1], {KA['ws']}
    v_lshrrev_b32 v12, 6, v0
    v_and_b32 v13, 63, v0
    v_readfirstlane_b32 s{sW}, v12
    v_lshlrev_b32 v{V_LANE16}, 4, v13
    s_and_b32 s{sT0}, s2, 7
    s_lshr_b32 s{sT1}, s2, 3
    s_and_b32 s{sHD}, s{sT1}, 3
    s_lshl_b32 s{sT0}, s{sT0}, 2
    s_add_u32 s{sHD}, s{sHD}, s{sT0}
    s_lshr_b32 s{sPR}, s{sT1}, 2
    s_and_b32 s{sR}, s{sW}, 1
    s_lshr_b32 s{sP_}, s{sW}, 1
    """)
    HV = 16
    WF = 144
    VOW = 176
    VWR = 184
    VH = 188
    def hreg(ks, q):
        return vr(HV + 8 * ks + 4 * q, 4) if ks < 16 else ar(128 + 8 * (ks - 16) + 4 * q, 4)
    A(f"""
    v_lshrrev_b32 v14, 4, v13
    v_and_b32 v15, 15, v13
    v_lshlrev_b32 v12, 2, v14
    v_xor_b32 v15, v15, v12
    v_lshlrev_b32 v15, 4, v15
    v_lshl_add_u32 v15, v14, 13, v15
    s_lshl_b32 s{sT0}, s{sW}, 18
    v_add_u32 v15, s{sT0}, v15
    """)
    for i in range(8):
        A(f"v_add_u32 v{VOW+i}, {4*i*8192-(i%4)*1024}, v15")
    A(f"""
    s_sub_u32 s{sQB}, 15, s{sPR}
    s_cmp_eq_u32 s{sP_}, 0
    s_cselect_b32 s{sT0}, s{sQB}, s{sPR}
    s_lshl_b32 s{sT0}, s{sT0}, 2
    s_lshl_b32 s{sT1}, s{sR}, 1
    s_add_u32 s{sT0}, s{sT0}, s{sT1}
    s_lshl_b32 s{sT0}, s{sT0}, 15
    s_add_u32 s{sT0}, s{sT0}, {WS_H1}
    v_add_u32 v{VH}, s{sT0}, v{V_LANE16}
    v_add_u32 v{VH+1}, 32768, v{VH}
    s_waitcnt lgkmcnt(0)
    s_lshl_b32 s{sT0}, s{sHD}, 8
    s_add_u32 s{S_WQ}, s4, s{sT0}
    s_addc_u32 s{S_WQ+1}, s5, 0
    s_mov_b32 s{S_WQ+2}, {511*8192+256}
    s_mov_b32 s{S_WQ+3}, 0x00020000
    """)
    srd(A, S_WS, 8, 9, WS_END)
    A(f"s_lshl_b32 s60, s{sW}, 13")
    def group(c):
        G = []
        for grp in range(2):
            for i in range(4 * grp, 4 * grp + 4):
                pre = []
                if i % 4 == 0:
                    pre = [f"s_mov_b32 s61, {c*128*8192}", f"s_add_u32 m0, s60, {32768*(c+1)+grp*4096}"]
                G.append((pre, f"buffer_load_dwordx4 v{VOW+i}, s[{S_WQ}:{S_WQ+3}], s61 offen offset:{(i%4)*1024} lds"))
        for ks in range(8 * c, 8 * c + 8):
            for q in range(2):
                pre = []
                if ks % 4 == 0 and q == 0:
                    pre = [f"s_mov_b32 s62, {ks*1024}"]
                G.append((pre, f"buffer_load_dwordx4 {hreg(ks,q)}, v{VH+q}, s[{S_WS}:{S_WS+3}], s62 offen offset:{(ks%4)*1024}"))
        return G
    for c in range(2):
        for pre, ld in group(c):
            A.ext(pre)
            if pre: A("s_nop 0")
            A(ld)
    ST.stamp()
    A(f"""
    s_lshl_b32 s{sT0}, s{sHD}, 19
    s_add_u32 s{sT1}, s{sT0}, {WS_KF}
    s_add_u32 s{S_K}, s8, s{sT1}
    s_addc_u32 s{S_K+1}, s9, 0
    s_mov_b32 s{S_K+3}, 0x00020000
    s_add_u32 s{sT1}, s{sT0}, {WS_VF}
    s_add_u32 s{S_V}, s8, s{sT1}
    s_addc_u32 s{S_V+1}, s9, 0
    s_mov_b32 s{S_V+2}, 0x80000
    s_mov_b32 s{S_V+3}, 0x00020000
    s_lshl_b32 s{sT0}, s{sPR}, 1
    s_sub_u32 s{sN}, 32, s{sT0}
    s_lshl_b32 s{sKEND}, s{sN}, 14
    s_mov_b32 s{S_K+2}, s{sKEND}
    s_add_u32 s{sN2B}, s{sT0}, 2
    s_lshl_b32 s{sN2B}, s{sN2B}, 14
    s_mov_b32 s{sKOFF}, 0
    s_lshl_b32 s{sKDST}, s{sW}, 12
    s_mov_b32 s{sBLK}, 0
    v_add_u32 v{V_DMA}, s{sKDST}, v{V_LANE16}
    s_lshl_b32 s{sT0}, s{sP_}, 13
    v_add_u32 v{V_KADDR}, s{sT0}, v{V_LANE16}
    v_mov_b32 v{V_NINF}, 0xff800000
    s_lshl_b32 s{sT1}, s{sR}, 14
    s_add_u32 s{sT1}, s{sT1}, s{sT0}
    v_add_u32 v{V_QA}, s{sT1}, v{V_LANE16}
    v_xor_b32 v{V_QA+1}, 0x2000, v{V_QA}
    v_and_b32 v12, 31, v13
    v_lshrrev_b32 v14, 5, v13
    v_lshlrev_b32 v14, 2, v14
    v_sub_u32 v12, v12, v14
    """)
    for z in range(2):
        for q in range(2):
            A(f"s_xor_b32 s{sT0}, s{sP_}, {q}")
            A(f"s_lshl_b32 s{sT1}, s{sR}, 1")
            A(f"s_add_u32 s{sT0}, s{sT0}, s{sT1}")
            A(f"s_sub_u32 s{sT0}, s{sT0}, s{sP_}")
            A(f"s_sub_u32 s{sT0}, s{sT0}, {2*z}")
            A(f"s_lshl_b32 s{sT0}, s{sT0}, 5")
            A(f"v_add_u32 v{V_LIM+2*z+q}, s{sT0}, v12")
    A(f"""
    v_bfe_u32 v12, v13, 2, 2
    v_lshrrev_b32 v14, 5, v13
    v_lshl_add_u32 v14, v14, 3, v12
    v_lshlrev_b32 v14, 8, v14
    v_bfe_u32 v15, v13, 4, 1
    v_lshl_add_u32 v14, v15, 5, v14
    v_and_b32 v15, 3, v13
    v_lshl_add_u32 v14, v15, 3, v14
    v_add_u32 v14, 0x8000, v14
    """)
    for nt in range(4):
        A(f"v_xor_b32 v15, {nt}, v12")
        A(f"v_lshl_add_u32 v{VWR+nt}, v15, 6, v14")
    def wreads(s, ks):
        L_ = []
        for nt in range(4):
            for e in range(2):
                b = WF + 16 * s + 4 * nt + 2 * e
                L_.append(f"ds_read_b64_tr_b16 v[{b}:{b+1}], v{VWR+nt} offset:{(ks%8)*4096+e*1024}")
        return L_
    A("s_waitcnt vmcnt(24)")
    A("s_barrier")
    ST.stamp()
    A.ext(wreads(0, 0))
    pending = []
    for ks in range(32):
        c = ks // 8
        s = ks & 1
        if ks % 8 == 0:
            if c == 0: pending = group(2)
            elif c == 1: pending = group(3)
            elif c == 2:
                pending = []
                for t in range(4):
                    pre, d, post = kdma()
                    pending.append((pre if t == 0 else lastpost + pre, d[0]))
                    pending += [([], x) for x in d[1:]]
                    lastpost = post
                kpost = lastpost
            else:
                pending = []
        mf = []
        for dt in range(4):
            for q in range(2):
                cc = O(q, dt) if ks else "0"
                mf.append(mfma(O(q, dt), vr(WF + 16 * s + 4 * dt, 4), hreg(ks, q), cc))
        gaps = [[] for _ in range(8)]
        if ks % 8 == 7 and ks < 31:
            nyoung = {0: 24, 1: 24, 2: 16}[c]
            assert not pending
            A(f"s_waitcnt vmcnt({nyoung}) lgkmcnt(0)")
            A("s_barrier")
            for i in range(4):
                A(f"v_add_u32 v{VWR+i}, 0x8000, v{VWR+i}")
        elif ks == 31:
            A("s_waitcnt lgkmcnt(0)")
            A("s_barrier")
        else:
            A("s_waitcnt lgkmcnt(0)")
        if ks < 31:
            for i, r in enumerate(wreads(1 - s, ks + 1)):
                gaps[i].append(r)
        if ks % 8 < 7:
            for g in (1, 3, 5, 7):
                if pending:
                    pre, ld = pending.pop(0)
                    gaps[g - 1] += pre
                    gaps[g].append(ld)
                    if not pending and c == 2:
                        gaps[g] += kpost
        if ks == 31:
            A(f"s_lshl_b32 s{sVOFF}, s{sW}, 12")
            for t in range(2):
                pre, d, post = vdma()
                if t == 0:
                    A.ext(pre)
                else:
                    gaps[3] += pre
                for i, x in enumerate(d):
                    gaps[4 * t + i].insert(0, x)
                gaps[4 * t + 3].insert(1, post[0])
        weave(A, mf, gaps)
    ST.stamp()
    A(f"""
    s_mov_b32 s{sT0}, {QSCALE}
    s_lshl_b32 s{sT1}, s{sP_}, 15
    s_lshl_b32 s{sT2}, s{sR}, 14
    s_add_u32 s{sT1}, s{sT1}, s{sT2}
    s_add_u32 s{sT1}, s{sT1}, 98304
    v_add_u32 v12, s{sT1}, v{V_LANE16}
    s_nop 7
    """)
    n = 0
    for q in range(2):
        for dt in range(4):
            for j in range(2):
                tmp = 16 + 16 * (n % 4)
                a0 = AO + 64 * q + 16 * dt + 8 * j
                for e in range(8):
                    A(f"v_accvgpr_read_b32 v{tmp+4+e}, a{a0+e}")
                for e in range(8):
                    A(f"v_mul_f32 v{tmp+4+e}, s{sT0}, v{tmp+4+e}")
                for i in range(4):
                    A(f"v_cvt_pk_bf16_f32 v{tmp+i}, v{tmp+4+2*i}, v{tmp+5+2*i}")
                A(f"ds_write_b128 v12, v[{tmp}:{tmp+3}] offset:{(q*8+2*dt+j)*1024}")
                n += 1
    A(f"""
    v_add_u32 v12, 98304, v{V_QA}
    v_add_u32 v13, 98304, v{V_QA+1}
    v_add_u32 v{V_QA}, 0x20000, v{V_QA}
    v_add_u32 v{V_QA+1}, 0x20000, v{V_QA+1}
    s_waitcnt vmcnt(8) lgkmcnt(0)
    s_barrier
    """)
    for kk in range(8):
        A(kread(kk, 0))
        for q in range(2):
            A(f"ds_read_b128 {ar(AQ+32*q+4*kk,4)}, v{12+q} offset:{kk*1024}")
    ST.stamp()
    A.label("K2_BLOCK")
    A(f"""
    v_mov_b32 v{V_T0+1}, {THR}
    s_lshl_b32 s{sT0}, s{sP_}, 13
    s_add_u32 s{sT0}, s{sT0}, 0x18000
    v_add_u32 v{V_VADDR}, s{sT0}, v{V_LANE16}
    v_mov_b32 {L(1,0)}, 0
    v_mov_b32 {L(1,1)}, 0
    s_lshr_b32 s{sCNT}, s{sN}, 1
    s_sub_u32 s{sCNT}, s{sCNT}, 1
    """)
    zi = [f"v_accvgpr_write_b32 a{AO+i}, 0" for i in range(128)]
    A.ext(zi[:40])
    A("s_waitcnt lgkmcnt(0)")
    fx = {}
    for kk in range(8):
        add_fixed(fx, 2 * kk + 1, kread(kk, 1))
    gaps, cap = pack(16, fx, zi[40:], 15)
    weave(A, qk_mfmas(0, czero=True), gaps)
    A(f"s_cmp_lg_u32 s{sN}, 2")
    A("s_nop 7")
    A("s_cbranch_scc1 K2_NOMASK0")
    A.ext(mask_stream(0, 0))
    A.label("K2_NOMASK0")
    for q in range(2):
        T = VX + q
        A(f"v_max3_f32 v{T}, {S(0,q,0)}, {S(0,q,1)}, {S(0,q,2)}")
    for e in range(3, 15, 2):
        for q in range(2):
            T = VX + q
            A(f"v_max3_f32 v{T}, v{T}, {S(0,q,e)}, {S(0,q,e+1)}")
    A(f"s_mov_b32 s{sT0}, {NEGBIG}")
    for q in range(2):
        A(f"v_max3_f32 v{VX+q}, v{VX+q}, {S(0,q,15)}, s{sT0}")
    for q in range(2):
        A(f"v_mov_b32 v{VX+2+q}, v{VX+q}")
    A("s_nop 0")
    for q in range(2):
        A(f"v_permlane32_swap_b32 v{VX+q}, v{VX+2+q}")
    A("s_nop 0")
    for q in range(2):
        A(f"v_max_f32 v{VX+q}, v{VX+q}, v{VX+2+q}")
    for q in range(2):
        for e in range(16):
            A(f"v_sub_f32 v{VN+16*q+e}, 0, v{VX+q}")
    subs = [f"v_sub_f32 {S(0,q,e)}, {S(0,q,e)}, v{VX+q}" for q in range(2) for e in range(16)]
    A(f"v_xor_b32 v{V_KADDR}, 0x8000, v{V_KADDR}")
    A("s_waitcnt lgkmcnt(0)")
    fx = {}
    add_fixed(fx, 0, "s_barrier")
    for kk in range(8):
        add_fixed(fx, 2 * kk + 1, kread(kk, 0))
    place_dma(fx, kdma(), [1, 2, 3, 4])
    place_dma(fx, kdma(), [7, 8, 9, 10])
    place_dma(fx, vdma(), [12, 13, 14, 15])
    sm = sm_stream(0)
    stream = subs[:4]
    si = 4
    for ins in sm:
        stream.append(ins)
        if ins.startswith("v_exp") and si < 32:
            stream.append(subs[si]); si += 1
    gaps, cap = pack(16, fx, stream, 15)
    print("step0 cap", cap)
    weave(A, qk_mfmas(1), gaps)
    lab = "K2_RARE_S0"; rare_sites.append((lab, 0, True))
    A.ext(check_stream(0, lab))
    A(f"s_cmp_eq_u32 s{sN}, 2")
    A("s_waitcnt vmcnt(12) lgkmcnt(0)")
    A("s_cbranch_scc1 K2_LAST")

    def full_step(par, lab, z=None, kr=True, vd=True, tail=None, endwait=16):
        fx = {}
        add_fixed(fx, 0, "s_barrier")
        odd = par
        pre = []
        if par == 1:
            pre.append(f"v_xor_b32 v{V_VADDR}, 0x8000, v{V_VADDR}")
        for f in range(8):
            add_fixed(fx, 1 + f, vread(f, 1 - par))
        add_fixed(fx, 15, "s_waitcnt lgkmcnt(0)")
        if kr:
            if par == 0:
                add_fixed(fx, 12, f"v_xor_b32 v{V_KADDR}, 0x8000, v{V_KADDR}")
            for kk in range(8):
                add_fixed(fx, 16 + kk, kread(kk, par))
        place_dma(fx, kdma(), [2, 6, 10, 13])
        if vd:
            place_dma(fx, vdma(), [18, 22, 25, 28])
        rare_sites.append((lab, par, True))
        chk = check_stream(par, lab)
        endi = chk + (tail or []) + [f"s_waitcnt vmcnt({endwait}) lgkmcnt(0)"]
        add_fixed(fx, 31, endi)
        gaps, cap = pack(32, fx, sm_stream(par, z), 30)
        print(lab, "cap", cap)
        A.ext(pre)
        weave(A, qk_mfmas(1 - par) + pv_mfmas(1 - par), gaps)

    A.lines.append(".p2align 3")
    A.label("K2_LOOP")
    full_step(1, "K2_RARE_O", tail=[f"s_sub_u32 s{sCNT}, s{sCNT}, 1", f"s_cmp_eq_u32 s{sCNT}, 0"])
    A("s_cbranch_scc1 K2_NM2")
    full_step(0, "K2_RARE_E")
    A("s_branch K2_LOOP")
    A.label("K2_NM2")
    full_step(0, "K2_RARE_M", z=0, kr=False, vd=False, endwait=12)
    A.label("K2_LAST")
    A("s_barrier")
    A(f"v_xor_b32 v{V_VADDR}, 0x8000, v{V_VADDR}")
    for f in range(8):
        A(vread(f, 0))
    sm = sm_stream(1, 1)
    head = sm[:24]
    A.ext(head)
    A("s_waitcnt lgkmcnt(0)")
    fx = {}
    for i in range(16):
        q, kk = i // 8, i % 8
        add_fixed(fx, i, f"ds_read_b128 {ar(AQ+32*q+4*kk,4)}, v{V_QA+q} offset:{kk*1024}")
    gaps, cap = pack(16, fx, sm[24:], 15)
    print("last cap", cap)
    weave(A, pv_mfmas(0), gaps)
    lab = "K2_RARE_L"; rare_sites.append((lab, 1, False))
    A.ext(check_stream(1, lab))
    A("s_waitcnt vmcnt(4) lgkmcnt(0)")
    A("s_barrier")
    for f in range(8):
        A(vread(f, 1))
    for q in range(2):
        A(f"v_mov_b32 v{VX+q}, {L(1,q)}")
    A("s_nop 1")
    for q in range(2):
        A(f"v_permlane32_swap_b32 {L(1,q)}, v{VX+q}")
    A("s_nop 1")
    for q in range(2):
        A(f"v_add_f32 {L(1,q)}, {L(1,q)}, v{VX+q}")
    A(f"""
    v_mov_b32 v{VX+2}, v{VN+16}
    v_mov_b32 v{VX+3}, {L(1,1)}
    s_lshl_b32 s{sT0}, s{sW}, 14
    s_add_u32 s{sT0}, s{sT0}, 0x10000
    v_add_u32 v{VX+4}, s{sT0}, v{V_LANE16}
    v_xor_b32 v{VX+5}, 0x8000, v{VX+4}
    s_lshl_b32 s{sT0}, s{sW}, 10
    s_add_u32 s{sT0}, s{sT0}, 0x20000
    v_add_u32 v{VX+6}, s{sT0}, v{V_LANE16}
    v_xor_b32 v{VX+7}, 0x800, v{VX+6}
    s_waitcnt lgkmcnt(0)
    """)
    gaps = [[] for _ in range(16)]
    gaps[0] = ["s_barrier"]
    gaps[1] = [f"ds_write_b64 v{VX+6}, v[{VX+2}:{VX+3}]"]
    mf = pv_mfmas(1, qmajor=True)
    weave(A, mf, gaps)
    A("s_nop 3")
    for i in range(16):
        A(f"ds_write_b128 v{VX+4}, {ar(AO+64+4*i,4)} offset:{i*1024}")
    A("s_waitcnt vmcnt(0) lgkmcnt(0)")
    A("s_barrier")
    A(f"ds_read_b64 v[{VX+2}:{VX+3}], v{VX+7}")
    for i in range(16):
        A(f"ds_read_b128 v[{VS+4*i}:{VS+4*i+3}], v{VX+5} offset:{i*1024}")
    A(f"""
    s_lshl_b32 s{sT0}, s{sQB}, 2
    s_lshl_b32 s{sT1}, s{sR}, 1
    s_add_u32 s{sT0}, s{sT0}, s{sT1}
    s_add_u32 s{sT0}, s{sT0}, s{sP_}
    s_lshl_b32 s{sT0}, s{sT0}, 18
    s_lshl_b32 s{sT1}, s{sHD}, 13
    s_add_u32 s{sT0}, s{sT0}, s{sT1}
    s_add_u32 s63, s{sT0}, {WS_CTX}
    s_add_u32 s64, s63, 4096
    s_waitcnt lgkmcnt(0)
    s_barrier
    s_cmp_eq_u32 s{sBLK}, 0
    s_cbranch_scc0 K2_NOPRE
    s_lshl_b32 s{sVOFF}, s{sW}, 12
    v_xor_b32 v{V_KADDR}, 0x8000, v{V_KADDR}
    """)
    for t in range(2):
        pre, d, post = vdma()
        A.ext(pre); A("s_nop 0"); A.ext(d); A.ext(post)
    for kk in range(8):
        A(kread(kk, 0))
    A.label("K2_NOPRE")
    A(f"""
    v_min_f32 v{VX+8}, v{VN}, v{VX+2}
    v_sub_f32 v{VX+9}, v{VX+8}, v{VN}
    v_sub_f32 v{VX+10}, v{VX+8}, v{VX+2}
    v_exp_f32 v{VX+9}, v{VX+9}
    v_exp_f32 v{VX+10}, v{VX+10}
    s_nop 0
    v_mul_f32 v{VX+11}, v{VX+9}, {L(1,0)}
    v_fmac_f32 v{VX+11}, v{VX+10}, v{VX+3}
    v_rcp_f32 v{VX+11}, v{VX+11}
    s_nop 0
    v_mul_f32 v{VX+9}, v{VX+9}, v{VX+11}
    v_mul_f32 v{VX+10}, v{VX+10}, v{VX+11}
    """)
    for fi in range(8):
        tmp = VP + 12 * (fi % 2)
        for e in range(8):
            A(f"v_accvgpr_read_b32 v{tmp+4+e}, a{AO+8*fi+e}")
        for e in range(8):
            A(f"v_mul_f32 v{VS+8*fi+e}, v{VS+8*fi+e}, v{VX+10}")
        for e in range(8):
            A(f"v_fmac_f32 v{VS+8*fi+e}, v{tmp+4+e}, v{VX+9}")
        for i in range(4):
            A(f"v_cvt_pk_bf16_f32 v{tmp+i}, v{VS+8*fi+2*i}, v{VS+8*fi+2*i+1}")
        A(f"buffer_store_dwordx4 v[{tmp}:{tmp+3}], v{V_LANE16}, s[{S_WS}:{S_WS+3}], s{63+fi//4} offen offset:{(fi%4)*1024}")
    A(f"s_cmp_eq_u32 s{sBLK}, 0")
    A("s_cbranch_scc0 K2_DONE")
    if STAMPS:
        ST.stamp()
    A(f"""
    s_mov_b32 s{sBLK}, 1
    s_mov_b32 s{sQB}, s{sPR}
    s_lshr_b32 s{sN}, s{sN2B}, 14
    s_branch K2_BLOCK
    K2_DONE:
    """)
    ST.stamp()
    if STAMPS: A("s_waitcnt vmcnt(0)")
    ST.stamp()
    ST.flush(4, f"s{sW}", 12)
    A("K2_END:")
    A("s_endpgm")
    for lab, par, hn in rare_sites:
        gen_rare(A, lab, par, hn)
    return name, A.text(), kernel_desc(name, 256, 256), "grid=(256,1,1) block=(256,1,1) lds=163840"
```

```python
from asmlib import *
LOG2E = 0x3fb8aa3b

def skinny_gemm(tag, kidx, name, wkey, wrows, act_base, act_ksteps, nk, D, epilogue_pre, epilogue):
    A = Asm()
    A.lines.append(kernel_header(name))
    A(f"""
    s_cmp_ge_u32 s2, 256
    s_cbranch_scc1 {tag}_END
    """)
    ST = Stamper(A, kidx)
    ST.stamp()
    S_W, S_WS = 12, 16
    CT = 64
    WF = 32
    VA = 8
    VOW = 10
    VWR = 12
    A(f"""
    s_load_dwordx2 s[4:5], s[0:1], {KA[wkey]}
    s_load_dwordx2 s[8:9], s[0:1], {KA['ws']}
    s_load_dwordx2 s[6:7], s[0:1], {KA['x']}
    s_load_dwordx2 s[10:11], s[0:1], {KA['out']}
    v_lshrrev_b32 v1, 6, v0
    v_and_b32 v2, 63, v0
    v_readfirstlane_b32 s30, v1
    v_lshlrev_b32 v3, 4, v2
    s_and_b32 s31, s2, 7
    s_lshr_b32 s32, s2, 3
    s_lshr_b32 s33, s32, 3
    s_lshl_b32 s31, s31, 2
    s_add_u32 s33, s33, s31
    s_and_b32 s34, s32, 7
    """)
    A(f"""
    s_mul_i32 s35, s33, {2*act_ksteps*1024}
    s_mul_i32 s36, s30, {nk*1024}
    s_add_u32 s35, s35, s36
    s_add_u32 s35, s35, {act_base}
    v_add_u32 v{VA}, s35, v3
    v_add_u32 v{VA+1}, {act_ksteps*1024}, v{VA}
    v_lshrrev_b32 v4, 3, v2
    v_and_b32 v5, 7, v2
    v_bfe_u32 v6, v2, 4, 1
    v_lshlrev_b32 v6, 2, v6
    v_xor_b32 v5, v5, v6
    v_lshlrev_b32 v5, 4, v5
    v_lshl_add_u32 v5, v4, 10, v5
    s_mul_i32 s35, s30, {nk*16*1024}
    s_lshl_b32 s36, s34, 7
    s_add_u32 s35, s35, s36
    v_add_u32 v{VOW}, s35, v5
    v_add_u32 v{VOW+1}, {8192-1024}, v{VOW}
    s_mul_i32 s37, s30, {D*2048}
    v_bfe_u32 v4, v2, 2, 2
    v_lshrrev_b32 v5, 5, v2
    v_lshl_add_u32 v5, v5, 2, v4
    v_lshlrev_b32 v5, 7, v5
    v_bfe_u32 v6, v2, 4, 1
    v_lshl_add_u32 v5, v6, 5, v5
    v_and_b32 v6, 3, v2
    v_lshl_add_u32 v5, v6, 3, v5
    v_add_u32 v5, s37, v5
    v_lshrrev_b32 v4, 1, v4
    v_lshl_add_u32 v{VWR}, v4, 6, v5
    v_xor_b32 v{VWR+1}, 64, v{VWR}
    s_waitcnt lgkmcnt(0)
    """)
    srd(A, S_W, 4, 5, wrows * 1024)
    srd(A, S_WS, 8, 9, WS_END)
    def loads(slot, sa, sw):
        return [f"s_add_u32 m0, s37, {slot*2048}",
                f"buffer_load_dwordx4 v[{CT+8*slot}:{CT+8*slot+3}], v{VA}, s[{S_WS}:{S_WS+3}], {sa} offen",
                f"buffer_load_dwordx4 v{VOW}, s[{S_W}:{S_W+3}], {sw} offen lds",
                f"buffer_load_dwordx4 v[{CT+8*slot+4}:{CT+8*slot+7}], v{VA+1}, s[{S_WS}:{S_WS+3}], {sa} offen",
                f"buffer_load_dwordx4 v{VOW+1}, s[{S_W}:{S_W+3}], {sw} offen offset:1024 lds"]
    npre = epilogue_pre(A)
    A("s_mov_b32 s38, 0")
    A("s_mov_b32 s39, 0")
    for j in range(D - 1):
        A.ext(loads(j, "s38", "s39"))
        A("s_add_u32 s38, s38, 1024")
        A("s_add_u32 s39, s39, 16384")
    for i in range(64):
        A(f"v_accvgpr_write_b32 a{i}, 0")
    def wreads(s, slot):
        return [f"ds_read_b64_tr_b16 v[{WF+8*s+4*nt+2*e}:{WF+8*s+4*nt+2*e+1}], v{VWR+nt} offset:{slot*2048+e*1024}"
                for nt in range(2) for e in range(2)]
    ST.stamp()
    A(f"s_waitcnt vmcnt({4*(D-2)})")
    ST.stamp()
    A.ext(wreads(0, 0))
    A(f"s_mov_b32 s40, {D-1}")
    A.label(f"{tag}_LOOP")
    for j in range(D):
        s = j & 1
        ld = loads((j - 1) % D, "s41", "s42")
        A(f"s_cmp_lt_u32 s40, {nk}")
        A("s_cselect_b32 s41, s38, 0x80000000")
        A("s_cselect_b32 s42, s39, 0x80000000")
        A.ext(ld)
        A("s_add_u32 s38, s38, 1024")
        A("s_add_u32 s39, s39, 16384")
        A("s_add_u32 s40, s40, 1")
        A(f"s_waitcnt vmcnt({4*(D-2)}) lgkmcnt(0)")
        rd = wreads(1 - s, (j + 1) % D)
        k = 0
        for nt in range(2):
            for q in range(2):
                acc = ar(16 * (2 * q + nt), 16)
                A(mfma(acc, vr(WF + 8 * s + 4 * nt, 4), vr(CT + 8 * j + 4 * q, 4), acc))
                A(rd[k]); k += 1
    A(f"s_cmp_lt_u32 s40, {nk + D - 1}")
    A(f"s_cbranch_scc1 {tag}_LOOP")
    ST.stamp()
    A(f"""
    s_waitcnt vmcnt(0) lgkmcnt(0)
    s_barrier
    s_lshl_b32 s35, s30, 14
    v_add_u32 v4, s35, v3
    s_lshl_b32 s35, s30, 12
    v_add_u32 v5, s35, v3
    s_nop 7
    """)
    for i in range(16):
        A(f"ds_write_b128 v4, {ar(4*i,4)} offset:{i*1024}")
    A("s_waitcnt lgkmcnt(0)")
    A("s_barrier")
    R = CT
    for w in range(4):
        for i in range(4):
            A(f"ds_read_b128 v[{R+16*w+4*i}:{R+16*w+4*i+3}], v5 offset:{w*16384+i*1024}")
    A("s_waitcnt lgkmcnt(8)")
    for e in range(16):
        A(f"v_add_f32 v{R+e}, v{R+e}, v{R+16+e}")
    A("s_waitcnt lgkmcnt(0)")
    for e in range(16):
        A(f"v_add_f32 v{R+32+e}, v{R+32+e}, v{R+48+e}")
    for e in range(16):
        A(f"v_add_f32 v{R+e}, v{R+e}, v{R+32+e}")
    epilogue(A, R)
    ST.stamp()
    if STAMPS: A("s_waitcnt vmcnt(0)")
    ST.stamp()
    ST.flush(4, "s30", 4)
    A.label(f"{tag}_END")
    A("s_endpgm")
    lds = max(4 * D * 2048, 65536)
    return name, A.text(), kernel_desc(name, 256, 64), f"grid=(256,1,1) block=(256,1,1) lds={lds}"

EX = 200
EG = 208
EC = 224

def modvec_loads(A, dst, idx, vaddr):
    for i in range(4):
        A(f"buffer_load_dwordx4 v[{dst+4*i}:{dst+4*i+3}], v{vaddr}, s[16:19], s44 offen offset:{32*i}" if False else
          f"buffer_load_dwordx4 v[{dst+4*i}:{dst+4*i+3}], v{vaddr}, s[16:19], s{idx} offen offset:{32*i}")

def common_epi_setup(A):
    A("""
    s_lshr_b32 s45, s30, 1
    s_and_b32 s46, s30, 1
    s_lshl_b32 s47, s33, 1
    s_add_u32 s47, s47, s45
    s_lshl_b32 s48, s34, 1
    s_add_u32 s48, s48, s46
    v_lshrrev_b32 v4, 5, v2
    v_and_b32 v5, 31, v2
    s_lshl_b32 s49, s48, 7
    v_lshlrev_b32 v14, 4, v4
    v_add_u32 v14, s49, v14
    s_lshl_b32 s49, s47, 15
    s_lshl_b32 s50, s48, 6
    s_add_u32 s49, s49, s50
    v_lshlrev_b32 v15, 10, v5
    v_lshl_add_u32 v15, v4, 3, v15
    v_add_u32 v15, s49, v15
    s_lshl_b32 s51, s47, 15
    s_lshl_b32 s50, s48, 11
    s_add_u32 s51, s51, s50
    """)

def gen_k3():
    def pre(A):
        common_epi_setup(A)
        srd(A, 20, 6, 7, 2048 * 1024)
        for i in range(4):
            A(f"buffer_load_dwordx2 v[{EX+2*i}:{EX+2*i+1}], v15, s[20:23], 0 offen offset:{16*i}")
        A(f"s_mov_b32 s43, {2*2048}")
        A(f"s_mov_b32 s44, {4*2048}")
        modvec_loads(A, EG, 43, 14)
        modvec_loads(A, EC, 44, 14)
    def epi(A, R):
        X = R + 16
        for i in range(8):
            A(f"v_lshlrev_b32 v{X+2*i}, 16, v{EX+i}")
            A(f"v_and_b32 v{X+2*i+1}, 0xffff0000, v{EX+i}")
        for e in range(16):
            A(f"v_fmac_f32 v{X+e}, v{R+e}, v{EG+e}")
        PK = R + 32
        for i in range(8):
            A(f"v_cvt_pk_bf16_f32 v{PK+i}, v{X+2*i}, v{X+2*i+1}")
        A(f"s_add_u32 s52, s51, {WS_X2}")
        A(f"buffer_store_dwordx4 v[{PK}:{PK+3}], v3, s[16:19], s52 offen")
        A(f"buffer_store_dwordx4 v[{PK+4}:{PK+7}], v3, s[16:19], s52 offen offset:1024")
        for i in range(8):
            A(f"v_lshlrev_b32 v{X+2*i}, 16, v{PK+i}")
            A(f"v_and_b32 v{X+2*i+1}, 0xffff0000, v{PK+i}")
        for e in range(16):
            A(f"v_add_f32 v{EC+e}, 1.0, v{EC+e}")
        for e in range(16):
            A(f"v_cvt_pk_bf16_f32 v{EC+e}, v{EC+e}, v{EC+e}")
        for e in range(16):
            A(f"v_lshlrev_b32 v{EC+e}, 16, v{EC+e}")
        for e in range(16):
            A(f"v_mul_f32 v{EC+e}, v{EC+e}, v{X+e}")
        PU = R + 40
        for i in range(8):
            A(f"v_cvt_pk_bf16_f32 v{PU+i}, v{EC+2*i}, v{EC+2*i+1}")
        A(f"s_add_u32 s52, s51, {WS_U}")
        A(f"buffer_store_dwordx4 v[{PU}:{PU+3}], v3, s[16:19], s52 offen")
        A(f"buffer_store_dwordx4 v[{PU+4}:{PU+7}], v3, s[16:19], s52 offen offset:1024")
        T = R + 48
        A(f"v_add_f32 v{T}, v{X}, v{X+1}")
        for e in range(2, 16):
            A(f"v_add_f32 v{T}, v{T}, v{X+e}")
        A(f"""
        v_mov_b32 v{T+2}, v{T}
        s_nop 1
        v_permlane32_swap_b32 v{T}, v{T+2}
        s_nop 1
        v_add_f32 v{T}, v{T}, v{T+2}
        v_mul_f32 v{T}, 0x3d000000, v{T}
        """)
        for e in range(16):
            A(f"v_sub_f32 v{X+e}, v{X+e}, v{T}")
        A(f"v_mul_f32 v{T+1}, v{X}, v{X}")
        for e in range(1, 16):
            A(f"v_fmac_f32 v{T+1}, v{X+e}, v{X+e}")
        A(f"""
        v_mov_b32 v{T+2}, v{T+1}
        s_nop 1
        v_permlane32_swap_b32 v{T+1}, v{T+2}
        s_nop 1
        v_add_f32 v{T+1}, v{T+1}, v{T+2}
        v_and_b32 v4, 31, v2
        v_lshlrev_b32 v4, 7, v4
        s_lshl_b32 s52, s47, 12
        s_lshl_b32 s53, s48, 3
        s_add_u32 s52, s52, s53
        s_add_u32 s52, s52, {WS_STAT}
        s_mov_b32 exec_hi, 0
        buffer_store_dwordx2 v[{T}:{T+1}], v4, s[16:19], s52 offen
        s_mov_b64 exec, -1
        """)
    return skinny_gemm("K3", 3, "k3oproj_kernel", "wo", 4096, WS_CTX, 256, 64, 16, pre, epi)

def gen_k5():
    def pre(A):
        common_epi_setup(A)
        srd(A, 20, 10, 11, 2048 * 1024)
        A(f"s_add_u32 s52, s51, {WS_X2}")
        A(f"buffer_load_dwordx4 v[{EX}:{EX+3}], v3, s[16:19], s52 offen")
        A(f"buffer_load_dwordx4 v[{EX+4}:{EX+7}], v3, s[16:19], s52 offen offset:1024")
        A(f"s_mov_b32 s43, {5*2048}")
        modvec_loads(A, EG, 43, 14)
    def epi(A, R):
        X = R + 16
        for i in range(8):
            A(f"v_lshlrev_b32 v{X+2*i}, 16, v{EX+i}")
            A(f"v_and_b32 v{X+2*i+1}, 0xffff0000, v{EX+i}")
        for e in range(16):
            A(f"v_fmac_f32 v{X+e}, v{R+e}, v{EG+e}")
        PK = R + 32
        for i in range(8):
            A(f"v_cvt_pk_bf16_f32 v{PK+i}, v{X+2*i}, v{X+2*i+1}")
        for i in range(4):
            A(f"buffer_store_dwordx2 v[{PK+2*i}:{PK+2*i+1}], v15, s[20:23], 0 offen offset:{16*i}")
    return skinny_gemm("K5", 5, "k5ffn2_kernel", "w2", 1792, WS_ACT, 112, 28, 14, pre, epi)

def gen_k4():
    A = Asm()
    name = "k4ffn1_kernel"
    A.lines.append(kernel_header(name))
    A(f"""
    s_cmp_ge_u32 s2, 256
    s_cbranch_scc1 K4_END
    s_lshr_b32 s32, s2, 3
    s_and_b32 s34, s32, 7
    s_cmp_eq_u32 s34, 7
    s_cbranch_scc1 K4_END
    """)
    ST = Stamper(A, 4)
    ST.stamp()
    D = 12
    S_W, S_WS, S_B = 12, 16, 20
    VOW, VWR, VUR = 10, 12, 14
    WF = 16
    UF = 32
    ACC = 64
    STT = 128
    GP = 192
    A(f"""
    s_load_dwordx4 s[4:7], s[0:1], {KA['w1']}
    s_load_dwordx2 s[8:9], s[0:1], {KA['ws']}
    v_lshrrev_b32 v1, 6, v0
    v_and_b32 v2, 63, v0
    v_readfirstlane_b32 s30, v1
    v_lshlrev_b32 v3, 4, v2
    s_and_b32 s31, s2, 7
    s_lshr_b32 s33, s32, 3
    s_lshl_b32 s31, s31, 2
    s_add_u32 s33, s33, s31
    v_lshrrev_b32 v4, 3, v2
    v_and_b32 v5, 7, v2
    v_bfe_u32 v6, v2, 4, 1
    v_lshlrev_b32 v6, 2, v6
    v_xor_b32 v5, v5, v6
    v_lshlrev_b32 v5, 4, v5
    v_mul_u32_u24 v4, 3584, v4
    v_add_u32 v5, v4, v5
    s_lshl_b32 s35, s34, 9
    s_lshl_b32 s36, s30, 7
    s_add_u32 s35, s35, s36
    v_add_u32 v{VOW}, s35, v5
    v_add_u32 v{VOW+1}, {8*3584-1024}, v{VOW}
    s_mul_i32 s37, s30, {D*2048}
    s_add_u32 s37, s37, 65536
    v_bfe_u32 v4, v2, 2, 2
    v_lshrrev_b32 v5, 5, v2
    v_lshl_add_u32 v5, v5, 2, v4
    v_lshlrev_b32 v5, 7, v5
    v_bfe_u32 v6, v2, 4, 1
    v_lshl_add_u32 v5, v6, 5, v5
    v_and_b32 v6, 3, v2
    v_lshl_add_u32 v5, v6, 3, v5
    v_add_u32 v5, s37, v5
    v_lshrrev_b32 v4, 1, v4
    v_lshl_add_u32 v{VWR}, v4, 6, v5
    v_xor_b32 v{VWR+1}, 64, v{VWR}
    s_waitcnt lgkmcnt(0)
    """)
    srd(A, S_W, 4, 5, 512 * 3584)
    srd(A, S_WS, 8, 9, WS_END)
    srd(A, S_B, 6, 7, 3584)
    A(f"""
    s_lshl_b32 s38, s33, 16
    s_lshl_b32 s39, s30, 14
    s_add_u32 s38, s38, s39
    s_add_u32 s38, s38, {WS_U}
    """)
    for g in range(4):
        A(f"s_add_u32 m0, s39, {g*4096}")
        A(f"s_add_u32 s40, s38, {g*4096}")
        for i in range(4):
            A(f"buffer_load_dwordx4 v3, s[{S_WS}:{S_WS+3}], s40 offen offset:{i*1024} lds")
    def wload(ks):
        slot = ks % D
        return [f"s_add_u32 m0, s37, {slot*2048}",
                f"s_mov_b32 s41, {ks*16*3584}",
                f"buffer_load_dwordx4 v{VOW}, s[{S_W}:{S_W+3}], s41 offen lds",
                f"buffer_load_dwordx4 v{VOW+1}, s[{S_W}:{S_W+3}], s41 offen offset:1024 lds"]
    for ks in range(D - 1):
        A.ext(wload(ks))
    A(f"""
    v_and_b32 v4, 31, v2
    v_lshrrev_b32 v5, 5, v2
    v_lshlrev_b32 v4, 7, v4
    v_lshl_add_u32 v4, v5, 6, v4
    s_lshl_b32 s42, s33, 13
    s_add_u32 s42, s42, {WS_STAT}
    s_add_u32 s43, s42, 4096
    """)
    for q in range(2):
        for i in range(4):
            A(f"buffer_load_dwordx4 v[{STT+16*q+4*i}:{STT+16*q+4*i+3}], v4, s[{S_WS}:{S_WS+3}], s{42+q} offen offset:{16*i}")
    A(f"""
    s_lshl_b32 s44, s34, 10
    s_lshl_b32 s45, s30, 8
    s_add_u32 s44, s44, s45
    v_lshlrev_b32 v5, 2, v2
    v_add_u32 v5, s44, v5
    v_lshrrev_b32 v6, 1, v5
    """)
    for kc in range(8):
        for wh in range(2):
            A(f"s_mov_b32 s45, {WS_G + (kc*2+wh)*7168}")
            A(f"buffer_load_dword v{GP+8*wh+kc}, v5, s[{S_WS}:{S_WS+3}], s45 offen")
    A(f"buffer_load_ushort v{GP+16}, v6, s[{S_B}:{S_B+3}], 0 offen")
    nextra = 8 + 17
    def wreads(s, ks):
        return [f"ds_read_b64_tr_b16 v[{WF+8*s+4*nt+2*e}:{WF+8*s+4*nt+2*e+1}], v{VWR+nt} offset:{(ks%D)*2048+e*1024}"
                for nt in range(2) for e in range(2)]
    def ureads(s, ks):
        return [f"ds_read_b128 v[{UF+8*s+4*q}:{UF+8*s+4*q+3}], v3 offset:{q*32768+ks*1024}" for q in range(2)]
    ST.stamp()
    A(f"s_waitcnt vmcnt({2*(D-2)+nextra})")
    A("s_barrier")
    ST.stamp()
    A.ext(wreads(0, 0) + ureads(0, 0))
    for ks in range(32):
        s = ks & 1
        nxt = ks + D - 1
        if nxt < 32:
            A.ext(wload(nxt))
        if ks + 1 < 32:
            last_issued = min(nxt, 31)
            ny = 2 * (last_issued - (ks + 1))
            if ks + 1 <= D - 2:
                ny += nextra
            A(f"s_waitcnt vmcnt({ny}) lgkmcnt(0)")
            rd = wreads(1 - s, ks + 1) + ureads(1 - s, ks + 1)
        else:
            A("s_waitcnt lgkmcnt(0)")
            rd = []
        k = 0
        for nt in range(2):
            for q in range(2):
                acc = vr(ACC + 16 * (2 * q + nt), 16)
                A(mfma(acc, vr(WF + 8 * s + 4 * nt, 4), vr(UF + 8 * s + 4 * q, 4), acc if ks else "0"))
                for r in rd[k:k + 2]:
                    A(r)
                k += 2
    ST.stamp()
    A("s_waitcnt vmcnt(0)")
    T = 48
    for q in range(2):
        b = STT + 16 * q
        A(f"v_add_f32 v{T+q}, v{b}, v{b+2}")
        for i in range(2, 8):
            A(f"v_add_f32 v{T+q}, v{T+q}, v{b+2*i}")
    for q in range(2):
        A(f"v_mov_b32 v{T+2+q}, v{T+q}")
    A("s_nop 0")
    for q in range(2):
        A(f"v_permlane32_swap_b32 v{T+q}, v{T+2+q}")
    A("s_nop 0")
    for q in range(2):
        A(f"v_add_f32 v{T+q}, v{T+q}, v{T+2+q}")
        A(f"v_mul_f32 v{T+q}, 0x3d800000, v{T+q}")
    A("s_mov_b32 s45, 0x42000000")
    for q in range(2):
        b = STT + 16 * q
        for i in range(8):
            A(f"v_sub_f32 v{b+2*i}, v{b+2*i}, v{T+q}")
        for i in range(8):
            A(f"v_mul_f32 v{b+2*i}, v{b+2*i}, v{b+2*i}")
        for i in range(8):
            A(f"v_fma_f32 v{b+2*i}, v{b+2*i}, s45, v{b+2*i+1}")
        A(f"v_add_f32 v{T+4+q}, v{b}, v{b+2}")
        for i in range(2, 8):
            A(f"v_add_f32 v{T+4+q}, v{T+4+q}, v{b+2*i}")
    for q in range(2):
        A(f"v_mov_b32 v{T+2+q}, v{T+4+q}")
    A("s_nop 0")
    for q in range(2):
        A(f"v_permlane32_swap_b32 v{T+4+q}, v{T+2+q}")
    A(f"v_mov_b32 v{T+6}, 0x3727c5ac")
    A("s_mov_b32 s45, 0x3b000000")
    for q in range(2):
        A(f"v_add_f32 v{T+4+q}, v{T+4+q}, v{T+2+q}")
    for q in range(2):
        A(f"v_fma_f32 v{T+4+q}, v{T+4+q}, s45, v{T+6}")
    for q in range(2):
        A(f"v_rsq_f32 v{T+4+q}, v{T+4+q}")
    for wh in range(2):
        for kc in range(1, 8):
            A(f"v_add_f32 v{GP+8*wh}, v{GP+8*wh}, v{GP+8*wh+kc}")
    A(f"v_lshlrev_b32 v{GP+16}, 16, v{GP+16}")
    A(f"v_add_f32 v{GP+1}, v{GP+8}, v{GP+16}")
    for q in range(2):
        A(f"v_mul_f32 v{T+q}, v{T+q}, v{T+4+q}")
    A(f"""
    v_lshlrev_b32 v4, 2, v2
    v_add_u32 v4, s37, v4
    ds_write_b32 v4, v{GP}
    ds_write_b32 v4, v{GP+1} offset:256
    v_lshrrev_b32 v5, 5, v2
    v_lshlrev_b32 v5, 4, v5
    v_add_u32 v5, s37, v5
    s_waitcnt lgkmcnt(0)
    """)
    G1, G2 = 128, 160
    for nt in range(2):
        for i in range(4):
            A(f"ds_read_b128 v[{G1+16*nt+4*i}:{G1+16*nt+4*i+3}], v5 offset:{nt*128+i*32}")
            A(f"ds_read_b128 v[{G2+16*nt+4*i}:{G2+16*nt+4*i+3}], v5 offset:{256+nt*128+i*32}")
    A(f"""
    s_mul_i32 s46, s33, {2*112*1024}
    s_lshl_b32 s47, s34, 14
    s_add_u32 s46, s46, s47
    s_lshl_b32 s47, s30, 12
    s_add_u32 s46, s46, s47
    s_add_u32 s46, s46, {WS_ACT}
    s_add_u32 s47, s46, {112*1024}
    s_mov_b32 s48, {LOG2E}
    s_mov_b32 s49, 0x42200000
    s_waitcnt lgkmcnt(0)
    """)
    n = 0
    for q in range(2):
        for nt in range(2):
            for j in range(2):
                z = ACC + 16 * (2 * q + nt) + 8 * j
                t = 192 + 20 * (n % 2)
                for e in range(8):
                    A(f"v_fma_f32 v{t+e}, -v{T+q}, v{G1+16*nt+8*j+e}, v{G2+16*nt+8*j+e}")
                for e in range(8):
                    A(f"v_fma_f32 v{z+e}, v{z+e}, v{T+4+q}, v{t+e}")
                for e in range(8):
                    A(f"v_min_f32 v{t+e}, s49, v{z+e}")
                for e in range(8):
                    A(f"v_mul_f32 v{t+e}, s48, v{t+e}")
                for e in range(8):
                    A(f"v_exp_f32 v{t+e}, v{t+e}")
                for e in range(8):
                    A(f"v_add_f32 v{t+8+e}, 2.0, v{t+e}")
                for e in range(8):
                    A(f"v_mul_f32 v{t+e}, v{t+e}, v{t+8+e}")
                for e in range(8):
                    A(f"v_add_f32 v{t+8+e}, 2.0, v{t+e}")
                for e in range(8):
                    A(f"v_rcp_f32 v{t+8+e}, v{t+8+e}")
                for e in range(8):
                    A(f"v_mul_f32 v{t+e}, v{t+e}, v{t+8+e}")
                for e in range(8):
                    A(f"v_mul_f32 v{z+e}, v{z+e}, v{t+e}")
                for i in range(4):
                    A(f"v_cvt_pk_bf16_f32 v{t+16+i}, v{z+2*i}, v{z+2*i+1}")
                A(f"buffer_store_dwordx4 v[{t+16}:{t+19}], v3, s[{S_WS}:{S_WS+3}], s{46+q} offen offset:{(2*nt+j)*1024}")
                n += 1
    ST.stamp()
    if STAMPS: A("s_waitcnt vmcnt(0)")
    ST.stamp()
    ST.flush(4, "s30", 4)
    A("K4_END:")
    A("s_endpgm")
    return name, A.text(), kernel_desc(name, 256, 0), f"grid=(256,1,1) block=(256,1,1) lds={65536+4*D*2048}"

def gen_all():
    return [gen_k3(), gen_k4(), gen_k5()]
```

```python
import sys, os
from asmlib import *
import k0k1

HEADER = open("adaLN_cond__compressed_kv_cla__dense_activation_mish__prompt.s.ref").read().split("; Override launch")[0]

def build(kernels, path):
    out = HEADER
    for name, body, desc, launch in kernels:
        out += f"; @launch kernel={name} {launch}\n"
    out += '.amdgcn_target "amdgcn-amd-amdhsa--gfx950"\n.text\n'
    for name, body, desc, launch in kernels:
        out += body
    out += '.section .rodata,"a"\n'
    for name, body, desc, launch in kernels:
        out += desc
    open(path, "w").write(out)

if __name__ == "__main__":
    ks = [k0k1.gen_k0(os.environ.get('PF','')), k0k1.gen_k1()]
    try:
        import k2
        ks.append(k2.gen_k2())
    except ImportError:
        pass
    try:
        import k345
        ks += k345.gen_all()
    except ImportError:
        pass
    path = sys.argv[1] if len(sys.argv) > 1 else "adaLN_cond__compressed_kv_cla__dense_activation_mish__prompt.s"
    build(ks, path)
    print("wrote", path)
```

```python
from asmlib import *

LOG2E = 0x3fb8aa3b

def allreduce_sum(A, regs, tmps):
    n = len(regs)
    pad = max(0, 2 - (n - 1))
    def nop():
        if pad == 1: A("s_nop 0")
        elif pad == 2: A("s_nop 1")
    A("s_nop 1")
    for ror in (8, 4, 2, 1):
        for r in regs:
            A(f"v_add_f32_dpp v{r}, v{r}, v{r} row_ror:{ror} row_mask:0xf bank_mask:0xf")
        nop()
    for sw in ("v_permlane16_swap_b32", "v_permlane32_swap_b32"):
        for r, t in zip(regs, tmps):
            A(f"v_mov_b32 v{t}, v{r}")
        A("s_nop 1")
        for r, t in zip(regs, tmps):
            A(f"{sw} v{r}, v{t}")
        A("s_nop 1")
        for r, t in zip(regs, tmps):
            A(f"v_add_f32 v{r}, v{r}, v{t}")

def gen_k0(pf=""):
    A = Asm()
    name = "k0mod_kernel"
    A.lines.append(kernel_header(name))
    if pf:
        A(f"""
        s_cmp_ge_u32 s2, 304
        s_cbranch_scc1 K0_END
        s_cmp_lt_u32 s2, 48
        s_cbranch_scc1 K0_MOD
        s_sub_u32 s3, s2, 48
        s_load_dwordx8 s[4:11], s[0:1], 0
        s_load_dwordx4 s[12:15], s[0:1], 32
        s_load_dwordx2 s[16:17], s[0:1], {KA['w1']}
        s_load_dwordx2 s[18:19], s[0:1], {KA['w2']}
        v_lshlrev_b32 v1, 7, v0
        s_mov_b32 s23, 0x00020000
        s_waitcnt lgkmcnt(0)
        """)
        n = 0
        def pfl(lo, nbytes, soff_code, voff="v1"):
            nonlocal n
            A(f"s_mov_b32 s20, s{lo}")
            A(f"s_mov_b32 s21, s{lo+1}")
            A(f"s_mov_b32 s22, {nbytes}")
            A(soff_code)
            A(f"buffer_load_dword v{8+n}, {voff}, s[20:23], s24 offen")
            n += 1
        if "x" in pf:
            A("s_lshr_b32 s25, s3, 3")
            pfl(6, 2 << 20, "s_lshl_b32 s24, s25, 16")
            pfl(6, 2 << 20, "s_add_u32 s24, s24, 32768")
            A("""
            v_and_b32 v2, 7, v0
            v_bfe_u32 v3, v0, 3, 4
            v_lshlrev_b32 v2, 7, v2
            v_lshl_add_u32 v2, v3, 13, v2
            s_and_b32 s26, s3, 7
            s_lshl_b32 s26, s26, 10
            s_lshl_b32 s27, s25, 17
            s_add_u32 s26, s26, s27
            v_readfirstlane_b32 s28, v0
            s_cmp_lt_u32 s28, 128
            s_cselect_b32 s30, s10, s12
            s_cselect_b32 s31, s11, s13
            """)
            pfl(30, 4 << 20, "s_mov_b32 s24, s26", "v2")
            pfl(8, 4 << 20, "s_mov_b32 s24, s26", "v2")
        else:
            pfl(6, 2 << 20, "s_lshl_b32 s24, s3, 15")
            pfl(10, 4 << 20, "s_lshl_b32 s24, s3, 15")
            pfl(12, 4 << 20, "s_xor_b32 s24, s24, 0x400000")
            pfl(8, 4 << 20, "s_lshl_b32 s24, s3, 15")
        if "t" in pf:
            pfl(14, 4 << 20, "s_lshl_b32 s24, s3, 15\ns_xor_b32 s24, s24, 0x400000")
            pfl(16, 512 * 3584, "s_lshl_b32 s24, s3, 15\ns_xor_b32 s24, s24, 0x200000")
            pfl(18, 1792 * 1024, "s_lshl_b32 s24, s3, 15\ns_xor_b32 s24, s24, 0x600000")
        pfl(4, 2 << 20, "s_lshl_b32 s24, s3, 15\ns_xor_b32 s24, s24, 0x600000")
        A("s_waitcnt vmcnt(0)")
        A("s_endpgm")
        A("K0_MOD:")
    A(f"""
    s_cmp_ge_u32 s2, 48
    s_cbranch_scc1 K0_END
    """)
    ST = Stamper(A, 0)
    ST.stamp()
    A(f"""
    s_load_dwordx4 s[4:7], s[0:1], {KA['c']}
    s_load_dwordx2 s[8:9], s[0:1], {KA['ws']}
    v_and_b32 v1, 7, v0
    v_lshrrev_b32 v2, 3, v0
    v_mul_u32_u24 v3, 6144, v2
    v_lshl_add_u32 v3, v1, 4, v3
    v_lshlrev_b32 v4, 1, v2
    s_lshl_b32 s3, s2, 7
    s_waitcnt lgkmcnt(0)
    """)
    srd(A, 12, 4, 5, 1024)
    srd(A, 16, 6, 7, 512 * 6144)
    srd(A, 20, 8, 9, 3072 * 4)
    for it in range(16):
        A(f"buffer_load_ushort v{80+it}, v4, s[12:15], 0 offen offset:{it*64}")
    for it in range(16):
        A(f"s_add_u32 s24, s3, {it*196608}")
        A(f"buffer_load_dwordx4 v[{16+4*it}:{19+4*it}], v3, s[16:19], s24 offen")
    for i in range(8):
        A(f"v_mov_b32 v{8+i}, 0")
    A(f"s_mov_b32 s25, {LOG2E}")
    A("s_waitcnt vmcnt(16)")
    for it in range(16):
        A(f"v_lshlrev_b32 v{80+it}, 16, v{80+it}")
    for it in range(16):
        A(f"v_mul_f32 v{96+it}, s25, v{80+it}")
    for it in range(16):
        A(f"v_exp_f32 v{96+it}, -v{96+it}")
    for it in range(16):
        A(f"v_add_f32 v{96+it}, 1.0, v{96+it}")
    for it in range(16):
        A(f"v_rcp_f32 v{96+it}, v{96+it}")
    for it in range(16):
        A(f"v_mul_f32 v{80+it}, v{80+it}, v{96+it}")
    for it in range(16):
        A(f"v_cvt_pk_bf16_f32 v{80+it}, v{80+it}, v{80+it}")
    for it in range(16):
        A(f"v_lshlrev_b32 v{80+it}, 16, v{80+it}")
    for it in range(16):
        A(f"s_waitcnt vmcnt({15-it})")
        for q in range(4):
            w = 16 + 4 * it + q
            A(f"v_lshlrev_b32 v5, 16, v{w}")
            A(f"v_and_b32 v6, 0xffff0000, v{w}")
            A(f"v_fmac_f32 v{8+2*q}, v{80+it}, v5")
            A(f"v_fmac_f32 v{9+2*q}, v{80+it}, v6")
    A("""
    v_lshlrev_b32 v5, 5, v0
    ds_write_b128 v5, v[8:11]
    ds_write_b128 v5, v[12:15] offset:16
    s_waitcnt lgkmcnt(0)
    s_barrier
    v_cmp_gt_u32 vcc, 64, v0
    s_and_saveexec_b64 s[26:27], vcc
    s_cbranch_execz K0_END
    v_lshlrev_b32 v5, 2, v0
    """)
    for r in range(32):
        A(f"ds_read_b32 v{16+r}, v5 offset:{r*256}")
    A("s_waitcnt lgkmcnt(0)")
    st = 16
    while st >= 1:
        for r in range(st):
            A(f"v_add_f32 v{16+r}, v{16+r}, v{16+r+st}")
        st //= 2
    A("""
    v_cvt_pk_bf16_f32 v16, v16, v16
    v_lshlrev_b32 v16, 16, v16
    s_lshl_b32 s3, s2, 8
    buffer_store_dword v16, v5, s[20:23], s3 offen
    """)
    if STAMPS: A("s_waitcnt vmcnt(0)")
    ST.stamp()
    ST.flush(4, "0", 40)
    A("""
    K0_END:
    s_endpgm
    """)
    return name, A.text(), kernel_desc(name, 112, 0), f"grid=({304 if pf else 48},1,1) block=(256,1,1) lds=8192"


def gen_k1():
    A = Asm()
    name = "k1kv_kernel"
    A.lines.append(kernel_header(name))
    VOT = 8
    VOW = 16
    VT = 24
    VW = 28
    FR = 32
    X0 = 96
    S_T, S_W, S_O = 12, 16, 20
    A(f"""
    s_cmp_ge_u32 s2, 256
    s_cbranch_scc1 K1_END
    """)
    ST = Stamper(A, 1)
    ST.stamp()
    A(f"""
    s_load_dwordx4 s[4:7], s[0:1], {KA['x']}
    s_load_dwordx4 s[24:27], s[0:1], {KA['wuk']}
    s_load_dwordx2 s[8:9], s[0:1], {KA['ws']}
    s_load_dwordx2 s[10:11], s[0:1], {KA['w1']}
    v_lshrrev_b32 v1, 6, v0
    v_and_b32 v2, 63, v0
    v_readfirstlane_b32 s30, v1
    s_and_b32 s31, s2, 7
    s_lshr_b32 s32, s2, 3
    s_and_b32 s33, s32, 3
    s_lshl_b32 s31, s31, 2
    s_add_u32 s33, s33, s31
    s_lshr_b32 s34, s32, 2
    s_and_b32 s35, s30, 1
    s_lshr_b32 s36, s30, 1
    """)
    A("""
    v_lshrrev_b32 v3, 3, v2
    v_lshrrev_b32 v4, 4, v2
    v_and_b32 v5, 7, v2
    v_xor_b32 v5, v5, v4
    v_lshlrev_b32 v5, 4, v5
    v_lshl_add_u32 v5, v3, 10, v5
    s_lshl_b32 s37, s30, 16
    v_add_u32 v5, s37, v5
    """)
    for i in range(8):
        off = 8 * i * 1024 - (i % 4) * 1024
        A(f"v_add_u32 v{VOT+i}, {off}, v5")
        if i % 2 == 1:
            A(f"v_xor_b32 v{VOT+i}, 64, v{VOT+i}")
    A("""
    v_and_b32 v5, 15, v2
    v_lshlrev_b32 v6, 2, v4
    v_xor_b32 v5, v5, v6
    v_lshlrev_b32 v5, 4, v5
    v_lshl_add_u32 v5, v4, 13, v5
    s_lshl_b32 s37, s35, 18
    v_add_u32 v5, s37, v5
    """)
    for i in range(8):
        off = 4 * i * 8192 - (i % 4) * 1024
        A(f"v_add_u32 v{VOW+i}, {off}, v5")
    A("s_waitcnt lgkmcnt(0)")
    ST.stamp()
    A(f"""
    s_lshl_b32 s37, s34, 18
    s_add_u32 s{S_T}, s6, s37
    s_addc_u32 s{S_T+1}, s7, 0
    s_mov_b32 s{S_T+2}, 0x40000
    s_mov_b32 s{S_T+3}, 0x00020000
    s_cmp_eq_u32 s36, 0
    s_cselect_b32 s{S_W}, s24, s26
    s_cselect_b32 s{S_W+1}, s25, s27
    s_lshl_b32 s37, s33, 8
    s_add_u32 s{S_W}, s{S_W}, s37
    s_addc_u32 s{S_W+1}, s{S_W+1}, 0
    s_mov_b32 s{S_W+2}, {511*8192+256}
    s_mov_b32 s{S_W+3}, 0x00020000
    """)
    srd(A, 40, 4, 5, 2048 * 1024)
    srd(A, 44, 8, 9, WS_END)
    srd(A, 48, 10, 11, 512 * 3584)
    XR = X0
    CA = X0 + 8
    SA = X0 + 16
    GW = X0 + 24
    GC = X0 + 32
    A(f"""
    s_lshl_b32 s37, s2, 13
    s_lshl_b32 s38, s30, 11
    s_add_u32 s37, s37, s38
    v_lshlrev_b32 v6, 4, v2
    buffer_load_dwordx4 v[{XR}:{XR+3}], v6, s[40:43], s37 offen
    buffer_load_dwordx4 v[{XR+4}:{XR+7}], v6, s[40:43], s37 offen offset:1024
    v_lshlrev_b32 v7, 5, v2
    buffer_load_dwordx4 v[{SA}:{SA+3}], v7, s[44:47], 0 offen
    buffer_load_dwordx4 v[{SA+4}:{SA+7}], v7, s[44:47], 0 offen offset:16
    buffer_load_dwordx4 v[{CA}:{CA+3}], v7, s[44:47], 0 offen offset:2048
    buffer_load_dwordx4 v[{CA+4}:{CA+7}], v7, s[44:47], 0 offen offset:2064
    """)
    A(f"""
    s_mul_i32 s52, s2, 9363
    s_lshr_b32 s52, s52, 18
    s_mul_i32 s53, s52, 28
    s_sub_u32 s53, s2, s53
    v_lshrrev_b32 v3, 3, v0
    v_and_b32 v4, 7, v0
    v_mul_u32_u24 v5, 3584, v3
    v_lshl_add_u32 v5, v4, 4, v5
    s_mul_i32 s54, s52, {64*3584}
    s_lshl_b32 s55, s53, 7
    s_add_u32 s54, s54, s55
    s_add_u32 s55, s54, {32*3584}
    buffer_load_dwordx4 v[{GW}:{GW+3}], v5, s[48:51], s54 offen
    buffer_load_dwordx4 v[{GW+4}:{GW+7}], v5, s[48:51], s55 offen
    v_lshlrev_b32 v5, 2, v3
    s_lshl_b32 s54, s52, 8
    s_add_u32 s55, s54, {3*2048}
    s_add_u32 s54, s54, {4*2048}
    buffer_load_dword v{GC}, v5, s[44:47], s54 offen
    buffer_load_dword v{GC+1}, v5, s[44:47], s54 offen offset:128
    buffer_load_dword v{GC+2}, v5, s[44:47], s55 offen
    buffer_load_dword v{GC+3}, v5, s[44:47], s55 offen offset:128
    """)
    ST.stamp()
    A("s_lshl_b32 s56, s30, 13")
    def dma_stage_instrs(sT, sW, m0base):
        L = []
        for grp in range(2):
            L.append(f"s_add_u32 m0, {m0base}, {grp*4096}")
            for i in range(4 * grp, 4 * grp + 4):
                L.append(f"buffer_load_dwordx4 v{VOT+i}, s[{S_T}:{S_T+3}], {sT} offen offset:{(i%4)*1024} lds")
        for grp in range(2):
            L.append(f"s_add_u32 m0, {m0base}, {32768+grp*4096}")
            for i in range(4 * grp, 4 * grp + 4):
                L.append(f"buffer_load_dwordx4 v{VOW+i}, s[{S_W}:{S_W+3}], {sW} offen offset:{(i%4)*1024} lds")
        return L
    def with_m0_nops(L):
        out = []
        for ins in L:
            out.append(ins)
            if "m0" in ins.split(",")[0]:
                out.append("s_nop 0")
        return out
    A("s_mov_b32 s57, 0")
    A("s_mov_b32 s58, 0")
    A.ext(with_m0_nops(dma_stage_instrs("s57", "s58", "s56")))
    ST.stamp()
    A("s_mov_b32 s57, 128")
    A("s_mov_b32 s58, 524288")
    A("s_add_u32 s59, s56, 65536")
    A.ext(with_m0_nops(dma_stage_instrs("s57", "s58", "s59")))
    ST.stamp()
    A(f"""
    v_and_b32 v3, 31, v2
    v_lshrrev_b32 v4, 5, v2
    v_bfe_u32 v5, v2, 1, 3
    s_lshl_b32 s37, s35, 14
    v_lshlrev_b32 v6, 7, v3
    v_add_u32 v6, s37, v6
    """)
    for ks in range(4):
        A(f"v_add_u32 v7, {2*ks}, v4")
        A(f"v_xor_b32 v7, v7, v5")
        A(f"v_lshl_add_u32 v{VT+ks}, v7, 4, v6")
    A(f"""
    v_bfe_u32 v3, v2, 2, 2
    v_and_b32 v5, 3, v2
    v_bfe_u32 v6, v2, 4, 1
    v_lshl_add_u32 v7, v4, 3, v3
    v_lshlrev_b32 v7, 8, v7
    v_lshl_add_u32 v7, v6, 5, v7
    v_lshl_add_u32 v7, v5, 3, v7
    s_lshl_b32 s37, s36, 14
    s_add_u32 s37, s37, 32768
    v_add_u32 v7, s37, v7
    """)
    for nt in range(4):
        A(f"v_xor_b32 v5, {nt}, v3")
        A(f"v_lshl_add_u32 v{VW+nt}, v5, 6, v7")
    for i in range(256):
        A(f"v_accvgpr_write_b32 a{i}, 0")
    F = X0 + 40
    T = X0 + 56
    ST.stamp()
    A("s_waitcnt vmcnt(38)")
    ST.stamp()
    for rr in range(2):
        for q in range(4):
            A(f"v_lshlrev_b32 v{F+8*rr+2*q}, 16, v{XR+4*rr+q}")
            A(f"v_and_b32 v{F+8*rr+2*q+1}, 0xffff0000, v{XR+4*rr+q}")
    for rr in range(2):
        A(f"v_add_f32 v{T+rr}, v{F+8*rr}, v{F+8*rr+1}")
    for e in range(2, 8):
        for rr in range(2):
            A(f"v_add_f32 v{T+rr}, v{T+rr}, v{F+8*rr+e}")
    allreduce_sum(A, [T, T + 1], [T + 2, T + 3])
    A(f"s_mov_b32 s37, 0x3b000000")
    for rr in range(2):
        A(f"v_mul_f32 v{T+rr}, s37, v{T+rr}")
    for rr in range(2):
        for e in range(8):
            A(f"v_sub_f32 v{F+8*rr+e}, v{F+8*rr+e}, v{T+rr}")
    for rr in range(2):
        A(f"v_mul_f32 v{T+rr}, v{F+8*rr}, v{F+8*rr}")
    for e in range(1, 8):
        for rr in range(2):
            A(f"v_fmac_f32 v{T+rr}, v{F+8*rr+e}, v{F+8*rr+e}")
    allreduce_sum(A, [T, T + 1], [T + 2, T + 3])
    A(f"v_mov_b32 v{T+2}, 0x3727c5ac")
    for rr in range(2):
        A(f"v_fma_f32 v{T+rr}, v{T+rr}, s37, v{T+2}")
    for rr in range(2):
        A(f"v_rsq_f32 v{T+rr}, v{T+rr}")
    for e in range(8):
        A(f"v_add_f32 v{CA+e}, 1.0, v{CA+e}")
    for e in range(8):
        A(f"v_cvt_pk_bf16_f32 v{CA+e}, v{CA+e}, v{CA+e}")
    for e in range(8):
        A(f"v_lshlrev_b32 v{CA+e}, 16, v{CA+e}")
    for rr in range(2):
        for e in range(8):
            A(f"v_mul_f32 v{F+8*rr+e}, v{F+8*rr+e}, v{T+rr}")
    for rr in range(2):
        for e in range(8):
            A(f"v_fma_f32 v{F+8*rr+e}, v{F+8*rr+e}, v{CA+e}, v{SA+e}")
    for rr in range(2):
        for q in range(4):
            A(f"v_cvt_pk_bf16_f32 v{XR+4*rr+q}, v{F+8*rr+2*q}, v{F+8*rr+2*q+1}")
    A(f"""
    s_lshl_b32 s37, s2, 3
    s_lshl_b32 s38, s30, 1
    s_add_u32 s37, s37, s38
    s_lshr_b32 s38, s37, 5
    s_lshl_b32 s38, s38, 15
    s_and_b32 s37, s37, 31
    s_lshl_b32 s37, s37, 4
    s_add_u32 s37, s37, s38
    s_add_u32 s37, s37, {WS_H1}
    v_lshlrev_b32 v3, 9, v2
    buffer_store_dwordx4 v[{XR}:{XR+3}], v3, s[44:47], s37 offen
    buffer_store_dwordx4 v[{XR+4}:{XR+7}], v3, s[44:47], s37 offen offset:16
    """)
    G = X0 + 64
    A("s_waitcnt vmcnt(34)")
    for rr in range(2):
        A(f"v_add_f32 v{GC+rr}, 1.0, v{GC+rr}")
    for rr in range(2):
        A(f"v_cvt_pk_bf16_f32 v{GC+rr}, v{GC+rr}, v{GC+rr}")
    for rr in range(2):
        A(f"v_lshlrev_b32 v{GC+rr}, 16, v{GC+rr}")
    for rr in range(2):
        for q in range(4):
            A(f"v_lshlrev_b32 v{F+8*rr+2*q}, 16, v{GW+4*rr+q}")
            A(f"v_and_b32 v{F+8*rr+2*q+1}, 0xffff0000, v{GW+4*rr+q}")
    for e in range(8):
        A(f"v_mul_f32 v{G+e}, v{F+e}, v{GC}")
        A(f"v_mul_f32 v{G+8+e}, v{F+e}, v{GC+2}")
    for e in range(8):
        A(f"v_fmac_f32 v{G+e}, v{F+8+e}, v{GC+1}")
        A(f"v_fmac_f32 v{G+8+e}, v{F+8+e}, v{GC+3}")
    A(f"""
    v_lshrrev_b32 v3, 3, v0
    v_and_b32 v4, 7, v0
    v_lshlrev_b32 v3, 9, v3
    v_lshl_add_u32 v3, v4, 5, v3
    v_add_u32 v3, 0x20000, v3
    ds_write_b128 v3, v[{G}:{G+3}]
    ds_write_b128 v3, v[{G+4}:{G+7}] offset:16
    ds_write_b128 v3, v[{G+8}:{G+11}] offset:256
    ds_write_b128 v3, v[{G+12}:{G+15}] offset:272
    s_waitcnt lgkmcnt(0)
    s_barrier
    s_cmp_ge_u32 s30, 2
    s_cbranch_scc1 K1_GDONE
    s_cmp_ge_u32 s2, 224
    s_cbranch_scc1 K1_GDONE
    v_lshlrev_b32 v3, 2, v0
    v_add_u32 v4, 0x20000, v3
    """)
    for r in range(32):
        A(f"ds_read_b32 v{X0+r}, v4 offset:{r*512}")
    A("s_waitcnt lgkmcnt(0)")
    st = 16
    while st >= 1:
        for r in range(st):
            A(f"v_add_f32 v{X0+r}, v{X0+r}, v{X0+r+st}")
        st //= 2
    A(f"""
    s_lshl_b32 s37, s52, 1
    s_add_u32 s37, s37, s30
    s_mul_i32 s37, s37, 7168
    s_lshl_b32 s38, s53, 8
    s_add_u32 s37, s37, s38
    s_add_u32 s37, s37, {WS_G}
    v_lshlrev_b32 v3, 2, v2
    buffer_store_dword v{X0}, v3, s[44:47], s37 offen
    K1_GDONE:
    """)
    def reads(s, ks):
        L = []
        for tt in range(4):
            L.append(f"ds_read_b128 v[{FR+32*s+4*tt}:{FR+32*s+4*tt+3}], v{VT+ks} offset:{tt*4096}")
        for nt in range(4):
            for e in range(2):
                b = FR + 32 * s + 16 + 4 * nt + 2 * e
                L.append(f"ds_read_b64_tr_b16 v[{b}:{b+1}], v{VW+nt} offset:{ks*4096+e*1024}")
        return L
    ST.stamp()
    A("s_waitcnt vmcnt(16)")
    A("s_barrier")
    ST.stamp()
    A.ext(reads(0, 0))
    A("s_mov_b32 s60, 0")
    A("s_cmp_eq_u32 s36, 0")
    A("s_cbranch_scc0 K1_LOOP_V")
    for kind in ("K", "V"):
        A.label(f"K1_LOOP_{kind}")
        for ks in range(4):
            s = ks & 1
            mf = []
            for tt in range(4):
                for nt in range(4):
                    acc = ar(16 * (tt * 4 + nt), 16)
                    tok = vr(FR + 32 * s + 4 * tt, 4)
                    wf = vr(FR + 32 * s + 16 + 4 * nt, 4)
                    mf.append(mfma(acc, wf, tok, acc) if kind == "K" else mfma(acc, tok, wf, acc))
            gaps = [[] for _ in range(16)]
            if ks < 3:
                A("s_waitcnt lgkmcnt(0)")
                rd = reads(1 - s, ks + 1)
                for i, r in enumerate(rd):
                    gaps[i].append(r)
                if ks == 2:
                    gaps[12] += ["s_add_u32 s57, s57, 128", "s_add_u32 s58, s58, 524288", "s_add_u32 s60, s60, 1"]
                    gaps[13] += ["s_cmp_ge_u32 s60, 7", "s_cselect_b32 s61, 0x80000000, s57", "s_cselect_b32 s62, 0x80000000, s58"]
                    gaps[14] += [f"v_xor_b32 v{VT+i}, 0x10000, v{VT+i}" for i in range(4)]
                    gaps[15] += [f"v_xor_b32 v{VW+i}, 0x10000, v{VW+i}" for i in range(4)]
            else:
                A("s_waitcnt vmcnt(0) lgkmcnt(0)")
                A("s_barrier")
                rd = reads(1 - s, 0)
                for i, r in enumerate(rd):
                    gaps[i].append(r)
                dm = dma_stage_instrs("s61", "s62", "s56")
                gi = 0
                pend = None
                first = True
                for ins in dm:
                    if ins.startswith("s_add_u32 m0"):
                        if first:
                            A(ins)
                            first = False
                        else:
                            gaps[gi - 1].append(ins)
                    else:
                        gaps[gi].append(ins)
                        gi += 1
                gaps[15] += ["s_xor_b32 s56, s56, 0x10000", "s_cmp_lt_u32 s60, 8"]
            weave(A, mf, gaps)
        A(f"s_cbranch_scc1 K1_LOOP_{kind}")
        ST.n = 9
        ST.stamp()
        base = WS_KF if kind == "K" else WS_VF
        A(f"""
        s_lshl_b32 s37, s33, 19
        s_lshl_b32 s38, s34, 16
        s_add_u32 s37, s37, s38
        s_lshl_b32 s38, s35, 15
        s_add_u32 s37, s37, s38
        s_add_u32 s37, s37, {base}
        v_lshlrev_b32 v3, 4, v2
        s_nop 7
        s_nop 3
        """)
        n = 0
        for tt in range(4):
            for nt in range(4):
                for j in range(2):
                    fi = (2 * nt + j) if kind == "K" else (4 * j + nt)
                    tmp = X0 + 16 * (n % 8)
                    a0 = 16 * (tt * 4 + nt) + 8 * j
                    for e in range(8):
                        A(f"v_accvgpr_read_b32 v{tmp+4+e}, a{a0+e}")
                    for q in range(4):
                        A(f"v_cvt_pk_bf16_f32 v{tmp+q}, v{tmp+4+2*q}, v{tmp+5+2*q}")
                    off = tt * 8192 + fi * 1024
                    A(f"s_add_u32 s38, s37, {off & ~4095}")
                    A(f"buffer_store_dwordx4 v[{tmp}:{tmp+3}], v3, s[44:47], s38 offen offset:{off & 4095}")
                    n += 1
        ST.stamp()
        if STAMPS: A("s_waitcnt vmcnt(0)")
        ST.stamp()
        ST.flush(4, "s30", 4)
        A("s_endpgm")
    A("K1_END:")
    A("s_endpgm")
    return name, A.text(), kernel_desc(name, 256, 256), "grid=(256,1,1) block=(256,1,1) lds=147456"
```

```python
class Asm:
    def __init__(self):
        self.lines = []
        self._uid = 0
    def __call__(self, s):
        for l in s.split("\n"):
            l = l.strip()
            if l:
                self.lines.append(l if l.endswith(":") else "  " + l)
    def ext(self, lst):
        for s in lst:
            self(s)
    def label(self, name):
        self.lines.append(name + ":")
    def uid(self, p="L"):
        self._uid += 1
        return f"{p}_{self._uid}"
    def text(self):
        return "\n".join(self.lines) + "\n"

def vr(b, n=1):
    return f"v{b}" if n == 1 else f"v[{b}:{b+n-1}]"
def ar(b, n=1):
    return f"a{b}" if n == 1 else f"a[{b}:{b+n-1}]"
def sr(b, n=1):
    return f"s{b}" if n == 1 else f"s[{b}:{b+n-1}]"

def mfma(d, a, b, c):
    return f"v_mfma_f32_32x32x16_bf16 {d}, {a}, {b}, {c}"

def srd(A, s, base_lo, base_hi, nbytes):
    A(f"s_mov_b32 s{s}, s{base_lo}")
    A(f"s_mov_b32 s{s+1}, s{base_hi}")
    A(f"s_mov_b32 s{s+2}, {nbytes}")
    A(f"s_mov_b32 s{s+3}, 0x00020000")

def srd_off(A, s, base_lo, base_hi, off, nbytes):
    A(f"s_add_u32 s{s}, s{base_lo}, {off}")
    A(f"s_addc_u32 s{s+1}, s{base_hi}, 0")
    A(f"s_mov_b32 s{s+2}, {nbytes}")
    A(f"s_mov_b32 s{s+3}, 0x00020000")

def kernel_header(name):
    return f""".globl {name}
.p2align 8
.type {name},@function
{name}:
"""

def kernel_desc(name, vgpr, agpr, sgpr=102):
    acc = (vgpr + 3) // 4 * 4
    nfv = acc + agpr if agpr else vgpr
    return f""".p2align 6
.amdhsa_kernel {name}
  .amdhsa_next_free_vgpr {nfv}
  .amdhsa_next_free_sgpr {sgpr}
  .amdhsa_accum_offset {acc}
  .amdhsa_group_segment_fixed_size 0
  .amdhsa_kernarg_size 120
  .amdhsa_user_sgpr_count 2
  .amdhsa_user_sgpr_kernarg_segment_ptr 1
  .amdhsa_system_sgpr_workgroup_id_x 1
  .amdhsa_float_denorm_mode_32 3
  .amdhsa_float_denorm_mode_16_64 3
.end_amdhsa_kernel
"""

def cost(ins):
    op = ins.split()[0]
    if op.startswith("v_exp") or op.startswith("v_rcp") or op.startswith("v_rsq") or op.startswith("v_log") or op.startswith("v_sqrt"):
        return 8
    if op.startswith("buffer_") or op.startswith("global_"):
        return 8
    if op == "s_nop":
        return 4 * (int(ins.split()[1]) + 1)
    return 4

def is_mem(ins):
    op = ins.split()[0]
    return op.startswith("ds_") or op.startswith("buffer_") or op.startswith("global_")

def weave(A, mfmas, gaps):
    assert len(mfmas) == len(gaps)
    for m, g in zip(mfmas, gaps):
        A(m)
        for i in g:
            A(i)

KA = dict(x=0, ckv=8, wq=16, wuk=24, wuv=32, wo=40, bx=48, w1=56, b1=64, w2=72, c=80, wmod=88, out=96, dbg=104, ws=112)

MB = 1 << 20
WS_MOD = 0
WS_FLAG = 64 * 1024
WS_G = 64 * 1024
WS_STAT = 256 * 1024
import os as _os
WB = int(_os.environ.get("WSBASE", "0")) * MB
WS_H1 = WB + 1 * MB
WS_X2 = WB + 4 * MB
WS_U = WB + 6 * MB
WS_ACT = WB + 8 * MB
WS_KF = WB + 16 * MB
WS_VF = WB + 32 * MB
WS_CTX = WB + 48 * MB
WS_WOF = WB + 64 * MB
WS_W1F = WB + 68 * MB
WS_W2F = WB + 70 * MB
WS_END = WB + 72 * MB

import os
STAMPS = os.environ.get("STAMPS", "") != ""
WS_STAMP = 128 * MB
class Stamper:
    def __init__(self, A, kidx, base=72):
        self.A = A; self.n = 0; self.kidx = kidx; self.base = base
    def stamp(self):
        if not STAMPS: return
        b = self.base + 2 * self.n
        assert b + 1 < 100
        self.A(f"s_memtime s[{b}:{b+1}]")
        if self.n == 0:
            self.A("s_memrealtime s[66:67]")
        self.n += 1
    def flush(self, nwaves, s_wave, vtmp, nst=None):
        if not STAMPS: return
        A = self.A
        n = self.n if nst is None else nst
        A(f"s_load_dwordx2 s[68:69], s[0:1], {KA['ws']}")
        A(f"s_memrealtime s[100:101]")
        A("s_waitcnt lgkmcnt(0)")
        A(f"v_mov_b32 v{vtmp+1}, s100")
        A(f"v_mov_b32 v{vtmp+2}, s66")
        A(f"s_mov_b32 s70, {256*MB}")
        A("s_mov_b32 s71, 0x00020000")
        A(f"s_mul_i32 s100, s2, {nwaves}")
        A(f"s_add_u32 s100, s100, {s_wave}")
        A(f"s_lshl_b32 s100, s100, 6")
        A(f"s_add_u32 s100, s100, {WS_STAMP + self.kidx * MB}")
        A(f"v_mov_b32 v{vtmp}, 0")
        A(f"buffer_store_dword v{vtmp+1}, v{vtmp}, s[68:71], s100 offen offset:60")
        A(f"buffer_store_dword v{vtmp+2}, v{vtmp}, s[68:71], s100 offen offset:56")
        for i in range(n):
            A(f"v_mov_b32 v{vtmp+1}, s{self.base+2*i}")
            A(f"buffer_store_dword v{vtmp+1}, v{vtmp}, s[68:71], s100 offen offset:{4*i}")
            A("s_nop 1")
```

```python
from asmlib import *
import os
LOG2E = 0x3fb8aa3b

def skinny_gemm(tag, kidx, name, wkey, wrows, act_base, act_ksteps, nk, D, epilogue_pre, epilogue):
    A = Asm()
    A.lines.append(kernel_header(name))
    A(f"""
    s_cmp_ge_u32 s2, 256
    s_cbranch_scc1 {tag}_END
    """)
    ST = Stamper(A, kidx)
    ST.stamp()
    S_W, S_WS = 12, 16
    CT = 64
    WF = 32
    VA = 8
    VOW = 10
    VWR = 12
    A(f"""
    s_load_dwordx2 s[4:5], s[0:1], {KA[wkey]}
    s_load_dwordx2 s[8:9], s[0:1], {KA['ws']}
    s_load_dwordx2 s[6:7], s[0:1], {KA['x']}
    s_load_dwordx2 s[10:11], s[0:1], {KA['out']}
    v_lshrrev_b32 v1, 6, v0
    v_and_b32 v2, 63, v0
    v_readfirstlane_b32 s30, v1
    v_lshlrev_b32 v3, 4, v2
    s_and_b32 s31, s2, 7
    s_lshr_b32 s32, s2, 3
    s_lshr_b32 s33, s32, 3
    s_lshl_b32 s31, s31, 2
    s_add_u32 s33, s33, s31
    s_and_b32 s34, s32, 7
    """)
    A(f"""
    s_mul_i32 s35, s33, {2*act_ksteps*1024}
    s_mul_i32 s36, s30, {nk*1024}
    s_add_u32 s35, s35, s36
    s_add_u32 s35, s35, {act_base}
    v_add_u32 v{VA}, s35, v3
    v_add_u32 v{VA+1}, {act_ksteps*1024}, v{VA}
    v_lshrrev_b32 v4, 3, v2
    v_and_b32 v5, 7, v2
    v_bfe_u32 v6, v2, 4, 1
    v_lshlrev_b32 v6, 2, v6
    v_xor_b32 v5, v5, v6
    v_lshlrev_b32 v5, 4, v5
    v_lshl_add_u32 v5, v4, 10, v5
    s_mul_i32 s35, s30, {nk*16*1024}
    s_lshl_b32 s36, s34, 7
    s_add_u32 s35, s35, s36
    v_add_u32 v{VOW}, s35, v5
    v_add_u32 v{VOW+1}, {8192-1024}, v{VOW}
    s_mul_i32 s37, s30, {D*2048}
    v_bfe_u32 v4, v2, 2, 2
    v_lshrrev_b32 v5, 5, v2
    v_lshl_add_u32 v5, v5, 2, v4
    v_lshlrev_b32 v5, 7, v5
    v_bfe_u32 v6, v2, 4, 1
    v_lshl_add_u32 v5, v6, 5, v5
    v_and_b32 v6, 3, v2
    v_lshl_add_u32 v5, v6, 3, v5
    v_add_u32 v5, s37, v5
    v_lshrrev_b32 v4, 1, v4
    v_lshl_add_u32 v{VWR}, v4, 6, v5
    v_xor_b32 v{VWR+1}, 64, v{VWR}
    s_waitcnt lgkmcnt(0)
    """)
    srd(A, S_W, 4, 5, wrows * 1024)
    srd(A, S_WS, 8, 9, WS_END)
    def loads(slot, sa, sw):
        return [f"s_add_u32 m0, s37, {slot*2048}",
                f"buffer_load_dwordx4 v[{CT+8*slot}:{CT+8*slot+3}], v{VA}, s[{S_WS}:{S_WS+3}], {sa} offen",
                f"buffer_load_dwordx4 v{VOW}, s[{S_W}:{S_W+3}], {sw} offen lds",
                f"buffer_load_dwordx4 v[{CT+8*slot+4}:{CT+8*slot+7}], v{VA+1}, s[{S_WS}:{S_WS+3}], {sa} offen",
                f"buffer_load_dwordx4 v{VOW+1}, s[{S_W}:{S_W+3}], {sw} offen offset:1024 lds"]
    A("s_mov_b32 s38, 0")
    A("s_mov_b32 s39, 0")
    def adv():
        return ["s_add_u32 s38, s38, 1024", "s_add_u32 s39, s39, 16384"]
    for j in range(D - 1):
        A.ext(loads(j, "s38", "s39"))
        A.ext(adv())
    for i in range(64):
        A(f"v_accvgpr_write_b32 a{i}, 0")
    def wreads(s, slot):
        return [f"ds_read_b64_tr_b16 v[{WF+8*s+4*nt+2*e}:{WF+8*s+4*nt+2*e+1}], v{VWR+nt} offset:{slot*2048+e*1024}"
                for nt in range(2) for e in range(2)]
    ST.stamp()
    A(f"s_waitcnt vmcnt({4*(D-2)})")
    ST.stamp()
    A.ext(wreads(0, 0))
    def kstep(j, load, ny, last=False):
        s = j & 1
        if load:
            A.ext(loads((j - 1) % D, "s38", "s39"))
            A.ext(adv())
        A(f"s_waitcnt vmcnt({ny}) lgkmcnt(0)" if not last else "s_waitcnt lgkmcnt(0)")
        rd = wreads(1 - s, (j + 1) % D) if not last else [None] * 4
        k = 0
        for nt in range(2):
            for q in range(2):
                acc = ar(16 * (2 * q + nt), 16)
                A(mfma(acc, vr(WF + 8 * s + 4 * nt, 4), vr(CT + 8 * j + 4 * q, 4), acc))
                if rd[k]: A(rd[k])
                k += 1
    A.label(f"{tag}_LOOP")
    for j in range(D):
        kstep(j, True, 4 * (D - 2))
    A(f"s_cmp_lt_u32 s38, {(nk-1)*1024}")
    A(f"s_cbranch_scc1 {tag}_LOOP")
    kstep(0, True, 4 * (D - 2))
    npre = epilogue_pre(A)
    for j in range(1, D):
        kstep(j, False, 4 * (D - 2 - j) + npre if j < D - 1 else 0, last=(j == D - 1))
    ST.stamp()
    A(f"""
    s_lshl_b32 s35, s30, 14
    s_add_u32 s35, s35, {4*D*2048}
    v_add_u32 v4, s35, v3
    s_lshl_b32 s35, s30, 12
    s_add_u32 s35, s35, {4*D*2048}
    v_add_u32 v5, s35, v3
    s_nop 7
    """)
    for i in range(16):
        A(f"ds_write_b128 v4, {ar(4*i,4)} offset:{i*1024}")
    A("s_waitcnt lgkmcnt(0)")
    A("s_barrier")
    R = CT
    for w in range(4):
        for i in range(4):
            A(f"ds_read_b128 v[{R+16*w+4*i}:{R+16*w+4*i+3}], v5 offset:{w*16384+i*1024}")
    A("s_waitcnt lgkmcnt(8)")
    for e in range(16):
        A(f"v_add_f32 v{R+e}, v{R+e}, v{R+16+e}")
    A("s_waitcnt vmcnt(0) lgkmcnt(0)")
    for e in range(16):
        A(f"v_add_f32 v{R+32+e}, v{R+32+e}, v{R+48+e}")
    for e in range(16):
        A(f"v_add_f32 v{R+e}, v{R+e}, v{R+32+e}")
    epilogue(A, R)
    ST.stamp()
    if STAMPS: A("s_waitcnt vmcnt(0)")
    ST.stamp()
    ST.flush(4, "s30", 4)
    A.label(f"{tag}_END")
    A("s_endpgm")
    lds = 4 * D * 2048 + 65536
    return name, A.text(), kernel_desc(name, 256, 64), f"grid=(256,1,1) block=(256,1,1) lds={lds}"

EX = 200
EG = 208
EC = 224

def modvec_loads(A, dst, idx, vaddr):
    for i in range(4):
        A(f"buffer_load_dwordx4 v[{dst+4*i}:{dst+4*i+3}], v{vaddr}, s[16:19], s44 offen offset:{32*i}" if False else
          f"buffer_load_dwordx4 v[{dst+4*i}:{dst+4*i+3}], v{vaddr}, s[16:19], s{idx} offen offset:{32*i}")

def common_epi_setup(A):
    A("""
    s_lshr_b32 s45, s30, 1
    s_and_b32 s46, s30, 1
    s_lshl_b32 s47, s33, 1
    s_add_u32 s47, s47, s45
    s_lshl_b32 s48, s34, 1
    s_add_u32 s48, s48, s46
    v_lshrrev_b32 v4, 5, v2
    v_and_b32 v5, 31, v2
    s_lshl_b32 s49, s48, 7
    v_lshlrev_b32 v14, 4, v4
    v_add_u32 v14, s49, v14
    s_lshl_b32 s49, s47, 15
    s_lshl_b32 s50, s48, 6
    s_add_u32 s49, s49, s50
    v_lshlrev_b32 v15, 10, v5
    v_lshl_add_u32 v15, v4, 3, v15
    v_add_u32 v15, s49, v15
    s_lshl_b32 s51, s47, 15
    s_lshl_b32 s50, s48, 11
    s_add_u32 s51, s51, s50
    """)

def gen_k3():
    def pre(A):
        common_epi_setup(A)
        srd(A, 20, 6, 7, 2048 * 1024)
        for i in range(4):
            A(f"buffer_load_dwordx2 v[{EX+2*i}:{EX+2*i+1}], v15, s[20:23], 0 offen offset:{16*i}")
        A(f"s_mov_b32 s43, {2*2048}")
        A(f"s_mov_b32 s44, {4*2048}")
        modvec_loads(A, EG, 43, 14)
        modvec_loads(A, EC, 44, 14)
        return 12
    def epi(A, R):
        X = R + 16
        for i in range(8):
            A(f"v_lshlrev_b32 v{X+2*i}, 16, v{EX+i}")
            A(f"v_and_b32 v{X+2*i+1}, 0xffff0000, v{EX+i}")
        for e in range(16):
            A(f"v_fmac_f32 v{X+e}, v{R+e}, v{EG+e}")
        PK = R + 32
        for i in range(8):
            A(f"v_cvt_pk_bf16_f32 v{PK+i}, v{X+2*i}, v{X+2*i+1}")
        A(f"s_add_u32 s52, s51, {WS_X2}")
        A(f"buffer_store_dwordx4 v[{PK}:{PK+3}], v3, s[16:19], s52 offen")
        A(f"buffer_store_dwordx4 v[{PK+4}:{PK+7}], v3, s[16:19], s52 offen offset:1024")
        for i in range(8):
            A(f"v_lshlrev_b32 v{X+2*i}, 16, v{PK+i}")
            A(f"v_and_b32 v{X+2*i+1}, 0xffff0000, v{PK+i}")
        for e in range(16):
            A(f"v_add_f32 v{EC+e}, 1.0, v{EC+e}")
        for e in range(16):
            A(f"v_cvt_pk_bf16_f32 v{EC+e}, v{EC+e}, v{EC+e}")
        for e in range(16):
            A(f"v_lshlrev_b32 v{EC+e}, 16, v{EC+e}")
        for e in range(16):
            A(f"v_mul_f32 v{EC+e}, v{EC+e}, v{X+e}")
        PU = R + 40
        for i in range(8):
            A(f"v_cvt_pk_bf16_f32 v{PU+i}, v{EC+2*i}, v{EC+2*i+1}")
        A(f"s_add_u32 s52, s51, {WS_U}")
        A(f"buffer_store_dwordx4 v[{PU}:{PU+3}], v3, s[16:19], s52 offen")
        A(f"buffer_store_dwordx4 v[{PU+4}:{PU+7}], v3, s[16:19], s52 offen offset:1024")
        T = R + 48
        A(f"v_add_f32 v{T}, v{X}, v{X+1}")
        for e in range(2, 16):
            A(f"v_add_f32 v{T}, v{T}, v{X+e}")
        A(f"""
        v_mov_b32 v{T+2}, v{T}
        s_nop 1
        v_permlane32_swap_b32 v{T}, v{T+2}
        s_nop 1
        v_add_f32 v{T}, v{T}, v{T+2}
        v_mul_f32 v{T}, 0x3d000000, v{T}
        """)
        for e in range(16):
            A(f"v_sub_f32 v{X+e}, v{X+e}, v{T}")
        A(f"v_mul_f32 v{T+1}, v{X}, v{X}")
        for e in range(1, 16):
            A(f"v_fmac_f32 v{T+1}, v{X+e}, v{X+e}")
        A(f"""
        v_mov_b32 v{T+2}, v{T+1}
        s_nop 1
        v_permlane32_swap_b32 v{T+1}, v{T+2}
        s_nop 1
        v_add_f32 v{T+1}, v{T+1}, v{T+2}
        v_and_b32 v4, 31, v2
        v_lshlrev_b32 v4, 7, v4
        s_lshl_b32 s52, s47, 12
        s_lshl_b32 s53, s48, 3
        s_add_u32 s52, s52, s53
        s_add_u32 s52, s52, {WS_STAT}
        s_mov_b32 exec_hi, 0
        buffer_store_dwordx2 v[{T}:{T+1}], v4, s[16:19], s52 offen
        s_mov_b64 exec, -1
        """)
    return skinny_gemm("K3", 2, "k3oproj_kernel", "wo", 4096, WS_CTX, 256, 64, int(os.environ.get("D3","4")), pre, epi)

def gen_k5():
    def pre(A):
        common_epi_setup(A)
        srd(A, 20, 10, 11, 2048 * 1024)
        A(f"s_add_u32 s52, s51, {WS_X2}")
        A(f"buffer_load_dwordx4 v[{EX}:{EX+3}], v3, s[16:19], s52 offen")
        A(f"buffer_load_dwordx4 v[{EX+4}:{EX+7}], v3, s[16:19], s52 offen offset:1024")
        A(f"s_mov_b32 s43, {5*2048}")
        modvec_loads(A, EG, 43, 14)
        return 6
    def epi(A, R):
        X = R + 16
        for i in range(8):
            A(f"v_lshlrev_b32 v{X+2*i}, 16, v{EX+i}")
            A(f"v_and_b32 v{X+2*i+1}, 0xffff0000, v{EX+i}")
        for e in range(16):
            A(f"v_fmac_f32 v{X+e}, v{R+e}, v{EG+e}")
        PK = R + 32
        for i in range(8):
            A(f"v_cvt_pk_bf16_f32 v{PK+i}, v{X+2*i}, v{X+2*i+1}")
        for i in range(4):
            A(f"buffer_store_dwordx2 v[{PK+2*i}:{PK+2*i+1}], v15, s[20:23], 0 offen offset:{16*i}")
    return skinny_gemm("K5", 4, "k5ffn2_kernel", "w2", 1792, WS_ACT, 112, 28, 4, pre, epi)

def gen_k4():
    A = Asm()
    name = "k4ffn1_kernel"
    A.lines.append(kernel_header(name))
    A(f"""
    s_cmp_ge_u32 s2, 256
    s_cbranch_scc1 K4_END
    s_lshr_b32 s32, s2, 3
    s_and_b32 s34, s32, 7
    s_cmp_eq_u32 s34, 7
    s_cbranch_scc1 K4_END
    """)
    ST = Stamper(A, 3)
    ST.stamp()
    D = 12
    S_W, S_WS, S_B = 12, 16, 20
    VOW, VWR, VUR = 10, 12, 14
    WF = 16
    UF = 32
    ACC = 64
    STT = 128
    GP = 192
    A(f"""
    s_load_dwordx4 s[4:7], s[0:1], {KA['w1']}
    s_load_dwordx2 s[8:9], s[0:1], {KA['ws']}
    v_lshrrev_b32 v1, 6, v0
    v_and_b32 v2, 63, v0
    v_readfirstlane_b32 s30, v1
    v_lshlrev_b32 v3, 4, v2
    s_and_b32 s31, s2, 7
    s_lshr_b32 s33, s32, 3
    s_lshl_b32 s31, s31, 2
    s_add_u32 s33, s33, s31
    v_lshrrev_b32 v4, 3, v2
    v_and_b32 v5, 7, v2
    v_bfe_u32 v6, v2, 4, 1
    v_lshlrev_b32 v6, 2, v6
    v_xor_b32 v5, v5, v6
    v_lshlrev_b32 v5, 4, v5
    v_mul_u32_u24 v4, 3584, v4
    v_add_u32 v5, v4, v5
    s_lshl_b32 s35, s34, 9
    s_lshl_b32 s36, s30, 7
    s_add_u32 s35, s35, s36
    v_add_u32 v{VOW}, s35, v5
    v_add_u32 v{VOW+1}, {8*3584-1024}, v{VOW}
    s_mul_i32 s37, s30, {D*2048}
    s_add_u32 s37, s37, 65536
    v_bfe_u32 v4, v2, 2, 2
    v_lshrrev_b32 v5, 5, v2
    v_lshl_add_u32 v5, v5, 2, v4
    v_lshlrev_b32 v5, 7, v5
    v_bfe_u32 v6, v2, 4, 1
    v_lshl_add_u32 v5, v6, 5, v5
    v_and_b32 v6, 3, v2
    v_lshl_add_u32 v5, v6, 3, v5
    v_add_u32 v5, s37, v5
    v_lshrrev_b32 v4, 1, v4
    v_lshl_add_u32 v{VWR}, v4, 6, v5
    v_xor_b32 v{VWR+1}, 64, v{VWR}
    s_waitcnt lgkmcnt(0)
    """)
    srd(A, S_W, 4, 5, 512 * 3584)
    srd(A, S_WS, 8, 9, WS_END)
    srd(A, S_B, 6, 7, 3584)
    A(f"""
    s_lshl_b32 s38, s33, 16
    s_lshl_b32 s39, s30, 14
    s_add_u32 s38, s38, s39
    s_add_u32 s38, s38, {WS_U}
    """)
    for g in range(4):
        A(f"s_add_u32 m0, s39, {g*4096}")
        A(f"s_add_u32 s40, s38, {g*4096}")
        for i in range(4):
            A(f"buffer_load_dwordx4 v3, s[{S_WS}:{S_WS+3}], s40 offen offset:{i*1024} lds")
    def wload(ks):
        slot = ks % D
        return [f"s_add_u32 m0, s37, {slot*2048}",
                f"s_mov_b32 s41, {ks*16*3584}",
                f"buffer_load_dwordx4 v{VOW}, s[{S_W}:{S_W+3}], s41 offen lds",
                f"buffer_load_dwordx4 v{VOW+1}, s[{S_W}:{S_W+3}], s41 offen offset:1024 lds"]
    for ks in range(D - 1):
        A.ext(wload(ks))
    A(f"""
    v_and_b32 v4, 31, v2
    v_lshrrev_b32 v5, 5, v2
    v_lshlrev_b32 v4, 7, v4
    v_lshl_add_u32 v4, v5, 6, v4
    s_lshl_b32 s42, s33, 13
    s_add_u32 s42, s42, {WS_STAT}
    s_add_u32 s43, s42, 4096
    """)
    for q in range(2):
        for i in range(4):
            A(f"buffer_load_dwordx4 v[{STT+16*q+4*i}:{STT+16*q+4*i+3}], v4, s[{S_WS}:{S_WS+3}], s{42+q} offen offset:{16*i}")
    A(f"""
    s_lshl_b32 s44, s34, 10
    s_lshl_b32 s45, s30, 8
    s_add_u32 s44, s44, s45
    v_lshlrev_b32 v5, 2, v2
    v_add_u32 v5, s44, v5
    v_lshrrev_b32 v6, 1, v5
    """)
    for kc in range(8):
        for wh in range(2):
            A(f"s_mov_b32 s45, {WS_G + (kc*2+wh)*7168}")
            A(f"buffer_load_dword v{GP+8*wh+kc}, v5, s[{S_WS}:{S_WS+3}], s45 offen")
    A(f"buffer_load_ushort v{GP+16}, v6, s[{S_B}:{S_B+3}], 0 offen")
    nextra = 8 + 17
    def wreads(s, ks):
        return [f"ds_read_b64_tr_b16 v[{WF+8*s+4*nt+2*e}:{WF+8*s+4*nt+2*e+1}], v{VWR+nt} offset:{(ks%D)*2048+e*1024}"
                for nt in range(2) for e in range(2)]
    def ureads(s, ks):
        return [f"ds_read_b128 v[{UF+8*s+4*q}:{UF+8*s+4*q+3}], v3 offset:{q*32768+ks*1024}" for q in range(2)]
    ST.stamp()
    A(f"s_waitcnt vmcnt({2*(D-2)+nextra})")
    A("s_barrier")
    ST.stamp()
    A.ext(wreads(0, 0) + ureads(0, 0))
    for ks in range(32):
        s = ks & 1
        nxt = ks + D - 1
        if nxt < 32:
            A.ext(wload(nxt))
        if ks + 1 < 32:
            last_issued = min(nxt, 31)
            ny = 2 * (last_issued - (ks + 1))
            if ks + 1 <= D - 2:
                ny += nextra
            A(f"s_waitcnt vmcnt({ny}) lgkmcnt(0)")
            rd = wreads(1 - s, ks + 1) + ureads(1 - s, ks + 1)
        else:
            A("s_waitcnt lgkmcnt(0)")
            rd = []
        k = 0
        for nt in range(2):
            for q in range(2):
                acc = vr(ACC + 16 * (2 * q + nt), 16)
                A(mfma(acc, vr(WF + 8 * s + 4 * nt, 4), vr(UF + 8 * s + 4 * q, 4), acc if ks else "0"))
                for r in rd[k:k + 2]:
                    A(r)
                k += 2
    ST.stamp()
    A("s_waitcnt vmcnt(0)")
    T = 48
    for q in range(2):
        b = STT + 16 * q
        A(f"v_add_f32 v{T+q}, v{b}, v{b+2}")
        for i in range(2, 8):
            A(f"v_add_f32 v{T+q}, v{T+q}, v{b+2*i}")
    for q in range(2):
        A(f"v_mov_b32 v{T+2+q}, v{T+q}")
    A("s_nop 0")
    for q in range(2):
        A(f"v_permlane32_swap_b32 v{T+q}, v{T+2+q}")
    A("s_nop 0")
    for q in range(2):
        A(f"v_add_f32 v{T+q}, v{T+q}, v{T+2+q}")
        A(f"v_mul_f32 v{T+q}, 0x3d800000, v{T+q}")
    A("s_mov_b32 s45, 0x42000000")
    for q in range(2):
        b = STT + 16 * q
        for i in range(8):
            A(f"v_sub_f32 v{b+2*i}, v{b+2*i}, v{T+q}")
        for i in range(8):
            A(f"v_mul_f32 v{b+2*i}, v{b+2*i}, v{b+2*i}")
        for i in range(8):
            A(f"v_fma_f32 v{b+2*i}, v{b+2*i}, s45, v{b+2*i+1}")
        A(f"v_add_f32 v{T+4+q}, v{b}, v{b+2}")
        for i in range(2, 8):
            A(f"v_add_f32 v{T+4+q}, v{T+4+q}, v{b+2*i}")
    for q in range(2):
        A(f"v_mov_b32 v{T+2+q}, v{T+4+q}")
    A("s_nop 0")
    for q in range(2):
        A(f"v_permlane32_swap_b32 v{T+4+q}, v{T+2+q}")
    A(f"v_mov_b32 v{T+6}, 0x3727c5ac")
    A("s_mov_b32 s45, 0x3b000000")
    for q in range(2):
        A(f"v_add_f32 v{T+4+q}, v{T+4+q}, v{T+2+q}")
    for q in range(2):
        A(f"v_fma_f32 v{T+4+q}, v{T+4+q}, s45, v{T+6}")
    for q in range(2):
        A(f"v_rsq_f32 v{T+4+q}, v{T+4+q}")
    for wh in range(2):
        for kc in range(1, 8):
            A(f"v_add_f32 v{GP+8*wh}, v{GP+8*wh}, v{GP+8*wh+kc}")
    A(f"v_lshlrev_b32 v{GP+16}, 16, v{GP+16}")
    A(f"v_add_f32 v{GP+1}, v{GP+8}, v{GP+16}")
    for q in range(2):
        A(f"v_mul_f32 v{T+q}, v{T+q}, v{T+4+q}")
    A(f"""
    v_lshlrev_b32 v4, 2, v2
    v_add_u32 v4, s37, v4
    ds_write_b32 v4, v{GP}
    ds_write_b32 v4, v{GP+1} offset:256
    v_lshrrev_b32 v5, 5, v2
    v_lshlrev_b32 v5, 4, v5
    v_add_u32 v5, s37, v5
    s_waitcnt lgkmcnt(0)
    """)
    G1, G2 = 128, 160
    for nt in range(2):
        for i in range(4):
            A(f"ds_read_b128 v[{G1+16*nt+4*i}:{G1+16*nt+4*i+3}], v5 offset:{nt*128+i*32}")
            A(f"ds_read_b128 v[{G2+16*nt+4*i}:{G2+16*nt+4*i+3}], v5 offset:{256+nt*128+i*32}")
    A(f"""
    s_mul_i32 s46, s33, {2*112*1024}
    s_lshl_b32 s47, s34, 14
    s_add_u32 s46, s46, s47
    s_lshl_b32 s47, s30, 12
    s_add_u32 s46, s46, s47
    s_add_u32 s46, s46, {WS_ACT}
    s_add_u32 s47, s46, {112*1024}
    s_mov_b32 s48, {LOG2E}
    s_mov_b32 s49, 0x42200000
    s_waitcnt lgkmcnt(0)
    """)
    n = 0
    for q in range(2):
        for nt in range(2):
            for j in range(2):
                z = ACC + 16 * (2 * q + nt) + 8 * j
                t = 192 + 20 * (n % 2)
                for e in range(8):
                    A(f"v_fma_f32 v{t+e}, -v{T+q}, v{G1+16*nt+8*j+e}, v{G2+16*nt+8*j+e}")
                for e in range(8):
                    A(f"v_fma_f32 v{z+e}, v{z+e}, v{T+4+q}, v{t+e}")
                for e in range(8):
                    A(f"v_min_f32 v{t+e}, s49, v{z+e}")
                for e in range(8):
                    A(f"v_mul_f32 v{t+e}, s48, v{t+e}")
                for e in range(8):
                    A(f"v_exp_f32 v{t+e}, v{t+e}")
                for e in range(8):
                    A(f"v_add_f32 v{t+8+e}, 2.0, v{t+e}")
                for e in range(8):
                    A(f"v_mul_f32 v{t+e}, v{t+e}, v{t+8+e}")
                for e in range(8):
                    A(f"v_add_f32 v{t+8+e}, 2.0, v{t+e}")
                for e in range(8):
                    A(f"v_rcp_f32 v{t+8+e}, v{t+8+e}")
                for e in range(8):
                    A(f"v_mul_f32 v{t+e}, v{t+e}, v{t+8+e}")
                for e in range(8):
                    A(f"v_mul_f32 v{z+e}, v{z+e}, v{t+e}")
                for i in range(4):
                    A(f"v_cvt_pk_bf16_f32 v{t+16+i}, v{z+2*i}, v{z+2*i+1}")
                A(f"buffer_store_dwordx4 v[{t+16}:{t+19}], v3, s[{S_WS}:{S_WS+3}], s{46+q} offen offset:{(2*nt+j)*1024}")
                n += 1
    ST.stamp()
    if STAMPS: A("s_waitcnt vmcnt(0)")
    ST.stamp()
    ST.flush(4, "s30", 4)
    A("K4_END:")
    A("s_endpgm")
    return name, A.text(), kernel_desc(name, 256, 0), f"grid=(256,1,1) block=(256,1,1) lds={65536+4*D*2048}"

def gen_all():
    return [gen_k3(), gen_k4(), gen_k5()]
```

```python
from asmlib import *
from sched import *
import os
LOG2E = 0x3fb8aa3b
STF = os.environ.get("KA_ST", "")
WNT = os.environ.get("KA_WNT", "")

def gen_ka(code_bytes_total=65536):
    A = Asm()
    name = "k1a_kernel"
    A.lines.append(kernel_header(name))
    A("s_getpc_b64 s[64:65]")
    A("s_cmp_ge_u32 s2, 256")
    A("s_cbranch_scc1 KA_END")
    ST = Stamper(A, 0)
    ST.stamp()
    VOT, VOW, VT, VW = 4, 12, 16, 20
    WF, ACC, PK, J = 32, 48, 176, 184
    S_T, S_WK, S_WV, S_WS = 12, 16, 20, 24
    S_X, S_J2S, S_D, S_M = 28, 32, 36, 60
    sW, sHD, sMT, sXC, sJ = 40, 41, 42, 43, 44
    sM0T, sM0W, sT0, sT1, sKV = 45, 46, 47, 48, 49
    sA, sB, sC_, sD, sE, sF = 50, 51, 52, 53, 54, 55
    A(f"""
    s_load_dwordx8 s[4:11], s[0:1], 0
    s_load_dwordx2 s[{S_WV}:{S_WV+1}], s[0:1], {KA['wuv']}
    s_load_dwordx2 s[{S_WS}:{S_WS+1}], s[0:1], {KA['ws']}
    v_lshrrev_b32 v3, 6, v0
    v_and_b32 v2, 63, v0
    v_readfirstlane_b32 s{sW}, v3
    v_lshlrev_b32 v1, 4, v2
    s_and_b32 s{sXC}, s2, 7
    s_lshr_b32 s{sJ}, s2, 3
    s_and_b32 s{sHD}, s{sJ}, 3
    s_lshl_b32 s{sT0}, s{sXC}, 2
    s_add_u32 s{sHD}, s{sHD}, s{sT0}
    s_lshr_b32 s{sMT}, s{sJ}, 2
    v_lshrrev_b32 v22, 3, v2
    v_lshrrev_b32 v23, 4, v2
    v_and_b32 v24, 7, v2
    v_xor_b32 v25, v24, v23
    v_lshlrev_b32 v25, 4, v25
    v_lshl_add_u32 v25, v22, 10, v25
    s_lshl_b32 s{sT0}, s{sW}, 16
    v_add_u32 v25, s{sT0}, v25
    """)
    for i in range(8):
        A(f"v_add_u32 v{VOT+i}, {8*i*1024-(i%4)*1024}, v25")
        if i % 2: A(f"v_xor_b32 v{VOT+i}, 64, v{VOT+i}")
    A(f"""
    v_and_b32 v23, 1, v23
    v_lshlrev_b32 v23, 2, v23
    v_xor_b32 v25, v24, v23
    v_lshlrev_b32 v25, 4, v25
    v_lshl_add_u32 v25, v22, 13, v25
    s_lshl_b32 s{sT0}, s{sW}, 18
    v_add_u32 v25, s{sT0}, v25
    """)
    for i in range(4):
        A(f"v_add_u32 v{VOW+i}, {8*i*8192-i*1024}, v25")
    A(f"""
    s_lshl_b32 s{sM0W}, s{sW}, 12
    s_mul_i32 s{sM0T}, s{sW}, 24576
    s_add_u32 s{sM0T}, s{sM0T}, 65536
    v_lshlrev_b32 v22, 7, v2
    v_lshlrev_b32 v23, 13, v2
    s_waitcnt lgkmcnt(0)
    s_lshl_b32 s{sT0}, s{sMT}, 18
    s_add_u32 s{S_T}, s6, s{sT0}
    s_addc_u32 s{S_T+1}, s7, 0
    s_mov_b32 s{S_T+2}, 0x40000
    s_mov_b32 s{S_T+3}, 0x00020000
    s_lshl_b32 s{sT0}, s{sHD}, 8
    s_add_u32 s{S_WK}, s10, s{sT0}
    s_addc_u32 s{S_WK+1}, s11, 0
    s_mov_b32 s{S_WK+2}, {511*8192+256}
    s_mov_b32 s{S_WK+3}, 0x00020000
    """)
    A(f"""
    s_cmp_eq_u32 s{sW}, 0
    s_cbranch_scc1 KA_PF0
    s_cmp_eq_u32 s{sW}, 1
    s_cbranch_scc1 KA_PF1
    s_lshl_b32 s{sT1}, s{sW}, 13
    s_sub_u32 s{sT1}, s{sT1}, 16384
    v_add_u32 v22, s{sT1}, v22
    global_load_dword v26, v22, s[64:65]
    s_branch KA_PFD
    KA_PF0:
    s_lshl_b32 s{sT1}, s{sHD}, 13
    buffer_load_dword v26, v22, s[{S_T}:{S_T+3}], s{sT1} offen
    s_branch KA_PFD
    KA_PF1:
    s_lshl_b32 s{sT1}, s{sMT}, 19
    buffer_load_dword v26, v23, s[{S_WK}:{S_WK+3}], s{sT1} offen
    KA_PFD:
    """)
    def wdma(u):
        c = u // 4
        srdr = S_WK if c < 2 else S_WV
        pre = [f"s_add_u32 m0, s{sM0W}, {(u%4)*16384}", f"s_mov_b32 s{sT0}, {(u%4)*128*8192+(c&1)*128}"]
        return pre, [I(f"buffer_load_dwordx4 v{VOW+i}, s[{srdr}:{srdr+3}], s{sT0} offen offset:{i*1024} {WNT} lds", f"W{u}") for i in range(4)]
    def tdma(s, grp):
        pre = [f"s_add_u32 m0, s{sM0T}, {(s%3)*8192+grp*4096}", f"s_mov_b32 s{sT0}, {s*128}"]
        return pre, [I(f"buffer_load_dwordx4 v{VOT+i}, s[{S_T}:{S_T+3}], s{sT0} offen offset:{(i%4)*1024} lds", f"T{s}") for i in range(4 * grp, 4 * grp + 4)]
    P = []
    def seq(g):
        pre, d = g
        return [I(x) for x in pre] + d
    P += seq(wdma(0)) + seq(tdma(0, 0)) + seq(tdma(0, 1))
    setup = f"""
    s_add_u32 s{S_WV}, s{S_WV}, s{sKV}
    s_addc_u32 s{S_WV+1}, s{S_WV+1}, 0
    s_mov_b32 s{S_WV+2}, {511*8192+256}
    s_mov_b32 s{S_WV+3}, 0x00020000
    s_mov_b32 s{S_WS+2}, {WS_END}
    s_mov_b32 s{S_WS+3}, 0x00020000
    s_mov_b32 s{S_X}, s4
    s_mov_b32 s{S_X+1}, s5
    s_mov_b32 s{S_X+2}, 0x200000
    s_mov_b32 s{S_X+3}, 0x00020000
    v_and_b32 v22, 31, v2
    v_lshrrev_b32 v23, 5, v2
    v_bfe_u32 v24, v2, 1, 3
    v_lshlrev_b32 v25, 7, v22
    v_add_u32 v25, s{sM0T}, v25
    """
    P += [I(f"s_lshl_b32 s{sKV}, s{sHD}, 8")] + [I(x.strip()) for x in setup.strip().split("\n")]
    for ks in range(4):
        P += [I(f"v_add_u32 v27, {2*ks}, v23"), I(f"v_xor_b32 v27, v27, v24"), I(f"v_lshl_add_u32 v{VT+ks}, v27, 4, v25")]
    setup = f"""
    v_bfe_u32 v22, v2, 2, 2
    v_lshl_add_u32 v25, v23, 3, v22
    v_lshlrev_b32 v25, 7, v25
    v_bfe_u32 v24, v2, 4, 1
    v_lshl_add_u32 v25, v24, 5, v25
    v_and_b32 v24, 3, v2
    v_lshl_add_u32 v25, v24, 3, v25
    v_lshrrev_b32 v22, 1, v22
    v_lshl_add_u32 v{VW}, v22, 6, v25
    v_xor_b32 v{VW+1}, 64, v{VW}
    s_lshl_b32 s{sKV}, s{sHD}, 19
    s_lshl_b32 s{sT1}, s{sMT}, 16
    s_add_u32 s{sKV}, s{sKV}, s{sT1}
    s_lshl_b32 s{sT1}, s{sW}, 14
    s_add_u32 s{sKV}, s{sKV}, s{sT1}
    """
    P += [I(x.strip()) for x in setup.strip().split("\n")]
    P += seq(tdma(1, 0)) + seq(tdma(1, 1)) + seq(wdma(1)) + seq(tdma(2, 0)) + seq(tdma(2, 1))
    P += [I(f"s_load_dwordx2 s[56:57], s[0:1], {KA['wo']}"),
          I(f"s_load_dwordx2 s[58:59], s[0:1], {KA['w1']}"),
          I(f"s_load_dwordx2 s[4:5], s[0:1], {KA['w2']}"),
          I(f"s_load_dwordx2 s[6:7], s[0:1], {KA['c']}"),
          I(f"s_load_dwordx2 s[10:11], s[0:1], {KA['wmod']}"),
          I(f"s_load_dwordx2 s[{S_D}:{S_D+1}], s[0:1], {KA['dbg']}"),
          I("s_waitcnt lgkmcnt(0)")]
    def treads(s):
        return [I(f"ds_read_b128 {ar((( 4*s+k)*2+q)*4,4)}, v{VT+k} offset:{(s%3)*8192+q*4096}", f"t{s}") for k in range(4) for q in range(2)]
    def wreads(gk):
        u, ksl, st = gk // 8, gk % 8, gk & 1
        return [I(f"ds_read_b64_tr_b16 v[{WF+8*st+4*nt+2*e}:{WF+8*st+4*nt+2*e+1}], v{VW+nt} offset:{(u%4)*16384+ksl*2048+e*512}", f"w{gk}")
                for nt in range(2) for e in range(2)]
    if STAMPS:
        P.append(I(f"s_memtime s[{ST.base+2}:{ST.base+3}]")); ST.n += 1
    P += [WV("W0", "T0"), I("s_barrier")]
    if STAMPS:
        P.append(I(f"s_memtime s[{ST.base+4}:{ST.base+5}]")); ST.n += 1
        P.append(I("s_waitcnt lgkmcnt(0)"))
    P += wreads(0) + treads(0) + [WL("w0", "t0")]

    mf = []
    for c in range(4):
        for ks in range(32):
            st = ks & 1
            for nt in range(2):
                for q in range(2):
                    acc = vr(ACC + 64 * (c & 1) + 16 * (2 * q + nt), 16)
                    wf = vr(WF + 8 * st + 4 * nt, 4)
                    tk = ar((ks * 2 + q) * 4, 4)
                    cc = acc if ks else "0"
                    mf.append(mfma(acc, wf, tk, cc) if c < 2 else mfma(acc, tk, wf, cc))
    G = Gaps(mf)
    dma_gaps = set()
    def put_dma(g0, grp, step=1):
        pre, d = grp
        G.put(g0 - 1, pre, "end")
        for i, x in enumerate(d):
            g = g0 + i * step
            G.put(g, x, "mem")
        for g in range(g0 - 1, g0 + (len(d) - 1) * step + 1):
            assert g not in dma_gaps or g == g0 - 1, g
        for g in range(g0, g0 + (len(d) - 1) * step + 1):
            dma_gaps.add(g)
    for gk in range(128):
        g0 = 4 * gk
        if gk + 1 < 128:
            if (gk + 1) % 8 == 0:
                u = (gk + 1) // 8
                G.put(g0 - 1, WVL([f"W{u}"], ["*"]), "end")
                G.put(g0, "s_barrier", "mem")
                rd = wreads(gk + 1)
                G.put(g0, rd[0]); G.put(g0 + 1, rd[1:3]); G.put(g0 + 2, rd[3])
            else:
                rd = wreads(gk + 1)
                G.put(g0, rd[0:2]); G.put(g0 + 1, rd[2:4])
            if (gk + 2) % 8 != 0 or gk + 2 >= 128 + 0:
                tags = [f"w{gk+1}"]
                if gk + 1 < 32 and (gk + 1) % 4 == 0: tags.append(f"t{(gk+1)//4}")
                G.put(g0 + 3, WL(*tags), "end")
    for s in range(1, 8):
        g0 = 4 * (4 * s - 2)
        G.put(g0 + 1, WV(f"T{s}"), "end")
        rd = treads(s)
        G.put(g0 + 2, rd[0:3]); G.put(g0 + 3, rd[3:6]);
        G.put(g0 + 6, rd[6:8])
    put_dma(1, tdma(3, 0)); put_dma(5, tdma(3, 1))
    put_dma(9, wdma(2))
    put_dma(17, tdma(4, 0)); put_dma(21, tdma(4, 1))
    put_dma(33, tdma(5, 0)); put_dma(37, tdma(5, 1))
    put_dma(41, wdma(3))
    put_dma(49, tdma(6, 0)); put_dma(53, tdma(6, 1))
    put_dma(65, tdma(7, 0)); put_dma(69, tdma(7, 1))
    put_dma(73, wdma(4))
    put_dma(81, wdma(5))
    put_dma(97, wdma(6), step=2)
    for u in range(7, 16):
        gb = 4 * (8 * (u - 3) - 1)
        put_dma(gb + 3, wdma(u), step=4)

    cand = [x for x in range(140, 256) if x not in dma_gaps and (x - 1) not in dma_gaps and (x + 1) not in dma_gaps]
    used = []
    for i in range(8):
        gg = cand[2 * i]
        G.put(gg - 1, [f"s_add_u32 m0, s{sM0T}, {i*1024}"], "end")
        G.put(gg, I(f"buffer_load_dwordx4 v28, s[{S_J2S}:{S_J2S+3}], s6 offen lds", "j2"), "mem")
        G.put(gg, f"s_add_u32 s6, s6, s{sF}", "end")
        used.append(gg)
    print("J2 dma gaps", used)
    def epi(c):
        L = []
        base = WS_KF if c < 2 else WS_VF
        n = 0
        for q in range(2):
            for nt in range(2):
                for j in range(2):
                    dt = 2 * (c & 1) + nt
                    fi = (2 * dt + j) if c < 2 else (4 * j + dt)
                    off = q * 8192 + fi * 1024
                    a0 = ACC + 64 * (c & 1) + 16 * (2 * q + nt) + 8 * j
                    t = PK + 4 * (n % 2)
                    for i in range(4):
                        L.append(f"v_cvt_pk_bf16_f32 v{t+i}, v{a0+2*i}, v{a0+2*i+1}")
                    L.append(f"s_add_u32 s{sT1}, s{sKV}, {base + (off & ~4095)}")
                    L.append(I(f"buffer_store_dwordx4 v[{t}:{t+3}], v1, s[{S_WS}:{S_WS+3}], s{sT1} offen offset:{off & 4095} {STF}", "st"))
                    n += 1
        return L
    for c in range(3):
        L = epi(c)
        for n in range(8):
            G.stream(128 * (c + 1) + 6 + 10 * n, L[6 * n:6 * n + 6])

    W4, C4, AC, T1 = J, J + 16, J + 20, J + 28
    L = [f"s_mov_b32 s{S_M}, s10", f"s_mov_b32 s{S_M+1}, s11", f"s_mov_b32 s{S_M+2}, {512*6144}", f"s_mov_b32 s{S_M+3}, 0x00020000",
         f"v_lshrrev_b32 v22, 1, v0", f"v_and_b32 v23, 1, v0", f"v_mul_u32_u24 v24, 6144, v22", f"v_lshl_add_u32 v24, v23, 4, v24",
         f"s_mul_i32 s{sA}, s{sXC}, 768", f"s_lshl_b32 s{sB}, s{sJ}, 5", f"s_add_u32 s{sA}, s{sA}, s{sB}",
         [f"s_cmp_lt_u32 s{sJ}, 24", f"s_cselect_b32 s{sA}, s{sA}, 0x40000000"],
         f"v_lshlrev_b32 v22, 1, v22", f"s_mov_b32 s{sB}, s{sA}"]
    for i in range(4):
        L.append(I(f"buffer_load_dwordx4 v[{W4+4*i}:{W4+4*i+3}], v24, s[{S_M}:{S_M+3}], s{sB} offen", "j1"))
        if i < 3: L.append(f"s_add_u32 s{sB}, s{sB}, {128*6144}")
    L += [[f"s_mov_b32 s{S_M}, s6", f"s_mov_b32 s{S_M+1}, s7", f"s_mov_b32 s{S_M+2}, 1024"]]
    for i in range(4):
        L.append(I(f"buffer_load_ushort v{C4+i}, v22, s[{S_M}:{S_M+3}], 0 offen offset:{256*i}", "j1"))
    g = G.stream(86, L)
    print("J1 loads end gap", g)
    L = [WV("j1"), f"s_mov_b32 s{sB}, {LOG2E}"]
    for i in range(4): L.append(f"v_lshlrev_b32 v{C4+i}, 16, v{C4+i}")
    for i in range(4): L.append(f"v_mul_f32 v{T1+i}, s{sB}, v{C4+i}")
    for i in range(4): L.append(f"v_exp_f32 v{T1+i}, -v{T1+i}")
    for i in range(4): L.append(f"v_add_f32 v{T1+i}, 1.0, v{T1+i}")
    for i in range(4): L.append(f"v_rcp_f32 v{T1+i}, v{T1+i}")
    for i in range(4): L.append(f"v_mul_f32 v{C4+i}, v{C4+i}, v{T1+i}")
    for i in range(4): L.append(f"v_cvt_pk_bf16_f32 v{C4+i}, v{C4+i}, v{C4+i}")
    for i in range(4): L.append(f"v_lshlrev_b32 v{C4+i}, 16, v{C4+i}")
    for i in range(4):
        for qd in range(4):
            w = W4 + 4 * i + qd
            L.append(f"v_lshlrev_b32 v{T1}, 16, v{w}")
            L.append(f"v_and_b32 v{T1+1}, 0xffff0000, v{w}")
            op = "v_mul_f32" if i == 0 else "v_fmac_f32"
            L.append(f"{op} v{AC+2*qd}, v{C4+i}, v{T1}")
            L.append(f"{op} v{AC+2*qd+1}, v{C4+i}, v{T1+1}")
    L.append("s_nop 1")
    for ror in (8, 4, 2):
        for e in range(8):
            L.append(f"v_add_f32_dpp v{AC+e}, v{AC+e}, v{AC+e} row_ror:{ror} row_mask:0xf bank_mask:0xf")
    SCR = 65536 + 23 * 1024
    L += [f"v_lshrrev_b32 v22, 4, v0", f"v_lshlrev_b32 v22, 6, v22", f"v_lshl_add_u32 v22, v23, 5, v22", f"v_add_u32 v22, {SCR}, v22",
          I(f"ds_write_b128 v22, v[{AC}:{AC+3}]", "j1w"), I(f"ds_write_b128 v22, v[{AC+4}:{AC+7}] offset:16", "j1w")]
    g = G.stream(134, L)
    print("J1 compute end gap", g)
    gb = ((g + 1 + 4 + 31) // 32) * 32 - 4
    assert gb > g + 0
    L = [f"v_and_b32 v22, 15, v2", f"v_lshrrev_b32 v23, 4, v2", f"v_lshlrev_b32 v23, 8, v23", f"v_lshl_add_u32 v23, v22, 2, v23", f"v_add_u32 v23, {SCR}, v23"]
    G.stream(g + 1, L)
    L = [I(f"ds_read_b32 v{T1+i}, v23 offset:{64*i}", "j1r") for i in range(4)]
    L += [f"v_lshlrev_b32 v22, 2, v22", f"s_lshl_b32 s{sB}, s{sA}, 1",
          [f"s_cmp_eq_u32 s{sW}, 0", f"s_cselect_b32 s{sB}, s{sB}, 0x80000000"],
          WL("j1r"),
          f"v_add_f32 v{T1}, v{T1}, v{T1+1}", f"v_add_f32 v{T1+2}, v{T1+2}, v{T1+3}", f"v_add_f32 v{T1}, v{T1}, v{T1+2}"]
    for sw in ("v_permlane16_swap_b32", "v_permlane32_swap_b32"):
        L += [f"v_mov_b32 v{T1+1}, v{T1}", "s_nop 1", f"{sw} v{T1}, v{T1+1}", "s_nop 0", f"v_add_f32 v{T1}, v{T1}, v{T1+1}"]
    L += [f"v_cvt_pk_bf16_f32 v{T1}, v{T1}, v{T1}", f"v_lshlrev_b32 v{T1}, 16, v{T1}",
          I(f"buffer_store_dword v{T1}, v22, s[{S_WS}:{S_WS+3}], s{sB} offen sc1", "j1s")]
    L += [f"s_mov_b32 s{S_D+2}, 256", f"s_mov_b32 s{S_D+3}, 0x00020000",
          [f"s_sub_u32 s{sC_}, s{sB}, {1536*4}", f"s_cmp_lt_u32 s{sC_}, 4096", f"s_cselect_b32 s{sC_}, 2, 64", f"s_lshl_b32 s{sC_}, s{sC_}, 6",
           f"s_cmp_lt_u32 s{sB}, 4096", f"s_cselect_b32 s{sC_}, 0, s{sC_}"],
          f"v_lshlrev_b32 v23, 12, v2", f"v_mov_b32 v{T1+2}, 1"]
    g = G.stream(gb + 1, L)
    print("J1 store gap", g)
    g = G.stream(g + 24, [WV("j1s"), I(f"buffer_atomic_add v{T1+2}, v23, s[{S_D}:{S_D+3}], s{sC_} offen sc1", "j1a")])
    print("J1 signal gap", g)
    gsig = g

    F2 = J + 32
    L = [f"s_lshl_b32 s{sD}, s2, 2", f"s_add_u32 s{sD}, s{sD}, s{sW}",
         f"s_mov_b32 s{S_J2S}, s56", f"s_mov_b32 s{S_J2S+1}, s57", f"s_mov_b32 s{S_J2S+2}, {4096*1024}", f"s_mov_b32 s{S_J2S+3}, 0x00020000",
         [f"s_cmp_ge_u32 s{sD}, 736", f"s_cselect_b32 s{S_J2S}, s4, s{S_J2S}", f"s_cselect_b32 s{S_J2S+1}, s5, s{S_J2S+1}",
          f"s_cselect_b32 s{S_J2S+2}, {1792*1024}, s{S_J2S+2}", f"s_cselect_b32 s{sE}, 736, 0"],
         [f"s_cmp_ge_u32 s{sD}, 736", f"s_cselect_b32 s56, {112*2048}, {0}", f"s_cselect_b32 s57, {WS_W2F - WS_WOF}, 0"],
         [f"s_cmp_eq_u32 s56, 0", f"s_cselect_b32 s56, {256*2048}, s56"],
         f"s_sub_u32 s{sE}, s{sD}, s{sE}",
         f"s_lshr_b32 s4, s{sE}, 1", f"s_and_b32 s5, s{sE}, 1",
         f"s_mov_b32 s{sF}, 1024",
         f"s_sub_u32 s{sE}, s{sD}, 512", f"s_mul_i32 s6, s{sE}, 9363", f"s_lshr_b32 s6, s6, 16", f"s_mul_i32 s7, s6, 7", f"s_sub_u32 s7, s{sE}, s7",
         [f"s_cmp_lt_u32 s{sE}, 224", f"s_cselect_b32 s4, s6, s4", f"s_cselect_b32 s5, s7, s5", f"s_cselect_b32 s{sF}, 3584, s{sF}", f"s_cselect_b32 s56, {32*2048}, s56"],
         [f"s_cmp_lt_u32 s{sE}, 224", f"s_cselect_b32 s57, {WS_W1F - WS_WOF}, s57", f"s_cselect_b32 s{S_J2S}, s58, s{S_J2S}", f"s_cselect_b32 s{S_J2S+1}, s59, s{S_J2S+1}",
          f"s_cselect_b32 s{S_J2S+2}, {512*3584}, s{S_J2S+2}"],
         f"s_mul_i32 s6, s4, s{sF}", f"s_lshl_b32 s6, s6, 4", f"s_lshl_b32 s7, s5, 9", f"s_add_u32 s6, s6, s7",
         f"s_mul_i32 s7, s5, s56", f"s_lshl_b32 s7, s7, 2", f"s_add_u32 s57, s57, s7", f"s_lshl_b32 s7, s4, 11", f"s_add_u32 s57, s57, s7",
         f"s_add_u32 s57, s57, {WS_WOF}",
         [f"s_cmp_ge_u32 s{sD}, 960", f"s_cselect_b32 s57, 0x80000000, s57"],
         f"v_lshrrev_b32 v28, 5, v2", f"v_mul_lo_u32 v28, v28, s{sF}", f"v_and_b32 v29, 31, v2", f"v_lshl_add_u32 v28, v29, 4, v28",
         f"s_lshl_b32 s{sF}, s{sF}, 1",
         f"v_bfe_u32 v29, v2, 2, 2", f"v_lshrrev_b32 v30, 5, v2", f"v_lshl_add_u32 v29, v30, 2, v29", f"v_lshlrev_b32 v29, 9, v29",
         f"v_bfe_u32 v30, v2, 4, 1", f"v_lshl_add_u32 v29, v30, 5, v29", f"v_and_b32 v30, 3, v2", f"v_lshl_add_u32 v29, v30, 3, v29",
         f"v_add_u32 v29, s{sM0T}, v29"]
    g = G.stream(108, L)
    print("J2 setup end", g)
    assert g + 2 <= used[0]
    L = [WV("j2")]
    for f in range(8):
        for e in range(2):
            L.append(I(f"ds_read_b64_tr_b16 v[{F2+4*f+2*e}:{F2+4*f+2*e+1}], v29 offset:{e*4096+f*64}", "j2r"))
    L.append(WL("j2r"))
    for f in range(8):
        L.append(I(f"buffer_store_dwordx4 v[{F2+4*f}:{F2+4*f+3}], v1, s[{S_WS}:{S_WS+3}], s57 offen offset:{(f&1)*1024}", "j2s"))
        if f & 1: L.append(f"s_add_u32 s57, s57, s56")
        else: L.append("s_nop 0")
    g = G.stream(used[-1] + 60, L)
    print("J2 end gap", g)
    gj2 = g

    XR, GW = J, J + 8
    F, T = J + 16, 4
    L = [f"s_lshl_b32 s{sA}, s2, 13", f"s_lshl_b32 s10, s{sW}, 11", f"s_add_u32 s{sA}, s{sA}, s10",
         I(f"buffer_load_dwordx4 v[{XR}:{XR+3}], v1, s[{S_X}:{S_X+3}], s{sA} offen", "j3"),
         I(f"buffer_load_dwordx4 v[{XR+4}:{XR+7}], v1, s[{S_X}:{S_X+3}], s{sA} offen offset:1024", "j3"),
         f"s_mov_b32 s{S_M}, s58", f"s_mov_b32 s{S_M+1}, s59", f"s_mov_b32 s{S_M+2}, {512*3584}",
         f"s_mul_i32 s10, s2, 9363", f"s_lshr_b32 s10, s10, 18", f"s_mul_i32 s11, s10, 28", f"s_sub_u32 s11, s2, s11",
         f"v_lshrrev_b32 v16, 3, v0", f"v_and_b32 v17, 7, v0", f"v_mul_u32_u24 v18, 3584, v16", f"v_lshl_add_u32 v18, v17, 4, v18",
         f"s_mul_i32 s{sA}, s10, {64*3584}", f"s_lshl_b32 s{sD}, s11, 7", f"s_add_u32 s{sA}, s{sA}, s{sD}", f"s_add_u32 s{sD}, s{sA}, {32*3584}",
         I(f"buffer_load_dwordx4 v[{GW}:{GW+3}], v18, s[{S_M}:{S_M+3}], s{sA} offen", "j3"),
         I(f"buffer_load_dwordx4 v[{GW+4}:{GW+7}], v18, s[{S_M}:{S_M+3}], s{sD} offen", "j3")]
    g = G.stream(gsig + 1, L)
    print("J3 loads end", g)
    L = [WV("j3")]
    for rr in range(2):
        for qd in range(4):
            L.append(f"v_lshlrev_b32 v{F+8*rr+2*qd}, 16, v{XR+4*rr+qd}")
            L.append(f"v_and_b32 v{F+8*rr+2*qd+1}, 0xffff0000, v{XR+4*rr+qd}")
    for rr in range(2): L.append(f"v_add_f32 v{T+rr}, v{F+8*rr}, v{F+8*rr+1}")
    for e in range(2, 8):
        for rr in range(2): L.append(f"v_add_f32 v{T+rr}, v{T+rr}, v{F+8*rr+e}")
    def allred():
        R = ["s_nop 0"]
        for ror in (8, 4, 2, 1):
            for rr in range(2): R.append(f"v_add_f32_dpp v{T+rr}, v{T+rr}, v{T+rr} row_ror:{ror} row_mask:0xf bank_mask:0xf")
            R.append("s_nop 0")
        for sw in ("v_permlane16_swap_b32", "v_permlane32_swap_b32"):
            R += [f"v_mov_b32 v{T+2}, v{T}", f"v_mov_b32 v{T+3}, v{T+1}", "s_nop 0", f"{sw} v{T}, v{T+2}", f"{sw} v{T+1}, v{T+3}", "s_nop 0",
                  f"v_add_f32 v{T}, v{T}, v{T+2}", f"v_add_f32 v{T+1}, v{T+1}, v{T+3}"]
        return R
    L += allred()
    for rr in range(2): L.append(f"v_mul_f32 v{T+rr}, 0x3b000000, v{T+rr}")
    for rr in range(2):
        for e in range(8): L.append(f"v_sub_f32 v{F+8*rr+e}, v{F+8*rr+e}, v{T+rr}")
    for rr in range(2): L.append(f"v_mul_f32 v{T+rr}, v{F+8*rr}, v{F+8*rr}")
    for e in range(1, 8):
        for rr in range(2): L.append(f"v_fmac_f32 v{T+rr}, v{F+8*rr+e}, v{F+8*rr+e}")
    L += allred()
    L.append(f"v_mov_b32 v{T+2}, 0x3727c5ac")
    for rr in range(2): L.append(f"v_fmac_f32 v{T+2+rr}, 0x3b000000, v{T+rr}" if rr == 0 else f"v_mov_b32 v{T+3}, 0x3727c5ac")
    L.append(f"v_fmac_f32 v{T+3}, 0x3b000000, v{T+1}")
    for rr in range(2): L.append(f"v_rsq_f32 v{T+rr}, v{T+2+rr}")
    L.append("s_nop 0")
    for rr in range(2):
        for e in range(8): L.append(f"v_mul_f32 v{F+8*rr+e}, v{F+8*rr+e}, v{T+rr}")
    g = G.stream(g + 40, L)
    print("J3 stats end", g)
    g = max(g, gj2) + 1
    gpoll = max(g, int(os.environ.get("KA_POLL", "350")))
    L = [f"v_mov_b32 v{T+4}, 0",
         I(f"buffer_load_dword v{T+5}, v{T+4}, s[{S_D}:{S_D+3}], 0 offen sc1", "pl"),
         I(f"buffer_load_dword v{T+6}, v{T+4}, s[{S_D}:{S_D+3}], 0 offen offset:128 sc1", "pl")]
    g = G.stream(gpoll, L)
    CA, SA, GC = F2, F2 + 8, F2 + 16
    L = [[WV("pl"), f"v_add_u32 v{T+5}, v{T+5}, v{T+6}", "s_nop 0", f"v_readfirstlane_b32 s{sA}, v{T+5}"],
         [f"s_cmp_lg_u32 s{sA}, 128", "s_cbranch_scc1 KA_SPIN", "KA_SPIN_RET:"],
         f"v_lshlrev_b32 v19, 5, v2",
         I(f"buffer_load_dwordx4 v[{SA}:{SA+3}], v19, s[{S_WS}:{S_WS+3}], 0 offen sc1", "md"),
         I(f"buffer_load_dwordx4 v[{SA+4}:{SA+7}], v19, s[{S_WS}:{S_WS+3}], 0 offen offset:16 sc1", "md"),
         I(f"buffer_load_dwordx4 v[{CA}:{CA+3}], v19, s[{S_WS}:{S_WS+3}], 0 offen offset:2048 sc1", "md"),
         I(f"buffer_load_dwordx4 v[{CA+4}:{CA+7}], v19, s[{S_WS}:{S_WS+3}], 0 offen offset:2064 sc1", "md"),
         f"v_lshlrev_b32 v18, 2, v16", f"s_lshl_b32 s{sA}, s10, 8", f"s_add_u32 s{sD}, s{sA}, {3*2048}", f"s_add_u32 s{sA}, s{sA}, {4*2048}",
         I(f"buffer_load_dword v{GC}, v18, s[{S_WS}:{S_WS+3}], s{sA} offen sc1", "md"),
         I(f"buffer_load_dword v{GC+1}, v18, s[{S_WS}:{S_WS+3}], s{sA} offen offset:128 sc1", "md"),
         I(f"buffer_load_dword v{GC+2}, v18, s[{S_WS}:{S_WS+3}], s{sD} offen sc1", "md"),
         I(f"buffer_load_dword v{GC+3}, v18, s[{S_WS}:{S_WS+3}], s{sD} offen offset:128 sc1", "md")]
    g = G.stream(g + 24, L)
    print("J3 mod loads end", g)
    L = [WV("md")]
    GA = F2 + 20
    for rr in range(2): L.append(f"v_add_f32 v{GC+rr}, 1.0, v{GC+rr}")
    for rr in range(2): L.append(f"v_cvt_pk_bf16_f32 v{GC+rr}, v{GC+rr}, v{GC+rr}")
    for rr in range(2): L.append(f"v_lshlrev_b32 v{GC+rr}, 16, v{GC+rr}")
    for rr in range(2):
        op = "v_mul_f32" if rr == 0 else "v_fmac_f32"
        for qd in range(4):
            L.append(f"v_lshlrev_b32 v{T+4}, 16, v{GW+4*rr+qd}")
            L.append(f"v_and_b32 v{T+5}, 0xffff0000, v{GW+4*rr+qd}")
            L.append(f"{op} v{GA+2*qd}, v{T+4}, v{GC+rr}")
            L.append(f"{op} v{GA+2*qd+1}, v{T+5}, v{GC+rr}")
            L.append(f"{op} v{GA+8+2*qd}, v{T+4}, v{GC+2+rr}")
            L.append(f"{op} v{GA+8+2*qd+1}, v{T+5}, v{GC+2+rr}")
    L.append("s_nop 1")
    for e in range(16):
        L.append(f"v_add_f32_dpp v{GA+e}, v{GA+e}, v{GA+e} row_ror:8 row_mask:0xf bank_mask:0xf")
    SC2 = 65536 + 8192
    L += [f"v_lshrrev_b32 v18, 4, v0", f"v_lshlrev_b32 v18, 9, v18", f"v_lshl_add_u32 v18, v17, 5, v18", f"v_add_u32 v18, {SC2}, v18",
          I(f"ds_write_b128 v18, v[{GA}:{GA+3}]", "gw"), I(f"ds_write_b128 v18, v[{GA+4}:{GA+7}] offset:16", "gw"),
          I(f"ds_write_b128 v18, v[{GA+8}:{GA+11}] offset:256", "gw"), I(f"ds_write_b128 v18, v[{GA+12}:{GA+15}] offset:272", "gw")]
    g = G.stream(g + 24, L)
    print("g write end", g)
    gb2 = ((g + 1 + 4 + 31) // 32) * 32 - 4
    assert gb2 <= 4 * 119 + 0, gb2
    L = []
    for e in range(8): L.append(f"v_add_f32 v{CA+e}, 1.0, v{CA+e}")
    for e in range(8): L.append(f"v_cvt_pk_bf16_f32 v{CA+e}, v{CA+e}, v{CA+e}")
    for e in range(8): L.append(f"v_lshlrev_b32 v{CA+e}, 16, v{CA+e}")
    for rr in range(2):
        for e in range(8): L.append(f"v_fma_f32 v{F+8*rr+e}, v{F+8*rr+e}, v{CA+e}, v{SA+e}")
    for rr in range(2):
        for qd in range(4): L.append(f"v_cvt_pk_bf16_f32 v{XR+4*rr+qd}, v{F+8*rr+2*qd}, v{F+8*rr+2*qd+1}")
    L += [f"s_lshl_b32 s{sA}, s2, 3", f"s_lshl_b32 s{sD}, s{sW}, 1", f"s_add_u32 s{sA}, s{sA}, s{sD}", f"s_lshr_b32 s{sD}, s{sA}, 5",
          f"s_lshl_b32 s{sD}, s{sD}, 15", f"s_and_b32 s{sA}, s{sA}, 31", f"s_lshl_b32 s{sA}, s{sA}, 4", f"s_add_u32 s{sA}, s{sA}, s{sD}",
          f"s_add_u32 s{sA}, s{sA}, {WS_H1}", f"v_lshlrev_b32 v19, 9, v2",
          I(f"buffer_store_dwordx4 v[{XR}:{XR+3}], v19, s[{S_WS}:{S_WS+3}], s{sA} offen", "st"),
          I(f"buffer_store_dwordx4 v[{XR+4}:{XR+7}], v19, s[{S_WS}:{S_WS+3}], s{sA} offen offset:16", "st")]
    g = G.stream(g + 1, L)
    print("LN end", g)
    L = [f"v_and_b32 v18, 127, v0", f"v_lshlrev_b32 v18, 2, v18", f"v_add_u32 v18, {SC2}, v18"]
    L += [I(f"ds_read_b32 v{GA+i}, v18 offset:{512*i}", "gr") for i in range(16)]
    L += [f"s_lshl_b32 s{sA}, s10, 1", f"s_add_u32 s{sA}, s{sA}, s{sW}", f"s_mul_i32 s{sA}, s{sA}, 7168", f"s_lshl_b32 s{sD}, s11, 8",
          f"s_add_u32 s{sA}, s{sA}, s{sD}", f"s_add_u32 s{sA}, s{sA}, {WS_G}",
          [f"s_cmp_lt_u32 s2, 224", f"s_cselect_b32 s{sA}, s{sA}, 0x80000000", f"s_cmp_lt_u32 s{sW}, 2", f"s_cselect_b32 s{sA}, s{sA}, 0x80000000"],
          f"v_lshlrev_b32 v19, 2, v2", WL("gr")]
    for st_ in (8, 4, 2, 1):
        for i in range(st_): L.append(f"v_add_f32 v{GA+i}, v{GA+i}, v{GA+i+st_}")
    L.append(I(f"buffer_store_dword v{GA}, v19, s[{S_WS}:{S_WS+3}], s{sA} offen", "st"))
    g = G.stream(max(g, gb2) + 1, L)
    print("g end", g)
    L = [f"s_lshl_b32 s{sE}, s{sHD}, 8", [f"s_add_u32 s{S_M}, s8, s{sE}", f"s_addc_u32 s{S_M+1}, s9, 0"], f"s_mov_b32 s{S_M+2}, {511*8192+256}",
         f"v_lshrrev_b32 v30, 1, v2", f"v_and_b32 v31, 1, v2", f"v_lshlrev_b32 v30, 13, v30", f"v_lshl_add_u32 v30, v31, 7, v30",
         f"s_lshl_b32 s{sE}, s{sMT}, 19", f"s_and_b32 s{sF}, s{sW}, 1", f"s_lshl_b32 s{sF}, s{sF}, 18", f"s_add_u32 s{sE}, s{sE}, s{sF}",
         [f"s_cmp_lt_u32 s{sW}, 2", f"s_cselect_b32 s{sE}, s{sE}, 0x80000000"],
         I(f"buffer_load_dword v26, v30, s[{S_M}:{S_M+3}], s{sE} offen", "pf"),
         f"v_lshlrev_b32 v30, 7, v0", f"v_add_u32 v30, 16384, v30",
         I(f"global_load_dword v27, v30, s[64:65]", "pf")]
    G.stream(int(os.environ.get("KA_PFG", "330")), L)

    items = P + G.items()
    over = [(g, u) for g, u in enumerate(G.used) if u > 24]
    print("KA gaps over cap:", len(over), over[:40])
    if STAMPS:
        pos = [i for i, it in enumerate(items) if it.s.startswith("v_mfma")]
        for c in (3, 2, 1):
            b = ST.base + 2 * (2 + c)
            items.insert(pos[128 * c], I(f"s_memtime s[{b}:{b+1}]"))
        ST.n += 3
    items += [I("s_nop 7"), I("s_nop 3")] + [x if isinstance(x, Item) else I(x) for x in epi(3)]
    resolve(items, A, vm0=["pf0"])
    ST.stamp()
    if STAMPS: A("s_waitcnt vmcnt(0)")
    ST.stamp()
    ST.flush(4, f"s{sW}", 22)
    A("KA_END:")
    A("s_endpgm")
    A(f"""
    KA_SPIN:
    s_mov_b32 s{sD}, 200000
    KA_SPIN_L:
    s_sleep 8
    buffer_load_dword v{T+5}, v{T+4}, s[{S_D}:{S_D+3}], 0 offen sc1
    buffer_load_dword v{T+6}, v{T+4}, s[{S_D}:{S_D+3}], 0 offen offset:128 sc1
    s_waitcnt vmcnt(0)
    v_add_u32 v{T+5}, v{T+5}, v{T+6}
    s_nop 0
    v_readfirstlane_b32 s{sA}, v{T+5}
    s_cmp_eq_u32 s{sA}, 128
    s_cbranch_scc1 KA_SPIN_RET
    s_sub_u32 s{sD}, s{sD}, 1
    s_cmp_lg_u32 s{sD}, 0
    s_cbranch_scc1 KA_SPIN_L
    s_branch KA_SPIN_RET
    """)
    return name, A.text(), kernel_desc(name, 256, 256), "grid=(256,1,1) block=(256,1,1) lds=163840"
```

```python
from asmlib import *

class Item:
    __slots__ = ("s", "tag")
    def __init__(self, s, tag=None):
        self.s = s; self.tag = tag

def I(s, tag=None): return Item(s, tag)
def WV(*tags): return Item("WAITVM", tuple(tags))
def WL(*tags): return Item("WAITLG", tuple(tags))
def WVL(vt, lt): return Item("WAITBOTH", (tuple(vt), tuple(lt)))

def icost(it):
    if it.s.startswith("WAIT"): return 4
    if it.s.endswith(":"): return 0
    return cost(it.s)
def imem(it):
    return (not it.s.startswith("WAIT")) and (is_mem(it.s) or it.s == "s_barrier")

def is_vm(s):
    op = s.split()[0]
    return op.startswith("buffer_") or op.startswith("global_")
def is_lg(s):
    return s.split()[0].startswith("ds_")

def resolve(items, A, vm0=None, lg0=None):
    vm = list(vm0 or []); lg = list(lg0 or [])
    def cnt(lst, tags, cap):
        last = -1
        for i, t in enumerate(lst):
            if t in tags: last = i
        if last < 0: return None
        return min(len(lst) - 1 - last, cap)
    for it in items:
        s = it.s
        if s.startswith("WAIT"):
            vt, lt = ((it.tag, ()) if s == "WAITVM" else ((), it.tag) if s == "WAITLG" else it.tag)
            parts = []
            if vt:
                n = 0 if "*" in vt else cnt(vm, vt, 63)
                if n is not None:
                    parts.append(f"vmcnt({n})"); vm = vm[len(vm) - n:] if n else []
            if lt:
                n = 0 if "*" in lt else cnt(lg, lt, 15)
                if n is not None:
                    parts.append(f"lgkmcnt({n})"); lg = lg[len(lg) - n:] if n else []
            if parts: A("s_waitcnt " + " ".join(parts))
            else: A("s_nop 0")
            continue
        A(s)
        if s.endswith(":"): continue
        if is_vm(s): vm.append(it.tag)
        elif is_lg(s): lg.append(it.tag)
    return vm, lg

class Gaps:
    def __init__(self, mfmas, cap=24):
        self.m = mfmas; n = len(mfmas)
        self.mem = [[] for _ in range(n)]
        self.oth = [[] for _ in range(n)]
        self.end = [[] for _ in range(n)]
        self.used = [0] * n
        self.cap = cap
    def _it(self, x): return x if isinstance(x, Item) else Item(x)
    def put(self, g, x, where=None):
        xs = x if isinstance(x, list) else [x]
        for y in xs:
            y = self._it(y)
            w = where or ("mem" if imem(y) else "end")
            getattr(self, w)[g].append(y)
            self.used[g] += icost(y)
    def stream(self, start, xs, cap=None):
        cap = cap or self.cap
        g = start
        placed_here = False
        for x in xs:
            grp = [self._it(y) for y in (x if isinstance(x, list) else [x])]
            c = sum(icost(y) for y in grp)
            ismem = imem(grp[0])
            if ismem and placed_here:
                g += 1; placed_here = False
            while self.used[g] + c > cap and not (self.used[g] <= 4 and c > cap - 4):
                g += 1; placed_here = False
            if ismem:
                self.mem[g].append(grp[0]); self.oth[g] = grp[1:] + self.oth[g] if False else self.oth[g] + grp[1:]
                if len(grp) > 1: placed_here = True
            else:
                self.oth[g] += grp; placed_here = True
            self.used[g] += c
        return g
    def items(self):
        out = []
        for g, m in enumerate(self.m):
            out.append(Item(m))
            out += self.mem[g] + self.oth[g] + self.end[g]
        return out
```

```python
import sys, os
from asmlib import *

HEADER = open("adaLN_cond__compressed_kv_cla__dense_activation_mish__prompt.s.ref").read().split("; Override launch")[0]

def build(kernels, path):
    out = HEADER
    for name, body, desc, launch in kernels:
        out += f"; @launch kernel={name} {launch}\n"
    out += '.amdgcn_target "amdgcn-amd-amdhsa--gfx950"\n.text\n'
    for name, body, desc, launch in kernels:
        out += body
    out += '.section .rodata,"a"\n'
    for name, body, desc, launch in kernels:
        out += desc
    open(path, "w").write(out)

if __name__ == "__main__":
    import ka, k2, kc
    ks = [ka.gen_ka(), k2.gen_k2(), kc.gen_kc()]
    path = sys.argv[1] if len(sys.argv) > 1 else "adaLN_cond__compressed_kv_cla__dense_activation_mish__prompt.s"
    build(ks, path)
    print("wrote", path)
```

```python
from asmlib import *
from sched import I, WV, WL, WVL, Item, resolve, Gaps

QSCALE = 0x3e0293ee
import struct, math, os
QSCALE = struct.unpack("<I", struct.pack("<f", math.log2(math.e) / math.sqrt(128.0)))[0]
THR = struct.unpack("<I", struct.pack("<f", 2.0 ** 40))[0]
NEGBIG = struct.unpack("<I", struct.pack("<f", -1e30))[0]

AO, AQ, AK, AV = 0, 128, 192, 224
V_LANE16 = 1
V_KADDR = 2
V_VADDR = 3
V_DMA = 4
V_NINF = 5
V_LIM = 6
V_QA = 10
V_T0 = 12
VS = 16
VP = 80
VN = 112
VL = 144
VE = 148
VX = 156
V_J2 = 250
def S(par, q, e=None):
    b = VS + 32 * par + 16 * q
    return vr(b, 16) if e is None else f"v{b+e}"
def P(par, q, ks=None, i=None):
    b = VP + 16 * par + 8 * q
    if i is not None: return f"v{b+i}"
    return vr(b + 4 * ks, 4)
def L(par, q): return f"v{VL+2*par+q}"
def O(q, dt): return ar(AO + 64 * q + 16 * dt, 16)

S_K, S_V, S_WS, S_WQ = 12, 16, 20, 24
sW, sR, sP_, sHD, sPR = 30, 31, 32, 33, 34
sKOFF, sKEND, sN2B, sKDST, sVOFF = 36, 37, 38, 39, 40
sCNT, sTHR, sBLK, sQB, sN = 41, 42, 43, 44, 45
sT0, sT1, sT2 = 46, 47, 48
MASKP = [52, 54, 56, 58]

def kdma():
    pre = [f"s_and_b32 m0, s{sKDST}, 0xffff"]
    d = [f"buffer_load_dwordx4 v{V_DMA}, s[{S_K}:{S_K+3}], s{sKOFF} offen offset:{i*1024} lds" for i in range(4)]
    post = [f"s_add_u32 s{sKDST}, s{sKDST}, 16384",
            f"s_add_u32 s{sKOFF}, s{sKOFF}, 16384",
            f"s_cmp_eq_u32 s{sKOFF}, s{sKEND}",
            f"s_cselect_b32 s{sKOFF}, 0, s{sKOFF}",
            f"s_cselect_b32 s{S_K+2}, s{sN2B}, s{S_K+2}"]
    return pre, d, post
def vdma():
    pre = [f"s_and_b32 s{sT2}, s{sVOFF}, 0xffff", f"s_or_b32 m0, s{sT2}, 0x10000"]
    d = [f"buffer_load_dwordx4 v{V_LANE16}, s[{S_V}:{S_V+3}], s{sVOFF} offen offset:{i*1024} lds" for i in range(4)]
    post = [f"s_add_u32 s{sVOFF}, s{sVOFF}, 16384"]
    return pre, d, post

def kread(kk, odd):
    return f"ds_read_b128 {ar(AK+4*kk,4)}, v{V_KADDR} offset:{odd*16384+kk*1024}"
def vread(f, odd):
    return f"ds_read_b128 {ar(AV+4*f,4)}, v{V_VADDR} offset:{odd*16384+f*1024}"

def qk_mfmas(dst_par, czero=False):
    out = []
    for kk in range(8):
        for q in range(2):
            c = S(dst_par, q) if kk else ("0" if czero else vr(VN + 16 * q, 16))
            out.append(mfma(S(dst_par, q), ar(AK + 4 * kk, 4), ar(AQ + 32 * q + 4 * kk, 4), c))
    return out
def pv_mfmas(src_par, qmajor=False):
    out = []
    if qmajor:
        for q in (1, 0):
            for f in range(8):
                ks, dt = f // 4, f % 4
                out.append(mfma(O(q, dt), ar(AV + 4 * f, 4), P(src_par, q, ks), O(q, dt)))
    else:
        for f in range(8):
            ks, dt = f // 4, f % 4
            for q in range(2):
                out.append(mfma(O(q, dt), ar(AV + 4 * f, 4), P(src_par, q, ks), O(q, dt)))
    return out

def rho(e):
    return 8 * (e >> 2) + (e & 3)

def mask_stream(par, z):
    out = []
    els = [(q, e) for q in range(2) for e in range(16)]
    def cmp(i):
        q, e = els[i]
        mp = MASKP[i % 4]
        return f"v_cmp_le_i32 s[{mp}:{mp+1}], {rho(e)}, v{V_LIM+2*z+q}"
    def cnd(i):
        q, e = els[i]
        mp = MASKP[i % 4]
        return f"v_cndmask_b32 {S(par,q,e)}, v{V_NINF}, {S(par,q,e)}, s[{mp}:{mp+1}]"
    out += [cmp(0), cmp(1), cmp(2)]
    for i in range(32):
        out.append(cnd(i))
        if i + 3 < 32: out.append(cmp(i + 3))
    return out

def sm_stream(par, z=None):
    out = []
    els = [(q, e) for q in range(2) for e in range(16)]
    def cmp(i):
        q, e = els[i]
        mp = MASKP[i % 4]
        return f"v_cmp_le_i32 s[{mp}:{mp+1}], {rho(e)}, v{V_LIM+2*z+q}"
    def cnd(i):
        q, e = els[i]
        mp = MASKP[i % 4]
        return f"v_cndmask_b32 {S(par,q,e)}, v{V_NINF}, {S(par,q,e)}, s[{mp}:{mp+1}]"
    def ex(i):
        q, e = els[i]
        return f"v_exp_f32 v{VE+i%8}, {S(par,q,e)}"
    def add(i):
        q, e = els[i]
        src = L(1 - par, q) if e == 0 else L(par, q)
        return f"v_add_f32 {L(par,q)}, {src}, v{VE+i%8}"
    def cvt(i):
        q, e = els[i]
        return f"v_cvt_pk_bf16_f32 {P(par,q,i=e//2)}, v{VE+(i-1)%8}, v{VE+i%8}"
    if z is not None:
        out += [cmp(0), cmp(1), cmp(2), cnd(0)]
    for i in range(32):
        if z is not None:
            if i + 3 < 32: out.append(cmp(i + 3))
            if i + 1 < 32: out.append(cnd(i + 1))
        out.append(ex(i))
        if i >= 1:
            out.append(add(i - 1))
            if (i - 1) % 2 == 1:
                out.append(cvt(i - 1))
    out.append("s_nop 0")
    out.append(add(31))
    out.append(cvt(31))
    return out

def check_stream(par, label):
    return [f"v_add_f32 v{V_T0}, {L(par,0)}, {L(par,1)}",
            f"v_cmp_nle_f32 vcc, v{V_T0}, v{V_T0+1}",
            f"s_cbranch_vccnz {label}",
            f"{label}_ret:"]

def pack(ngaps, fixed, stream, last_gap, cap=24):
    gaps = [list(fixed.get(g, [])) for g in range(ngaps)]
    used = [sum(cost(i) for i in g) for g in gaps]
    total = sum(cost(i) for i in stream)
    while True:
        u = list(used); placed = [[] for _ in range(ngaps)]
        g = 0; ok = True
        for ins in stream:
            c = cost(ins)
            while g <= last_gap and u[g] + c > cap:
                g += 1
            if g > last_gap:
                ok = False; break
            placed[g].append(ins); u[g] += c
        if ok: break
        cap += 4
    res = []
    for g in range(ngaps):
        mem = [i for i in gaps[g] if is_mem(i) or i.startswith("s_barrier")]
        oth = [i for i in gaps[g] if not (is_mem(i) or i.startswith("s_barrier"))]
        res.append(mem + placed[g] + oth)
    return res, cap

def add_fixed(fx, g, ins):
    fx.setdefault(g, [])
    if isinstance(ins, list): fx[g] += ins
    else: fx[g].append(ins)

def place_dma(fx, grp, gaps4):
    pre, d, post = grp
    add_fixed(fx, gaps4[0] - 1, pre)
    for g, i in zip(gaps4, d):
        add_fixed(fx, g, i)
    g = gaps4[3]
    if len(post) == 5:
        add_fixed(fx, g, post[:2]); add_fixed(fx, g + 1, post[2:])
    else:
        add_fixed(fx, g, post)

rare_sites = []

def gen_rare(A, label, par, has_next):
    A.label(label)
    A("s_nop 15"); A("s_nop 7")
    T, T2 = VX, VX + 1
    for q in range(2):
        A(f"v_max3_f32 v{T}, {S(par,q,0)}, {S(par,q,1)}, {S(par,q,2)}")
        for e in range(3, 15, 2):
            A(f"v_max3_f32 v{T}, v{T}, {S(par,q,e)}, {S(par,q,e+1)}")
        A(f"v_max3_f32 v{T}, v{T}, {S(par,q,15)}, 0")
        A(f"v_mov_b32 v{T2}, v{T}")
        A("s_nop 1")
        A(f"v_permlane32_swap_b32 v{T}, v{T2}")
        A("s_nop 1")
        A(f"v_max_f32 v{T}, v{T}, v{T2}")
        A(f"v_exp_f32 v{T2}, -v{T}")
        for e in range(16):
            A(f"v_sub_f32 v{VN+16*q+e}, v{VN+16*q+e}, v{T}")
            A(f"v_sub_f32 {S(par,q,e)}, {S(par,q,e)}, v{T}")
            if has_next:
                A(f"v_sub_f32 {S(1-par,q,e)}, {S(1-par,q,e)}, v{T}")
        A(f"v_mul_f32 {L(1-par,q)}, {L(1-par,q)}, v{T2}")
        for i in range(0, 64, 4):
            for j in range(4):
                A(f"v_accvgpr_read_b32 v{VX+2+j}, a{AO+64*q+i+j}")
            for j in range(4):
                A(f"v_mul_f32 v{VX+2+j}, v{VX+2+j}, v{T2}")
            for j in range(4):
                A(f"v_accvgpr_write_b32 a{AO+64*q+i+j}, v{VX+2+j}")
    A.ext(sm_stream(par))
    A("s_nop 3")
    A(f"s_branch {label}_ret")

def gen_k2():
    global rare_sites
    rare_sites = []
    A = Asm()
    name = "k2attn_kernel"
    A.lines.append(kernel_header(name))
    A("""
    s_cmp_ge_u32 s2, 256
    s_cbranch_scc1 K2_END
    """)
    ST = Stamper(A, 1)
    ST.stamp()
    A(f"""
    s_load_dwordx2 s[4:5], s[0:1], {KA['wq']}
    s_load_dwordx2 s[8:9], s[0:1], {KA['ws']}
    s_load_dwordx2 s[52:53], s[0:1], {KA['wo']}
    s_load_dwordx2 s[54:55], s[0:1], {KA['w1']}
    s_load_dwordx2 s[56:57], s[0:1], {KA['w2']}
    v_lshrrev_b32 v12, 6, v0
    v_and_b32 v13, 63, v0
    v_readfirstlane_b32 s{sW}, v12
    v_lshlrev_b32 v{V_LANE16}, 4, v13
    s_and_b32 s{sT0}, s2, 7
    s_lshr_b32 s{sT1}, s2, 3
    s_and_b32 s{sHD}, s{sT1}, 3
    s_lshl_b32 s{sT0}, s{sT0}, 2
    s_add_u32 s{sHD}, s{sHD}, s{sT0}
    s_lshr_b32 s{sPR}, s{sT1}, 2
    s_and_b32 s{sR}, s{sW}, 1
    s_lshr_b32 s{sP_}, s{sW}, 1
    """)
    QA = 16
    WF = 144
    VOW = 176
    VWR = 184
    VH = 188
    def hreg(ks, q):
        return ar(8 * ks + 4 * q, 4)
    A(f"""
    v_lshrrev_b32 v14, 4, v13
    v_and_b32 v15, 15, v13
    v_lshlrev_b32 v12, 2, v14
    v_xor_b32 v15, v15, v12
    v_lshlrev_b32 v15, 4, v15
    v_lshl_add_u32 v15, v14, 13, v15
    s_lshl_b32 s{sT0}, s{sW}, 15
    v_add_u32 v{VOW}, s{sT0}, v15
    """)
    A(f"""
    s_sub_u32 s{sQB}, 15, s{sPR}
    s_cmp_eq_u32 s{sP_}, 0
    s_cselect_b32 s{sT0}, s{sQB}, s{sPR}
    s_lshl_b32 s{sT0}, s{sT0}, 2
    s_lshl_b32 s{sT1}, s{sR}, 1
    s_add_u32 s{sT0}, s{sT0}, s{sT1}
    s_lshl_b32 s{sT0}, s{sT0}, 15
    s_add_u32 s{sT0}, s{sT0}, {WS_H1}
    v_add_u32 v{VH}, s{sT0}, v{V_LANE16}
    v_add_u32 v{VH+1}, 32768, v{VH}
    s_waitcnt lgkmcnt(0)
    s_lshl_b32 s{sT0}, s{sHD}, 8
    s_add_u32 s{S_WQ}, s4, s{sT0}
    s_addc_u32 s{S_WQ+1}, s5, 0
    s_mov_b32 s{S_WQ+2}, {511*8192+256}
    s_mov_b32 s{S_WQ+3}, 0x00020000
    """)
    srd(A, S_WS, 8, 9, WS_END)
    A(f"s_lshl_b32 s60, s{sW}, 10")
    def qloads(ks):
        return [([f"s_mov_b32 s61, {ks*16*8192}", f"s_add_u32 m0, s60, {32768+ks*4096}"],
                 I(f"buffer_load_dwordx4 v{VOW}, s[{S_WQ}:{S_WQ+3}], s61 offen lds", f"q{ks}")),
                ([f"s_mov_b32 s62, {(ks//4)*4096}"] if ks % 4 == 0 else [],
                 I(f"buffer_load_dwordx4 {hreg(ks,0)}, v{VH}, s[{S_WS}:{S_WS+3}], s62 offen offset:{(ks%4)*1024}", f"q{ks}")),
                ([], I(f"buffer_load_dwordx4 {hreg(ks,1)}, v{VH+1}, s[{S_WS}:{S_WS+3}], s62 offen offset:{(ks%4)*1024}", f"q{ks}"))]
    NPRE = int(os.environ.get("K2_NPRE", "3"))
    vm0 = []
    for ks in range(NPRE):
        for pre, ld in qloads(ks):
            A.ext(pre)
            if pre: A("s_nop 0")
            A(ld.s); vm0.append(ld.tag)
    ST.stamp()
    A(f"""
    s_lshl_b32 s{sT0}, s{sHD}, 19
    s_add_u32 s{sT1}, s{sT0}, {WS_KF}
    s_add_u32 s{S_K}, s8, s{sT1}
    s_addc_u32 s{S_K+1}, s9, 0
    s_mov_b32 s{S_K+3}, 0x00020000
    s_add_u32 s{sT1}, s{sT0}, {WS_VF}
    s_add_u32 s{S_V}, s8, s{sT1}
    s_addc_u32 s{S_V+1}, s9, 0
    s_mov_b32 s{S_V+2}, 0x80000
    s_mov_b32 s{S_V+3}, 0x00020000
    s_lshl_b32 s{sT0}, s{sPR}, 1
    s_sub_u32 s{sN}, 32, s{sT0}
    s_lshl_b32 s{sKEND}, s{sN}, 14
    s_mov_b32 s{S_K+2}, s{sKEND}
    s_add_u32 s{sN2B}, s{sT0}, 2
    s_lshl_b32 s{sN2B}, s{sN2B}, 14
    s_mov_b32 s{sKOFF}, 0
    s_lshl_b32 s{sKDST}, s{sW}, 12
    s_mov_b32 s{sBLK}, 0
    v_add_u32 v{V_DMA}, s{sKDST}, v{V_LANE16}
    s_lshl_b32 s{sT0}, s{sP_}, 13
    v_add_u32 v{V_KADDR}, s{sT0}, v{V_LANE16}
    v_mov_b32 v{V_NINF}, 0xff800000
    s_lshl_b32 s{sT1}, s{sR}, 14
    s_add_u32 s{sT1}, s{sT1}, s{sT0}
    v_add_u32 v{V_QA}, s{sT1}, v{V_LANE16}
    v_xor_b32 v{V_QA+1}, 0x2000, v{V_QA}
    v_and_b32 v12, 31, v13
    v_lshrrev_b32 v14, 5, v13
    v_lshlrev_b32 v14, 2, v14
    v_sub_u32 v12, v12, v14
    """)
    A(f"""
    s_lshl_b32 s49, s2, 2
    s_add_u32 s49, s49, s{sW}
    s_mov_b32 s4, s52
    s_mov_b32 s5, s53
    s_mov_b32 s6, {4096*1024}
    s_mov_b32 s7, 0x00020000
    s_cmp_ge_u32 s49, 736
    s_cselect_b32 s4, s56, s4
    s_cselect_b32 s5, s57, s5
    s_cselect_b32 s6, {1792*1024}, s6
    s_cselect_b32 s50, 736, 0
    s_cselect_b32 s28, {WS_W2F - WS_WOF}, 0
    s_mov_b32 s29, {256*2048}
    s_cselect_b32 s29, {112*2048}, s29
    s_sub_u32 s50, s49, s50
    s_lshr_b32 s52, s50, 1
    s_and_b32 s53, s50, 1
    s_mov_b32 s11, 1024
    s_sub_u32 s50, s49, 512
    s_mul_i32 s56, s50, 9363
    s_lshr_b32 s56, s56, 16
    s_mul_i32 s57, s56, 7
    s_sub_u32 s57, s50, s57
    s_cmp_lt_u32 s50, 224
    s_cselect_b32 s52, s56, s52
    s_cselect_b32 s53, s57, s53
    s_cselect_b32 s11, 3584, s11
    s_cselect_b32 s29, {32*2048}, s29
    s_cselect_b32 s28, {WS_W1F - WS_WOF}, s28
    s_cselect_b32 s4, s54, s4
    s_cselect_b32 s5, s55, s5
    s_cselect_b32 s6, {512*3584}, s6
    s_mul_i32 s10, s52, s11
    s_lshl_b32 s10, s10, 4
    s_lshl_b32 s56, s53, 9
    s_add_u32 s10, s10, s56
    s_mul_i32 s56, s53, s29
    s_lshl_b32 s56, s56, 2
    s_add_u32 s28, s28, s56
    s_lshl_b32 s56, s52, 11
    s_add_u32 s28, s28, s56
    s_add_u32 s28, s28, {WS_WOF}
    s_cmp_ge_u32 s49, 960
    s_cselect_b32 s28, 0x80000000, s28
    v_lshrrev_b32 v15, 5, v13
    v_mul_lo_u32 v{V_J2}, v15, s11
    v_and_b32 v14, 31, v13
    v_lshl_add_u32 v{V_J2}, v14, 4, v{V_J2}
    s_lshl_b32 s11, s11, 1
    v_bfe_u32 v14, v13, 2, 2
    v_lshl_add_u32 v14, v15, 2, v14
    v_lshlrev_b32 v14, 9, v14
    v_bfe_u32 v15, v13, 4, 1
    v_lshl_add_u32 v14, v15, 5, v14
    v_and_b32 v15, 3, v13
    v_lshl_add_u32 v14, v15, 3, v14
    s_lshl_b32 s35, s{sW}, 13
    s_add_u32 s35, s35, 0x20000
    v_add_u32 v{V_J2+1}, s35, v14
    """)
    for z in range(2):
        for q in range(2):
            A(f"s_xor_b32 s{sT0}, s{sP_}, {q}")
            A(f"s_lshl_b32 s{sT1}, s{sR}, 1")
            A(f"s_add_u32 s{sT0}, s{sT0}, s{sT1}")
            A(f"s_sub_u32 s{sT0}, s{sT0}, s{sP_}")
            A(f"s_sub_u32 s{sT0}, s{sT0}, {2*z}")
            A(f"s_lshl_b32 s{sT0}, s{sT0}, 5")
            A(f"v_add_u32 v{V_LIM+2*z+q}, s{sT0}, v12")
    A(f"""
    v_bfe_u32 v12, v13, 2, 2
    v_lshrrev_b32 v14, 5, v13
    v_lshl_add_u32 v14, v14, 3, v12
    v_lshlrev_b32 v14, 8, v14
    v_bfe_u32 v15, v13, 4, 1
    v_lshl_add_u32 v14, v15, 5, v14
    v_and_b32 v15, 3, v13
    v_lshl_add_u32 v14, v15, 3, v14
    v_add_u32 v14, 0x8000, v14
    """)
    for nt in range(4):
        A(f"v_xor_b32 v15, {nt}, v12")
        A(f"v_lshl_add_u32 v{VWR+nt}, v15, 6, v14")
    for nt in range(4):
        A(f"v_add_u32 v{VWR+8+nt}, 0x10000, v{VWR+nt}")
    def wreads(ks):
        s = ks & 1
        L_ = []
        for nt in range(4):
            for e in range(2):
                b = WF + 16 * s + 4 * nt + 2 * e
                base = VWR + nt if ks < 16 else VWR + 8 + nt
                L_.append(I(f"ds_read_b64_tr_b16 v[{b}:{b+1}], v{base} offset:{(ks%16)*4096+e*1024}", f"w{ks}"))
        return L_
    mf = []
    for ks in range(32):
        for dt in range(4):
            for q in range(2):
                acc = vr(QA + 64 * q + 16 * dt, 16)
                mf.append(mfma(acc, vr(WF + 16 * (ks & 1) + 4 * dt, 4), hreg(ks, q), acc if ks else "0"))
    G = Gaps(mf)
    for ks in range(32):
        g0 = 8 * ks
        if ks % 2 == 0 or ks == 31:
            G.put(g0, "s_barrier", "mem")
        if ks + 1 < 32:
            rd = wreads(ks + 1)
            for i in range(4): G.put(g0 + i, rd[2 * i:2 * i + 2])
            if (ks + 1) % 2 == 0:
                G.put(g0 + 7, WVL([f"q{min(ks+3,31)}"], [f"w{ks+1}"]), "end")
            else:
                G.put(g0 + 7, WL(f"w{ks+1}"), "end")
    pend = []
    for ks in range(NPRE, 32): pend += qloads(ks)
    lastpost = []
    for t in range(2):
        pre, d, post = kdma()
        pend.append((lastpost + pre, I(d[0], "K")))
        pend += [([], I(x, "K")) for x in d[1:]]
        lastpost = post
    LD = int(os.environ.get("K2_LD", "6"))
    g = 1; n = 0
    while pend:
        ksn = NPRE + n // 3
        if ksn < 32 and g < 8 * (ksn - LD): g = 8 * (ksn - LD)
        pre, ld = pend.pop(0)
        G.put(g - 1, pre, "end"); G.put(g, ld, "mem")
        n += 1
        g += 1 if ksn <= LD else 2
    G.put(g - 1, lastpost, "end")
    print("K2 qproj last load gap", g)
    assert g < 246
    PP = [WV("q0"), I("s_barrier")]
    if STAMPS:
        b_ = ST.base + 2 * ST.n; ST.n += 1
        PP.append(I(f"s_memtime s[{b_}:{b_+1}]"))
    PP += wreads(0) + [WVL(["q2"], ["w0"])] + G.items()
    resolve(PP, A, vm0=vm0)
    ST.stamp()
    A(f"""
    s_lshl_b32 s{sT1}, s{sP_}, 15
    s_lshl_b32 s{sT0}, s{sR}, 14
    s_add_u32 s{sT1}, s{sT1}, s{sT0}
    s_add_u32 s{sT1}, s{sT1}, 98304
    v_add_u32 v12, s{sT1}, v{V_LANE16}
    s_lshl_b32 s{sVOFF}, s{sW}, 12
    """)
    dl = []
    for grp in (kdma(), kdma(), vdma(), vdma()):
        pre, d, post = grp
        dl += [(pre if i == 0 else [], x, post if i == 3 else []) for i, x in enumerate(d)]
    n = 0
    for dt in range(4):
        for q in range(2):
            for j in range(2):
                a0 = QA + 64 * q + 16 * dt + 8 * j
                pre, x, post = dl[n]; n += 1
                A.ext(pre)
                for i in range(4):
                    A(f"v_cvt_pk_bf16_f32 v{a0+i}, v{a0+2*i}, v{a0+2*i+1}")
                A(f"ds_write_b128 v12, v[{a0}:{a0+3}] offset:{(q*8+2*dt+j)*1024}")
                A(x); A.ext(post)
    A(f"""
    v_add_u32 v12, 98304, v{V_QA}
    v_add_u32 v13, 98304, v{V_QA+1}
    v_add_u32 v{V_QA}, 0x20000, v{V_QA}
    v_add_u32 v{V_QA+1}, 0x20000, v{V_QA+1}
    s_waitcnt vmcnt(16) lgkmcnt(0)
    s_barrier
    """)
    PP = []
    for kk in range(8):
        PP.append(I(kread(kk, 0), f"a{kk}"))
        PP.append(I(f"ds_read_b128 {ar(AQ+4*kk,4)}, v12 offset:{kk*1024}", f"a{kk}"))
    for kk in range(8):
        PP.append(I(f"ds_read_b128 {ar(AQ+32+4*kk,4)}, v13 offset:{kk*1024}", "qb"))
    def stamp_item():
        if not STAMPS: return []
        b_ = ST.base + 2 * ST.n; ST.n += 1
        return [I(f"s_memtime s[{b_}:{b_+1}]")]
    PP += stamp_item()
    VZ = 244
    for x in f"""
    s_lshl_b32 s{sT0}, s{sP_}, 13
    s_add_u32 s{sT0}, s{sT0}, 0x18000
    v_add_u32 v{V_VADDR}, s{sT0}, v{V_LANE16}
    v_mov_b32 {L(1,0)}, 0
    v_mov_b32 {L(1,1)}, 0
    s_lshr_b32 s{sCNT}, s{sN}, 1
    s_sub_u32 s{sCNT}, s{sCNT}, 1
    v_mov_b32 v{VZ}, 0
    v_mov_b32 v{VZ+1}, 0
    v_mov_b32 v{VZ+2}, 0
    v_mov_b32 v{VZ+3}, 0
    s_mov_b32 s{sTHR}, {NEGBIG}
    """.strip().split("\n"): PP.append(I(x.strip()))
    def qk_q(dst_par, q, czero):
        return [mfma(S(dst_par, q), ar(AK + 4 * kk, 4), ar(AQ + 32 * q + 4 * kk, 4),
                     S(dst_par, q) if kk else ("0" if czero else vr(VN + 16 * q, 16))) for kk in range(8)]
    def zero_mfmas(qs=(0, 1)):
        return [mfma(O(q, dt), vr(VZ, 4), vr(VZ, 4), "0") for q in qs for dt in range(4)]
    def init_q(q):
        T = VX + q
        R = [f"v_max3_f32 v{T}, {S(0,q,0)}, {S(0,q,1)}, {S(0,q,2)}", f"v_max3_f32 v{T+2}, {S(0,q,3)}, {S(0,q,4)}, {S(0,q,5)}"]
        for e in range(6, 14, 4):
            R.append(f"v_max3_f32 v{T}, v{T}, {S(0,q,e)}, {S(0,q,e+1)}")
            R.append(f"v_max3_f32 v{T+2}, v{T+2}, {S(0,q,e+2)}, {S(0,q,e+3)}")
        R += [f"v_max3_f32 v{T}, v{T}, {S(0,q,14)}, {S(0,q,15)}", f"v_max3_f32 v{T}, v{T}, v{T+2}, s{sTHR}",
              f"v_mov_b32 v{T+2}, v{T}", "s_nop 1", f"v_permlane32_swap_b32 v{T}, v{T+2}", "s_nop 0", f"v_max_f32 v{T}, v{T}, v{T+2}"]
        R += [f"v_sub_f32 v{VN+16*q+e}, 0, v{T}" for e in range(16)]
        return R
    def sm0_stream():
        subs = [f"v_sub_f32 {S(0,q,e)}, {S(0,q,e)}, v{VX+q}" for q in range(2) for e in range(16)]
        stream = subs[:2]; si = 2
        for ins in sm_stream(0):
            stream.append(ins)
            if ins.startswith("v_exp") and si < 32:
                stream.append(subs[si]); si += 1
        return stream
    def gdma(G, grp, gaps4, tag):
        pre, d, post = grp
        G.put(gaps4[0] - 1, pre, "end")
        for g, x in zip(gaps4, d): G.put(g, I(x, tag), "mem")
        G.put(gaps4[3], I("\n".join(post)), "end"); G.used[gaps4[3]] += 4 * (len(post) - 1)
    def fit(G, start, stream, last, cap0=24):
        import copy
        cap = cap0
        while True:
            H = copy.deepcopy(G)
            try:
                g = H.stream(start, stream, cap=cap)
                if g <= last: break
            except IndexError:
                pass
            cap += 4
        G.stream(start, stream, cap=cap)
        return cap
    G = Gaps(qk_q(0, 0, True) + qk_q(0, 1, True) + zero_mfmas() + qk_q(1, 0, False) + qk_q(1, 1, False))
    PP.append(WL("a0"))
    for kk in range(7): G.put(kk, WL(f"a{kk+1}"), "end")
    G.put(7, WL("qb"), "end")
    G.put(0, f"v_mov_b32 v{V_T0+1}, {THR}", "end")
    for kk in range(8): G.put(8 + kk, I(kread(kk, 1), "k1"))
    G.put(20, f"v_xor_b32 v{V_KADDR}, 0x8000, v{V_KADDR}", "end")
    G.put(22, WVL(["K2"], ["k1"]), "end")
    G.put(23, "s_barrier", "mem")
    for kk in range(8): G.put(32 + kk, I(kread(kk, 0), "k2"))
    gdma(G, kdma(), [24, 25, 26, 27], "K4"); gdma(G, kdma(), [29, 30, 31, 32], "K5"); gdma(G, vdma(), [34, 35, 36, 37], "V2")
    for g in range(8, 12): G.put(g, "s_nop 0", "end")
    g = G.stream(12, init_q(0)); assert g <= 21, g
    g = G.stream(max(g, 19), init_q(1)); assert g <= 29, g
    cap = fit(G, g, sm0_stream(), 39)
    print("P0 cap", cap)
    PP += G.items() + [WVL(["V0"], ["*"])]
    resolve(PP, A, vm0=["K2"] * 4 + ["K3"] * 4 + ["V0"] * 4 + ["V1"] * 4)

    def full_step(par, lab, tail=None):
        fx = {}
        add_fixed(fx, 0, "s_barrier")
        if par == 1:
            add_fixed(fx, 0, f"v_xor_b32 v{V_VADDR}, 0x8000, v{V_VADDR}")
        for f in range(8):
            add_fixed(fx, 1 + f, vread(f, 1 - par))
        add_fixed(fx, 15, "s_waitcnt lgkmcnt(0)")
        if par == 0:
            add_fixed(fx, 12, f"v_xor_b32 v{V_KADDR}, 0x8000, v{V_KADDR}")
        for kk in range(8):
            add_fixed(fx, 16 + kk, kread(kk, par))
        place_dma(fx, kdma(), [2, 6, 10, 13])
        place_dma(fx, vdma(), [18, 22, 25, 28])
        rare_sites.append((lab, par, True))
        chk = check_stream(par, lab)
        add_fixed(fx, 30, chk[:2] + (tail or []))
        add_fixed(fx, 31, chk[2:] + [f"s_waitcnt vmcnt(16) lgkmcnt(0)"])
        gaps, cap = pack(32, fx, sm_stream(par), 30)
        print(lab, "cap", cap)
        weave(A, qk_mfmas(1 - par) + pv_mfmas(1 - par), gaps)

    ST.stamp()
    A.lines.append(".p2align 3")
    A.label("K2_LOOP")
    full_step(1, "K2_RARE_O", tail=[f"s_sub_u32 s{sCNT}, s{sCNT}, 1", f"s_cmp_eq_u32 s{sCNT}, 0"])
    A("s_cbranch_scc1 K2_X")
    full_step(0, "K2_RARE_E")
    A("s_branch K2_LOOP")
    A.label("K2_X")
    A(f"s_cmp_eq_u32 s{sBLK}, 0")
    A("s_cbranch_scc0 K2_NM2")
    ST.stamp()
    def chk_put(G, par, lab, hn, gv, gb):
        rare_sites.append((lab, par, hn))
        chk = check_stream(par, lab)
        G.put(gv, chk[:2], "end"); G.put(gb, chk[2:], "end")
    PP = []
    G = Gaps(qk_mfmas(1) + pv_mfmas(1))
    G.put(0, "s_barrier", "mem")
    for f in range(8): G.put(1 + f, I(vread(f, 1), "v1"))
    G.put(15, WL("v1"), "end")
    G.put(12, f"v_xor_b32 v{V_KADDR}, 0x8000, v{V_KADDR}", "end")
    for kk in range(8):
        G.put(16 + kk, I(kread(kk, 0), "t1r"))
    for i in range(16):
        q, kk = i % 2, i // 2
        G.put(9 + i,
              I(f"ds_read_b128 {ar(AQ+32*q+4*kk,4)}, v{V_QA+q} offset:{kk*1024}", "t1r"))
    gdma(G, kdma(), [2, 6, 10, 13], "KB3")
    G.put(14, I(f"s_sub_u32 s{S_V}, s{S_V}, s{sKEND}\ns_subb_u32 s{S_V+1}, s{S_V+1}, 0\ns_add_u32 s{S_V+2}, s{S_V+2}, s{sKEND}"), "end")
    gdma(G, vdma(), [18, 22, 26, 28], "VB0")
    G.put(3, [f"v_lshrrev_b32 v240, 6, v{V_LANE16}", f"v_mul_lo_u32 v240, v240, s11", f"v_lshrrev_b32 v240, 1, v240",
              ], "end")
    G.put(5, [f"v_and_b32 v241, 48, v{V_LANE16}", f"v_lshl_add_u32 v240, v241, 3, v240"], "end")
    G.put(30, I(f"buffer_load_dword v241, v240, s[4:7], s10 offen", "pf"), "mem")
    chk_put(G, 0, "K2_RARE_T1", True, 30, 31)
    G.put(31, WVL(["VAl"], ["*"]), "end")
    print("T1 cap", fit(G, 0, sm_stream(0, 0), 30))
    PP += G.items()
    G = Gaps(qk_mfmas(0, czero=True) + pv_mfmas(0))
    G.put(0, "s_barrier", "mem")
    G.put(0, f"v_xor_b32 v{V_VADDR}, 0x8000, v{V_VADDR}", "end")
    for f in range(8): G.put(1 + f, I(vread(f, 0), "v2"))
    G.put(15, WL("v2"), "end")
    for kk in range(8):
        G.put(16 + 2 * kk, I(kread(kk, 1), "t2r"))
        G.put(17 + 2 * kk, I(vread(kk, 1), f"t2v{kk}"))
    gdma(G, kdma(), [2, 6, 10, 13], "KB4")
    gdma(G, vdma(), [18, 22, 26, 28], "VB1")
    chk_put(G, 1, "K2_RARE_T2", False, 30, 31)
    G.put(31, [f"s_cmp_lg_u32 s{sN2B}, 0x8000", "s_cbranch_scc1 K2_NOMASK0"], "end")
    print("T2 cap", fit(G, 0, sm_stream(1, 1), 30))
    PP += G.items() + [I(x) for x in mask_stream(0, 0)] + [I("K2_NOMASK0:")]
    PP += stamp_item()
    PO = 176
    XM = VX + 4
    def lsum_save():
        R = [f"v_mov_b32 v{XM+1}, {L(1,1)}", f"v_mov_b32 v{XM+3}, {L(1,0)}", f"v_mov_b32 v{XM}, v{VN+16}", f"v_mov_b32 v{XM+2}, v{VN}",
             f"v_permlane32_swap_b32 {L(1,1)}, v{XM+1}", f"v_permlane32_swap_b32 {L(1,0)}, v{XM+3}", "s_nop 0",
             f"v_add_f32 v{XM+1}, v{XM+1}, {L(1,1)}", f"v_add_f32 v{XM+3}, v{XM+3}, {L(1,0)}"]
        return R
    def ctx_addr():
        return [f"s_lshl_b32 s{sT0}, s{sQB}, 2", f"s_lshl_b32 s{sT1}, s{sR}, 1", f"s_add_u32 s{sT0}, s{sT0}, s{sT1}", f"s_add_u32 s{sT0}, s{sT0}, s{sP_}",
                f"s_lshl_b32 s{sT0}, s{sT0}, 18", f"s_lshl_b32 s{sT1}, s{sHD}, 13", f"s_add_u32 s{sT0}, s{sT0}, s{sT1}",
                f"s_add_u32 s63, s{sT0}, {WS_CTX}", f"s_add_u32 s64, s63, 4096"]
    def factors():
        F = XM + 10
        return [f"v_min_f32 v{F}, v{XM+2}, v{XM+4}", f"v_sub_f32 v{F+1}, v{F}, v{XM+2}", f"v_sub_f32 v{F+2}, v{F}, v{XM+4}",
                f"v_exp_f32 v{F+1}, v{F+1}", f"v_exp_f32 v{F+2}, v{F+2}", "s_nop 0",
                f"v_mul_f32 v{F}, v{F+1}, v{XM+3}", f"v_fmac_f32 v{F}, v{F+2}, v{XM+5}", f"v_rcp_f32 v{F}, v{F}", "s_nop 0",
                f"v_mul_f32 v{F+1}, v{F+1}, v{F}", f"v_mul_f32 v{F+2}, v{F+2}, v{F}"]
    CST = os.environ.get("K2_CST", "sc1")
    def combine(fi, tmp):
        F = XM + 10
        R = []
        for e in range(8): R.append(f"v_accvgpr_read_b32 v{tmp+e}, a{AO+8*fi+e}")
        for e in range(8): R.append(f"v_mul_f32 v{PO+8*fi+e}, v{PO+8*fi+e}, v{F+2}")
        for e in range(8): R.append(f"v_fmac_f32 v{PO+8*fi+e}, v{tmp+e}, v{F+1}")
        for i in range(4): R.append(f"v_cvt_pk_bf16_f32 v{PO+8*fi+i}, v{PO+8*fi+2*i}, v{PO+8*fi+2*i+1}")
        R.append(I(f"buffer_store_dwordx4 v[{PO+8*fi}:{PO+8*fi+3}], v{V_LANE16}, s[{S_WS}:{S_WS+3}], s{63+fi//4} offen offset:{(fi%4)*1024} {CST}", "cst"))
        return R
    PP.append(WL("t2v3"))
    G = Gaps(pv_mfmas(1, qmajor=True) + qk_q(1, 0, False) + qk_q(1, 1, False) + zero_mfmas((1,)))
    G.put(3, WL("t2v7"), "end")
    G.put(4, "s_barrier", "mem")
    addr = [f"s_and_b32 s{sT0}, s{sVOFF}, 0x8000", f"s_or_b32 s{sT0}, s{sT0}, 0x10000",
            [f"s_cmp_eq_u32 s{sP_}, 0", f"s_cselect_b32 s{sT1}, s{sT0}, 0x20000", f"s_cselect_b32 s{sT0}, 0x20000, s{sT0}"],
            f"s_lshl_b32 s{sT2}, s{sR}, 14", f"s_add_u32 s{sT1}, s{sT1}, s{sT2}", f"s_add_u32 s{sT0}, s{sT0}, s{sT2}",
            f"v_add_u32 v{XM+6}, s{sT1}, v{V_LANE16}", f"v_add_u32 v{XM+7}, s{sT0}, v{V_LANE16}",
            f"s_and_b32 s{sT0}, s{sKDST}, 0xffff", f"v_add_u32 v{XM+8}, s{sT0}, v{V_LANE16}", f"v_xor_b32 v{XM+9}, 0x2000, v{XM+8}"]
    for i in range(16):
        G.put(12 + i, I(f"ds_write_b128 v{XM+6}, {ar(AO+64+4*i,4)} offset:{i*1024}", "xw"), "mem"); G.used[12 + i] += 8
    G.put(11, I(f"ds_write_b64 v{XM+8}, v[{XM}:{XM+1}]", "xw"), "mem")
    G.put(20, f"v_xor_b32 v{V_KADDR}, 0x8000, v{V_KADDR}", "end")
    for kk in range(8): G.put(24 + kk, I(kread(kk, 0), "t3k"))
    G.put(31, WL("xw"), "end")
    G.put(32, "s_barrier", "mem")
    G.put(32, I(f"ds_read_b64 v[{XM+4}:{XM+5}], v{XM+9}", "xr"), "mem")
    for i in range(16):
        G.put(32 + i // 4, I(f"ds_read_b128 v[{PO+4*i}:{PO+4*i+3}], v{XM+7} offset:{i*1024}", "xr"), "mem")
    g = G.stream(0, lsum_save() + [f"v_mov_b32 {L(1,0)}, 0", f"v_mov_b32 {L(1,1)}, 0"] + addr); assert g <= 9, g
    g = G.stream(g, init_q(0)); assert g <= 14, g
    g = G.stream(g, init_q(1), cap=28); assert g <= 22, g
    sm0 = sm0_stream()
    NH = int(os.environ.get("K2_T3H", "70"))
    print("T3 cap", fit(G, g, sm0[:NH], 35))
    PP += G.items() + [I(x) for x in sm0[NH:] + ctx_addr()]
    PP += [WL("*"), I("s_barrier")]
    misc = []
    for grp, tag in ((kdma(), "KB5"), (vdma(), "VB2")):
        pre, d, post = grp
        misc.append([I(x) for x in pre] + [I("s_nop 0"), I(d[0], tag), I(d[1], tag)])
        misc.append([I(d[2], tag), I(d[3], tag)] + [I(x) for x in post])
    for i in range(0, 8, 2):
        grp = []
        for k in (i, i + 1):
            grp += [I(f"s_add_u32 m0, s35, {k*1024}"), I("s_nop 0"), I(f"buffer_load_dwordx4 v{V_J2}, s[4:7], s10 offen lds", "j2"), I("s_add_u32 s10, s10, s11")]
        misc.append(grp)
    PP += misc[0] + misc[1]
    PP += [I(x) for x in factors()]
    for fi in range(8):
        PP += [x if isinstance(x, Item) else I(x) for x in combine(fi, VP + 16 + 8 * (fi % 2))]
        if fi + 2 < len(misc): PP += misc[fi + 2]
        if fi % 2 == 1: PP.append(I(mfma(O(0, fi // 2), vr(VZ, 4), vr(VZ, 4), "0")))
    for x in f"""
    s_getpc_b64 s[52:53]
    s_add_u32 s52, s52, kc_kernel-.
    s_addc_u32 s53, s53, 0
    v_lshlrev_b32 v240, 6, v0
    global_load_dword v241, v240, s[52:53]
    v_lshlrev_b32 v240, 4, v0
    s_lshl_b32 s52, s2, 12
    s_add_u32 s52, s52, {WS_FLAG}
    s_cmp_lt_u32 s2, 16
    s_cselect_b32 s52, s52, 0x80000000
    buffer_store_dwordx4 v[{VZ}:{VZ+3}], v240, s[{S_WS}:{S_WS+3}], s52 offen
    s_mov_b32 s{sBLK}, 1
    s_mov_b32 s{sQB}, s{sPR}
    s_mov_b32 s{sCNT}, s{sPR}
    s_cmp_eq_u32 s{sPR}, 0
    """.strip().split("\n"): PP.append(I(x.strip()))
    PP.append(WV("VB1"))
    PP += stamp_item()
    resolve(PP, A, vm0=["KB1"] * 4 + ["VAm"] * 4 + ["KB2"] * 4 + ["VAl"] * 4)
    A("s_cbranch_scc0 K2_LOOP")
    A("s_waitcnt vmcnt(0)")
    A("s_branch K2_LAST")
    A.label("K2_NM2")
    ST.stamp()
    G = Gaps(qk_mfmas(1) + pv_mfmas(1))
    G.put(0, "s_barrier", "mem")
    for f in range(8): G.put(1 + f, I(vread(f, 1), "v1"))
    G.put(15, WL("v1"), "end")
    chk_put(G, 0, "K2_RARE_M", True, 30, 31)
    G.put(31, WV("*"), "end")
    print("NM2 cap", fit(G, 0, sm_stream(0, 0), 30))
    resolve(G.items(), A)
    A.label("K2_LAST")
    PP = [I("s_barrier"), I(f"v_xor_b32 v{V_VADDR}, 0x8000, v{V_VADDR}")]
    PP += [I(vread(f, 0), "v2") for f in range(8)]
    for f in range(8):
        for e in range(2):
            PP.append(I(f"ds_read_b64_tr_b16 {ar(AQ+4*f+2*e,2)}, v{V_J2+1} offset:{e*4096+f*64}", "j2r"))
    sm = sm_stream(1, 1)
    PP += [I(x) for x in sm[:20]] + [WL("v2")]
    G = Gaps(pv_mfmas(0))
    for f in range(8): G.put(2 * f + 1, I(vread(f, 1), "v3"))
    G.put(1, WL("j2r"), "end")
    for f in range(8):
        G.put(2 * f + 2 if f < 7 else 15, I(f"buffer_store_dwordx4 {ar(AQ+4*f,4)}, v{V_LANE16}, s[{S_WS}:{S_WS+3}], s28 offen offset:{(f&1)*1024} {CST}", "j2s"), "mem")
        if f & 1 and f < 7: G.put(2 * f + 2, "s_add_u32 s28, s28, s29", "end")
    chk_put(G, 1, "K2_RARE_L", False, 15, 15)
    G.put(15, WL("v3"), "end")
    print("LAST cap", fit(G, 0, sm[20:], 15))
    PP += G.items()
    PP += stamp_item()
    G = Gaps(pv_mfmas(1, qmajor=True))
    addr = [f"s_lshl_b32 s{sT0}, s{sW}, 14", f"v_add_u32 v{XM+6}, s{sT0}, v{V_LANE16}", f"v_xor_b32 v{XM+7}, 0x8000, v{XM+6}",
            f"v_add_u32 v{XM+8}, s35, v{V_LANE16}", f"v_xor_b32 v{XM+9}, 0x4000, v{XM+8}"]
    G.put(0, "s_nop 1", "oth")
    g = G.stream(0, lsum_save() + addr + ctx_addr()); assert g <= 6, g
    G.put(7, I(f"ds_write_b64 v{XM+8}, v[{XM}:{XM+1}]", "xw"), "mem")
    for g in range(5, 10): G.put(g, "s_nop 1", "end")
    for i in range(12):
        G.put(10 + i // 2, I(f"ds_write_b128 v{XM+6}, {ar(AO+64+4*i,4)} offset:{i*1024}", "xw"), "mem")
    PP += G.items()
    for i in range(12, 16):
        PP.append(I(f"ds_write_b128 v{XM+6}, {ar(AO+64+4*i,4)} offset:{i*1024}", "xw"))
    PP += [WL("xw"), I("s_barrier"), I(f"ds_read_b64 v[{XM+4}:{XM+5}], v{XM+9}", "ml")]
    for i in range(16):
        PP.append(I(f"ds_read_b128 v[{PO+4*i}:{PO+4*i+3}], v{XM+7} offset:{i*1024}", f"x{i//2}"))
    PP += stamp_item()
    PP.append(WL("ml"))
    PP += [I(x) for x in factors()]
    for fi in range(8):
        c = combine(fi, VP + 8 * (fi % 2))
        PP += [I(x) for x in c[:8]] + [WL(f"x{fi}")] + [x if isinstance(x, Item) else I(x) for x in c[8:]]
    resolve(PP, A)
    ST.stamp()
    if STAMPS: A("s_waitcnt vmcnt(0)")
    ST.stamp()
    ST.flush(4, f"s{sW}", 12)
    A("K2_END:")
    A("s_endpgm")
    for lab, par, hn in rare_sites:
        gen_rare(A, lab, par, hn)
    return name, A.text(), kernel_desc(name, 256, 256), "grid=(256,1,1) block=(256,1,1) lds=163840"
```

```python
from asmlib import *
from sched import *
import os
LOG2E = 0x3fb8aa3b
import struct, math
QSCALE = struct.unpack('<I', struct.pack('<f', math.log2(math.e) / math.sqrt(128.0)))[0]
STF = os.environ.get("KA_ST", "sc1")
WNT = os.environ.get("KA_WNT", "")

def gen_ka(code_bytes_total=65536):
    A = Asm()
    name = "k1a_kernel"
    A.lines.append(kernel_header(name))
    A("s_getpc_b64 s[64:65]")
    A("s_cmp_ge_u32 s2, 256")
    A("s_cbranch_scc1 KA_END")
    ST = Stamper(A, 0)
    ST.stamp()
    VOT, VOW, VT, VW = 4, 12, 16, 20
    WF, ACC, J = 32, 64, 192
    VW2 = 3
    PFN = os.environ.get('KA_PFNT', '')
    J2ON = os.environ.get('KA_J2', '1') == '1'
    S_T, S_WK, S_WV, S_WS = 12, 16, 20, 24
    S_X, S_J2S, S_D, S_M = 28, 32, 36, 60
    sW, sHD, sMT, sXC, sJ = 40, 41, 42, 43, 44
    sM0T, sM0W, sT0, sT1, sKV = 45, 46, 47, 48, 49
    sM0J = 3
    sA, sB, sC_, sD, sE, sF = 50, 51, 52, 53, 54, 55
    A(f"""
    s_load_dwordx8 s[4:11], s[0:1], 0
    s_load_dwordx2 s[{S_WV}:{S_WV+1}], s[0:1], {KA['wuv']}
    s_load_dwordx2 s[{S_WS}:{S_WS+1}], s[0:1], {KA['ws']}
    v_lshrrev_b32 v3, 6, v0
    v_and_b32 v2, 63, v0
    v_readfirstlane_b32 s{sW}, v3
    v_lshlrev_b32 v1, 4, v2
    s_and_b32 s{sXC}, s2, 7
    s_lshr_b32 s{sJ}, s2, 3
    s_and_b32 s{sHD}, s{sJ}, 3
    s_lshl_b32 s{sT0}, s{sXC}, 2
    s_add_u32 s{sHD}, s{sHD}, s{sT0}
    s_lshr_b32 s{sMT}, s{sJ}, 2
    v_lshrrev_b32 v22, 3, v2
    v_lshrrev_b32 v23, 4, v2
    v_and_b32 v24, 7, v2
    v_xor_b32 v25, v24, v23
    v_lshlrev_b32 v25, 4, v25
    v_lshl_add_u32 v25, v22, 10, v25
    s_lshl_b32 s{sT0}, s{sW}, 16
    v_add_u32 v25, s{sT0}, v25
    """)
    for i in range(8):
        A(f"v_add_u32 v{VOT+i}, {8*i*1024-(i%4)*1024}, v25")
        if i % 2: A(f"v_xor_b32 v{VOT+i}, 64, v{VOT+i}")
    A(f"""
    v_and_b32 v23, 1, v23
    v_lshlrev_b32 v23, 2, v23
    v_xor_b32 v25, v24, v23
    v_lshlrev_b32 v25, 4, v25
    v_lshl_add_u32 v25, v22, 13, v25
    s_lshl_b32 s{sT0}, s{sW}, 18
    v_add_u32 v25, s{sT0}, v25
    """)
    for i in range(4):
        A(f"v_add_u32 v{VOW+i}, {8*i*8192-i*1024}, v25")
    A(f"""
    s_lshl_b32 s{sM0W}, s{sW}, 12
    s_lshl_b32 s{sM0T}, s{sW}, 14
    s_add_u32 s{sM0T}, s{sM0T}, 98304
    v_lshlrev_b32 v22, 7, v2
    v_lshlrev_b32 v23, 13, v2
    s_waitcnt lgkmcnt(0)
    s_lshl_b32 s{sT0}, s{sMT}, 18
    s_add_u32 s{S_T}, s6, s{sT0}
    s_addc_u32 s{S_T+1}, s7, 0
    s_mov_b32 s{S_T+2}, 0x40000
    s_mov_b32 s{S_T+3}, 0x00020000
    s_lshl_b32 s{sT0}, s{sHD}, 8
    s_add_u32 s{S_WK}, s10, s{sT0}
    s_addc_u32 s{S_WK+1}, s11, 0
    s_mov_b32 s{S_WK+2}, {511*8192+256}
    s_mov_b32 s{S_WK+3}, 0x00020000
    """)
    A(f"""
    s_cmp_eq_u32 s{sW}, 0
    s_cbranch_scc1 KA_PF0
    s_cmp_eq_u32 s{sW}, 3
    s_cbranch_scc0 KA_PF1
    s_and_b32 s{sT1}, s{sJ}, 3
    s_lshl_b32 s{sT1}, s{sT1}, 13
    v_add_u32 v22, s{sT1}, v22
    global_load_dword v26, v22, s[64:65]
    s_branch KA_PFD
    KA_PF0:
    s_lshl_b32 s{sT1}, s{sHD}, 13
    buffer_load_dword v26, v22, s[{S_T}:{S_T+3}], s{sT1} offen
    s_branch KA_PFD
    KA_PF1:
    s_lshl_b32 s{sT1}, s{sMT}, 19
    s_lshl_b32 s{sT0}, s{sW}, 7
    s_add_u32 s{sT1}, s{sT1}, s{sT0}
    s_sub_u32 s{sT1}, s{sT1}, 128
    buffer_load_dword v26, v23, s[{S_WK}:{S_WK+3}], s{sT1} offen {PFN}
    KA_PFD:
    """)
    WSLOT = {0: 0, 1: 1, 2: 2, 3: 3, 4: 4, 5: 5, 6: 0, 7: 1, 8: 2, 9: 6, 10: 7, 11: 3, 12: 4, 13: 5, 14: 0, 15: 1}
    def wdma(u):
        c = u // 4
        srdr = S_WK if c < 2 else S_WV
        pre = [f"s_add_u32 m0, s{sM0W}, {WSLOT[u]*16384}", f"s_mov_b32 s{sT0}, {(u%4)*128*8192+(c&1)*128}"]
        return pre, [I(f"buffer_load_dwordx4 v{VOW+i}, s[{srdr}:{srdr+3}], s{sT0} offen offset:{i*1024} {WNT} lds", f"W{u}") for i in range(4)]
    def tdma(s, grp):
        pre = [f"s_add_u32 m0, s{sM0T}, {(s%2)*8192+grp*4096}", f"s_mov_b32 s{sT0}, {s*128}"]
        return pre, [I(f"buffer_load_dwordx4 v{VOT+i}, s[{S_T}:{S_T+3}], s{sT0} offen offset:{(i%4)*1024} lds", f"T{s}") for i in range(4 * grp, 4 * grp + 4)]
    P = []
    def seq(g):
        pre, d = g
        return [I(x) for x in pre] + d
    P += seq(wdma(0)) + seq(tdma(0, 0)) + seq(tdma(0, 1))
    setup = f"""
    s_add_u32 s{S_WV}, s{S_WV}, s{sKV}
    s_addc_u32 s{S_WV+1}, s{S_WV+1}, 0
    s_mov_b32 s{S_WV+2}, {511*8192+256}
    s_mov_b32 s{S_WV+3}, 0x00020000
    s_mov_b32 s{S_WS+2}, {WS_END}
    s_mov_b32 s{S_WS+3}, 0x00020000
    s_mov_b32 s{S_X}, s4
    s_mov_b32 s{S_X+1}, s5
    s_mov_b32 s{S_X+2}, 0x200000
    s_mov_b32 s{S_X+3}, 0x00020000
    v_and_b32 v22, 31, v2
    v_lshrrev_b32 v23, 5, v2
    v_bfe_u32 v24, v2, 1, 3
    v_lshlrev_b32 v25, 7, v22
    v_add_u32 v25, s{sM0T}, v25
    """
    P += [I(f"s_lshl_b32 s{sKV}, s{sHD}, 8")] + [I(x.strip()) for x in setup.strip().split("\n")]
    for ks in range(4):
        P += [I(f"v_add_u32 v27, {2*ks}, v23"), I(f"v_xor_b32 v27, v27, v24"), I(f"v_lshl_add_u32 v{VT+ks}, v27, 4, v25")]
    setup = f"""
    v_bfe_u32 v22, v2, 2, 2
    v_lshl_add_u32 v25, v23, 3, v22
    v_lshlrev_b32 v25, 7, v25
    v_bfe_u32 v24, v2, 4, 1
    v_lshl_add_u32 v25, v24, 5, v25
    v_and_b32 v24, 3, v2
    v_lshl_add_u32 v25, v24, 3, v25
    v_lshrrev_b32 v22, 1, v22
    v_lshl_add_u32 v{VW}, v22, 6, v25
    v_xor_b32 v{VW+1}, 64, v{VW}
    v_add_u32 v30, 0x10000, v{VW}
    v_add_u32 v31, 0x10000, v{VW+1}
    s_lshl_b32 s{sKV}, s{sHD}, 19
    s_lshl_b32 s{sT1}, s{sMT}, 16
    s_add_u32 s{sKV}, s{sKV}, s{sT1}
    s_lshl_b32 s{sT1}, s{sW}, 14
    s_add_u32 s{sKV}, s{sKV}, s{sT1}
    """
    P += [I(x.strip()) for x in setup.strip().split("\n")]
    P += seq(tdma(1, 0)) + seq(tdma(1, 1))
    P += [
          I(f"s_load_dwordx2 s[6:7], s[0:1], {KA['c']}"),
          I(f"s_load_dwordx2 s[10:11], s[0:1], {KA['wmod']}"),
          I(f"s_load_dwordx2 s[{S_D}:{S_D+1}], s[0:1], {KA['dbg']}"),
          I("s_waitcnt lgkmcnt(0)")]
    def treads(s):
        return [I(f"ds_read_b128 {ar((( 4*s+k)*2+q)*4,4)}, v{VT+k} offset:{(s%2)*8192+q*4096}", f"t{s}") for k in range(4) for q in range(2)]
    def wreads(gk):
        u, ksl, st = gk // 8, gk % 8, gk & 3
        sl = WSLOT[u]
        base = VW if sl < 4 else 30
        return [I(f"ds_read_b64_tr_b16 v[{WF+8*st+4*nt+2*e}:{WF+8*st+4*nt+2*e+1}], v{base+nt} offset:{(sl%4)*16384+ksl*2048+e*512}", f"w{gk}")
                for nt in range(2) for e in range(2)]
    if STAMPS:
        P.append(I(f"s_memtime s[{ST.base+2}:{ST.base+3}]")); ST.n += 1
    P += [WV("W0", "T0"), I("s_barrier")]
    if STAMPS:
        P.append(I(f"s_memtime s[{ST.base+4}:{ST.base+5}]")); ST.n += 1
        P.append(I("s_waitcnt lgkmcnt(0)"))
    P += wreads(0) + treads(0) + wreads(1) + [WL("w0", "t0")]

    mf = []
    for c in range(4):
        for ks in range(32):
            st = ks & 3
            for nt in range(2):
                for q in range(2):
                    acc = vr(ACC + 64 * (c & 1) + 16 * (2 * q + nt), 16)
                    wf = vr(WF + 8 * st + 4 * nt, 4)
                    tk = ar((ks * 2 + q) * 4, 4)
                    cc = acc if ks else "0"
                    mf.append(mfma(acc, wf, tk, cc) if c < 2 else mfma(acc, tk, wf, cc))
    G = Gaps(mf)
    dma_gaps = set()
    def put_dma(g0, grp, step=1):
        pre, d = grp
        G.put(g0 - 1, pre, "end")
        for i, x in enumerate(d):
            g = g0 + i * step
            G.put(g, x, "mem")
        for g in range(g0 - 1, g0 + (len(d) - 1) * step + 1):
            assert g not in dma_gaps or g == g0 - 1, g
        for g in range(g0, g0 + (len(d) - 1) * step + 1):
            dma_gaps.add(g)
    def BG(u): return 4 * (8 * u - 2)
    for gk in range(128):
        g0 = 4 * gk
        if gk + 2 < 128:
            if (gk + 2) % 8 == 0:
                G.put(g0, "s_barrier", "mem")
            rd = wreads(gk + 2)
            for i in range(4): G.put(g0 + i, rd[i])
        if gk + 1 < 128:
            tags = [f"w{gk+1}"]
            if gk + 1 < 32 and (gk + 1) % 4 == 0: tags.append(f"t{(gk+1)//4}")
            if (gk + 3) % 8 == 0 and gk + 3 < 128:
                G.put(g0 + 3, WVL([f"W{(gk+3)//8}"], tags), "end")
            else:
                G.put(g0 + 3, WL(*tags), "end")
    for s in range(1, 8):
        g0 = 4 * (4 * s - 2)
        G.put(g0 - 1, WV(f"T{s}"), "end")
        rd = treads(s)
        for i in range(4): G.put(g0 + i, rd[2 * i:2 * i + 2])
    put_dma(1, wdma(1))
    put_dma(5, tdma(2, 0)); put_dma(9, tdma(2, 1))
    put_dma(16, tdma(3, 0)); put_dma(20, tdma(3, 1))
    put_dma(24, wdma(2))
    put_dma(32, tdma(4, 0)); put_dma(36, tdma(4, 1))
    put_dma(48, tdma(5, 0)); put_dma(52, tdma(5, 1))
    put_dma(56, wdma(3))
    put_dma(64, tdma(6, 0)); put_dma(68, tdma(6, 1))
    put_dma(80, tdma(7, 0)); put_dma(84, tdma(7, 1))
    GW6 = int(os.environ.get("KA_GW6", "150"))
    put_dma(90, wdma(4), step=2); put_dma(98, wdma(5), step=2); put_dma(GW6, wdma(6), step=3); put_dma(GW6 + 12, wdma(7), step=3)
    GW8 = int(os.environ.get("KA_GW8", "200"))
    for u in range(8, 14):
        put_dma(GW8 + 12 * (u - 8), wdma(u), step=3)
    put_dma(max(BG(8) + 2, GW8 + 72), wdma(14), step=3)
    put_dma(max(BG(9) + 2, GW8 + 84), wdma(15), step=3)
    GB2 = int(os.environ.get("KA_B2", "108"))
    L = [f"v_lshlrev_b32 v28, 13, v2", f"s_lshl_b32 s{sE}, s{sMT}, 19", f"s_lshl_b32 s{sF}, s{sW}, 7", f"s_add_u32 s{sE}, s{sE}, s{sF}",
         [f"s_cmp_lt_u32 s{sW}, 2", f"s_cselect_b32 s{sE}, s{sE}, 0x80000000"]]
    G.stream(40, L)
    G.put(GB2, I(f"buffer_load_dword v26, v28, s[{S_WV}:{S_WV+3}], s{sE} offen {PFN}", "pf"))

    def epi(c):
        L = []
        base = WS_KF if c < 2 else WS_VF
        n = 0
        for q in range(2):
            for nt in range(2):
                for j in range(2):
                    dt = 2 * (c & 1) + nt
                    fi = (2 * dt + j) if c < 2 else (4 * j + dt)
                    off = q * 8192 + fi * 1024
                    a0 = ACC + 64 * (c & 1) + 16 * (2 * q + nt) + 8 * j
                    t = a0
                    for i in range(4):
                        L.append(f"v_cvt_pk_bf16_f32 v{t+i}, v{a0+2*i}, v{a0+2*i+1}")
                    L.append(f"s_add_u32 s{sT1}, s{sKV}, {base + (off & ~4095)}")
                    L.append(I(f"buffer_store_dwordx4 v[{t}:{t+3}], v1, s[{S_WS}:{S_WS+3}], s{sT1} offen offset:{off & 4095} {STF}", "st"))
                    n += 1
        return L
    for c in range(3):
        L = epi(c)
        for n in range(8):
            G.stream(128 * (c + 1) + 6 + 10 * n, L[6 * n:6 * n + 6])

    W4, C4, AC, T1 = J, J + 16, J + 20, J + 28
    L = [f"s_mov_b32 s{S_M}, s10", f"s_mov_b32 s{S_M+1}, s11", f"s_mov_b32 s{S_M+2}, {512*6144}", f"s_mov_b32 s{S_M+3}, 0x00020000",
         f"v_lshrrev_b32 v22, 1, v0", f"v_and_b32 v23, 1, v0", f"v_mul_u32_u24 v24, 6144, v22", f"v_lshl_add_u32 v24, v23, 4, v24",
         f"s_mul_i32 s{sA}, s{sXC}, 768", f"s_lshl_b32 s{sB}, s{sJ}, 5", f"s_add_u32 s{sA}, s{sA}, s{sB}",
         [f"s_cmp_lt_u32 s{sJ}, 24", f"s_cselect_b32 s{sA}, s{sA}, 0x40000000"],
         f"v_lshlrev_b32 v22, 1, v22", f"s_mov_b32 s{sB}, s{sA}"]
    L += [f"v_subrev_u32 v29, 128, v0", f"v_and_b32 v25, 7, v29", f"v_lshrrev_b32 v29, 3, v29", f"v_mul_u32_u24 v29, 6144, v29",
          f"v_lshl_add_u32 v29, v25, 7, v29", [f"v_cmp_lt_u32 vcc, 5, v25", f"v_mov_b32 v25, 0x40000000", "s_nop 0", f"v_cndmask_b32 v29, v29, v25, vcc"],
          f"s_mul_i32 s{sC_}, s{sJ}, {16*6144}", f"s_mul_i32 s{sD}, s{sXC}, 768", f"s_add_u32 s{sC_}, s{sC_}, s{sD}",
          [f"s_cmp_ge_u32 s{sW}, 2", f"s_cselect_b32 s{sC_}, s{sC_}, 0x80000000"], f"v_and_b32 v29, 0x4fffffff, v29"]
    G.stream(60, L)
    G.put(GB2 + 1, I(f"buffer_load_dword v27, v29, s[{S_M}:{S_M+3}], s{sC_} offen {PFN}", "pf"))
    JS = int(os.environ.get("KA_JS", "6"))
    GJ1 = int(os.environ.get("KA_GJ1", "176"))
    for i in range(4):
        L = [I(f"buffer_load_dwordx4 v[{W4+4*i}:{W4+4*i+3}], v24, s[{S_M}:{S_M+3}], s{sB} offen", "j1")]
        if i < 3: L.append(f"s_add_u32 s{sB}, s{sB}, {128*6144}")
        g = G.stream(GJ1 + JS * i, L)
    L = [[f"s_mov_b32 s{S_M}, s6", f"s_mov_b32 s{S_M+1}, s7", f"s_mov_b32 s{S_M+2}, 1024"]]
    for i in range(4):
        L.append(I(f"buffer_load_ushort v{C4+i}, v22, s[{S_M}:{S_M+3}], 0 offen offset:{256*i}", "j1"))
    g = G.stream(g + 1, L)
    XR = J + 32
    L = [f"s_lshl_b32 s{sD}, s2, 13", f"s_lshl_b32 s10, s{sW}, 11", f"s_add_u32 s{sD}, s{sD}, s10",
          I(f"buffer_load_dwordx4 v[{XR}:{XR+3}], v1, s[{S_X}:{S_X+3}], s{sD} offen", "j3"),
          I(f"buffer_load_dwordx4 v[{XR+4}:{XR+7}], v1, s[{S_X}:{S_X+3}], s{sD} offen offset:1024", "j3")]
    G.stream(int(os.environ.get("KA_PFG", "300")) - 3, L)
    print("J1 loads end gap", g)
    L = [WV("j1"), f"s_mov_b32 s{sB}, {LOG2E}"]
    for i in range(4): L.append(f"v_lshlrev_b32 v{C4+i}, 16, v{C4+i}")
    for i in range(4): L.append(f"v_mul_f32 v{T1+i}, s{sB}, v{C4+i}")
    for i in range(4): L.append(f"v_exp_f32 v{T1+i}, -v{T1+i}")
    for i in range(4): L.append(f"v_add_f32 v{T1+i}, 1.0, v{T1+i}")
    for i in range(4): L.append(f"v_rcp_f32 v{T1+i}, v{T1+i}")
    for i in range(4): L.append(f"v_mul_f32 v{C4+i}, v{C4+i}, v{T1+i}")
    for i in range(4): L.append(f"v_cvt_pk_bf16_f32 v{C4+i}, v{C4+i}, v{C4+i}")
    for i in range(4): L.append(f"v_lshlrev_b32 v{C4+i}, 16, v{C4+i}")
    for i in range(4):
        for qd in range(4):
            w = W4 + 4 * i + qd
            L.append(f"v_lshlrev_b32 v{T1}, 16, v{w}")
            L.append(f"v_and_b32 v{T1+1}, 0xffff0000, v{w}")
            op = "v_mul_f32" if i == 0 else "v_fmac_f32"
            L.append(f"{op} v{AC+2*qd}, v{C4+i}, v{T1}")
            L.append(f"{op} v{AC+2*qd+1}, v{C4+i}, v{T1+1}")
    L.append("s_nop 1")
    for ror in (8, 4, 2):
        for e in range(8):
            L.append(f"v_add_f32_dpp v{AC+e}, v{AC+e}, v{AC+e} row_ror:{ror} row_mask:0xf bank_mask:0xf")
    SCR = 131072
    L += [f"v_lshrrev_b32 v22, 4, v0", f"v_lshlrev_b32 v22, 6, v22", f"v_lshl_add_u32 v22, v23, 5, v22", f"v_add_u32 v22, {SCR}, v22",
          I(f"ds_write_b128 v22, v[{AC}:{AC+3}]", "j1w"), I(f"ds_write_b128 v22, v[{AC+4}:{AC+7}] offset:16", "j1w"), "s_nop 0", "s_nop 0", "s_nop 0", "s_nop 0", "s_nop 0", "s_nop 0", WL("j1w")]
    g = G.stream(int(os.environ.get("KA_J1", "236")), L)
    print("J1 compute end gap", g)
    gb = ((g + 3 + 8 + 31) // 32) * 32 - 8
    assert gb > g + 0
    L = [f"v_and_b32 v22, 15, v2", f"v_lshrrev_b32 v23, 4, v2", f"v_lshlrev_b32 v23, 8, v23", f"v_lshl_add_u32 v23, v22, 2, v23", f"v_add_u32 v23, {SCR}, v23"]
    G.stream(g + 1, L)
    L = [I(f"ds_read_b32 v{T1+i}, v23 offset:{64*i}", "j1r") for i in range(4)]
    L += [f"v_lshlrev_b32 v22, 2, v22", f"s_lshl_b32 s{sB}, s{sA}, 1",
          [f"s_cmp_eq_u32 s{sW}, 0", f"s_cselect_b32 s{sB}, s{sB}, 0x80000000"],
          WL("j1r"),
          f"v_add_f32 v{T1}, v{T1}, v{T1+1}", f"v_add_f32 v{T1+2}, v{T1+2}, v{T1+3}", f"v_add_f32 v{T1}, v{T1}, v{T1+2}"]
    for sw in ("v_permlane16_swap_b32", "v_permlane32_swap_b32"):
        L += [f"v_mov_b32 v{T1+1}, v{T1}", "s_nop 1", f"{sw} v{T1}, v{T1+1}", "s_nop 0", f"v_add_f32 v{T1}, v{T1}, v{T1+1}"]
    L += [f"v_cvt_pk_bf16_f32 v{T1}, v{T1}, v{T1}", f"v_lshlrev_b32 v{T1}, 16, v{T1}",
          I(f"buffer_store_dword v{T1}, v22, s[{S_WS}:{S_WS+3}], s{sB} offen sc1", "j1s")]
    L += [f"s_mov_b32 s{S_D+2}, 256", f"s_mov_b32 s{S_D+3}, 0x00020000",
          [f"s_cmp_lt_u32 s{sB}, 4096", f"s_cselect_b32 s{sC_}, 0, 0x1000"],
          f"v_lshlrev_b32 v23, 12, v2", f"v_mov_b32 v{T1+2}, 1"]
    g = G.stream(gb + 1, L)
    print("J1 store gap", g)
    g = G.stream(g + 24, [WV("j1s"), I(f"buffer_atomic_add v{T1+2}, v23, s[{S_D}:{S_D+3}], s{sC_} offen sc1", "j1a")])
    print("J1 signal gap", g)
    gsig = g

    F, T = J + 40, 4
    L = [WV("j3")]
    for rr in range(2):
        for qd in range(4):
            L.append(f"v_lshlrev_b32 v{F+8*rr+2*qd}, 16, v{XR+4*rr+qd}")
            L.append(f"v_and_b32 v{F+8*rr+2*qd+1}, 0xffff0000, v{XR+4*rr+qd}")
    for rr in range(2): L.append(f"v_add_f32 v{T+rr}, v{F+8*rr}, v{F+8*rr+1}")
    for e in range(2, 8):
        for rr in range(2): L.append(f"v_add_f32 v{T+rr}, v{T+rr}, v{F+8*rr+e}")
    def allred():
        R = ["s_nop 0"]
        for ror in (8, 4, 2, 1):
            for rr in range(2): R.append(f"v_add_f32_dpp v{T+rr}, v{T+rr}, v{T+rr} row_ror:{ror} row_mask:0xf bank_mask:0xf")
            R.append("s_nop 0")
        for sw in ("v_permlane16_swap_b32", "v_permlane32_swap_b32"):
            R += [f"v_mov_b32 v{T+2}, v{T}", f"v_mov_b32 v{T+3}, v{T+1}", "s_nop 0", f"{sw} v{T}, v{T+2}", f"{sw} v{T+1}, v{T+3}", "s_nop 0",
                  f"v_add_f32 v{T}, v{T}, v{T+2}", f"v_add_f32 v{T+1}, v{T+1}, v{T+3}"]
        return R
    L += allred()
    for rr in range(2): L.append(f"v_mul_f32 v{T+rr}, 0x3b000000, v{T+rr}")
    for rr in range(2):
        for e in range(8): L.append(f"v_sub_f32 v{F+8*rr+e}, v{F+8*rr+e}, v{T+rr}")
    for rr in range(2): L.append(f"v_mul_f32 v{T+rr}, v{F+8*rr}, v{F+8*rr}")
    for e in range(1, 8):
        for rr in range(2): L.append(f"v_fmac_f32 v{T+rr}, v{F+8*rr+e}, v{F+8*rr+e}")
    L += allred()
    L.append(f"v_mov_b32 v{T+2}, 0x3727c5ac")
    for rr in range(2): L.append(f"v_fmac_f32 v{T+2+rr}, 0x3b000000, v{T+rr}" if rr == 0 else f"v_mov_b32 v{T+3}, 0x3727c5ac")
    L.append(f"v_fmac_f32 v{T+3}, 0x3b000000, v{T+1}")
    for rr in range(2): L.append(f"v_rsq_f32 v{T+rr}, v{T+2+rr}")
    L.append("s_nop 0")
    for rr in range(2): L.append(f"v_mul_f32 v{T+rr}, 0x{QSCALE:x}, v{T+rr}")
    for rr in range(2):
        for e in range(8): L.append(f"v_mul_f32 v{F+8*rr+e}, v{F+8*rr+e}, v{T+rr}")
    g = G.stream(max(gsig + 1, int(os.environ.get("KA_J3", "372"))), L)
    print("J3 stats end", g)
    gpoll = max(g + 1, int(os.environ.get("KA_POLL", "420")))
    L = [f"v_mov_b32 v{T+4}, 0",
         I(f"buffer_load_dword v{T+5}, v{T+4}, s[{S_D}:{S_D+3}], 0 offen sc1", "pl")]
    g = G.stream(gpoll, L)
    CA, SA = J, J + 8
    L = [[WV("pl"), f"v_readfirstlane_b32 s{sA}, v{T+5}"],
         [f"s_cmp_lg_u32 s{sA}, 64", "s_cbranch_scc1 KA_SPIN", "KA_SPIN_RET:"],
         f"v_lshlrev_b32 v19, 5, v2",
         I(f"buffer_load_dwordx4 v[{SA}:{SA+3}], v19, s[{S_WS}:{S_WS+3}], 0 offen sc1", "md"),
         I(f"buffer_load_dwordx4 v[{SA+4}:{SA+7}], v19, s[{S_WS}:{S_WS+3}], 0 offen offset:16 sc1", "md"),
         I(f"buffer_load_dwordx4 v[{CA}:{CA+3}], v19, s[{S_WS}:{S_WS+3}], 0 offen offset:2048 sc1", "md"),
         I(f"buffer_load_dwordx4 v[{CA+4}:{CA+7}], v19, s[{S_WS}:{S_WS+3}], 0 offen offset:2064 sc1", "md")]
    g = G.stream(g + 28, L)
    print("J3 mod loads end", g)
    g += 28
    L = [WV("md")]
    for e in range(8): L.append(f"v_add_f32 v{CA+e}, 1.0, v{CA+e}")
    for e in range(8): L.append(f"v_cvt_pk_bf16_f32 v{CA+e}, v{CA+e}, v{CA+e}")
    for e in range(8): L.append(f"v_lshlrev_b32 v{CA+e}, 16, v{CA+e}")
    for e in range(8): L.append(f"v_mul_f32 v{SA+e}, 0x{QSCALE:x}, v{SA+e}")
    for rr in range(2):
        for e in range(8): L.append(f"v_fma_f32 v{F+8*rr+e}, v{F+8*rr+e}, v{CA+e}, v{SA+e}")
    for rr in range(2):
        for qd in range(4): L.append(f"v_cvt_pk_bf16_f32 v{XR+4*rr+qd}, v{F+8*rr+2*qd}, v{F+8*rr+2*qd+1}")
    L += [f"s_lshl_b32 s{sA}, s2, 3", f"s_lshl_b32 s{sD}, s{sW}, 1", f"s_add_u32 s{sA}, s{sA}, s{sD}", f"s_lshr_b32 s{sD}, s{sA}, 5",
          f"s_lshl_b32 s{sD}, s{sD}, 15", f"s_and_b32 s{sA}, s{sA}, 31", f"s_lshl_b32 s{sA}, s{sA}, 4", f"s_add_u32 s{sA}, s{sA}, s{sD}",
          f"s_add_u32 s{sA}, s{sA}, {WS_H1}", f"v_lshlrev_b32 v19, 9, v2",
          I(f"buffer_store_dwordx4 v[{XR}:{XR+3}], v19, s[{S_WS}:{S_WS+3}], s{sA} offen", "st"),
          I(f"buffer_store_dwordx4 v[{XR+4}:{XR+7}], v19, s[{S_WS}:{S_WS+3}], s{sA} offen offset:16", "st")]
    g = G.stream(g + 1, L)
    print("LN end", g)
    L = [f"s_lshl_b32 s{sE}, s{sHD}, 8", [f"s_add_u32 s{S_M}, s8, s{sE}", f"s_addc_u32 s{S_M+1}, s9, 0"], f"s_mov_b32 s{S_M+2}, {511*8192+256}",
         f"v_lshrrev_b32 v28, 1, v2", f"v_and_b32 v29, 1, v2", f"v_lshlrev_b32 v28, 13, v28", f"v_lshl_add_u32 v28, v29, 7, v28",
         f"s_lshl_b32 s{sE}, s{sMT}, 19", f"s_and_b32 s{sF}, s{sW}, 1", f"s_lshl_b32 s{sF}, s{sF}, 18", f"s_add_u32 s{sE}, s{sE}, s{sF}",
         [f"s_cmp_lt_u32 s{sW}, 2", f"s_cselect_b32 s{sE}, s{sE}, 0x80000000"],
         I(f"buffer_load_dword v26, v28, s[{S_M}:{S_M+3}], s{sE} offen", "pf")]
    G.stream(int(os.environ.get("KA_PFG", "300")), L)

    items = P + G.items()
    over = [(g, u) for g, u in enumerate(G.used) if u > 24]
    print("KA gaps over cap:", len(over), over[:40])
    if STAMPS:
        pos = [i for i, it in enumerate(items) if it.s.startswith("v_mfma")]
        stg = [int(x) for x in os.environ.get("STG", "128,256,384").split(",")]
        for k in range(len(stg) - 1, -1, -1):
            b = ST.base + 2 * (3 + k)
            items.insert(pos[stg[k]], I(f"s_memtime s[{b}:{b+1}]"))
        ST.n += len(stg)
    items += [I("s_nop 7"), I("s_nop 3")] + [x if isinstance(x, Item) else I(x) for x in epi(3)]
    resolve(items, A, vm0=["pf0"])
    ST.stamp()
    if STAMPS: A("s_waitcnt vmcnt(0)")
    ST.stamp()
    ST.flush(4, f"s{sW}", 22)
    A("KA_END:")
    A("s_endpgm")
    A(f"""
    KA_SPIN:
    s_mov_b32 s{sD}, 200000
    KA_SPIN_L:
    s_sleep 8
    buffer_load_dword v{T+5}, v{T+4}, s[{S_D}:{S_D+3}], 0 offen sc1
    s_waitcnt vmcnt(0)
    v_readfirstlane_b32 s{sA}, v{T+5}
    s_cmp_eq_u32 s{sA}, 64
    s_cbranch_scc1 KA_SPIN_RET
    s_sub_u32 s{sD}, s{sD}, 1
    s_cmp_lg_u32 s{sD}, 0
    s_cbranch_scc1 KA_SPIN_L
    s_branch KA_SPIN_RET
    """)
    return name, A.text(), kernel_desc(name, 256, 256), "grid=(256,1,1) block=(256,1,1) lds=163840"
```

```python
from asmlib import *
from sched import *
import os
LOG2E = 0x3fb8aa3b
MAGIC = 0x5a17

def lines(s):
    return [I(x.strip()) for x in s.strip().split("\n") if x.strip()]

def gen_kc():
    A = Asm()
    name = "kc_kernel"
    A.lines.append(kernel_header(name))
    A("s_cmp_ge_u32 s2, 256")
    A("s_cbranch_scc1 KC_END")
    ST = Stamper(A, 2)
    ST.stamp()
    def stamp_item():
        if not STAMPS: return []
        b = ST.base + 2 * ST.n; ST.n += 1
        return [I(f"s_memtime s[{b}:{b+1}]")]
    S_WS, S_X, S_O, S_B = 12, 16, 20, 24
    sW, sRB, sCB, sTS, sNT = 30, 31, 32, 33, 34
    sA, sWo, sT0, sT1, sT2, sFR, sFL = 35, 36, 37, 38, 39, 40, 41
    sW1, sACT, sFW, sL2E = 42, 43, 44, 45
    VA, VW, VM, VRM, VMG, VRR, VGT, VPL, VF0 = 4, 6, 8, 9, 10, 11, 12, 13, 3
    ACC, RING, X, GA, CB1, T = 16, 80, 144, 160, 176, 192
    D = 4
    WS = f"s[{S_WS}:{S_WS+3}]"
    A(f"""
    s_load_dwordx2 s[{S_WS}:{S_WS+1}], s[0:1], {KA['ws']}
    s_load_dwordx2 s[{S_X}:{S_X+1}], s[0:1], {KA['x']}
    s_load_dwordx2 s[{S_O}:{S_O+1}], s[0:1], {KA['out']}
    s_load_dwordx2 s[{S_B}:{S_B+1}], s[0:1], {KA['b1']}
    v_lshrrev_b32 v3, 6, v0
    v_and_b32 v2, 63, v0
    v_readfirstlane_b32 s{sW}, v3
    v_lshlrev_b32 v1, 4, v2
    s_and_b32 s{sT0}, s2, 7
    s_lshr_b32 s{sT1}, s2, 3
    s_lshr_b32 s{sRB}, s{sT1}, 3
    s_lshl_b32 s{sT0}, s{sT0}, 2
    s_add_u32 s{sRB}, s{sRB}, s{sT0}
    s_and_b32 s{sCB}, s{sT1}, 7
    s_lshr_b32 s{sT0}, s{sW}, 1
    s_lshl_b32 s{sTS}, s{sRB}, 1
    s_add_u32 s{sTS}, s{sTS}, s{sT0}
    s_and_b32 s{sT1}, s{sW}, 1
    s_lshl_b32 s{sNT}, s{sCB}, 1
    s_add_u32 s{sNT}, s{sNT}, s{sT1}
    s_lshl_b32 s{sT0}, s{sTS}, 18
    s_lshl_b32 s{sT2}, s{sW}, 16
    s_add_u32 s{sT0}, s{sT0}, s{sT2}
    v_add_u32 v{VA}, s{sT0}, v1
    v_xor_b32 v{VA+1}, 0x40000, v{VA}
    s_lshl_b32 s{sT1}, s{sT1}, 10
    v_add_u32 v{VW}, s{sT1}, v1
    v_xor_b32 v{VW+1}, 0x400, v{VW}
    s_mov_b32 s{sA}, {WS_CTX}
    s_lshl_b32 s{sWo}, s{sCB}, 19
    s_lshl_b32 s{sT2}, s{sW}, 17
    s_add_u32 s{sWo}, s{sWo}, s{sT2}
    s_add_u32 s{sWo}, s{sWo}, {WS_WOF}
    s_mov_b32 s{S_WS+2}, {WS_END}
    s_mov_b32 s{S_WS+3}, 0x00020000
    s_waitcnt lgkmcnt(0)
    """)
    def p1loads(slot):
        b = RING + 16 * slot
        return [I(f"buffer_load_dwordx4 v[{b}:{b+3}], v{VA}, {WS}, s{sA} offen", "p1"),
                I(f"buffer_load_dwordx4 v[{b+8}:{b+11}], v{VW}, {WS}, s{sWo} offen", "p1"),
                I(f"buffer_load_dwordx4 v[{b+4}:{b+7}], v{VA+1}, {WS}, s{sA} offen", "p1"),
                I(f"buffer_load_dwordx4 v[{b+12}:{b+15}], v{VW+1}, {WS}, s{sWo} offen", "p1"),
                I(f"s_add_u32 s{sA}, s{sA}, 1024"), I(f"s_add_u32 s{sWo}, s{sWo}, 2048")]
    def p1mfma(slot):
        b = RING + 16 * slot
        return [mfma(vr(ACC + 16 * (2 * q + nt), 16), vr(b + 8 + 4 * nt, 4), vr(b + 4 * q, 4), vr(ACC + 16 * (2 * q + nt), 16))
                for q in range(2) for nt in range(2)]
    for j in range(D - 1):
        for it in p1loads(j): A(it.s)
    for i in range(64):
        A(f"v_mov_b32 v{ACC+i}, 0")
    ST.stamp()
    def p1step(j):
        for it in p1loads((j - 1) % D): A(it.s)
        A(f"s_waitcnt vmcnt({4*(D-1)})")
        for m in p1mfma(j): A(m)
    A.label("KC_L1")
    for j in range(D):
        p1step(j)
    A(f"s_cmp_lt_u32 s{sA}, {WS_CTX + 51*1024}")
    A("s_cbranch_scc1 KC_L1")
    B1 = T + 16
    SET = lines(f"""
    s_mov_b32 s{S_X+2}, 0x200000
    s_mov_b32 s{S_X+3}, 0x00020000
    s_mov_b32 s{S_O+2}, 0x200000
    s_mov_b32 s{S_O+3}, 0x00020000
    s_mov_b32 s{S_B+2}, 3584
    s_mov_b32 s{S_B+3}, 0x00020000
    v_lshrrev_b32 v14, 5, v2
    v_and_b32 v15, 31, v2
    s_lshl_b32 s{sT0}, s{sNT}, 7
    v_lshlrev_b32 v{VM}, 4, v14
    v_add_u32 v{VM}, s{sT0}, v{VM}
    s_lshl_b32 s{sT0}, s{sTS}, 15
    s_lshl_b32 s{sT1}, s{sNT}, 6
    s_add_u32 s{sT1}, s{sT1}, s{sT0}
    v_lshlrev_b32 v{VRM}, 10, v15
    v_lshl_add_u32 v{VRM}, v14, 3, v{VRM}
    v_add_u32 v{VRM}, s{sT1}, v{VRM}
    s_lshl_b32 s{sT1}, s{sNT}, 11
    s_add_u32 s{sFR}, s{sT0}, s{sT1}
    s_add_u32 s{sFR}, s{sFR}, {WS_U}
    s_mov_b32 s{sT0}, {2*2048}
    s_mov_b32 s{sT1}, {4*2048}
    """)
    for i in range(4):
        SET.append(I(f"buffer_load_dwordx2 v[{T+2*i}:{T+2*i+1}], v{VRM}, s[{S_X}:{S_X+3}], 0 offen offset:{16*i}", "sm"))
    for i in range(4):
        SET.append(I(f"buffer_load_dwordx4 v[{GA+4*i}:{GA+4*i+3}], v{VM}, {WS}, s{sT0} offen offset:{32*i}", "sm"))
    for i in range(4):
        SET.append(I(f"buffer_load_dwordx4 v[{CB1+4*i}:{CB1+4*i+3}], v{VM}, {WS}, s{sT1} offen offset:{32*i}", "sm"))
    SET += lines(f"""
    v_and_b32 v14, 127, v0
    v_lshrrev_b32 v15, 7, v0
    v_lshlrev_b32 v{T+12}, 4, v14
    v_lshlrev_b32 v{T+13}, 11, v15
    v_sub_u32 v{T+12}, v{T+12}, v{T+13}
    v_add_u32 v{T+12}, {4*2048}, v{T+12}
    """)
    SET.append(I(f"buffer_load_dwordx4 v[{T+8}:{T+11}], v{T+12}, {WS}, 0 offen", "sm"))
    SET += lines(f"""
    v_lshrrev_b32 v{T+13}, 2, v14
    v_lshlrev_b32 v{T+13}, 6, v{T+13}
    v_lshl_add_u32 v{T+13}, v15, 5, v{T+13}
    v_and_b32 v{T+14}, 1, v14
    v_lshl_add_u32 v{T+13}, v{T+14}, 4, v{T+13}
    v_bfe_u32 v{T+14}, v14, 1, 1
    v_lshl_add_u32 v{T+13}, v{T+14}, 3, v{T+13}
    v_add_u32 v{T+13}, 0x20000, v{T+13}
    v_sub_u32 v{T+14}, 1, v15
    v_cvt_f32_u32 v{T+14}, v{T+14}
    v_and_b32 v14, 1, v2
    v_lshrrev_b32 v15, 5, v2
    v_lshlrev_b32 v{VGT}, 5, v14
    v_lshl_add_u32 v{VGT}, v15, 4, v{VGT}
    v_add_u32 v{VGT}, 0x20000, v{VGT}
    s_mul_i32 s{sT0}, s{sW}, 12288
    v_add_u32 v{VRR}, s{sT0}, v1
    s_lshl_b32 s{sFL}, s{sRB}, 10
    s_add_u32 s{sFL}, s{sFL}, {WS_FLAG}
    s_lshl_b32 s{sW1}, s{sCB}, 2
    s_add_u32 s{sW1}, s{sW1}, s{sW}
    s_lshl_b32 s{sFW}, s{sCB}, 7
    s_add_u32 s{sFW}, s{sFW}, s{sFL}
    s_lshl_b32 s{sT0}, s{sW1}, 7
    v_lshlrev_b32 v{T+15}, 3, v15
    s_lshl_b32 s{sW1}, s{sW1}, 16
    s_add_u32 s{sW1}, s{sW1}, {WS_W1F}
    v_and_b32 v{VPL}, 7, v2
    v_lshlrev_b32 v{VPL}, 7, v{VPL}
    v_mov_b32 v{VMG}, {MAGIC}
    v_lshlrev_b32 v{VF0}, 28, v2
    v_lshrrev_b32 v14, 4, v2
    v_lshlrev_b32 v14, 28, v14
    v_or_b32 v{VF0}, v{VF0}, v14
    v_lshrrev_b32 v{VF0}, 1, v{VF0}
    """)
    for nt in range(2):
        for i in range(4):
            SET.append(I(f"buffer_load_dwordx2 v[{B1+8*nt+2*i}:{B1+8*nt+2*i+1}], v{T+15}, s[{S_B}:{S_B+3}], s{sT0} offen offset:{64*nt+16*i}", "sm"))
    SET.append(I(f"s_cmp_eq_u32 s{sCB}, 7\ns_cselect_b32 s{sW1}, 0x80000000, s{sW1}"))
    SET.append(I(f"s_cmp_eq_u32 s{sW}, 0\ns_cselect_b32 s{sFW}, s{sFW}, 0x80000000"))
    PREP = [WV("sm")]
    for i in range(8):
        PREP.append(I(f"v_lshlrev_b32 v{X+2*i}, 16, v{T+i}"))
        PREP.append(I(f"v_and_b32 v{X+2*i+1}, 0xffff0000, v{T+i}"))
    for e in range(16): PREP.append(I(f"v_add_f32 v{CB1+e}, 1.0, v{CB1+e}"))
    for e in range(16): PREP.append(I(f"v_cvt_pk_bf16_f32 v{CB1+e}, v{CB1+e}, v{CB1+e}"))
    for e in range(16): PREP.append(I(f"v_lshlrev_b32 v{CB1+e}, 16, v{CB1+e}"))
    for e in range(4): PREP.append(I(f"v_add_f32 v{T+8+e}, v{T+14}, v{T+8+e}"))
    PREP += [I(f"v_cvt_pk_bf16_f32 v{T+8}, v{T+8}, v{T+9}"), I(f"v_cvt_pk_bf16_f32 v{T+9}, v{T+10}, v{T+11}"),
             I(f"ds_write_b64 v{T+13}, v[{T+8}:{T+9}]", "gt")]
    B1F = T + 32
    PREP.append(I(f"s_mov_b32 s{sL2E}, {LOG2E}"))
    for i in range(16):
        PREP.append(I(f"v_lshlrev_b32 v{B1F+2*i}, 16, v{B1+i}"))
        PREP.append(I(f"v_and_b32 v{B1F+2*i+1}, 0xffff0000, v{B1+i}"))
    for sp in (1, 2, 3):
        PREP += lines(f"""
        s_xor_b32 s{sT0}, s{sW}, {sp}
        s_mul_i32 s{sT0}, s{sT0}, 12288
        v_add_u32 v{T+sp}, s{sT0}, v1
        """)
    def w1load(n):
        ks, nt = n // 2, n % 2
        pre = [I(f"s_add_u32 s{sW1}, s{sW1}, 4096")] if (n % 4 == 0 and n) else []
        return pre + [I(f"buffer_load_dwordx4 {ar(8*ks+4*nt,4)}, v1, {WS}, s{sW1} offen offset:{(n%4)*1024}", f"w1_{ks}")]
    P = []
    vm0 = []
    for j in range(D - 1):
        vm0 += [f"k{48+j}"] * 4
    nw1 = 0
    fill = SET
    for k in range(48, 64):
        if k + D - 1 < 64:
            ld = p1loads((k - 1) % D)
            for it in ld:
                if it.tag: it.tag = f"k{k+D-1}"
            P += ld
        else:
            for _ in range(4):
                P += w1load(nw1); nw1 += 1
        P.append(WV(f"k{k}"))
        if k == 56:
            assert not fill
            fill = PREP
        for m in p1mfma(k % D):
            P.append(I(m))
            for _ in range(5):
                if fill: P.append(fill.pop(0))
    assert not fill
    P += stamp_item()
    P += [I("s_nop 7"), I("s_nop 1")]
    def reduce_items(extra):
        R = []
        for sp in (1, 2, 3):
            for i in range(4):
                R.append(I(f"ds_write_b128 v{T+sp}, v[{ACC+16*sp+4*i}:{ACC+16*sp+4*i+3}] offset:{(sp-1)*4096+i*1024}", "rw"))
        R += extra()
        R += [WL("rw"), I("s_barrier")]
        for sp in (1, 2, 3):
            for i in range(4):
                R.append(I(f"ds_read_b128 v[{ACC+16*sp+4*i}:{ACC+16*sp+4*i+3}], v{VRR} offset:{(sp-1)*4096+i*1024}", f"rr{sp}"))
        R += extra()
        for sp in (1, 2, 3):
            R.append(WL(f"rr{sp}"))
            for e in range(16):
                R.append(I(f"v_add_f32 v{ACC+e}, v{ACC+e}, v{ACC+16*sp+e}"))
        return R
    def more(n):
        def f():
            nonlocal nw1
            R = []
            for _ in range(n):
                if nw1 < 64:
                    R += w1load(nw1); nw1 += 1
            return R
        return f
    E = reduce_items(more(3))
    PK = ACC + 16
    V = []
    for e in range(16): V.append(I(f"v_fmac_f32 v{X+e}, v{ACC+e}, v{GA+e}"))
    for i in range(8): V.append(I(f"v_cvt_pk_bf16_f32 v{PK+i}, v{X+2*i}, v{X+2*i+1}"))
    for i in range(8):
        V.append(I(f"v_lshlrev_b32 v{X+2*i}, 16, v{PK+i}"))
        V.append(I(f"v_and_b32 v{X+2*i+1}, 0xffff0000, v{PK+i}"))
    for e in range(16): V.append(I(f"v_mul_f32 v{CB1+e}, v{CB1+e}, v{X+e}"))
    for i in range(8): V.append(I(f"v_cvt_pk_bf16_f32 v{PK+i}, v{CB1+2*i}, v{CB1+2*i+1}"))
    V.append(I(f"buffer_store_dwordx4 v[{PK}:{PK+3}], v1, {WS}, s{sFR} offen sc1", "st1"))
    V.append(I(f"buffer_store_dwordx4 v[{PK+4}:{PK+7}], v1, {WS}, s{sFR} offen offset:1024 sc1", "st1"))
    Q = ACC + 32
    V.append(I(f"v_add_f32 v{Q}, v{X}, v{X+1}")); V.append(I(f"v_add_f32 v{Q+1}, v{X+2}, v{X+3}"))
    for e in range(4, 16, 2):
        V.append(I(f"v_add_f32 v{Q}, v{Q}, v{X+e}")); V.append(I(f"v_add_f32 v{Q+1}, v{Q+1}, v{X+e+1}"))
    V += lines(f"""
    v_add_f32 v{Q}, v{Q}, v{Q+1}
    v_mov_b32 v{Q+2}, v{Q}
    v_and_b32 v14, 31, v2
    v_lshlrev_b32 v14, 4, v14
    v_permlane32_swap_b32 v{Q}, v{Q+2}
    s_lshl_b32 s{sT0}, s{sTS}, 12
    v_add_f32 v{Q}, v{Q}, v{Q+2}
    v_mul_f32 v{Q}, 0x3d000000, v{Q}
    """)
    for e in range(16): V.append(I(f"v_sub_f32 v{Q+8+e}, v{X+e}, v{Q}"))
    V.append(I(f"v_mul_f32 v{Q+1}, v{Q+8}, v{Q+8}")); V.append(I(f"v_mul_f32 v{Q+2}, v{Q+9}, v{Q+9}"))
    for e in range(2, 16, 2):
        V.append(I(f"v_fmac_f32 v{Q+1}, v{Q+8+e}, v{Q+8+e}")); V.append(I(f"v_fmac_f32 v{Q+2}, v{Q+9+e}, v{Q+9+e}"))
    V += lines(f"""
    v_add_f32 v{Q+1}, v{Q+1}, v{Q+2}
    v_mov_b32 v{Q+2}, v{Q+1}
    s_lshl_b32 s{sT1}, s{sCB}, 9
    s_add_u32 s{sT0}, s{sT0}, s{sT1}
    s_and_b32 s{sT1}, s{sW}, 1
    s_lshl_b32 s{sT1}, s{sT1}, 3
    s_add_u32 s{sT0}, s{sT0}, s{sT1}
    v_permlane32_swap_b32 v{Q+1}, v{Q+2}
    s_add_u32 s{sT0}, s{sT0}, {WS_STAT}
    v_add_f32 v{Q+1}, v{Q+1}, v{Q+2}
    """)
    V.append(I(f"buffer_store_dwordx2 v[{Q}:{Q+1}], v14, {WS}, s{sT0} offen sc1", "st1"))
    EV = int(os.environ.get("KC_EV", "20"))
    cnt = 0
    for it in E + V:
        P.append(it)
        if it.s.startswith("v_"):
            cnt += 1
            if cnt % EV == 0: P += more(1)()
    P += stamp_item()
    print("w1 issued at end of E1:", nw1)
    GACC, G1, UF = 80, 112, 160
    UFG = 176
    def gread(ks):
        return I(f"ds_read_b128 v[{UFG+4*(ks%4)}:{UFG+4*(ks%4)+3}], v{VGT} offset:{ks*64}", f"g{ks}")
    def gstep(ks):
        R = []
        if ks + 2 < 32: R.append(gread(ks + 2))
        R.append(WVL([f"w1_{ks}"], [f"g{ks}"]))
        for nt in range(2):
            acc = vr(GACC + 16 * nt, 16)
            R.append(I(mfma(acc, ar(8 * ks + 4 * nt, 4), vr(UFG + 4 * (ks % 4), 4), acc if ks else "0")))
        return R
    P += [gread(0), gread(1)]
    gk = 0
    NG1 = int(os.environ.get("KC_NG1", "10"))
    for _ in range(NG1):
        P += more(1)()
        P += gstep(gk); gk += 1
    P += [WV("st1"), I("s_barrier"), I(f"buffer_store_dword v{VMG}, v{VF0}, {WS}, s{sFW} offen sc1", "fl")]
    P += stamp_item()
    while nw1 < 64:
        P += more(2)()
        if gk < 32 and 2 * gk + 10 < nw1:
            P += gstep(gk); gk += 1
    P += stamp_item()
    resolve(P, A, vm0=vm0)
    A(f"""
    s_mul_i32 s{sWo}, s{sCB}, {112*2048}
    s_mul_i32 s{sT0}, s{sW}, {28*2048}
    s_add_u32 s{sWo}, s{sWo}, s{sT0}
    s_add_u32 s{sWo}, s{sWo}, {WS_W2F}
    s_cmp_eq_u32 s{sCB}, 7
    s_cbranch_scc1 KC_SKIP2
    """)
    def w2reg(i, nt):
        n = 2 * i + nt
        return 8 * n if n < 32 else 8 * (n - 32) + 4
    def w2load(n):
        i, nt = n // 2, n % 2
        post = [I(f"s_add_u32 s{sWo}, s{sWo}, 4096")] if n % 4 == 3 else []
        return [I(f"buffer_load_dwordx4 {ar(w2reg(i,nt),4)}, v{VW+nt}, {WS}, s{sWo} offen offset:{(i%2)*2048}", "w2")] + post
    def poll(tag, off, mask, any_=False, sl=None):
        A(f"""
        s_mov_b32 s{sT1}, 100000
        s_add_u32 s{sT2}, s{sFL}, {off}
        {tag}_L:
        buffer_load_dword v14, v{VPL}, {WS}, s{sT2} offen sc1
        s_waitcnt vmcnt(0)
        v_cmp_eq_u32 vcc, {MAGIC}, v14
        s_and_b32 s{sT0}, vcc_lo, {mask}
        {'s_cmp_lg_u32 s%d, 0' % sT0 if any_ else 's_cmp_eq_u32 s%d, %d' % (sT0, mask)}
        s_cbranch_scc1 {tag}_OK
        s_sleep {sl or os.environ.get('KC_PS','4')}
        s_sub_u32 s{sT1}, s{sT1}, 1
        s_cmp_lg_u32 s{sT1}, 0
        s_cbranch_scc1 {tag}_L
        {tag}_OK:
        """)
    poll("KC_P1", 0, 0xff)
    ST.stamp()
    VL2 = 15
    P = lines(f"""
    s_lshl_b32 s{sT0}, s{sRB}, 16
    s_lshl_b32 s{sT1}, s{sW}, 12
    s_add_u32 s{sT0}, s{sT0}, s{sT1}
    s_add_u32 s{sT0}, s{sT0}, {WS_U}
    s_add_u32 s{sT1}, s{sT1}, 0x10000
    """)
    for g in range(4):
        P.append(I(f"s_add_u32 m0, s{sT1}, {g*16384}"))
        P.append(I(f"s_add_u32 s{sT2}, s{sT0}, {g*16384}"))
        for i in range(4):
            P.append(I(f"buffer_load_dwordx4 v1, {WS}, s{sT2} offen offset:{i*1024} sc1 lds", f"u{g}"))
        if g == 1:
            P += lines(f"""
            s_lshl_b32 s{sA}, s{sRB}, 13
            s_add_u32 s{sA}, s{sA}, {WS_STAT}
            s_add_u32 s{sACT}, s{sA}, 4096
            v_mov_b32 v{VL2}, s{sL2E}
            """)
            for q in range(2):
                for i in range(4):
                    P.append(I(f"buffer_load_dwordx4 v[{T+16*q+4*i}:{T+16*q+4*i+3}], v1, {WS}, s{sA if q==0 else sACT} offen offset:{1024*i} sc1", "stt"))
    lg0 = [f"g{gk}", f"g{gk+1}"]
    while gk < 32:
        P += gstep(gk); gk += 1
    P += [I("s_nop 7"), I("s_nop 3")]
    for r in range(32):
        P.append(I(f"v_mul_f32_dpp v{G1+r}, v{GACC+r}, v{VL2} quad_perm:[0,0,2,2] row_mask:0xf bank_mask:0xf"))
    for r in range(32):
        P.append(I(f"v_add_f32_dpp v{GACC+r}, v{GACC+r}, v{B1F+r} quad_perm:[1,1,3,3] row_mask:0xf bank_mask:0xf"))
    for r in range(32):
        P.append(I(f"v_mul_f32 v{GACC+r}, s{sL2E}, v{GACC+r}"))
    P.append(I(f"v_add_u32 v{VGT}, 0x10000, v1"))
    P += stamp_item()
    units = [(0, 0), (0, 1), (1, 0), (1, 1)]
    mf = []; seq = []
    NU = 8
    for nt, q in units:
        for ks in range(32):
            acc = vr(ACC + 16 * (2 * q + nt), 16)
            n = len(mf)
            mf.append(mfma(acc, ar(8 * ks + 4 * nt, 4), vr(UF + 4 * (n % NU), 4), acc if ks else "0"))
            seq.append((q, ks))
    def uread(n):
        q, ks = seq[n]
        return I(f"ds_read_b128 v[{UF+4*(n%NU)}:{UF+4*(n%NU)+3}], v{VGT} offset:{q*32768+ks*1024}", f"r{n}")
    LEAD = 6
    P += [WV("u0", "u1"), I("s_barrier")] + [uread(i) for i in range(LEAD)] + [WL("r1")]
    G = Gaps(mf)
    for n in range(128):
        if n + LEAD < 128:
            if n + LEAD == 32:
                G.put(n - 1, WV("u3"), "end"); G.put(n, "s_barrier", "mem")
            G.put(n, uread(n + LEAD))
        if n % 2 == 1 and n + 1 < 128: G.put(n, WL(f"r{n+2}"), "end")
    MR, RS, TT = 14, 10, T + 32
    MR, RS = T + 60, T + 62
    L = [WV("stt")]
    for q in range(2):
        b = T + 16 * q
        L.append(f"v_add_f32 v{MR+q}, v{b}, v{b+2}")
        for i in range(2, 8): L.append(f"v_add_f32 v{MR+q}, v{MR+q}, v{b+2*i}")
    L += [f"v_mov_b32 v{TT}, v{MR}", f"v_mov_b32 v{TT+1}, v{MR+1}", "s_nop 0",
          f"v_permlane32_swap_b32 v{MR}, v{TT}", f"v_permlane32_swap_b32 v{MR+1}, v{TT+1}", f"s_mov_b32 s{sT0}, 0x42000000"]
    for q in range(2):
        L += [f"v_add_f32 v{MR+q}, v{MR+q}, v{TT+q}", f"v_mul_f32 v{MR+q}, 0x3d800000, v{MR+q}"]
    for q in range(2):
        b = T + 16 * q
        for i in range(8): L.append(f"v_sub_f32 v{b+2*i}, v{b+2*i}, v{MR+q}")
        for i in range(8): L.append(f"v_mul_f32 v{b+2*i}, v{b+2*i}, v{b+2*i}")
        for i in range(8): L.append(f"v_fma_f32 v{b+2*i}, v{b+2*i}, s{sT0}, v{b+2*i+1}")
        L.append(f"v_add_f32 v{RS+q}, v{b}, v{b+2}")
        for i in range(2, 8): L.append(f"v_add_f32 v{RS+q}, v{RS+q}, v{b+2*i}")
    L += [f"v_mov_b32 v{TT}, v{RS}", f"v_mov_b32 v{TT+1}, v{RS+1}", f"v_mov_b32 v{TT+2}, 0x3727c5ac",
          f"v_permlane32_swap_b32 v{RS}, v{TT}", f"v_permlane32_swap_b32 v{RS+1}, v{TT+1}", f"s_mov_b32 s{sT0}, 0x3b000000"]
    for q in range(2): L.append(f"v_add_f32 v{RS+q}, v{RS+q}, v{TT+q}")
    for q in range(2): L.append(f"v_fma_f32 v{RS+q}, v{RS+q}, s{sT0}, v{TT+2}")
    for q in range(2): L.append(f"v_rsq_f32 v{RS+q}, v{RS+q}")
    L.append("s_nop 0")
    for q in range(2): L.append(f"v_mul_f32 v{MR+q}, v{MR+q}, v{RS+q}")
    for q in range(2): L.append(f"v_mul_f32 v{RS+q}, s{sL2E}, v{RS+q}")
    L += [f"s_mul_i32 s{sACT}, s{sRB}, {2*112*1024}", f"s_lshl_b32 s{sA}, s{sCB}, 14", f"s_add_u32 s{sACT}, s{sACT}, s{sA}",
          f"s_lshl_b32 s{sA}, s{sW}, 12", f"s_add_u32 s{sACT}, s{sACT}, s{sA}", f"s_add_u32 s{sACT}, s{sACT}, {WS_ACT}",
          f"s_add_u32 s{sA}, s{sACT}, {112*1024}"]
    g = G.stream(0, L)
    print("KC stats end gap", g)
    def mish(nt, q):
        L = []
        for j in range(2):
            z = ACC + 16 * (2 * q + nt) + 8 * j
            t = T + 16 * j
            for e in range(8): L.append(f"v_fma_f32 v{t+e}, -v{MR+q}, v{G1+16*nt+8*j+e}, v{GACC+16*nt+8*j+e}")
            for e in range(8): L.append(f"v_fma_f32 v{z+e}, v{z+e}, v{RS+q}, v{t+e}")
            for e in range(8): L.append(f"v_exp_f32 v{t+e}, v{z+e}")
            for e in range(8): L.append(f"v_fma_f32 v{t+8+e}, v{t+e}, 0.5, 1.0")
            for e in range(8): L.append(f"v_fma_f32 v{t+e}, v{t+e}, v{t+8+e}, 1.0")
            for e in range(8): L.append(f"v_rcp_f32 v{t+e}, v{t+e}")
            for e in range(8): L.append(f"v_fma_f32 v{z+e}, -v{z+e}, v{t+e}, v{z+e}")
            for i in range(4): L.append(f"v_cvt_pk_bf16_f32 v{z+i}, v{z+2*i}, v{z+2*i+1}")
            L.append(I(f"buffer_store_dwordx4 v[{z}:{z+3}], v1, {WS}, s{sACT if q==0 else sA} offen offset:{(2*nt+j)*1024} sc1", "st2"))
        return L
    nw2 = 0
    for n in range(32):
        gg = 34 + n * 3
        if gg < 128:
            G.put(gg, w2load(n)[0], "mem")
            if len(w2load(n)) > 1: G.put(gg, w2load(n)[1], "end")
            nw2 = n + 1
    CAP2 = int(os.environ.get("KC_CAP2", "28"))
    rest = []
    for ui in range(3):
        L = mish(*units[ui])
        start = max(g + 1, 32 * (ui + 1) + 4)
        k = 0
        while k < len(L):
            try:
                g2 = G.stream(start, [L[k]], cap=CAP2)
            except IndexError:
                break
            nxt_mem = k + 1 < len(L) and isinstance(L[k + 1], Item)
            start = g2 + 1 if nxt_mem else g2
            g = g2
            k += 1
            if start >= 128: break
        rest += L[k:]
        if k < len(L):
            for uj in range(ui + 1, 3): rest += mish(*units[uj])
            break
    print("KC mish leftover", len(rest), "last gap", g, "w2 issued", nw2)
    P += G.items()
    P += stamp_item()
    rest = rest + ["s_nop 7", "s_nop 3"] + mish(*units[3])
    cnt = 0
    for x in rest:
        P.append(x if isinstance(x, Item) else I(x))
        cnt += 1
        if cnt % 12 == 0 and nw2 < 48:
            P += w2load(nw2); nw2 += 1
    P += stamp_item()
    P.append(I(f"s_add_u32 s{sFW}, s{sFW}, 32768"))
    for _ in range(8):
        if nw2 < 56:
            P += w2load(nw2); nw2 += 1
    P += [WV("st2"), I("s_barrier"), I(f"buffer_store_dword v{VMG}, v{VF0}, {WS}, s{sFW} offen sc1", "fl")]
    while nw2 < 56:
        P += w2load(nw2); nw2 += 1
    resolve(P, A, lg0=lg0)
    A("s_branch KC_PH3")
    A.label("KC_SKIP2")
    for n in range(56):
        for it in w2load(n): A(it.s)
    poll("KC_P2B", 32768, 0x7f, any_=True, sl=16)
    A.label("KC_PH3")
    A(f"""
    s_mul_i32 s{sT0}, s{sTS}, {112*1024}
    s_mul_i32 s{sT1}, s{sW}, {28*1024}
    s_add_u32 s{sT0}, s{sT0}, s{sT1}
    v_add_u32 v{VA}, s{sT0}, v1
    s_xor_b32 s{sT0}, s{sTS}, 1
    s_mul_i32 s{sT0}, s{sT0}, {112*1024}
    s_add_u32 s{sT0}, s{sT0}, s{sT1}
    v_add_u32 v{VA+1}, s{sT0}, v1
    s_mov_b32 s{sA}, {WS_ACT}
    s_mov_b32 s{sT1}, {5*2048}
    """)
    for i in range(4):
        A(f"buffer_load_dwordx4 v[{GA+4*i}:{GA+4*i+3}], v{VM}, {WS}, s{sT1} offen offset:{32*i}")
    poll("KC_P2", 32768, 0x7f)
    ST.stamp()
    D3 = 8
    def aload(i):
        b = RING + 8 * (i % D3)
        post = [I(f"s_add_u32 s{sA}, s{sA}, 4096")] if i % 4 == 3 else []
        return [I(f"buffer_load_dwordx4 v[{b+4*q}:{b+4*q+3}], v{VA+q}, {WS}, s{sA} offen offset:{(i%4)*1024} sc1", f"a{i}") for q in range(2)] + post
    P = []
    for i in range(D3 - 1): P += aload(i)
    for e in range(16): P.append(I(f"v_mul_f32 v{GA+e}, 0x3f317218, v{GA+e}"))
    for sp in (1, 2, 3):
        P += lines(f"""
        s_xor_b32 s{sT0}, s{sW}, {sp}
        s_mul_i32 s{sT0}, s{sT0}, 12288
        v_add_u32 v{T+sp}, s{sT0}, v1
        """)
    for i in range(28):
        if i + D3 - 1 < 28: P += aload(i + D3 - 1)
        P.append(WV(f"a{i}"))
        b = RING + 8 * (i % D3)
        for q in range(2):
            for nt in range(2):
                acc = vr(ACC + 16 * (2 * q + nt), 16)
                P.append(I(mfma(acc, ar(w2reg(i, nt), 4), vr(b + 4 * q, 4), acc if i else "0")))
    P += stamp_item()
    P += [I("s_nop 7"), I("s_nop 3")]
    P += reduce_items(lambda: [])
    for e in range(16): P.append(I(f"v_fmac_f32 v{X+e}, v{ACC+e}, v{GA+e}"))
    for i in range(8): P.append(I(f"v_cvt_pk_bf16_f32 v{PK+i}, v{X+2*i}, v{X+2*i+1}"))
    for i in range(4):
        P.append(I(f"buffer_store_dwordx2 v[{PK+2*i}:{PK+2*i+1}], v{VRM}, s[{S_O}:{S_O+3}], 0 offen offset:{16*i}", "o"))
    resolve(P, A)
    if STAMPS: A("s_waitcnt vmcnt(0)")
    ST.stamp()
    ST.flush(4, f"s{sW}", 4)
    A("KC_END:")
    A("s_endpgm")
    A.lines.append("  .fill 5000, 4, 0xbf800000")
    A("s_endpgm")
    return name, A.text(), kernel_desc(name, 256, 256), f"grid=(256,1,1) block=(256,1,1) lds={131072+2048}"
```

```python
from asmlib import *

class Item:
    __slots__ = ("s", "tag")
    def __init__(self, s, tag=None):
        self.s = s; self.tag = tag

def I(s, tag=None): return Item(s, tag)
def WV(*tags): return Item("WAITVM", tuple(tags))
def WL(*tags): return Item("WAITLG", tuple(tags))
def WVL(vt, lt): return Item("WAITBOTH", (tuple(vt), tuple(lt)))

def icost(it):
    if it.s.startswith("WAIT"): return 4
    if it.s.endswith(":"): return 0
    return cost(it.s)
def imem(it):
    return (not it.s.startswith("WAIT")) and (is_mem(it.s) or it.s == "s_barrier")

def is_vm(s):
    op = s.split()[0]
    return op.startswith("buffer_") or op.startswith("global_")
def is_lg(s):
    return s.split()[0].startswith("ds_")

def resolve(items, A, vm0=None, lg0=None):
    vm = list(vm0 or []); lg = list(lg0 or [])
    waited = set()
    for it in items:
        if it.s.startswith("WAIT"):
            vt, lt = ((it.tag, ()) if it.s == "WAITVM" else ((), it.tag) if it.s == "WAITLG" else it.tag)
            waited |= {("v", t) for t in vt} | {("l", t) for t in lt}
        elif it.tag is not None and not it.s.endswith(":"):
            k = "v" if is_vm(it.s) else "l"
            assert (k, it.tag) not in waited, f"op with tag {it.tag} issued after wait: {it.s}"
    def cnt(lst, tags, cap):
        last = -1
        for i, t in enumerate(lst):
            if t in tags: last = i
        if last < 0: return None
        return min(len(lst) - 1 - last, cap)
    for it in items:
        s = it.s
        if s.startswith("WAIT"):
            vt, lt = ((it.tag, ()) if s == "WAITVM" else ((), it.tag) if s == "WAITLG" else it.tag)
            parts = []
            if vt:
                n = 0 if "*" in vt else cnt(vm, vt, 63)
                if n is not None:
                    parts.append(f"vmcnt({n})"); vm = vm[len(vm) - n:] if n else []
            if lt:
                n = 0 if "*" in lt else cnt(lg, lt, 15)
                if n is not None:
                    parts.append(f"lgkmcnt({n})"); lg = lg[len(lg) - n:] if n else []
            if parts: A("s_waitcnt " + " ".join(parts))
            else: A("s_nop 0")
            continue
        A(s)
        if s.endswith(":"): continue
        if is_vm(s): vm.append(it.tag)
        elif is_lg(s): lg.append(it.tag)
    return vm, lg

class Gaps:
    def __init__(self, mfmas, cap=24):
        self.m = mfmas; n = len(mfmas)
        self.mem = [[] for _ in range(n)]
        self.oth = [[] for _ in range(n)]
        self.end = [[] for _ in range(n)]
        self.used = [0] * n
        self.cap = cap
    def _it(self, x): return x if isinstance(x, Item) else Item(x)
    def put(self, g, x, where=None):
        xs = x if isinstance(x, list) else [x]
        for y in xs:
            y = self._it(y)
            w = where or ("mem" if imem(y) else "end")
            getattr(self, w)[g].append(y)
            self.used[g] += icost(y)
    def stream(self, start, xs, cap=None):
        cap = cap or self.cap
        g = start
        placed_here = False
        for x in xs:
            grp = [self._it(y) for y in (x if isinstance(x, list) else [x])]
            c = sum(icost(y) for y in grp)
            ismem = imem(grp[0])
            if ismem and placed_here:
                g += 1; placed_here = False
            while self.used[g] + c > cap and not (self.used[g] <= 4 and c > cap - 4):
                g += 1; placed_here = False
            if ismem:
                self.mem[g].append(grp[0]); self.oth[g] = grp[1:] + self.oth[g] if False else self.oth[g] + grp[1:]
                if len(grp) > 1: placed_here = True
            else:
                self.oth[g] += grp; placed_here = True
            self.used[g] += c
        return g
    def items(self):
        out = []
        for g, m in enumerate(self.m):
            out.append(Item(m))
            out += self.mem[g] + self.oth[g] + self.end[g]
        return out
```

```python
class Asm:
    def __init__(self):
        self.lines = []
        self._uid = 0
    def __call__(self, s):
        for l in s.split("\n"):
            l = l.strip()
            if l:
                self.lines.append(l if l.endswith(":") else "  " + l)
    def ext(self, lst):
        for s in lst:
            self(s)
    def label(self, name):
        self.lines.append(name + ":")
    def uid(self, p="L"):
        self._uid += 1
        return f"{p}_{self._uid}"
    def text(self):
        return "\n".join(self.lines) + "\n"

def vr(b, n=1):
    return f"v{b}" if n == 1 else f"v[{b}:{b+n-1}]"
def ar(b, n=1):
    return f"a{b}" if n == 1 else f"a[{b}:{b+n-1}]"
def sr(b, n=1):
    return f"s{b}" if n == 1 else f"s[{b}:{b+n-1}]"

def mfma(d, a, b, c):
    return f"v_mfma_f32_32x32x16_bf16 {d}, {a}, {b}, {c}"

def srd(A, s, base_lo, base_hi, nbytes):
    A(f"s_mov_b32 s{s}, s{base_lo}")
    A(f"s_mov_b32 s{s+1}, s{base_hi}")
    A(f"s_mov_b32 s{s+2}, {nbytes}")
    A(f"s_mov_b32 s{s+3}, 0x00020000")

def srd_off(A, s, base_lo, base_hi, off, nbytes):
    A(f"s_add_u32 s{s}, s{base_lo}, {off}")
    A(f"s_addc_u32 s{s+1}, s{base_hi}, 0")
    A(f"s_mov_b32 s{s+2}, {nbytes}")
    A(f"s_mov_b32 s{s+3}, 0x00020000")

def kernel_header(name):
    return f""".globl {name}
.p2align 8
.type {name},@function
{name}:
"""

def kernel_desc(name, vgpr, agpr, sgpr=102):
    acc = (vgpr + 3) // 4 * 4
    nfv = acc + agpr if agpr else vgpr
    return f""".p2align 6
.amdhsa_kernel {name}
  .amdhsa_next_free_vgpr {nfv}
  .amdhsa_next_free_sgpr {sgpr}
  .amdhsa_accum_offset {acc}
  .amdhsa_group_segment_fixed_size 0
  .amdhsa_kernarg_size 120
  .amdhsa_user_sgpr_count 2
  .amdhsa_user_sgpr_kernarg_segment_ptr 1
  .amdhsa_system_sgpr_workgroup_id_x 1
  .amdhsa_float_denorm_mode_32 3
  .amdhsa_float_denorm_mode_16_64 3
.end_amdhsa_kernel
"""

def cost(ins):
    op = ins.split()[0]
    if op.startswith("v_exp") or op.startswith("v_rcp") or op.startswith("v_rsq") or op.startswith("v_log") or op.startswith("v_sqrt"):
        return 8
    if op.startswith("buffer_") or op.startswith("global_"):
        return 8
    if op == "s_nop":
        return 4 * (int(ins.split()[1]) + 1)
    return 4

def is_mem(ins):
    op = ins.split()[0]
    return op.startswith("ds_") or op.startswith("buffer_") or op.startswith("global_")

def weave(A, mfmas, gaps):
    assert len(mfmas) == len(gaps)
    for m, g in zip(mfmas, gaps):
        A(m)
        for i in g:
            A(i)

KA = dict(x=0, ckv=8, wq=16, wuk=24, wuv=32, wo=40, bx=48, w1=56, b1=64, w2=72, c=80, wmod=88, out=96, dbg=104, ws=112)

MB = 1 << 20
WS_MOD = 0
WS_FLAG = 64 * 1024
FL_H, FL_KV, FL_CTX, FL_J2, FL_W = 131072, 163840, 196608, 229376, 262144
WS_G = 64 * 1024
WS_STAT = 512 * 1024
import os as _os
WB = int(_os.environ.get("WSBASE", "0")) * MB
WS_H1 = WB + 1 * MB
WS_X2 = WB + 4 * MB
WS_U = WB + 6 * MB
WS_ACT = WB + 8 * MB
WS_KF = WB + 16 * MB
WS_VF = WB + 32 * MB
WS_CTX = WB + 48 * MB
WS_WOF = WB + 64 * MB
WS_W1F = WB + 68 * MB
WS_W2F = WB + 70 * MB
WS_PART = WS_KF
WS_ACT = WS_VF
WS_U = WS_VF + 8 * MB
WS_X2 = WS_VF + 10 * MB
WS_END = WB + 72 * MB
if _os.environ.get('LAY') == 'fresh':
    WS_PART = 72 * MB; WS_ACT = 80 * MB; WS_U = 88 * MB; WS_X2 = 90 * MB; WS_END = 92 * MB
if _os.environ.get('LAY') == 'hi':
    WS_PART = WS_KF + 8 * MB

import os
STAMPS = os.environ.get("STAMPS", "") != ""
WS_STAMP = 128 * MB
class Stamper:
    def __init__(self, A, kidx, base=72):
        self.A = A; self.n = 0; self.kidx = kidx; self.base = base
    def stamp(self):
        if not STAMPS: return
        b = self.base + 2 * self.n
        assert b + 1 < 100
        self.A(f"s_memtime s[{b}:{b+1}]")
        if self.n == 0:
            self.A("s_memrealtime s[66:67]")
        self.n += 1
    def flush(self, nwaves, s_wave, vtmp, nst=None):
        if not STAMPS: return
        A = self.A
        n = self.n if nst is None else nst
        A(f"s_load_dwordx2 s[68:69], s[0:1], {KA['ws']}")
        A(f"s_memrealtime s[100:101]")
        A("s_waitcnt lgkmcnt(0)")
        A(f"v_mov_b32 v{vtmp+1}, s100")
        A(f"v_mov_b32 v{vtmp+2}, s66")
        A(f"s_mov_b32 s70, {256*MB}")
        A("s_mov_b32 s71, 0x00020000")
        A(f"s_mul_i32 s100, s2, {nwaves}")
        A(f"s_add_u32 s100, s100, {s_wave}")
        A(f"s_lshl_b32 s100, s100, 6")
        A(f"s_add_u32 s100, s100, {WS_STAMP + self.kidx * MB}")
        A(f"v_mov_b32 v{vtmp}, 0")
        A(f"buffer_store_dword v{vtmp+1}, v{vtmp}, s[68:71], s100 offen offset:60")
        A(f"buffer_store_dword v{vtmp+2}, v{vtmp}, s[68:71], s100 offen offset:56")
        A("s_getreg_b32 s101, hwreg(HW_REG_XCC_ID)")
        A(f"v_mov_b32 v{vtmp+2}, s101")
        A("s_add_u32 s101, s100, 0x80000")
        A(f"buffer_store_dword v{vtmp+2}, v{vtmp}, s[68:71], s101 offen")
        for i in range(n):
            A(f"v_mov_b32 v{vtmp+1}, s{self.base+2*i}")
            A(f"buffer_store_dword v{vtmp+1}, v{vtmp}, s[68:71], s100 offen offset:{4*i}")
            A("s_nop 1")
        return 3 + n
```

```python
from asmlib import *
from sched import I, WV, WL, WVL, Item, resolve, Gaps

QSCALE = 0x3e0293ee
import struct, math, os
QSCALE = struct.unpack("<I", struct.pack("<f", math.log2(math.e) / math.sqrt(128.0)))[0]
THR = struct.unpack("<I", struct.pack("<f", 2.0 ** 40))[0]
NEGBIG = struct.unpack("<I", struct.pack("<f", -1e30))[0]

AO, AQ, AK, AV = 0, 128, 192, 224
V_LANE16 = 1
V_KADDR = 2
V_VADDR = 3
V_DMA = 4
V_NINF = 5
V_LIM = 6
V_QA = 10
V_T0 = 12
VS = 16
VP = 80
VN = 112
VL = 144
VE = 148
VX = 156
V_J2 = 250
def S(par, q, e=None):
    b = VS + 32 * par + 16 * q
    return vr(b, 16) if e is None else f"v{b+e}"
def P(par, q, ks=None, i=None):
    b = VP + 16 * par + 8 * q
    if i is not None: return f"v{b+i}"
    return vr(b + 4 * ks, 4)
def L(par, q): return f"v{VL+2*par+q}"
def O(q, dt): return ar(AO + 64 * q + 16 * dt, 16)

S_K, S_V, S_WS, S_WQ = 12, 16, 20, 24
sW, sR, sP_, sHD, sPR = 30, 31, 32, 33, 34
sKOFF, sKEND, sN2B, sKDST, sVOFF = 36, 37, 38, 39, 40
sCNT, sTHR, sBLK, sQB, sN = 41, 42, 43, 44, 45
sT0, sT1, sT2 = 46, 47, 48
MASKP = [52, 54, 56, 58]

def kdma():
    pre = [f"s_and_b32 m0, s{sKDST}, 0xffff"]
    d = [f"buffer_load_dwordx4 v{V_DMA}, s[{S_K}:{S_K+3}], s{sKOFF} offen offset:{i*1024} lds" for i in range(4)]
    post = [f"s_add_u32 s{sKDST}, s{sKDST}, 16384",
            f"s_add_u32 s{sKOFF}, s{sKOFF}, 16384",
            f"s_cmp_eq_u32 s{sKOFF}, s{sKEND}",
            f"s_cselect_b32 s{sKOFF}, 0, s{sKOFF}",
            f"s_cselect_b32 s{S_K+2}, s{sN2B}, s{S_K+2}"]
    return pre, d, post
def vdma():
    pre = [f"s_and_b32 s{sT2}, s{sVOFF}, 0xffff", f"s_or_b32 m0, s{sT2}, 0x10000"]
    d = [f"buffer_load_dwordx4 v{V_LANE16}, s[{S_V}:{S_V+3}], s{sVOFF} offen offset:{i*1024} lds" for i in range(4)]
    post = [f"s_add_u32 s{sVOFF}, s{sVOFF}, 16384"]
    return pre, d, post

def kread(kk, odd):
    return f"ds_read_b128 {ar(AK+4*kk,4)}, v{V_KADDR} offset:{odd*16384+kk*1024}"
def vread(f, odd):
    return f"ds_read_b128 {ar(AV+4*f,4)}, v{V_VADDR} offset:{odd*16384+f*1024}"

def qk_mfmas(dst_par, czero=False):
    out = []
    for kk in range(8):
        for q in range(2):
            c = S(dst_par, q) if kk else ("0" if czero else vr(VN + 16 * q, 16))
            out.append(mfma(S(dst_par, q), ar(AK + 4 * kk, 4), ar(AQ + 32 * q + 4 * kk, 4), c))
    return out
def pv_mfmas(src_par, qmajor=False):
    out = []
    if qmajor:
        for q in (1, 0):
            for f in range(8):
                ks, dt = f // 4, f % 4
                out.append(mfma(O(q, dt), ar(AV + 4 * f, 4), P(src_par, q, ks), O(q, dt)))
    else:
        for f in range(8):
            ks, dt = f // 4, f % 4
            for q in range(2):
                out.append(mfma(O(q, dt), ar(AV + 4 * f, 4), P(src_par, q, ks), O(q, dt)))
    return out

def rho(e):
    return 8 * (e >> 2) + (e & 3)

def mask_stream(par, z):
    out = []
    els = [(q, e) for q in range(2) for e in range(16)]
    def cmp(i):
        q, e = els[i]
        mp = MASKP[i % 4]
        return f"v_cmp_le_i32 s[{mp}:{mp+1}], {rho(e)}, v{V_LIM+2*z+q}"
    def cnd(i):
        q, e = els[i]
        mp = MASKP[i % 4]
        return f"v_cndmask_b32 {S(par,q,e)}, v{V_NINF}, {S(par,q,e)}, s[{mp}:{mp+1}]"
    out += [cmp(0), cmp(1), cmp(2)]
    for i in range(32):
        out.append(cnd(i))
        if i + 3 < 32: out.append(cmp(i + 3))
    return out

def sm_stream(par, z=None):
    out = []
    els = [(q, e) for q in range(2) for e in range(16)]
    def cmp(i):
        q, e = els[i]
        mp = MASKP[i % 4]
        return f"v_cmp_le_i32 s[{mp}:{mp+1}], {rho(e)}, v{V_LIM+2*z+q}"
    def cnd(i):
        q, e = els[i]
        mp = MASKP[i % 4]
        return f"v_cndmask_b32 {S(par,q,e)}, v{V_NINF}, {S(par,q,e)}, s[{mp}:{mp+1}]"
    def ex(i):
        q, e = els[i]
        return f"v_exp_f32 v{VE+i%8}, {S(par,q,e)}"
    def add(i):
        q, e = els[i]
        src = L(1 - par, q) if e == 0 else L(par, q)
        return f"v_add_f32 {L(par,q)}, {src}, v{VE+i%8}"
    def cvt(i):
        q, e = els[i]
        return f"v_cvt_pk_bf16_f32 {P(par,q,i=e//2)}, v{VE+(i-1)%8}, v{VE+i%8}"
    if z is not None:
        out += [cmp(0), cmp(1), cmp(2), cnd(0)]
    for i in range(32):
        if z is not None:
            if i + 3 < 32: out.append(cmp(i + 3))
            if i + 1 < 32: out.append(cnd(i + 1))
        out.append(ex(i))
        if i >= 1:
            out.append(add(i - 1))
            if (i - 1) % 2 == 1:
                out.append(cvt(i - 1))
    out.append("s_nop 0")
    out.append(add(31))
    out.append(cvt(31))
    return out

def check_stream(par, label):
    return [f"v_add_f32 v{V_T0}, {L(par,0)}, {L(par,1)}",
            f"v_cmp_nle_f32 vcc, v{V_T0}, v{V_T0+1}",
            f"s_cbranch_vccnz {label}",
            f"{label}_ret:"]

def pack(ngaps, fixed, stream, last_gap, cap=24):
    gaps = [list(fixed.get(g, [])) for g in range(ngaps)]
    used = [sum(cost(i) for i in g) for g in gaps]
    total = sum(cost(i) for i in stream)
    while True:
        u = list(used); placed = [[] for _ in range(ngaps)]
        g = 0; ok = True
        for ins in stream:
            c = cost(ins)
            while g <= last_gap and u[g] + c > cap:
                g += 1
            if g > last_gap:
                ok = False; break
            placed[g].append(ins); u[g] += c
        if ok: break
        cap += 4
    res = []
    for g in range(ngaps):
        mem = [i for i in gaps[g] if is_mem(i) or i.startswith("s_barrier")]
        oth = [i for i in gaps[g] if not (is_mem(i) or i.startswith("s_barrier"))]
        res.append(mem + placed[g] + oth)
    return res, cap

def add_fixed(fx, g, ins):
    fx.setdefault(g, [])
    if isinstance(ins, list): fx[g] += ins
    else: fx[g].append(ins)

def place_dma(fx, grp, gaps4):
    pre, d, post = grp
    add_fixed(fx, gaps4[0] - 1, pre)
    for g, i in zip(gaps4, d):
        add_fixed(fx, g, i)
    g = gaps4[3]
    if len(post) == 5:
        add_fixed(fx, g, post[:2]); add_fixed(fx, g + 1, post[2:])
    else:
        add_fixed(fx, g, post)

rare_sites = []

def gen_rare(A, label, par, has_next):
    A.label(label)
    A("s_nop 15"); A("s_nop 7")
    T, T2 = VX, VX + 1
    for q in range(2):
        A(f"v_max3_f32 v{T}, {S(par,q,0)}, {S(par,q,1)}, {S(par,q,2)}")
        for e in range(3, 15, 2):
            A(f"v_max3_f32 v{T}, v{T}, {S(par,q,e)}, {S(par,q,e+1)}")
        A(f"v_max3_f32 v{T}, v{T}, {S(par,q,15)}, 0")
        A(f"v_mov_b32 v{T2}, v{T}")
        A("s_nop 1")
        A(f"v_permlane32_swap_b32 v{T}, v{T2}")
        A("s_nop 1")
        A(f"v_max_f32 v{T}, v{T}, v{T2}")
        A(f"v_exp_f32 v{T2}, -v{T}")
        for e in range(16):
            A(f"v_sub_f32 v{VN+16*q+e}, v{VN+16*q+e}, v{T}")
            A(f"v_sub_f32 {S(par,q,e)}, {S(par,q,e)}, v{T}")
            if has_next:
                A(f"v_sub_f32 {S(1-par,q,e)}, {S(1-par,q,e)}, v{T}")
        A(f"v_mul_f32 {L(1-par,q)}, {L(1-par,q)}, v{T2}")
        for i in range(0, 64, 4):
            for j in range(4):
                A(f"v_accvgpr_read_b32 v{VX+2+j}, a{AO+64*q+i+j}")
            for j in range(4):
                A(f"v_mul_f32 v{VX+2+j}, v{VX+2+j}, v{T2}")
            for j in range(4):
                A(f"v_accvgpr_write_b32 a{AO+64*q+i+j}, v{VX+2+j}")
    A.ext(sm_stream(par))
    A("s_nop 3")
    A(f"s_branch {label}_ret")

def gen_k2():
    global rare_sites
    rare_sites = []
    A = Asm()
    name = "k2attn_kernel"
    A.lines.append(kernel_header(name))
    A("""
    s_cmp_ge_u32 s2, 256
    s_cbranch_scc1 K2_END
    """)
    for _ in range(int(os.environ.get("K2_XPRE", "0"))): A("s_sleep 127")
    ST = Stamper(A, 1)
    ST.stamp()
    A(f"""
    s_load_dwordx2 s[4:5], s[0:1], {KA['wq']}
    s_load_dwordx2 s[8:9], s[0:1], {KA['ws']}
    s_load_dwordx2 s[52:53], s[0:1], {KA['wo']}
    s_load_dwordx2 s[54:55], s[0:1], {KA['w1']}
    s_load_dwordx2 s[56:57], s[0:1], {KA['w2']}
    v_lshrrev_b32 v12, 6, v0
    v_and_b32 v13, 63, v0
    v_readfirstlane_b32 s{sW}, v12
    v_lshlrev_b32 v{V_LANE16}, 4, v13
    s_and_b32 s{sT0}, s2, 7
    s_lshr_b32 s{sT1}, s2, 3
    s_and_b32 s{sHD}, s{sT1}, 3
    s_lshl_b32 s{sT0}, s{sT0}, 2
    s_add_u32 s{sHD}, s{sHD}, s{sT0}
    s_lshr_b32 s{sPR}, s{sT1}, 2
    s_and_b32 s{sR}, s{sW}, 1
    s_lshr_b32 s{sP_}, s{sW}, 1
    """)
    QA = 16
    WF = 144
    VOW = 176
    VWR = 184
    VH = 188
    def hreg(ks, q):
        return ar(8 * ks + 4 * q, 4)
    A(f"""
    v_lshrrev_b32 v14, 4, v13
    v_and_b32 v15, 15, v13
    v_lshlrev_b32 v12, 2, v14
    v_xor_b32 v15, v15, v12
    v_lshlrev_b32 v15, 4, v15
    v_lshl_add_u32 v15, v14, 13, v15
    s_lshl_b32 s{sT0}, s{sW}, 15
    v_add_u32 v{VOW}, s{sT0}, v15
    """)
    A(f"""
    s_sub_u32 s{sQB}, 15, s{sPR}
    s_cmp_eq_u32 s{sP_}, 0
    s_cselect_b32 s{sT0}, s{sQB}, s{sPR}
    s_lshl_b32 s{sT0}, s{sT0}, 2
    s_lshl_b32 s{sT1}, s{sR}, 1
    s_add_u32 s{sT0}, s{sT0}, s{sT1}
    s_lshl_b32 s{sT0}, s{sT0}, 15
    s_add_u32 s{sT0}, s{sT0}, {WS_H1}
    v_add_u32 v{VH}, s{sT0}, v{V_LANE16}
    v_add_u32 v{VH+1}, 32768, v{VH}
    s_waitcnt lgkmcnt(0)
    s_lshl_b32 s{sT0}, s{sHD}, 8
    s_add_u32 s{S_WQ}, s4, s{sT0}
    s_addc_u32 s{S_WQ+1}, s5, 0
    s_mov_b32 s{S_WQ+2}, {511*8192+256}
    s_mov_b32 s{S_WQ+3}, 0x00020000
    """)
    srd(A, S_WS, 8, 9, WS_END)
    A(f"s_lshl_b32 s60, s{sW}, 10")
    def qloads(ks):
        return [([f"s_mov_b32 s61, {ks*16*8192}", f"s_add_u32 m0, s60, {32768+ks*4096}"],
                 I(f"buffer_load_dwordx4 v{VOW}, s[{S_WQ}:{S_WQ+3}], s61 offen lds", f"q{ks}")),
                ([f"s_mov_b32 s62, {(ks//4)*4096}"] if ks % 4 == 0 else [],
                 I(f"buffer_load_dwordx4 {hreg(ks,0)}, v{VH}, s[{S_WS}:{S_WS+3}], s62 offen offset:{(ks%4)*1024}", f"q{ks}")),
                ([], I(f"buffer_load_dwordx4 {hreg(ks,1)}, v{VH+1}, s[{S_WS}:{S_WS+3}], s62 offen offset:{(ks%4)*1024}", f"q{ks}"))]
    NPRE = int(os.environ.get("K2_NPRE", "3"))
    vm0 = []
    for ks in range(NPRE):
        for pre, ld in qloads(ks):
            A.ext(pre)
            if pre: A("s_nop 0")
            A(ld.s); vm0.append(ld.tag)
    ST.stamp()
    A(f"""
    s_lshl_b32 s{sT0}, s{sHD}, 19
    s_add_u32 s{sT1}, s{sT0}, {WS_KF}
    s_add_u32 s{S_K}, s8, s{sT1}
    s_addc_u32 s{S_K+1}, s9, 0
    s_mov_b32 s{S_K+3}, 0x00020000
    s_add_u32 s{sT1}, s{sT0}, {WS_VF}
    s_add_u32 s{S_V}, s8, s{sT1}
    s_addc_u32 s{S_V+1}, s9, 0
    s_mov_b32 s{S_V+2}, 0x80000
    s_mov_b32 s{S_V+3}, 0x00020000
    s_lshl_b32 s{sT0}, s{sPR}, 1
    s_sub_u32 s{sN}, 32, s{sT0}
    s_lshl_b32 s{sKEND}, s{sN}, 14
    s_mov_b32 s{S_K+2}, s{sKEND}
    s_add_u32 s{sN2B}, s{sT0}, 2
    s_lshl_b32 s{sN2B}, s{sN2B}, 14
    s_mov_b32 s{sKOFF}, 0
    s_lshl_b32 s{sKDST}, s{sW}, 12
    s_mov_b32 s{sBLK}, 0
    v_add_u32 v{V_DMA}, s{sKDST}, v{V_LANE16}
    s_lshl_b32 s{sT0}, s{sP_}, 13
    v_add_u32 v{V_KADDR}, s{sT0}, v{V_LANE16}
    v_mov_b32 v{V_NINF}, 0xff800000
    s_lshl_b32 s{sT1}, s{sR}, 14
    s_add_u32 s{sT1}, s{sT1}, s{sT0}
    v_add_u32 v{V_QA}, s{sT1}, v{V_LANE16}
    v_xor_b32 v{V_QA+1}, 0x2000, v{V_QA}
    v_and_b32 v12, 31, v13
    v_lshrrev_b32 v14, 5, v13
    v_lshlrev_b32 v14, 2, v14
    v_sub_u32 v12, v12, v14
    """)
    A(f"""
    s_lshl_b32 s49, s2, 2
    s_add_u32 s49, s49, s{sW}
    s_mov_b32 s4, s52
    s_mov_b32 s5, s53
    s_mov_b32 s6, {4096*1024}
    s_mov_b32 s7, 0x00020000
    s_cmp_ge_u32 s49, 736
    s_cselect_b32 s4, s56, s4
    s_cselect_b32 s5, s57, s5
    s_cselect_b32 s6, {1792*1024}, s6
    s_cselect_b32 s50, 736, 0
    s_cselect_b32 s28, {WS_W2F - WS_WOF}, 0
    s_mov_b32 s29, {256*2048}
    s_cselect_b32 s29, {112*2048}, s29
    s_sub_u32 s50, s49, s50
    s_lshr_b32 s52, s50, 1
    s_and_b32 s53, s50, 1
    s_mov_b32 s11, 1024
    s_sub_u32 s50, s49, 512
    s_mul_i32 s56, s50, 9363
    s_lshr_b32 s56, s56, 16
    s_mul_i32 s57, s56, 7
    s_sub_u32 s57, s50, s57
    s_cmp_lt_u32 s50, 224
    s_cselect_b32 s52, s56, s52
    s_cselect_b32 s53, s57, s53
    s_cselect_b32 s11, 3584, s11
    s_cselect_b32 s29, {32*2048}, s29
    s_cselect_b32 s28, {WS_W1F - WS_WOF}, s28
    s_cselect_b32 s4, s54, s4
    s_cselect_b32 s5, s55, s5
    s_cselect_b32 s6, {512*3584}, s6
    s_mul_i32 s10, s52, s11
    s_lshl_b32 s10, s10, 4
    s_lshl_b32 s56, s53, 9
    s_add_u32 s10, s10, s56
    s_mul_i32 s56, s53, s29
    s_lshl_b32 s56, s56, 2
    s_add_u32 s28, s28, s56
    s_lshl_b32 s56, s52, 11
    s_add_u32 s28, s28, s56
    s_add_u32 s28, s28, {WS_WOF}
    s_cmp_ge_u32 s49, 960
    s_cselect_b32 s28, 0x80000000, s28
    v_lshrrev_b32 v15, 5, v13
    v_mul_lo_u32 v{V_J2}, v15, s11
    v_and_b32 v14, 31, v13
    v_lshl_add_u32 v{V_J2}, v14, 4, v{V_J2}
    s_lshl_b32 s11, s11, 1
    v_bfe_u32 v14, v13, 2, 2
    v_lshl_add_u32 v14, v15, 2, v14
    v_lshlrev_b32 v14, 9, v14
    v_bfe_u32 v15, v13, 4, 1
    v_lshl_add_u32 v14, v15, 5, v14
    v_and_b32 v15, 3, v13
    v_lshl_add_u32 v14, v15, 3, v14
    s_lshl_b32 s35, s{sW}, 13
    s_add_u32 s35, s35, 0x20000
    v_add_u32 v{V_J2+1}, s35, v14
    """)
    for z in range(2):
        for q in range(2):
            A(f"s_xor_b32 s{sT0}, s{sP_}, {q}")
            A(f"s_lshl_b32 s{sT1}, s{sR}, 1")
            A(f"s_add_u32 s{sT0}, s{sT0}, s{sT1}")
            A(f"s_sub_u32 s{sT0}, s{sT0}, s{sP_}")
            A(f"s_sub_u32 s{sT0}, s{sT0}, {2*z}")
            A(f"s_lshl_b32 s{sT0}, s{sT0}, 5")
            A(f"v_add_u32 v{V_LIM+2*z+q}, s{sT0}, v12")
    A(f"""
    v_bfe_u32 v12, v13, 2, 2
    v_lshrrev_b32 v14, 5, v13
    v_lshl_add_u32 v14, v14, 3, v12
    v_lshlrev_b32 v14, 8, v14
    v_bfe_u32 v15, v13, 4, 1
    v_lshl_add_u32 v14, v15, 5, v14
    v_and_b32 v15, 3, v13
    v_lshl_add_u32 v14, v15, 3, v14
    v_add_u32 v14, 0x8000, v14
    """)
    for nt in range(4):
        A(f"v_xor_b32 v15, {nt}, v12")
        A(f"v_lshl_add_u32 v{VWR+nt}, v15, 6, v14")
    for nt in range(4):
        A(f"v_add_u32 v{VWR+8+nt}, 0x10000, v{VWR+nt}")
    def wreads(ks):
        s = ks & 1
        L_ = []
        for nt in range(4):
            for e in range(2):
                b = WF + 16 * s + 4 * nt + 2 * e
                base = VWR + nt if ks < 16 else VWR + 8 + nt
                L_.append(I(f"ds_read_b64_tr_b16 v[{b}:{b+1}], v{base} offset:{(ks%16)*4096+e*1024}", f"w{ks}"))
        return L_
    mf = []
    for ks in range(32):
        for dt in range(4):
            for q in range(2):
                acc = vr(QA + 64 * q + 16 * dt, 16)
                mf.append(mfma(acc, vr(WF + 16 * (ks & 1) + 4 * dt, 4), hreg(ks, q), acc if ks else "0"))
    G = Gaps(mf)
    for ks in range(32):
        g0 = 8 * ks
        if ks % 2 == 0 or ks == 31:
            G.put(g0, "s_barrier", "mem")
        if ks + 1 < 32:
            rd = wreads(ks + 1)
            for i in range(4): G.put(g0 + i, rd[2 * i:2 * i + 2])
            if (ks + 1) % 2 == 0:
                G.put(g0 + 7, WVL([f"q{min(ks+3,31)}"], [f"w{ks+1}"]), "end")
            else:
                G.put(g0 + 7, WL(f"w{ks+1}"), "end")
    pend = []
    for ks in range(NPRE, 32): pend += qloads(ks)
    lastpost = []
    for t in range(2):
        pre, d, post = kdma()
        pend.append((lastpost + pre, I(d[0], "K")))
        pend += [([], I(x, "K")) for x in d[1:]]
        lastpost = post
    LD = int(os.environ.get("K2_LD", "6"))
    g = 1; n = 0
    while pend:
        ksn = NPRE + n // 3
        if ksn < 32 and g < 8 * (ksn - LD): g = 8 * (ksn - LD)
        pre, ld = pend.pop(0)
        G.put(g - 1, pre, "end"); G.put(g, ld, "mem")
        n += 1
        g += 1 if ksn <= LD else 2
    G.put(g - 1, lastpost, "end")
    print("K2 qproj last load gap", g)
    assert g < 246
    PP = [WV("q0"), I("s_barrier")]
    if STAMPS:
        b_ = ST.base + 2 * ST.n; ST.n += 1
        PP.append(I(f"s_memtime s[{b_}:{b_+1}]"))
    PP += wreads(0) + [WVL(["q2"], ["w0"])] + G.items()
    resolve(PP, A, vm0=vm0)
    ST.stamp()
    A(f"""
    s_lshl_b32 s{sT1}, s{sP_}, 15
    s_lshl_b32 s{sT0}, s{sR}, 14
    s_add_u32 s{sT1}, s{sT1}, s{sT0}
    s_add_u32 s{sT1}, s{sT1}, 98304
    v_add_u32 v12, s{sT1}, v{V_LANE16}
    s_lshl_b32 s{sVOFF}, s{sW}, 12
    """)
    dl = []
    for grp in (kdma(), kdma(), vdma(), vdma()):
        pre, d, post = grp
        dl += [(pre if i == 0 else [], x, post if i == 3 else []) for i, x in enumerate(d)]
    n = 0
    for dt in range(4):
        for q in range(2):
            for j in range(2):
                a0 = QA + 64 * q + 16 * dt + 8 * j
                pre, x, post = dl[n]; n += 1
                A.ext(pre)
                for i in range(4):
                    A(f"v_cvt_pk_bf16_f32 v{a0+i}, v{a0+2*i}, v{a0+2*i+1}")
                A(f"ds_write_b128 v12, v[{a0}:{a0+3}] offset:{(q*8+2*dt+j)*1024}")
                A(x); A.ext(post)
    A(f"""
    v_add_u32 v12, 98304, v{V_QA}
    v_add_u32 v13, 98304, v{V_QA+1}
    v_add_u32 v{V_QA}, 0x20000, v{V_QA}
    v_add_u32 v{V_QA+1}, 0x20000, v{V_QA+1}
    s_waitcnt vmcnt(16) lgkmcnt(0)
    s_barrier
    """)
    PP = []
    for kk in range(8):
        PP.append(I(kread(kk, 0), f"a{kk}"))
        PP.append(I(f"ds_read_b128 {ar(AQ+4*kk,4)}, v12 offset:{kk*1024}", f"a{kk}"))
    for kk in range(8):
        PP.append(I(f"ds_read_b128 {ar(AQ+32+4*kk,4)}, v13 offset:{kk*1024}", "qb"))
    def stamp_item():
        if not STAMPS: return []
        b_ = ST.base + 2 * ST.n; ST.n += 1
        return [I(f"s_memtime s[{b_}:{b_+1}]")]
    PP += stamp_item()
    VZ = 244
    for x in f"""
    s_lshl_b32 s{sT0}, s{sP_}, 13
    s_add_u32 s{sT0}, s{sT0}, 0x18000
    v_add_u32 v{V_VADDR}, s{sT0}, v{V_LANE16}
    v_mov_b32 {L(1,0)}, 0
    v_mov_b32 {L(1,1)}, 0
    s_lshr_b32 s{sCNT}, s{sN}, 1
    s_sub_u32 s{sCNT}, s{sCNT}, 1
    v_mov_b32 v{VZ}, 0
    v_mov_b32 v{VZ+1}, 0
    v_mov_b32 v{VZ+2}, 0
    v_mov_b32 v{VZ+3}, 0
    s_mov_b32 s{sTHR}, {NEGBIG}
    """.strip().split("\n"): PP.append(I(x.strip()))
    def qk_q(dst_par, q, czero):
        return [mfma(S(dst_par, q), ar(AK + 4 * kk, 4), ar(AQ + 32 * q + 4 * kk, 4),
                     S(dst_par, q) if kk else ("0" if czero else vr(VN + 16 * q, 16))) for kk in range(8)]
    def zero_mfmas(qs=(0, 1)):
        return [mfma(O(q, dt), vr(VZ, 4), vr(VZ, 4), "0") for q in qs for dt in range(4)]
    def init_q(q):
        T = VX + q
        R = [f"v_max3_f32 v{T}, {S(0,q,0)}, {S(0,q,1)}, {S(0,q,2)}", f"v_max3_f32 v{T+2}, {S(0,q,3)}, {S(0,q,4)}, {S(0,q,5)}"]
        for e in range(6, 14, 4):
            R.append(f"v_max3_f32 v{T}, v{T}, {S(0,q,e)}, {S(0,q,e+1)}")
            R.append(f"v_max3_f32 v{T+2}, v{T+2}, {S(0,q,e+2)}, {S(0,q,e+3)}")
        R += [f"v_max3_f32 v{T}, v{T}, {S(0,q,14)}, {S(0,q,15)}", f"v_max3_f32 v{T}, v{T}, v{T+2}, s{sTHR}",
              f"v_mov_b32 v{T+2}, v{T}", "s_nop 1", f"v_permlane32_swap_b32 v{T}, v{T+2}", "s_nop 0", f"v_max_f32 v{T}, v{T}, v{T+2}"]
        R += [f"v_sub_f32 v{VN+16*q+e}, 0, v{T}" for e in range(16)]
        return R
    def sm0_stream():
        subs = [f"v_sub_f32 {S(0,q,e)}, {S(0,q,e)}, v{VX+q}" for q in range(2) for e in range(16)]
        stream = subs[:2]; si = 2
        for ins in sm_stream(0):
            stream.append(ins)
            if ins.startswith("v_exp") and si < 32:
                stream.append(subs[si]); si += 1
        return stream
    def gdma(G, grp, gaps4, tag):
        pre, d, post = grp
        G.put(gaps4[0] - 1, pre, "end")
        for g, x in zip(gaps4, d): G.put(g, I(x, tag), "mem")
        G.put(gaps4[3], I("\n".join(post)), "end"); G.used[gaps4[3]] += 4 * (len(post) - 1)
    def fit(G, start, stream, last, cap0=24):
        import copy
        cap = cap0
        while True:
            H = copy.deepcopy(G)
            try:
                g = H.stream(start, stream, cap=cap)
                if g <= last: break
            except IndexError:
                pass
            cap += 4
        G.stream(start, stream, cap=cap)
        return cap
    G = Gaps(qk_q(0, 0, True) + qk_q(0, 1, True) + zero_mfmas() + qk_q(1, 0, False) + qk_q(1, 1, False))
    PP.append(WL("a0"))
    for kk in range(7): G.put(kk, WL(f"a{kk+1}"), "end")
    G.put(7, WL("qb"), "end")
    G.put(0, f"v_mov_b32 v{V_T0+1}, {THR}", "end")
    for kk in range(8): G.put(8 + kk, I(kread(kk, 1), "k1"))
    G.put(20, f"v_xor_b32 v{V_KADDR}, 0x8000, v{V_KADDR}", "end")
    G.put(22, WVL(["K2"], ["k1"]), "end")
    G.put(23, "s_barrier", "mem")
    for kk in range(8): G.put(32 + kk, I(kread(kk, 0), "k2"))
    gdma(G, kdma(), [24, 25, 26, 27], "K4"); gdma(G, kdma(), [29, 30, 31, 32], "K5"); gdma(G, vdma(), [34, 35, 36, 37], "V2")
    for g in range(8, 12): G.put(g, "s_nop 0", "end")
    g = G.stream(12, init_q(0)); assert g <= 21, g
    g = G.stream(max(g, 19), init_q(1)); assert g <= 29, g
    cap = fit(G, g, sm0_stream(), 39)
    print("P0 cap", cap)
    PP += G.items() + [WVL(["V0"], ["*"])]
    resolve(PP, A, vm0=["K2"] * 4 + ["K3"] * 4 + ["V0"] * 4 + ["V1"] * 4)

    def full_step(par, lab, tail=None, extra=None):
        fx = {}
        add_fixed(fx, 0, "s_barrier")
        if par == 1:
            add_fixed(fx, 0, f"v_xor_b32 v{V_VADDR}, 0x8000, v{V_VADDR}")
        for f in range(8):
            add_fixed(fx, 1 + f, vread(f, 1 - par))
        add_fixed(fx, 15, "s_waitcnt lgkmcnt(0)")
        if par == 0:
            add_fixed(fx, 12, f"v_xor_b32 v{V_KADDR}, 0x8000, v{V_KADDR}")
        for kk in range(8):
            add_fixed(fx, 16 + kk, kread(kk, par))
        place_dma(fx, kdma(), [2, 6, 10, 13])
        place_dma(fx, vdma(), [18, 22, 25, 28])
        for g_, l_ in (extra or {}).items(): add_fixed(fx, g_, l_)
        rare_sites.append((lab, par, True))
        chk = check_stream(par, lab)
        add_fixed(fx, 30, chk[:2] + (tail or []))
        add_fixed(fx, 31, chk[2:] + [f"s_waitcnt vmcnt(16) lgkmcnt(0)"])
        gaps, cap = pack(32, fx, sm_stream(par), 30)
        print(lab, "cap", cap)
        weave(A, qk_mfmas(1 - par) + pv_mfmas(1 - par), gaps)

    ST.stamp()
    A.lines.append(".p2align 3")
    A.label("K2_LOOP")
    full_step(1, "K2_RARE_O", tail=[f"s_sub_u32 s{sCNT}, s{sCNT}, 1", f"s_cmp_eq_u32 s{sCNT}, 0"])
    A("s_cbranch_scc1 K2_X")
    CPF = os.environ.get("K2_CPF", "1") == "1"
    full_step(0, "K2_RARE_E", extra=({9: [f"s_cmp_eq_u32 s{sCNT}, 1", "s_cbranch_scc1 K2_CPFS", "K2_CPFS_ret:"]} if CPF else None))
    A("s_branch K2_LOOP")
    A.label("K2_X")
    A(f"s_cmp_eq_u32 s{sBLK}, 0")
    A("s_cbranch_scc0 K2_NM2")
    ST.stamp()
    def chk_put(G, par, lab, hn, gv, gb):
        rare_sites.append((lab, par, hn))
        chk = check_stream(par, lab)
        G.put(gv, chk[:2], "end"); G.put(gb, chk[2:], "end")
    PP = []
    G = Gaps(qk_mfmas(1) + pv_mfmas(1))
    G.put(0, "s_barrier", "mem")
    for f in range(8): G.put(1 + f, I(vread(f, 1), "v1"))
    G.put(15, WL("v1"), "end")
    G.put(12, f"v_xor_b32 v{V_KADDR}, 0x8000, v{V_KADDR}", "end")
    for kk in range(8):
        G.put(16 + kk, I(kread(kk, 0), "t1r"))
    for i in range(16):
        q, kk = i % 2, i // 2
        G.put(9 + i,
              I(f"ds_read_b128 {ar(AQ+32*q+4*kk,4)}, v{V_QA+q} offset:{kk*1024}", "t1r"))
    gdma(G, kdma(), [2, 6, 10, 13], "KB3")
    G.put(14, I(f"s_sub_u32 s{S_V}, s{S_V}, s{sKEND}\ns_subb_u32 s{S_V+1}, s{S_V+1}, 0\ns_add_u32 s{S_V+2}, s{S_V+2}, s{sKEND}"), "end")
    gdma(G, vdma(), [18, 22, 26, 28], "VB0")
    G.put(3, [f"v_lshrrev_b32 v240, 6, v{V_LANE16}", f"v_mul_lo_u32 v240, v240, s11", f"v_lshrrev_b32 v240, 1, v240",
              ], "end")
    G.put(5, [f"v_and_b32 v241, 48, v{V_LANE16}", f"v_lshl_add_u32 v240, v241, 3, v240"], "end")
    G.put(30, I(f"buffer_load_dword v241, v240, s[4:7], s10 offen", "pf"), "mem")
    chk_put(G, 0, "K2_RARE_T1", True, 30, 31)
    G.put(31, WVL(["VAl"], ["*"]), "end")
    print("T1 cap", fit(G, 0, sm_stream(0, 0), 30))
    PP += G.items()
    G = Gaps(qk_mfmas(0, czero=True) + pv_mfmas(0))
    G.put(0, "s_barrier", "mem")
    G.put(0, f"v_xor_b32 v{V_VADDR}, 0x8000, v{V_VADDR}", "end")
    for f in range(8): G.put(1 + f, I(vread(f, 0), "v2"))
    G.put(15, WL("v2"), "end")
    for kk in range(8):
        G.put(16 + 2 * kk, I(kread(kk, 1), "t2r"))
        G.put(17 + 2 * kk, I(vread(kk, 1), f"t2v{kk}"))
    gdma(G, kdma(), [2, 6, 10, 13], "KB4")
    gdma(G, vdma(), [18, 22, 26, 28], "VB1")
    chk_put(G, 1, "K2_RARE_T2", False, 30, 31)
    G.put(31, [f"s_cmp_lg_u32 s{sN2B}, 0x8000", "s_cbranch_scc1 K2_NOMASK0"], "end")
    print("T2 cap", fit(G, 0, sm_stream(1, 1), 30))
    PP += G.items() + [I(x) for x in mask_stream(0, 0)] + [I("K2_NOMASK0:")]
    PP += stamp_item()
    PO = 176
    XM = VX + 4
    def lsum_save():
        R = [f"v_mov_b32 v{XM+1}, {L(1,1)}", f"v_mov_b32 v{XM+3}, {L(1,0)}", f"v_mov_b32 v{XM}, v{VN+16}", f"v_mov_b32 v{XM+2}, v{VN}",
             f"v_permlane32_swap_b32 {L(1,1)}, v{XM+1}", f"v_permlane32_swap_b32 {L(1,0)}, v{XM+3}", "s_nop 0",
             f"v_add_f32 v{XM+1}, v{XM+1}, {L(1,1)}", f"v_add_f32 v{XM+3}, v{XM+3}, {L(1,0)}"]
        return R
    def ctx_addr():
        return [f"s_lshl_b32 s{sT0}, s{sQB}, 2", f"s_lshl_b32 s{sT1}, s{sR}, 1", f"s_add_u32 s{sT0}, s{sT0}, s{sT1}", f"s_add_u32 s{sT0}, s{sT0}, s{sP_}",
                f"s_lshl_b32 s{sT0}, s{sT0}, 18", f"s_lshl_b32 s{sT1}, s{sHD}, 13", f"s_add_u32 s{sT0}, s{sT0}, s{sT1}",
                f"s_add_u32 s63, s{sT0}, {WS_CTX}", f"s_add_u32 s64, s63, 4096"]
    def factors():
        F = XM + 10
        return [f"v_min_f32 v{F}, v{XM+2}, v{XM+4}", f"v_sub_f32 v{F+1}, v{F}, v{XM+2}", f"v_sub_f32 v{F+2}, v{F}, v{XM+4}",
                f"v_exp_f32 v{F+1}, v{F+1}", f"v_exp_f32 v{F+2}, v{F+2}", "s_nop 0",
                f"v_mul_f32 v{F}, v{F+1}, v{XM+3}", f"v_fmac_f32 v{F}, v{F+2}, v{XM+5}", f"v_rcp_f32 v{F}, v{F}", "s_nop 0",
                f"v_mul_f32 v{F+1}, v{F+1}, v{F}", f"v_mul_f32 v{F+2}, v{F+2}, v{F}"]
    CST = os.environ.get("K2_CST", "sc1")
    def combine(fi, tmp):
        F = XM + 10
        R = []
        for e in range(8): R.append(f"v_accvgpr_read_b32 v{tmp+e}, a{AO+8*fi+e}")
        for e in range(8): R.append(f"v_mul_f32 v{PO+8*fi+e}, v{PO+8*fi+e}, v{F+2}")
        for e in range(8): R.append(f"v_fmac_f32 v{PO+8*fi+e}, v{tmp+e}, v{F+1}")
        for i in range(4): R.append(f"v_cvt_pk_bf16_f32 v{PO+8*fi+i}, v{PO+8*fi+2*i}, v{PO+8*fi+2*i+1}")
        R.append(I(f"buffer_store_dwordx4 v[{PO+8*fi}:{PO+8*fi+3}], v{V_LANE16}, s[{S_WS}:{S_WS+3}], s{63+fi//4} offen offset:{(fi%4)*1024} {CST}", "cst"))
        return R
    PP.append(WL("t2v3"))
    G = Gaps(pv_mfmas(1, qmajor=True) + qk_q(1, 0, False) + qk_q(1, 1, False) + zero_mfmas((1,)))
    G.put(3, WL("t2v7"), "end")
    G.put(4, "s_barrier", "mem")
    addr = [f"s_and_b32 s{sT0}, s{sVOFF}, 0x8000", f"s_or_b32 s{sT0}, s{sT0}, 0x10000",
            [f"s_cmp_eq_u32 s{sP_}, 0", f"s_cselect_b32 s{sT1}, s{sT0}, 0x20000", f"s_cselect_b32 s{sT0}, 0x20000, s{sT0}"],
            f"s_lshl_b32 s{sT2}, s{sR}, 14", f"s_add_u32 s{sT1}, s{sT1}, s{sT2}", f"s_add_u32 s{sT0}, s{sT0}, s{sT2}",
            f"v_add_u32 v{XM+6}, s{sT1}, v{V_LANE16}", f"v_add_u32 v{XM+7}, s{sT0}, v{V_LANE16}",
            f"s_and_b32 s{sT0}, s{sKDST}, 0xffff", f"v_add_u32 v{XM+8}, s{sT0}, v{V_LANE16}", f"v_xor_b32 v{XM+9}, 0x2000, v{XM+8}"]
    for i in range(16):
        G.put(12 + i, I(f"ds_write_b128 v{XM+6}, {ar(AO+64+4*i,4)} offset:{i*1024}", "xw"), "mem"); G.used[12 + i] += 8
    G.put(11, I(f"ds_write_b64 v{XM+8}, v[{XM}:{XM+1}]", "xw"), "mem")
    G.put(20, f"v_xor_b32 v{V_KADDR}, 0x8000, v{V_KADDR}", "end")
    for kk in range(8): G.put(24 + kk, I(kread(kk, 0), "t3k"))
    G.put(31, WL("xw"), "end")
    G.put(32, "s_barrier", "mem")
    G.put(32, I(f"ds_read_b64 v[{XM+4}:{XM+5}], v{XM+9}", "xr"), "mem")
    for i in range(16):
        G.put(32 + i // 4, I(f"ds_read_b128 v[{PO+4*i}:{PO+4*i+3}], v{XM+7} offset:{i*1024}", "xr"), "mem")
    g = G.stream(0, lsum_save() + [f"v_mov_b32 {L(1,0)}, 0", f"v_mov_b32 {L(1,1)}, 0"] + addr); assert g <= 9, g
    g = G.stream(g, init_q(0)); assert g <= 14, g
    g = G.stream(g, init_q(1), cap=28); assert g <= 22, g
    sm0 = sm0_stream()
    NH = int(os.environ.get("K2_T3H", "70"))
    print("T3 cap", fit(G, g, sm0[:NH], 35))
    PP += G.items() + [I(x) for x in sm0[NH:] + ctx_addr()]
    PP += [WL("*"), I("s_barrier")]
    misc = []
    for grp, tag in ((kdma(), "KB5"), (vdma(), "VB2")):
        pre, d, post = grp
        misc.append([I(x) for x in pre] + [I("s_nop 0"), I(d[0], tag), I(d[1], tag)])
        misc.append([I(d[2], tag), I(d[3], tag)] + [I(x) for x in post])
    for i in range(0, 8, 2):
        grp = []
        for k in (i, i + 1):
            grp += [I(f"s_add_u32 m0, s35, {k*1024}"), I("s_nop 0"), I(f"buffer_load_dwordx4 v{V_J2}, s[4:7], s10 offen lds", "j2"), I("s_add_u32 s10, s10, s11")]
        misc.append(grp)
    PP += misc[0] + misc[1]
    PP += [I(x) for x in factors()]
    for fi in range(8):
        PP += [x if isinstance(x, Item) else I(x) for x in combine(fi, VP + 16 + 8 * (fi % 2))]
        if fi + 2 < len(misc): PP += misc[fi + 2]
        if fi % 2 == 1: PP.append(I(mfma(O(0, fi // 2), vr(VZ, 4), vr(VZ, 4), "0")))
    for x in f"""
    s_getpc_b64 s[52:53]
    s_add_u32 s52, s52, kc_kernel-.
    s_addc_u32 s53, s53, 0
    v_lshlrev_b32 v240, 6, v0
    global_load_dword v241, v240, s[52:53]
    s_mov_b32 s{sBLK}, 1
    s_mov_b32 s{sQB}, s{sPR}
    s_mov_b32 s{sCNT}, s{sPR}
    s_cmp_eq_u32 s{sPR}, 0
    """.strip().split("\n"): PP.append(I(x.strip()))
    PP.append(WV("VB1"))
    PP += stamp_item()
    resolve(PP, A, vm0=["KB1"] * 4 + ["VAm"] * 4 + ["KB2"] * 4 + ["VAl"] * 4)
    A("s_cbranch_scc0 K2_LOOP")
    A("s_waitcnt vmcnt(0)")
    A("s_branch K2_LAST")
    A.label("K2_NM2")
    ST.stamp()
    G = Gaps(qk_mfmas(1) + pv_mfmas(1))
    G.put(0, "s_barrier", "mem")
    for f in range(8): G.put(1 + f, I(vread(f, 1), "v1"))
    G.put(15, WL("v1"), "end")
    chk_put(G, 0, "K2_RARE_M", True, 30, 31)
    G.put(31, WV("*"), "end")
    print("NM2 cap", fit(G, 0, sm_stream(0, 0), 30))
    resolve(G.items(), A)
    A.label("K2_LAST")
    PP = [I("s_barrier"), I(f"v_xor_b32 v{V_VADDR}, 0x8000, v{V_VADDR}")]
    PP += [I(vread(f, 0), "v2") for f in range(8)]
    for f in range(8):
        for e in range(2):
            PP.append(I(f"ds_read_b64_tr_b16 {ar(AQ+4*f+2*e,2)}, v{V_J2+1} offset:{e*4096+f*64}", "j2r"))
    sm = sm_stream(1, 1)
    PP += [I(x) for x in sm[:20]] + [WL("v2")]
    G = Gaps(pv_mfmas(0))
    for f in range(8): G.put(2 * f + 1, I(vread(f, 1), "v3"))
    G.put(1, WL("j2r"), "end")
    for f in range(8):
        G.put(2 * f + 2 if f < 7 else 15, I(f"buffer_store_dwordx4 {ar(AQ+4*f,4)}, v{V_LANE16}, s[{S_WS}:{S_WS+3}], s28 offen offset:{(f&1)*1024} {CST}", "j2s"), "mem")
        if f & 1 and f < 7: G.put(2 * f + 2, "s_add_u32 s28, s28, s29", "end")
    chk_put(G, 1, "K2_RARE_L", False, 15, 15)
    G.put(15, WL("v3"), "end")
    print("LAST cap", fit(G, 0, sm[20:], 15))
    PP += G.items()
    PP += stamp_item()
    G = Gaps(pv_mfmas(1, qmajor=True))
    addr = [f"s_lshl_b32 s{sT0}, s{sW}, 14", f"v_add_u32 v{XM+6}, s{sT0}, v{V_LANE16}", f"v_xor_b32 v{XM+7}, 0x8000, v{XM+6}",
            f"v_add_u32 v{XM+8}, s35, v{V_LANE16}", f"v_xor_b32 v{XM+9}, 0x4000, v{XM+8}"]
    G.put(0, "s_nop 1", "oth")
    g = G.stream(0, lsum_save() + addr + ctx_addr()); assert g <= 6, g
    G.put(7, I(f"ds_write_b64 v{XM+8}, v[{XM}:{XM+1}]", "xw"), "mem")
    for g in range(5, 10): G.put(g, "s_nop 1", "end")
    for i in range(12):
        G.put(10 + i // 2, I(f"ds_write_b128 v{XM+6}, {ar(AO+64+4*i,4)} offset:{i*1024}", "xw"), "mem")
    PP += G.items()
    for i in range(12, 16):
        PP.append(I(f"ds_write_b128 v{XM+6}, {ar(AO+64+4*i,4)} offset:{i*1024}", "xw"))
    PP += [WL("xw"), I("s_barrier"), I(f"ds_read_b64 v[{XM+4}:{XM+5}], v{XM+9}", "ml")]
    for i in range(16):
        PP.append(I(f"ds_read_b128 v[{PO+4*i}:{PO+4*i+3}], v{XM+7} offset:{i*1024}", f"x{i//2}"))
    PP += stamp_item()
    PP.append(WL("ml"))
    PP += [I(x) for x in factors()]
    for fi in range(8):
        c = combine(fi, VP + 8 * (fi % 2))
        PP += [I(x) for x in c[:8]] + [WL(f"x{fi}")] + [x if isinstance(x, Item) else I(x) for x in c[8:]]
    resolve(PP, A)
    ST.stamp()
    if STAMPS: A("s_waitcnt vmcnt(0)")
    ST.stamp()
    ST.flush(4, f"s{sW}", 12)
    A("K2_END:")
    A("s_endpgm")
    if CPF:
        A(f"""
        K2_CPFS:
        s_getpc_b64 s[52:53]
        s_sub_u32 s52, s52, .-K2_X
        s_subb_u32 s53, s53, 0
        s_mul_i32 s54, s{sBLK}, K2_NM2-K2_X
        s_add_u32 s52, s52, s54
        s_addc_u32 s53, s53, 0
        v_lshlrev_b32 v240, 5, v0
        v_add_u32 v240, v240, v0
        v_lshlrev_b32 v240, 0, v240
        v_and_b32 v240, 0xffffffe0, v240
        global_load_dword v242, v240, s[52:53]
        s_branch K2_CPFS_ret
        """)
    for lab, par, hn in rare_sites:
        gen_rare(A, lab, par, hn)
    return name, A.text(), kernel_desc(name, 256, 256), "grid=(256,1,1) block=(256,1,1) lds=163840"
```

```python
from asmlib import *
from sched import *
import os
LOG2E = 0x3fb8aa3b
import struct, math
QSCALE = struct.unpack('<I', struct.pack('<f', math.log2(math.e) / math.sqrt(128.0)))[0]
STF = os.environ.get("KA_ST", "sc1")
WNT = os.environ.get("KA_WNT", "")

def gen_ka(code_bytes_total=65536):
    A = Asm()
    name = "k1a_kernel"
    A.lines.append(kernel_header(name))
    A("s_getpc_b64 s[64:65]")
    A("s_cmp_ge_u32 s2, 256")
    A("s_cbranch_scc1 KA_END")
    for _ in range(int(os.environ.get("KA_XPRE", "0"))): A("s_sleep 127")
    ST = Stamper(A, 0)
    ST.stamp()
    VOT, VOW, VT, VW = 4, 12, 16, 20
    WF, ACC, J = 32, 64, 192
    VW2 = 3
    PFN = os.environ.get('KA_PFNT', 'nt')
    J2ON = os.environ.get('KA_J2', '1') == '1'
    S_T, S_WK, S_WV, S_WS = 12, 16, 20, 24
    S_X, S_J2S, S_D, S_M = 28, 32, 36, 60
    sW, sHD, sMT, sXC, sJ = 40, 41, 42, 43, 44
    sM0T, sM0W, sT0, sT1, sKV = 45, 46, 47, 48, 49
    sM0J = 3
    sA, sB, sC_, sD, sE, sF = 50, 51, 52, 53, 54, 55
    A(f"""
    s_load_dwordx8 s[4:11], s[0:1], 0
    s_load_dwordx2 s[{S_WV}:{S_WV+1}], s[0:1], {KA['wuv']}
    s_load_dwordx2 s[{S_WS}:{S_WS+1}], s[0:1], {KA['ws']}
    s_lshr_b32 s56, s2, 3
    s_and_b32 s56, s56, 15
    s_min_u32 s56, s56, 14
    s_lshl_b32 s57, s56, 3
    s_load_dwordx2 s[58:59], s[0:1], s57
    s_load_dwordx4 s[{S_J2S}:{S_J2S+3}], s[0:1], {KA['c']}
    s_load_dwordx2 s[{S_D}:{S_D+1}], s[0:1], {KA['dbg']}
    v_lshrrev_b32 v3, 6, v0
    v_and_b32 v2, 63, v0
    v_readfirstlane_b32 s{sW}, v3
    v_lshlrev_b32 v1, 4, v2
    s_and_b32 s{sXC}, s2, 7
    s_lshr_b32 s{sJ}, s2, 3
    s_and_b32 s{sHD}, s{sJ}, 3
    s_lshl_b32 s{sT0}, s{sXC}, 2
    s_add_u32 s{sHD}, s{sHD}, s{sT0}
    s_lshr_b32 s{sMT}, s{sJ}, 2
    v_lshrrev_b32 v22, 3, v2
    v_lshrrev_b32 v23, 4, v2
    v_and_b32 v24, 7, v2
    v_xor_b32 v25, v24, v23
    v_lshlrev_b32 v25, 4, v25
    v_lshl_add_u32 v25, v22, 10, v25
    s_lshl_b32 s{sT0}, s{sW}, 16
    v_add_u32 v25, s{sT0}, v25
    """)
    for i in range(8):
        A(f"v_add_u32 v{VOT+i}, {8*i*1024-(i%4)*1024}, v25")
        if i % 2: A(f"v_xor_b32 v{VOT+i}, 64, v{VOT+i}")
    A(f"""
    v_and_b32 v23, 1, v23
    v_lshlrev_b32 v23, 2, v23
    v_xor_b32 v25, v24, v23
    v_lshlrev_b32 v25, 4, v25
    v_lshl_add_u32 v25, v22, 13, v25
    s_lshl_b32 s{sT0}, s{sW}, 18
    v_add_u32 v25, s{sT0}, v25
    """)
    for i in range(4):
        A(f"v_add_u32 v{VOW+i}, {8*i*8192-i*1024}, v25")
    A(f"""
    s_lshl_b32 s{sM0W}, s{sW}, 12
    s_lshl_b32 s{sM0T}, s{sW}, 14
    s_add_u32 s{sM0T}, s{sM0T}, 98304
    v_lshlrev_b32 v22, 7, v2
    v_lshlrev_b32 v23, 13, v2
    s_waitcnt lgkmcnt(0)
    {"s_memtime s[96:97]" if STAMPS else ""}
    s_lshl_b32 s{sT0}, s{sMT}, 18
    s_add_u32 s{S_T}, s6, s{sT0}
    s_addc_u32 s{S_T+1}, s7, 0
    s_mov_b32 s{S_T+2}, 0x40000
    s_mov_b32 s{S_T+3}, 0x00020000
    s_lshl_b32 s{sT0}, s{sHD}, 8
    s_add_u32 s{S_WK}, s10, s{sT0}
    s_addc_u32 s{S_WK+1}, s11, 0
    s_mov_b32 s{S_WK+2}, {511*8192+256}
    s_mov_b32 s{S_WK+3}, 0x00020000
    """)
    TOUCH = "" if os.environ.get("KA_TOUCH", "1") == "0" else f"""
    s_sub_u32 s57, s56, 2
    s_cmp_lt_u32 s57, 4
    s_cselect_b32 s57, 0x3ffffc, 0
    s_cmp_eq_u32 s56, 11
    s_cselect_b32 s57, 0x2ffffc, s57
    v_and_b32 v27, 1, v2
    v_mul_lo_u32 v27, v27, s57
    global_load_dword v26, v27, s[58:59]
    s_mov_b32 s{S_WS+2}, {WS_END}
    s_mov_b32 s{S_WS+3}, 0x00020000
    v_min_u32 v27, 2, v2
    v_lshlrev_b32 v27, 26, v27
    s_lshl_b32 s57, s{sJ}, 21
    buffer_load_dword v26, v27, s[{S_WS}:{S_WS+3}], s57 offen
    """
    A(f"""
    s_cmp_eq_u32 s{sW}, 0
    s_cbranch_scc1 KA_PF0
    s_cmp_eq_u32 s{sW}, 3
    s_cbranch_scc0 KA_PF1
    s_and_b32 s{sT1}, s{sJ}, 3
    s_lshl_b32 s{sT1}, s{sT1}, 13
    v_add_u32 v22, s{sT1}, v22
    global_load_dword v26, v22, s[64:65]
    {TOUCH}
    s_branch KA_PFD
    KA_PF0:
    s_lshl_b32 s{sT1}, s{sHD}, 13
    buffer_load_dword v26, v22, s[{S_T}:{S_T+3}], s{sT1} offen {os.environ.get('KA_PFT','')}
    s_branch KA_PFD
    KA_PF1:
    s_lshl_b32 s{sT1}, s{sMT}, 19
    s_lshl_b32 s{sT0}, s{sW}, 7
    s_add_u32 s{sT1}, s{sT1}, s{sT0}
    s_sub_u32 s{sT1}, s{sT1}, 128
    buffer_load_dword v26, v23, s[{S_WK}:{S_WK+3}], s{sT1} offen {PFN}
    KA_PFD:
    """)
    if os.environ.get("KA_PFW"):
        A("s_waitcnt vmcnt(0)")
        if STAMPS: A("s_memtime s[94:95]")
    WSLOT = {0: 0, 1: 1, 2: 2, 3: 3, 4: 4, 5: 5, 6: 0, 7: 1, 8: 2, 9: 6, 10: 7, 11: 3, 12: 4, 13: 5, 14: 0, 15: 1}
    def wdma(u):
        c = u // 4
        srdr = S_WK if c < 2 else S_WV
        pre = [f"s_add_u32 m0, s{sM0W}, {WSLOT[u]*16384}", f"s_mov_b32 s{sT0}, {(u%4)*128*8192+(c&1)*128}"]
        return pre, [I(f"buffer_load_dwordx4 v{VOW+i}, s[{srdr}:{srdr+3}], s{sT0} offen offset:{i*1024} {WNT} lds", f"W{u}") for i in range(4)]
    def tdma(s, grp):
        pre = [f"s_add_u32 m0, s{sM0T}, {(s%2)*8192+grp*4096}", f"s_mov_b32 s{sT0}, {s*128}"]
        return pre, [I(f"buffer_load_dwordx4 v{VOT+i}, s[{S_T}:{S_T+3}], s{sT0} offen offset:{(i%4)*1024} lds", f"T{s}") for i in range(4 * grp, 4 * grp + 4)]
    P = []
    def seq(g):
        pre, d = g
        return [I(x) for x in pre] + d
    P += seq(wdma(0)) + seq(tdma(0, 0)) + seq(tdma(0, 1))
    setup = f"""
    s_add_u32 s{S_WV}, s{S_WV}, s{sKV}
    s_addc_u32 s{S_WV+1}, s{S_WV+1}, 0
    s_mov_b32 s{S_WV+2}, {511*8192+256}
    s_mov_b32 s{S_WV+3}, 0x00020000
    s_mov_b32 s{S_WS+2}, {WS_END}
    s_mov_b32 s{S_WS+3}, 0x00020000
    s_mov_b32 s{S_X}, s4
    s_mov_b32 s{S_X+1}, s5
    s_mov_b32 s{S_X+2}, 0x200000
    s_mov_b32 s{S_X+3}, 0x00020000
    v_and_b32 v22, 31, v2
    v_lshrrev_b32 v23, 5, v2
    v_bfe_u32 v24, v2, 1, 3
    v_lshlrev_b32 v25, 7, v22
    v_add_u32 v25, s{sM0T}, v25
    """
    P += [I(f"s_lshl_b32 s{sKV}, s{sHD}, 8")] + [I(x.strip()) for x in setup.strip().split("\n")]
    for ks in range(4):
        P += [I(f"v_add_u32 v27, {2*ks}, v23"), I(f"v_xor_b32 v27, v27, v24"), I(f"v_lshl_add_u32 v{VT+ks}, v27, 4, v25")]
    setup = f"""
    v_bfe_u32 v22, v2, 2, 2
    v_lshl_add_u32 v25, v23, 3, v22
    v_lshlrev_b32 v25, 7, v25
    v_bfe_u32 v24, v2, 4, 1
    v_lshl_add_u32 v25, v24, 5, v25
    v_and_b32 v24, 3, v2
    v_lshl_add_u32 v25, v24, 3, v25
    v_lshrrev_b32 v22, 1, v22
    v_lshl_add_u32 v{VW}, v22, 6, v25
    v_xor_b32 v{VW+1}, 64, v{VW}
    v_add_u32 v30, 0x10000, v{VW}
    v_add_u32 v31, 0x10000, v{VW+1}
    s_lshl_b32 s{sKV}, s{sHD}, 19
    s_lshl_b32 s{sT1}, s{sMT}, 16
    s_add_u32 s{sKV}, s{sKV}, s{sT1}
    s_lshl_b32 s{sT1}, s{sW}, 14
    s_add_u32 s{sKV}, s{sKV}, s{sT1}
    """
    P += [I(x.strip()) for x in setup.strip().split("\n")]
    PINS = len(P)
    P += seq(tdma(1, 0)) + seq(tdma(1, 1))
    def treads(s):
        return [I(f"ds_read_b128 {ar((( 4*s+k)*2+q)*4,4)}, v{VT+k} offset:{(s%2)*8192+q*4096}", f"t{s}") for k in range(4) for q in range(2)]
    def wreads(gk):
        u, ksl, st = gk // 8, gk % 8, gk & 3
        sl = WSLOT[u]
        base = VW if sl < 4 else 30
        return [I(f"ds_read_b64_tr_b16 v[{WF+8*st+4*nt+2*e}:{WF+8*st+4*nt+2*e+1}], v{base+nt} offset:{(sl%4)*16384+ksl*2048+e*512}", f"w{gk}")
                for nt in range(2) for e in range(2)]
    if STAMPS:
        P.append(I(f"s_memtime s[{ST.base+2}:{ST.base+3}]")); ST.n += 1
    P += [WV("W0", "T0"), I("s_barrier")]
    if STAMPS:
        P.append(I(f"s_memtime s[{ST.base+4}:{ST.base+5}]")); ST.n += 1
        P.append(I("s_waitcnt lgkmcnt(0)"))
    P += wreads(0) + treads(0) + wreads(1) + [WL("w0", "t0")]

    mf = []
    for c in range(4):
        for ks in range(32):
            st = ks & 3
            for nt in range(2):
                for q in range(2):
                    acc = vr(ACC + 64 * (c & 1) + 16 * (2 * q + nt), 16)
                    wf = vr(WF + 8 * st + 4 * nt, 4)
                    tk = ar((ks * 2 + q) * 4, 4)
                    cc = acc if ks else "0"
                    mf.append(mfma(acc, wf, tk, cc) if c < 2 else mfma(acc, tk, wf, cc))
    G = Gaps(mf)
    dma_gaps = set()
    def put_dma(g0, grp, step=1):
        pre, d = grp
        G.put(g0 - 1, pre, "end")
        for i, x in enumerate(d):
            g = g0 + i * step
            G.put(g, x, "mem")
        for g in range(g0 - 1, g0 + (len(d) - 1) * step + 1):
            assert g not in dma_gaps or g == g0 - 1, g
        for g in range(g0, g0 + (len(d) - 1) * step + 1):
            dma_gaps.add(g)
    def BG(u): return 4 * (8 * u - 2)
    for gk in range(128):
        g0 = 4 * gk
        if gk + 2 < 128:
            if (gk + 2) % 8 == 0:
                G.put(g0, "s_barrier", "mem")
            rd = wreads(gk + 2)
            for i in range(4): G.put(g0 + i, rd[i])
        if gk + 1 < 128:
            tags = [f"w{gk+1}"]
            if gk + 1 < 32 and (gk + 1) % 4 == 0: tags.append(f"t{(gk+1)//4}")
            if (gk + 3) % 8 == 0 and gk + 3 < 128:
                G.put(g0 + 3, WVL([f"W{(gk+3)//8}"], tags), "end")
            else:
                G.put(g0 + 3, WL(*tags), "end")
    for s in range(1, 8):
        g0 = 4 * (4 * s - 2)
        G.put(g0 - 1, WV(f"T{s}"), "end")
        rd = treads(s)
        for i in range(4): G.put(g0 + i, rd[2 * i:2 * i + 2])
    put_dma(1, wdma(1))
    put_dma(5, tdma(2, 0)); put_dma(9, tdma(2, 1))
    put_dma(16, tdma(3, 0)); put_dma(20, tdma(3, 1))
    put_dma(24, wdma(2))
    put_dma(32, tdma(4, 0)); put_dma(36, tdma(4, 1))
    put_dma(48, tdma(5, 0)); put_dma(52, tdma(5, 1))
    put_dma(56, wdma(3))
    put_dma(64, tdma(6, 0)); put_dma(68, tdma(6, 1))
    put_dma(80, tdma(7, 0)); put_dma(84, tdma(7, 1))
    GW6 = int(os.environ.get("KA_GW6", "150"))
    put_dma(90, wdma(4), step=2); put_dma(98, wdma(5), step=2); put_dma(GW6, wdma(6), step=3); put_dma(GW6 + 12, wdma(7), step=3)
    GW8 = int(os.environ.get("KA_GW8", "200"))
    for u in range(8, 14):
        put_dma(GW8 + 12 * (u - 8), wdma(u), step=3)
    put_dma(max(BG(8) + 2, GW8 + 72), wdma(14), step=3)
    put_dma(max(BG(9) + 2, GW8 + 84), wdma(15), step=3)
    GB2 = int(os.environ.get("KA_B2", "108"))
    L = [f"v_lshlrev_b32 v28, 13, v2", f"s_lshl_b32 s{sE}, s{sMT}, 19", f"s_lshl_b32 s{sF}, s{sW}, 7", f"s_add_u32 s{sE}, s{sE}, s{sF}",
         [f"s_cmp_lt_u32 s{sW}, 2", f"s_cselect_b32 s{sE}, s{sE}, 0x80000000"]]
    G.stream(40, L)
    G.put(GB2, I(f"buffer_load_dword v26, v28, s[{S_WV}:{S_WV+3}], s{sE} offen {os.environ.get('KA_PFV','')}", "pf"))

    def epi(c):
        L = []
        base = WS_KF if c < 2 else WS_VF
        n = 0
        for q in range(2):
            for nt in range(2):
                for j in range(2):
                    dt = 2 * (c & 1) + nt
                    fi = (2 * dt + j) if c < 2 else (4 * j + dt)
                    off = q * 8192 + fi * 1024
                    a0 = ACC + 64 * (c & 1) + 16 * (2 * q + nt) + 8 * j
                    t = a0
                    for i in range(4):
                        L.append(f"v_cvt_pk_bf16_f32 v{t+i}, v{a0+2*i}, v{a0+2*i+1}")
                    L.append(f"s_add_u32 s{sT1}, s{sKV}, {base + (off & ~4095)}")
                    L.append(I(f"buffer_store_dwordx4 v[{t}:{t+3}], v1, s[{S_WS}:{S_WS+3}], s{sT1} offen offset:{off & 4095} {STF}", "st"))
                    n += 1
        return L
    for c in range(3):
        L = epi(c)
        for n in range(8):
            G.stream(128 * (c + 1) + 6 + 10 * n, L[6 * n:6 * n + 6])

    W4, C4, AC, T1 = J, J + 16, J + 20, J + 28
    L = [f"s_mov_b32 s{S_M}, s{S_J2S+2}", f"s_mov_b32 s{S_M+1}, s{S_J2S+3}", f"s_mov_b32 s{S_M+2}, {512*6144}", f"s_mov_b32 s{S_M+3}, 0x00020000",
         f"v_lshrrev_b32 v22, 1, v0", f"v_and_b32 v23, 1, v0", f"v_mul_u32_u24 v24, 6144, v22", f"v_lshl_add_u32 v24, v23, 4, v24",
         f"s_mul_i32 s{sA}, s{sXC}, 768", f"s_lshl_b32 s{sB}, s{sJ}, 5", f"s_add_u32 s{sA}, s{sA}, s{sB}",
         [f"s_cmp_lt_u32 s{sJ}, 24", f"s_cselect_b32 s{sA}, s{sA}, 0x40000000"],
         f"v_lshlrev_b32 v22, 1, v22", f"s_mov_b32 s{sB}, s{sA}"]
    L += [f"v_subrev_u32 v29, 128, v0", f"v_and_b32 v25, 7, v29", f"v_lshrrev_b32 v29, 3, v29", f"v_mul_u32_u24 v29, 6144, v29",
          f"v_lshl_add_u32 v29, v25, 7, v29", [f"v_cmp_lt_u32 vcc, 5, v25", f"v_mov_b32 v25, 0x40000000", "s_nop 0", f"v_cndmask_b32 v29, v29, v25, vcc"],
          f"s_mul_i32 s{sC_}, s{sJ}, {16*6144}", f"s_mul_i32 s{sD}, s{sXC}, 768", f"s_add_u32 s{sC_}, s{sC_}, s{sD}",
          [f"s_cmp_ge_u32 s{sW}, 2", f"s_cselect_b32 s{sC_}, s{sC_}, 0x80000000"], f"v_and_b32 v29, 0x4fffffff, v29"]
    EARLY = os.environ.get("KA_EARLY", "1") == "1"
    if EARLY:
        flat = []
        for x in L: flat += x if isinstance(x, list) else [x]
        ins = [I(x) for x in flat] + [I(f"buffer_load_dword v26, v29, s[{S_M}:{S_M+3}], s{sC_} offen {PFN}", "pf")]
        P[PINS:PINS] = ins
    else:
        G.stream(60, L)
        G.put(GB2 + 1, I(f"buffer_load_dword v26, v29, s[{S_M}:{S_M+3}], s{sC_} offen {PFN}", "pf"))
    JS = int(os.environ.get("KA_JS", "8" if EARLY else "6"))
    GJ1 = int(os.environ.get("KA_GJ1", "4" if EARLY else "176"))
    for i in range(4):
        L = [I(f"buffer_load_dwordx4 v[{W4+4*i}:{W4+4*i+3}], v24, s[{S_M}:{S_M+3}], s{sB} offen", "j1")]
        if i < 3: L.append(f"s_add_u32 s{sB}, s{sB}, {128*6144}")
        g = G.stream(GJ1 + JS * i, L)
    L = [[f"s_mov_b32 s{S_M}, s{S_J2S}", f"s_mov_b32 s{S_M+1}, s{S_J2S+1}", f"s_mov_b32 s{S_M+2}, 1024"]]
    for i in range(4):
        L.append(I(f"buffer_load_ushort v{C4+i}, v22, s[{S_M}:{S_M+3}], 0 offen offset:{256*i}", "j1"))
    g = G.stream(g + 1, L)
    XR = J + 32
    L = [f"s_lshl_b32 s{sD}, s2, 13", f"s_lshl_b32 s10, s{sW}, 11", f"s_add_u32 s{sD}, s{sD}, s10",
          I(f"buffer_load_dwordx4 v[{XR}:{XR+3}], v1, s[{S_X}:{S_X+3}], s{sD} offen", "j3"),
          I(f"buffer_load_dwordx4 v[{XR+4}:{XR+7}], v1, s[{S_X}:{S_X+3}], s{sD} offen offset:1024", "j3")]
    G.stream(int(os.environ.get("KA_PFG", "300")) - 3, L)
    print("J1 loads end gap", g)
    L = [WV("j1"), f"s_mov_b32 s{sB}, {LOG2E}"]
    for i in range(4): L.append(f"v_lshlrev_b32 v{C4+i}, 16, v{C4+i}")
    for i in range(4): L.append(f"v_mul_f32 v{T1+i}, s{sB}, v{C4+i}")
    for i in range(4): L.append(f"v_exp_f32 v{T1+i}, -v{T1+i}")
    for i in range(4): L.append(f"v_add_f32 v{T1+i}, 1.0, v{T1+i}")
    for i in range(4): L.append(f"v_rcp_f32 v{T1+i}, v{T1+i}")
    for i in range(4): L.append(f"v_mul_f32 v{C4+i}, v{C4+i}, v{T1+i}")
    for i in range(4): L.append(f"v_cvt_pk_bf16_f32 v{C4+i}, v{C4+i}, v{C4+i}")
    for i in range(4): L.append(f"v_lshlrev_b32 v{C4+i}, 16, v{C4+i}")
    for i in range(4):
        for qd in range(4):
            w = W4 + 4 * i + qd
            L.append(f"v_lshlrev_b32 v{T1}, 16, v{w}")
            L.append(f"v_and_b32 v{T1+1}, 0xffff0000, v{w}")
            op = "v_mul_f32" if i == 0 else "v_fmac_f32"
            L.append(f"{op} v{AC+2*qd}, v{C4+i}, v{T1}")
            L.append(f"{op} v{AC+2*qd+1}, v{C4+i}, v{T1+1}")
    L.append("s_nop 1")
    for ror in (8, 4, 2):
        for e in range(8):
            L.append(f"v_add_f32_dpp v{AC+e}, v{AC+e}, v{AC+e} row_ror:{ror} row_mask:0xf bank_mask:0xf")
    SCR = 0 if EARLY else 131072
    L += [f"v_lshrrev_b32 v22, 4, v0", f"v_lshlrev_b32 v22, 6, v22", f"v_lshl_add_u32 v22, v23, 5, v22", f"v_add_u32 v22, {SCR}, v22",
          I(f"ds_write_b128 v22, v[{AC}:{AC+3}]", "j1w"), I(f"ds_write_b128 v22, v[{AC+4}:{AC+7}] offset:16", "j1w"), "s_nop 0", "s_nop 0", "s_nop 0", "s_nop 0", "s_nop 0", "s_nop 0", WL("j1w")]
    g = G.stream(int(os.environ.get("KA_J1", "44" if EARLY else "236")), L)
    print("J1 compute end gap", g)
    assert not EARLY or g > 60
    gb = ((g + 3 + 8 + 31) // 32) * 32 - 8
    assert gb > g + 0
    L = [f"v_and_b32 v22, 15, v2", f"v_lshrrev_b32 v23, 4, v2", f"v_lshlrev_b32 v23, 8, v23", f"v_lshl_add_u32 v23, v22, 2, v23", f"v_add_u32 v23, {SCR}, v23"]
    G.stream(g + 1, L)
    L = [I(f"ds_read_b32 v{T1+i}, v23 offset:{64*i}", "j1r") for i in range(4)]
    L += [f"v_lshlrev_b32 v22, 2, v22", f"s_lshl_b32 s{sB}, s{sA}, 1",
          [f"s_cmp_eq_u32 s{sW}, 0", f"s_cselect_b32 s{sB}, s{sB}, 0x80000000"],
          WL("j1r"),
          f"v_add_f32 v{T1}, v{T1}, v{T1+1}", f"v_add_f32 v{T1+2}, v{T1+2}, v{T1+3}", f"v_add_f32 v{T1}, v{T1}, v{T1+2}"]
    for sw in ("v_permlane16_swap_b32", "v_permlane32_swap_b32"):
        L += [f"v_mov_b32 v{T1+1}, v{T1}", "s_nop 1", f"{sw} v{T1}, v{T1+1}", "s_nop 0", f"v_add_f32 v{T1}, v{T1}, v{T1+1}"]
    L += [f"v_cvt_pk_bf16_f32 v{T1}, v{T1}, v{T1}", f"v_lshlrev_b32 v{T1}, 16, v{T1}",
          I(f"buffer_store_dword v{T1}, v22, s[{S_WS}:{S_WS+3}], s{sB} offen sc1", "j1s")]
    L += [f"s_mov_b32 s{S_D+2}, 256", f"s_mov_b32 s{S_D+3}, 0x00020000",
          [f"s_cmp_lt_u32 s{sB}, 4096", f"s_cselect_b32 s{sC_}, 0, 0x1000"],
          f"v_lshlrev_b32 v23, 12, v2", f"v_mov_b32 v{T1+2}, 1"]
    g = G.stream(gb + 1, L)
    print("J1 store gap", g)
    g = G.stream(g + int(os.environ.get('KA_SIGD', '24')), [WV("j1s"), I(f"buffer_atomic_add v{T1+2}, v23, s[{S_D}:{S_D+3}], s{sC_} offen sc1", "j1a")])
    print("J1 signal gap", g)
    gsig = g

    F, T = J + 40, 4
    L = [WV("j3")]
    for rr in range(2):
        for qd in range(4):
            L.append(f"v_lshlrev_b32 v{F+8*rr+2*qd}, 16, v{XR+4*rr+qd}")
            L.append(f"v_and_b32 v{F+8*rr+2*qd+1}, 0xffff0000, v{XR+4*rr+qd}")
    for rr in range(2): L.append(f"v_add_f32 v{T+rr}, v{F+8*rr}, v{F+8*rr+1}")
    for e in range(2, 8):
        for rr in range(2): L.append(f"v_add_f32 v{T+rr}, v{T+rr}, v{F+8*rr+e}")
    def allred():
        R = ["s_nop 0"]
        for ror in (8, 4, 2, 1):
            for rr in range(2): R.append(f"v_add_f32_dpp v{T+rr}, v{T+rr}, v{T+rr} row_ror:{ror} row_mask:0xf bank_mask:0xf")
            R.append("s_nop 0")
        for sw in ("v_permlane16_swap_b32", "v_permlane32_swap_b32"):
            R += [f"v_mov_b32 v{T+2}, v{T}", f"v_mov_b32 v{T+3}, v{T+1}", "s_nop 0", f"{sw} v{T}, v{T+2}", f"{sw} v{T+1}, v{T+3}", "s_nop 0",
                  f"v_add_f32 v{T}, v{T}, v{T+2}", f"v_add_f32 v{T+1}, v{T+1}, v{T+3}"]
        return R
    L += allred()
    for rr in range(2): L.append(f"v_mul_f32 v{T+rr}, 0x3b000000, v{T+rr}")
    for rr in range(2):
        for e in range(8): L.append(f"v_sub_f32 v{F+8*rr+e}, v{F+8*rr+e}, v{T+rr}")
    for rr in range(2): L.append(f"v_mul_f32 v{T+rr}, v{F+8*rr}, v{F+8*rr}")
    for e in range(1, 8):
        for rr in range(2): L.append(f"v_fmac_f32 v{T+rr}, v{F+8*rr+e}, v{F+8*rr+e}")
    L += allred()
    L.append(f"v_mov_b32 v{T+2}, 0x3727c5ac")
    for rr in range(2): L.append(f"v_fmac_f32 v{T+2+rr}, 0x3b000000, v{T+rr}" if rr == 0 else f"v_mov_b32 v{T+3}, 0x3727c5ac")
    L.append(f"v_fmac_f32 v{T+3}, 0x3b000000, v{T+1}")
    for rr in range(2): L.append(f"v_rsq_f32 v{T+rr}, v{T+2+rr}")
    L.append("s_nop 0")
    for rr in range(2): L.append(f"v_mul_f32 v{T+rr}, 0x{QSCALE:x}, v{T+rr}")
    for rr in range(2):
        for e in range(8): L.append(f"v_mul_f32 v{F+8*rr+e}, v{F+8*rr+e}, v{T+rr}")
    g = G.stream(max(gsig + 1, int(os.environ.get("KA_J3", "372"))), L)
    print("J3 stats end", g)
    gpoll = max(g + 1, int(os.environ.get("KA_POLL", "420")))
    L = [f"v_mov_b32 v{T+4}, 0",
         I(f"buffer_load_dword v{T+5}, v{T+4}, s[{S_D}:{S_D+3}], 0 offen sc1", "pl")]
    g = G.stream(gpoll, L)
    CA, SA = J, J + 8
    L = [[WV("pl"), f"v_readfirstlane_b32 s{sA}, v{T+5}"],
         [f"s_cmp_lg_u32 s{sA}, 64", "s_cbranch_scc1 KA_SPIN", "KA_SPIN_RET:"],
         f"v_lshlrev_b32 v19, 5, v2",
         I(f"buffer_load_dwordx4 v[{SA}:{SA+3}], v19, s[{S_WS}:{S_WS+3}], 0 offen sc1", "md"),
         I(f"buffer_load_dwordx4 v[{SA+4}:{SA+7}], v19, s[{S_WS}:{S_WS+3}], 0 offen offset:16 sc1", "md"),
         I(f"buffer_load_dwordx4 v[{CA}:{CA+3}], v19, s[{S_WS}:{S_WS+3}], 0 offen offset:2048 sc1", "md"),
         I(f"buffer_load_dwordx4 v[{CA+4}:{CA+7}], v19, s[{S_WS}:{S_WS+3}], 0 offen offset:2064 sc1", "md")]
    g = G.stream(g + 28, L)
    print("J3 mod loads end", g)
    g += 28
    L = [WV("md")]
    for e in range(8): L.append(f"v_add_f32 v{CA+e}, 1.0, v{CA+e}")
    for e in range(8): L.append(f"v_cvt_pk_bf16_f32 v{CA+e}, v{CA+e}, v{CA+e}")
    for e in range(8): L.append(f"v_lshlrev_b32 v{CA+e}, 16, v{CA+e}")
    for e in range(8): L.append(f"v_mul_f32 v{SA+e}, 0x{QSCALE:x}, v{SA+e}")
    for rr in range(2):
        for e in range(8): L.append(f"v_fma_f32 v{F+8*rr+e}, v{F+8*rr+e}, v{CA+e}, v{SA+e}")
    for rr in range(2):
        for qd in range(4): L.append(f"v_cvt_pk_bf16_f32 v{XR+4*rr+qd}, v{F+8*rr+2*qd}, v{F+8*rr+2*qd+1}")
    L += [f"s_lshl_b32 s{sA}, s2, 3", f"s_lshl_b32 s{sD}, s{sW}, 1", f"s_add_u32 s{sA}, s{sA}, s{sD}", f"s_lshr_b32 s{sD}, s{sA}, 5",
          f"s_lshl_b32 s{sD}, s{sD}, 15", f"s_and_b32 s{sA}, s{sA}, 31", f"s_lshl_b32 s{sA}, s{sA}, 4", f"s_add_u32 s{sA}, s{sA}, s{sD}",
          f"s_add_u32 s{sA}, s{sA}, {WS_H1}", f"v_lshlrev_b32 v19, 9, v2",
          I(f"buffer_store_dwordx4 v[{XR}:{XR+3}], v19, s[{S_WS}:{S_WS+3}], s{sA} offen", "st"),
          I(f"buffer_store_dwordx4 v[{XR+4}:{XR+7}], v19, s[{S_WS}:{S_WS+3}], s{sA} offen offset:16", "st")]
    g = G.stream(g + 1, L)
    print("LN end", g)
    L = [f"s_lshl_b32 s{sE}, s{sHD}, 8", [f"s_add_u32 s{S_M}, s8, s{sE}", f"s_addc_u32 s{S_M+1}, s9, 0"], f"s_mov_b32 s{S_M+2}, {511*8192+256}",
         f"v_lshrrev_b32 v28, 1, v2", f"v_and_b32 v29, 1, v2", f"v_lshlrev_b32 v28, 13, v28", f"v_lshl_add_u32 v28, v29, 7, v28",
         f"s_lshl_b32 s{sE}, s{sMT}, 19", f"s_and_b32 s{sF}, s{sW}, 1", f"s_lshl_b32 s{sF}, s{sF}, 18", f"s_add_u32 s{sE}, s{sE}, s{sF}",
         [f"s_cmp_lt_u32 s{sW}, 2", f"s_cselect_b32 s{sE}, s{sE}, 0x80000000"],
         I(f"buffer_load_dword v26, v28, s[{S_M}:{S_M+3}], s{sE} offen", "pf")]
    G.stream(int(os.environ.get("KA_PFG", "300")), L)

    L = [f"v_mov_b32 v{J+56+i}, 0" for i in range(4)] + [f"v_lshlrev_b32 v29, 4, v0", f"s_lshl_b32 s{sF}, s2, 12", f"s_add_u32 s{sF}, s{sF}, {WS_FLAG}",
         [f"s_cmp_lt_u32 s2, 32", f"s_cselect_b32 s{sF}, s{sF}, 0x80000000"],
         I(f"buffer_store_dwordx4 v[{J+56}:{J+59}], v29, s[{S_WS}:{S_WS+3}], s{sF} offen sc1", "st")]
    G.stream(340, L)
    items = P + G.items()
    over = [(g, u) for g, u in enumerate(G.used) if u > 24]
    print("KA gaps over cap:", len(over), over[:40])
    if STAMPS:
        pos = [i for i, it in enumerate(items) if it.s.startswith("v_mfma")]
        stg = [int(x) for x in os.environ.get("STG", "128,256,384").split(",")]
        for k in range(len(stg) - 1, -1, -1):
            b = ST.base + 2 * (3 + k)
            items.insert(pos[stg[k]], I(f"s_memtime s[{b}:{b+1}]"))
        ST.n += len(stg)
    items += [I("s_nop 7"), I("s_nop 3")] + [x if isinstance(x, Item) else I(x) for x in epi(3)]
    resolve(items, A, vm0=["pf0"])
    ST.stamp()
    if STAMPS: A("s_waitcnt vmcnt(0)")
    ST.stamp()
    ST.flush(4, f"s{sW}", 22, nst=13)
    A("KA_END:")
    A("s_endpgm")
    A(f"""
    KA_SPIN:
    s_mov_b32 s{sD}, 200000
    KA_SPIN_L:
    s_sleep 8
    buffer_load_dword v{T+5}, v{T+4}, s[{S_D}:{S_D+3}], 0 offen sc1
    s_waitcnt vmcnt(0)
    v_readfirstlane_b32 s{sA}, v{T+5}
    s_cmp_eq_u32 s{sA}, 64
    s_cbranch_scc1 KA_SPIN_RET
    s_sub_u32 s{sD}, s{sD}, 1
    s_cmp_lg_u32 s{sD}, 0
    s_cbranch_scc1 KA_SPIN_L
    s_branch KA_SPIN_RET
    """)
    return name, A.text(), kernel_desc(name, 256, 256), "grid=(256,1,1) block=(256,1,1) lds=163840"
```

```python
from asmlib import *
from sched import *
import os
LOG2E = 0x3fb8aa3b
MAGIC = 0x5a17
LDF = os.environ.get('KC_LDF', 'sc1')

def lines(s):
    return [I(x.strip()) for x in s.strip().split("\n") if x.strip()]

def gen_kc():
    A = Asm()
    name = "kc_kernel"
    A.lines.append(kernel_header(name))
    A("s_cmp_ge_u32 s2, 256")
    A("s_cbranch_scc1 KC_END")
    ST = Stamper(A, 2)
    ST.stamp()
    def stamp_item():
        if not STAMPS: return []
        b = ST.base + 2 * ST.n; ST.n += 1
        return [I(f"s_memtime s[{b}:{b+1}]")]
    S_WS, S_X, S_O, S_B = 12, 16, 20, 24
    sW, sRB, sCB, sTS, sNT = 30, 31, 32, 33, 34
    sA, sWo, sT0, sT1, sT2, sFR, sFL = 35, 36, 37, 38, 39, 40, 41
    sW1, sACT, sFW, sL2E, sXC = 42, 43, 44, 45, 46
    S_F, S_S = 48, 52
    FASTON = os.environ.get('KC_FAST', '0') == '1'
    def st2(txt, tag):
        R = [I(txt.format(srd=f's[{S_S}:{S_S+3}]', fl='sc1'), tag)]
        if FASTON: R.append(I(txt.format(srd=f's[{S_F}:{S_F+3}]', fl='').rstrip(), tag))
        return R
    VA, VW, VM, VRM, VMG, VRR, VGT, VPL, VF0 = 4, 6, 8, 9, 10, 11, 12, 13, 3
    ACC, RING, X, GA, CB1, T = 16, 80, 144, 160, 176, 192
    D = 4
    WS = f"s[{S_WS}:{S_WS+3}]"
    A(f"""
    s_load_dwordx2 s[{S_WS}:{S_WS+1}], s[0:1], {KA['ws']}
    s_load_dwordx2 s[{S_X}:{S_X+1}], s[0:1], {KA['x']}
    s_load_dwordx2 s[{S_O}:{S_O+1}], s[0:1], {KA['out']}
    s_load_dwordx2 s[{S_B}:{S_B+1}], s[0:1], {KA['b1']}
    v_lshrrev_b32 v3, 6, v0
    v_and_b32 v2, 63, v0
    v_readfirstlane_b32 s{sW}, v3
    v_lshlrev_b32 v1, 4, v2
    s_and_b32 s{sT0}, s2, 7
    s_lshr_b32 s{sT1}, s2, 3
    s_lshr_b32 s{sRB}, s{sT1}, 3
    s_lshl_b32 s{sT0}, s{sT0}, 2
    s_add_u32 s{sRB}, s{sRB}, s{sT0}
    s_and_b32 s{sCB}, s{sT1}, 7
    s_lshr_b32 s{sT0}, s{sW}, 1
    s_lshl_b32 s{sTS}, s{sRB}, 1
    s_add_u32 s{sTS}, s{sTS}, s{sT0}
    s_and_b32 s{sT1}, s{sW}, 1
    s_lshl_b32 s{sNT}, s{sCB}, 1
    s_add_u32 s{sNT}, s{sNT}, s{sT1}
    s_lshl_b32 s{sT0}, s{sTS}, 18
    s_lshl_b32 s{sT2}, s{sW}, 16
    s_add_u32 s{sT0}, s{sT0}, s{sT2}
    v_add_u32 v{VA}, s{sT0}, v1
    v_xor_b32 v{VA+1}, 0x40000, v{VA}
    s_lshl_b32 s{sT1}, s{sT1}, 10
    v_add_u32 v{VW}, s{sT1}, v1
    v_xor_b32 v{VW+1}, 0x400, v{VW}
    s_mov_b32 s{sA}, {WS_CTX}
    s_lshl_b32 s{sWo}, s{sCB}, 19
    s_lshl_b32 s{sT2}, s{sW}, 17
    s_add_u32 s{sWo}, s{sWo}, s{sT2}
    s_add_u32 s{sWo}, s{sWo}, {WS_WOF}
    s_mov_b32 s{S_WS+2}, {WS_END}
    s_mov_b32 s{S_WS+3}, 0x00020000
    s_waitcnt lgkmcnt(0)
    """)
    def p1loads(slot):
        b = RING + 16 * slot
        return [I(f"buffer_load_dwordx4 v[{b}:{b+3}], v{VA}, {WS}, s{sA} offen", "p1"),
                I(f"buffer_load_dwordx4 v[{b+8}:{b+11}], v{VW}, {WS}, s{sWo} offen", "p1"),
                I(f"buffer_load_dwordx4 v[{b+4}:{b+7}], v{VA+1}, {WS}, s{sA} offen", "p1"),
                I(f"buffer_load_dwordx4 v[{b+12}:{b+15}], v{VW+1}, {WS}, s{sWo} offen", "p1"),
                I(f"s_add_u32 s{sA}, s{sA}, 1024"), I(f"s_add_u32 s{sWo}, s{sWo}, 2048")]
    def p1mfma(slot):
        b = RING + 16 * slot
        return [mfma(vr(ACC + 16 * (2 * q + nt), 16), vr(b + 8 + 4 * nt, 4), vr(b + 4 * q, 4), vr(ACC + 16 * (2 * q + nt), 16))
                for q in range(2) for nt in range(2)]
    for j in range(D - 1):
        for it in p1loads(j): A(it.s)
    A(f"""
    s_getreg_b32 s{sXC}, hwreg(HW_REG_XCC_ID, 0, 4)
    s_add_u32 s{sXC}, s{sXC}, {MAGIC}
    s_lshl_b32 s{sFL}, s{sRB}, 10
    s_add_u32 s{sFL}, s{sFL}, {WS_FLAG}
    s_lshl_b32 s{sFW}, s{sCB}, 7
    s_add_u32 s{sFW}, s{sFW}, s{sFL}
    s_cmp_eq_u32 s{sW}, 0
    s_cselect_b32 s{sFW}, s{sFW}, 0x80000000
    v_mov_b32 v{VMG}, s{sXC}
    v_lshlrev_b32 v{VF0}, 28, v2
    v_lshrrev_b32 v14, 4, v2
    v_lshlrev_b32 v14, 28, v14
    v_or_b32 v{VF0}, v{VF0}, v14
    v_lshrrev_b32 v{VF0}, 1, v{VF0}
    s_add_u32 s{sT0}, s{sFW}, 65536
    buffer_store_dword v{VMG}, v{VF0}, {WS}, s{sT0} offen sc1
    """)
    for i in range(64):
        A(f"v_mov_b32 v{ACC+i}, 0")
    ST.stamp()
    def p1step(j):
        for it in p1loads((j - 1) % D): A(it.s)
        A(f"s_waitcnt vmcnt({4*(D-1)})")
        for m in p1mfma(j): A(m)
    A.label("KC_L1")
    for j in range(D):
        p1step(j)
    A(f"s_cmp_lt_u32 s{sA}, {WS_CTX + 51*1024}")
    A("s_cbranch_scc1 KC_L1")
    B1 = T + 16
    CPF = os.environ.get("KC_CPF", "1") == "1"
    SET = []
    if CPF:
        SET = [I("s_getpc_b64 s[56:57]"), I(f"v_lshlrev_b32 v14, 6, v0"), I(f"global_load_dword v{T+40}, v14, s[56:57]", "pf")]
    SET += lines(f"""
    s_mov_b32 s{S_X+2}, 0x200000
    s_mov_b32 s{S_X+3}, 0x00020000
    s_mov_b32 s{S_O+2}, 0x200000
    s_mov_b32 s{S_O+3}, 0x00020000
    s_mov_b32 s{S_B+2}, 3584
    s_mov_b32 s{S_B+3}, 0x00020000
    v_lshrrev_b32 v14, 5, v2
    v_and_b32 v15, 31, v2
    s_lshl_b32 s{sT0}, s{sNT}, 7
    v_lshlrev_b32 v{VM}, 4, v14
    v_add_u32 v{VM}, s{sT0}, v{VM}
    s_lshl_b32 s{sT0}, s{sTS}, 15
    s_lshl_b32 s{sT1}, s{sNT}, 6
    s_add_u32 s{sT1}, s{sT1}, s{sT0}
    v_lshlrev_b32 v{VRM}, 10, v15
    v_lshl_add_u32 v{VRM}, v14, 3, v{VRM}
    v_add_u32 v{VRM}, s{sT1}, v{VRM}
    s_lshl_b32 s{sT1}, s{sNT}, 11
    s_add_u32 s{sFR}, s{sT0}, s{sT1}
    s_add_u32 s{sFR}, s{sFR}, {WS_U}
    s_mov_b32 s{sT0}, {2*2048}
    s_mov_b32 s{sT1}, {4*2048}
    """)
    for i in range(4):
        SET.append(I(f"buffer_load_dwordx2 v[{T+2*i}:{T+2*i+1}], v{VRM}, s[{S_X}:{S_X+3}], 0 offen offset:{16*i}", "sm"))
    for i in range(4):
        SET.append(I(f"buffer_load_dwordx4 v[{GA+4*i}:{GA+4*i+3}], v{VM}, {WS}, s{sT0} offen offset:{32*i}", "sm"))
    for i in range(4):
        SET.append(I(f"buffer_load_dwordx4 v[{CB1+4*i}:{CB1+4*i+3}], v{VM}, {WS}, s{sT1} offen offset:{32*i}", "sm"))
    SET += lines(f"""
    v_and_b32 v14, 127, v0
    v_lshrrev_b32 v15, 7, v0
    v_lshlrev_b32 v{T+12}, 4, v14
    v_lshlrev_b32 v{T+13}, 11, v15
    v_sub_u32 v{T+12}, v{T+12}, v{T+13}
    v_add_u32 v{T+12}, {4*2048}, v{T+12}
    """)
    SET.append(I(f"buffer_load_dwordx4 v[{T+8}:{T+11}], v{T+12}, {WS}, 0 offen", "sm"))
    SET += lines(f"""
    v_lshrrev_b32 v{T+13}, 2, v14
    v_lshlrev_b32 v{T+13}, 6, v{T+13}
    v_lshl_add_u32 v{T+13}, v15, 5, v{T+13}
    v_and_b32 v{T+14}, 1, v14
    v_lshl_add_u32 v{T+13}, v{T+14}, 4, v{T+13}
    v_bfe_u32 v{T+14}, v14, 1, 1
    v_lshl_add_u32 v{T+13}, v{T+14}, 3, v{T+13}
    v_add_u32 v{T+13}, 0x20000, v{T+13}
    v_sub_u32 v{T+14}, 1, v15
    v_cvt_f32_u32 v{T+14}, v{T+14}
    v_and_b32 v14, 1, v2
    v_lshrrev_b32 v15, 5, v2
    v_lshlrev_b32 v{VGT}, 5, v14
    v_lshl_add_u32 v{VGT}, v15, 4, v{VGT}
    v_add_u32 v{VGT}, 0x20000, v{VGT}
    s_mul_i32 s{sT0}, s{sW}, 12288
    v_add_u32 v{VRR}, s{sT0}, v1
    s_lshl_b32 s{sW1}, s{sCB}, 2
    s_add_u32 s{sW1}, s{sW1}, s{sW}
    s_lshl_b32 s{sT0}, s{sW1}, 7
    v_lshlrev_b32 v{T+15}, 3, v15
    s_lshl_b32 s{sW1}, s{sW1}, 16
    s_add_u32 s{sW1}, s{sW1}, {WS_W1F}
    v_and_b32 v{VPL}, 7, v2
    v_lshlrev_b32 v{VPL}, 7, v{VPL}
    v_mov_b32 v{VMG}, {MAGIC}
    s_add_u32 s{sT2}, s{sFL}, 65536
    """)
    SET.append(I(f"buffer_load_dword v14, v{VPL}, {WS}, s{sT2} offen sc1", "sm"))
    for nt in range(2):
        for i in range(4):
            SET.append(I(f"buffer_load_dwordx2 v[{B1+8*nt+2*i}:{B1+8*nt+2*i+1}], v{T+15}, s[{S_B}:{S_B+3}], s{sT0} offen offset:{64*nt+16*i}", "sm"))
    SET.append(I(f"s_cmp_eq_u32 s{sCB}, 7\ns_cselect_b32 s{sW1}, 0x80000000, s{sW1}"))
    PREP = [WV("sm")]
    PREP += lines(f"""
    v_cmp_eq_u32 vcc, s{sXC}, v14
    s_mov_b32 s{S_F}, s{S_WS}
    s_mov_b32 s{S_F+1}, s{S_WS+1}
    s_mov_b32 s{S_F+3}, 0x00020000
    s_mov_b32 s{S_S}, s{S_WS}
    s_mov_b32 s{S_S+1}, s{S_WS+1}
    s_mov_b32 s{S_S+3}, 0x00020000
    """)
    PREP.append(I(f"s_cmp_eq_u32 vcc_lo, {-1 if FASTON else 12345}\ns_cselect_b32 s{S_F+2}, {WS_END}, 0\ns_cselect_b32 s{S_S+2}, 0, {WS_END}"))
    for i in range(8):
        PREP.append(I(f"v_lshlrev_b32 v{X+2*i}, 16, v{T+i}"))
        PREP.append(I(f"v_and_b32 v{X+2*i+1}, 0xffff0000, v{T+i}"))
    for e in range(16): PREP.append(I(f"v_add_f32 v{CB1+e}, 1.0, v{CB1+e}"))
    for e in range(16): PREP.append(I(f"v_cvt_pk_bf16_f32 v{CB1+e}, v{CB1+e}, v{CB1+e}"))
    for e in range(16): PREP.append(I(f"v_lshlrev_b32 v{CB1+e}, 16, v{CB1+e}"))
    for e in range(4): PREP.append(I(f"v_add_f32 v{T+8+e}, v{T+14}, v{T+8+e}"))
    PREP += [I(f"v_cvt_pk_bf16_f32 v{T+8}, v{T+8}, v{T+9}"), I(f"v_cvt_pk_bf16_f32 v{T+9}, v{T+10}, v{T+11}"),
             I(f"ds_write_b64 v{T+13}, v[{T+8}:{T+9}]", "gt")]
    B1F = T + 32
    PREP.append(I(f"s_mov_b32 s{sL2E}, {LOG2E}"))
    for i in range(16):
        PREP.append(I(f"v_lshlrev_b32 v{B1F+2*i}, 16, v{B1+i}"))
        PREP.append(I(f"v_and_b32 v{B1F+2*i+1}, 0xffff0000, v{B1+i}"))
    for sp in (1, 2, 3):
        PREP += lines(f"""
        s_xor_b32 s{sT0}, s{sW}, {sp}
        s_mul_i32 s{sT0}, s{sT0}, 12288
        v_add_u32 v{T+sp}, s{sT0}, v1
        """)
    def w1load(n):
        nt, ks = n // 32, n % 32
        pre = []
        if n == 32: pre = [I(f"s_sub_u32 s{sW1}, s{sW1}, {15*4096}")]
        elif ks % 2 == 0 and ks: pre = [I(f"s_add_u32 s{sW1}, s{sW1}, 4096")]
        return pre + [I(f"buffer_load_dwordx4 {ar(8*ks+4*nt,4)}, v1, {WS}, s{sW1} offen offset:{(ks%2)*2048+nt*1024}", f"w1_{n}")]
    P = []
    vm0 = []
    for j in range(D - 1):
        vm0 += [f"k{48+j}"] * 4
    nw1 = 0
    fill = SET
    for k in range(48, 64):
        if k + D - 1 < 64:
            ld = p1loads((k - 1) % D)
            for it in ld:
                if it.tag: it.tag = f"k{k+D-1}"
            P += ld
        else:
            for _ in range(4):
                P += w1load(nw1); nw1 += 1
        P.append(WV(f"k{k}"))
        if k == 56:
            assert not fill
            fill = PREP
        for m in p1mfma(k % D):
            P.append(I(m))
            for _ in range(5):
                if fill: P.append(fill.pop(0))
    assert not fill
    P += stamp_item()
    P += [I("s_nop 7"), I("s_nop 1")]
    def reduce_items(extra):
        R = []
        for sp in (1, 2, 3):
            for i in range(4):
                R.append(I(f"ds_write_b128 v{T+sp}, v[{ACC+16*sp+4*i}:{ACC+16*sp+4*i+3}] offset:{(sp-1)*4096+i*1024}", "rw"))
        R += extra()
        R += [WL("rw"), I("s_barrier")]
        for sp in (1, 2, 3):
            for i in range(4):
                R.append(I(f"ds_read_b128 v[{ACC+16*sp+4*i}:{ACC+16*sp+4*i+3}], v{VRR} offset:{(sp-1)*4096+i*1024}", f"rr{sp}"))
        R += extra()
        for sp in (1, 2, 3):
            R.append(WL(f"rr{sp}"))
            for e in range(16):
                R.append(I(f"v_add_f32 v{ACC+e}, v{ACC+e}, v{ACC+16*sp+e}"))
        return R
    def more(n):
        def f():
            nonlocal nw1
            R = []
            for _ in range(n):
                if nw1 < 64:
                    R += w1load(nw1); nw1 += 1
            return R
        return f
    E = reduce_items(more(3))
    PK = ACC + 16
    V = []
    for e in range(16): V.append(I(f"v_fmac_f32 v{X+e}, v{ACC+e}, v{GA+e}"))
    for i in range(8): V.append(I(f"v_cvt_pk_bf16_f32 v{PK+i}, v{X+2*i}, v{X+2*i+1}"))
    for i in range(8):
        V.append(I(f"v_lshlrev_b32 v{X+2*i}, 16, v{PK+i}"))
        V.append(I(f"v_and_b32 v{X+2*i+1}, 0xffff0000, v{PK+i}"))
    for e in range(16): V.append(I(f"v_mul_f32 v{CB1+e}, v{CB1+e}, v{X+e}"))
    for i in range(8): V.append(I(f"v_cvt_pk_bf16_f32 v{PK+i}, v{CB1+2*i}, v{CB1+2*i+1}"))
    V += st2(f"buffer_store_dwordx4 v[{PK}:{PK+3}], v1, {{srd}}, s{sFR} offen {{fl}}", "st1")
    V += st2(f"buffer_store_dwordx4 v[{PK+4}:{PK+7}], v1, {{srd}}, s{sFR} offen offset:1024 {{fl}}", "st1")
    Q = ACC + 32
    V.append(I(f"v_add_f32 v{Q}, v{X}, v{X+1}")); V.append(I(f"v_add_f32 v{Q+1}, v{X+2}, v{X+3}"))
    for e in range(4, 16, 2):
        V.append(I(f"v_add_f32 v{Q}, v{Q}, v{X+e}")); V.append(I(f"v_add_f32 v{Q+1}, v{Q+1}, v{X+e+1}"))
    V += lines(f"""
    v_add_f32 v{Q}, v{Q}, v{Q+1}
    v_mov_b32 v{Q+2}, v{Q}
    v_and_b32 v14, 31, v2
    v_lshlrev_b32 v14, 4, v14
    v_permlane32_swap_b32 v{Q}, v{Q+2}
    s_lshl_b32 s{sT0}, s{sTS}, 12
    v_add_f32 v{Q}, v{Q}, v{Q+2}
    v_mul_f32 v{Q}, 0x3d000000, v{Q}
    """)
    for e in range(16): V.append(I(f"v_sub_f32 v{Q+8+e}, v{X+e}, v{Q}"))
    V.append(I(f"v_mul_f32 v{Q+1}, v{Q+8}, v{Q+8}")); V.append(I(f"v_mul_f32 v{Q+2}, v{Q+9}, v{Q+9}"))
    for e in range(2, 16, 2):
        V.append(I(f"v_fmac_f32 v{Q+1}, v{Q+8+e}, v{Q+8+e}")); V.append(I(f"v_fmac_f32 v{Q+2}, v{Q+9+e}, v{Q+9+e}"))
    V += lines(f"""
    v_add_f32 v{Q+1}, v{Q+1}, v{Q+2}
    v_mov_b32 v{Q+2}, v{Q+1}
    s_lshl_b32 s{sT1}, s{sCB}, 9
    s_add_u32 s{sT0}, s{sT0}, s{sT1}
    s_and_b32 s{sT1}, s{sW}, 1
    s_lshl_b32 s{sT1}, s{sT1}, 3
    s_add_u32 s{sT0}, s{sT0}, s{sT1}
    v_permlane32_swap_b32 v{Q+1}, v{Q+2}
    s_add_u32 s{sT0}, s{sT0}, {WS_STAT}
    v_add_f32 v{Q+1}, v{Q+1}, v{Q+2}
    """)
    V += st2(f"buffer_store_dwordx2 v[{Q}:{Q+1}], v14, {{srd}}, s{sT0} offen {{fl}}", "st1")
    EV = int(os.environ.get("KC_EV", "20"))
    cnt = 0
    for it in E + V:
        P.append(it)
        if it.s.startswith("v_"):
            cnt += 1
            if cnt % EV == 0: P += more(1)()
    P += stamp_item()
    print("w1 issued at end of E1:", nw1)
    GACC, G1, UF = 80, 112, 160
    UFG = 176
    def gread(n):
        return I(f"ds_read_b128 v[{UFG+4*(n%4)}:{UFG+4*(n%4)+3}], v{VGT} offset:{(n%32)*64}", f"g{n}")
    def gmf(n):
        nt, ks = n // 32, n % 32
        acc = vr(GACC + 16 * nt, 16)
        return mfma(acc, ar(8 * ks + 4 * nt, 4), vr(UFG + 4 * (n % 4), 4), acc if ks else "0")
    def gstep(n, lim):
        R = [WVL([f"w1_{n}"], [f"g{n}"]), I(gmf(n))]
        if n + 3 < lim: R.append(gread(n + 3))
        return R
    def extract(nt):
        R = []
        for r in range(16 * nt, 16 * nt + 16):
            R.append(f"v_mul_f32_dpp v{G1+r}, v{GACC+r}, v{VL2} quad_perm:[0,0,2,2] row_mask:0xf bank_mask:0xf")
        for r in range(16 * nt, 16 * nt + 16):
            R.append(f"v_add_f32_dpp v{GACC+r}, v{GACC+r}, v{B1F+r} quad_perm:[1,1,3,3] row_mask:0xf bank_mask:0xf")
        for r in range(16 * nt, 16 * nt + 16):
            R.append(f"v_mul_f32 v{GACC+r}, s{sL2E}, v{GACC+r}")
        return R
    VL2 = 15
    P += [gread(0), gread(1), gread(2), I(f"v_mov_b32 v{VL2}, s{sL2E}")]
    gk = 0
    NG1 = int(os.environ.get("KC_NG1", "20"))
    for i in range(NG1):
        if i % 2 == 0 and nw1 < int(os.environ.get('KC_NW1P', '64')): P += more(1)()
        P += gstep(gk, 32); gk += 1
    P += [WV("st1"), I("s_barrier")] + st2(f"buffer_store_dword v{VMG}, v{VF0}, {{srd}}, s{sFW} offen {{fl}}", "fl")
    P += stamp_item()
    NPOLL = int(os.environ.get("KC_NPOLL", "46"))
    NW1A = int(os.environ.get("KC_NW1A", "52"))
    polled = False
    while nw1 < NW1A or gk < 32:
        if nw1 >= NPOLL and not polled:
            P.append(I(f"buffer_load_dword v14, v{VPL}, {WS}, s{sFL} offen sc1", "pl")); polled = True
        if nw1 < NW1A: P += more(1)()
        if gk < 32:
            P += gstep(gk, 32); gk += 1
    assert polled
    P += stamp_item()
    P += lines(f"""
    s_mul_i32 s{sWo}, s{sCB}, {112*2048}
    s_mul_i32 s{sT0}, s{sW}, {28*2048}
    s_add_u32 s{sWo}, s{sWo}, s{sT0}
    s_add_u32 s{sWo}, s{sWo}, {WS_W2F}
    s_cmp_eq_u32 s{sCB}, 7
    s_cbranch_scc1 KC_SKIP2
    """)
    P.append(WV("pl"))
    P += lines(f"""
    v_cmp_eq_u32 vcc, {MAGIC}, v14
    s_cmp_eq_u32 vcc_lo, -1
    s_cbranch_scc0 KC_P1_SLOW
    KC_P1_OK:
    """)
    vmA, lgA = resolve(P, A, vm0=vm0)
    def w2reg(i, nt):
        n = 2 * i + nt
        return 8 * n if n < 32 else 8 * (n - 32) + 4
    def w2load(n):
        i, nt = n // 2, n % 2
        post = [I(f"s_add_u32 s{sWo}, s{sWo}, 4096")] if n % 4 == 3 else []
        return [I(f"buffer_load_dwordx4 {ar(w2reg(i,nt),4)}, v{VW+nt}, {WS}, s{sWo} offen offset:{(i%2)*2048}", "w2")] + post
    def poll(tag, off, mask, any_=False, sl=None):
        A(f"""
        s_mov_b32 s{sT1}, 100000
        s_add_u32 s{sT2}, s{sFL}, {off}
        {tag}_L:
        buffer_load_dword v14, v{VPL}, {WS}, s{sT2} offen sc1
        s_waitcnt vmcnt(0)
        v_cmp_eq_u32 vcc, {MAGIC}, v14
        s_and_b32 s{sT0}, vcc_lo, {mask}
        {'s_cmp_lg_u32 s%d, 0' % sT0 if any_ else 's_cmp_eq_u32 s%d, %d' % (sT0, mask)}
        s_cbranch_scc1 {tag}_OK
        s_sleep {sl or os.environ.get('KC_PS','1')}
        s_sub_u32 s{sT1}, s{sT1}, 1
        s_cmp_lg_u32 s{sT1}, 0
        s_cbranch_scc1 {tag}_L
        {tag}_OK:
        """)
    ST.stamp()
    P = lines(f"""
    s_lshl_b32 s{sT0}, s{sRB}, 16
    s_lshl_b32 s{sT1}, s{sW}, 12
    s_add_u32 s{sT0}, s{sT0}, s{sT1}
    s_add_u32 s{sT0}, s{sT0}, {WS_U}
    s_add_u32 s{sT1}, s{sT1}, 0x10000
    """)
    for g in range(4):
        P.append(I(f"s_add_u32 m0, s{sT1}, {g*16384}"))
        P.append(I(f"s_add_u32 s{sT2}, s{sT0}, {g*16384}"))
        for i in range(4):
            P.append(I(f"buffer_load_dwordx4 v1, {WS}, s{sT2} offen offset:{i*1024} {LDF} lds", f"u{g}"))
        if g == 1:
            P += lines(f"""
            s_lshl_b32 s{sA}, s{sRB}, 13
            s_add_u32 s{sA}, s{sA}, {WS_STAT}
            s_add_u32 s{sACT}, s{sA}, 4096
            """)
            for q in range(2):
                for i in range(4):
                    P.append(I(f"buffer_load_dwordx4 v[{T+16*q+4*i}:{T+16*q+4*i+3}], v1, {WS}, s{sA if q==0 else sACT} offen offset:{1024*i} sc1", "stt"))
    P += [I(x) for x in extract(0)]
    P.append(I(f"v_add_u32 v14, 0x10000, v1"))
    P += stamp_item()
    units = [(0, 0), (0, 1), (1, 0), (1, 1)]
    mf = []; seq = []
    NU = 8
    ustart = {}
    for ui, (nt, q) in enumerate(units):
        if ui == 2:
            for ks in range(32):
                n = len(mf); acc = vr(GACC + 16, 16)
                mf.append(mfma(acc, ar(8 * ks + 4, 4), vr(UF + 4 * (n % NU), 4), acc if ks else "0"))
                seq.append(("g", ks))
        ustart[ui] = len(mf)
        for ks in range(32):
            acc = vr(ACC + 16 * (2 * q + nt), 16)
            n = len(mf)
            mf.append(mfma(acc, ar(8 * ks + 4 * nt, 4), vr(UF + 4 * (n % NU), 4), acc if ks else "0"))
            seq.append((q, ks))
    NM = len(mf)
    def uread(n):
        q, ks = seq[n]
        if q == "g":
            return I(f"ds_read_b128 v[{UF+4*(n%NU)}:{UF+4*(n%NU)+3}], v{VGT} offset:{ks*64}", f"r{n}")
        return I(f"ds_read_b128 v[{UF+4*(n%NU)}:{UF+4*(n%NU)+3}], v14 offset:{q*32768+ks*1024}", f"r{n}")
    LEAD = 6
    P += [WV("u0", "u1"), I("s_barrier")] + [uread(i) for i in range(LEAD)] + [WL("r1")]
    G = Gaps(mf)
    for n in range(NM):
        if n + LEAD < NM:
            if n + LEAD == 32:
                G.put(n - 1, WV("u3"), "end"); G.put(n, "s_barrier", "mem")
            G.put(n, uread(n + LEAD))
        if n % 2 == 1 and n + 1 < NM: G.put(n, WL(f"r{n+2}"), "end")
    gg = 2
    wst = 3 if 64 - nw1 <= 18 else 2
    while nw1 < 64:
        w = w1load(nw1); nw1 += 1
        if len(w) > 1: G.put(gg - 1, w[0], "end")
        G.put(gg, w[-1], "mem"); gg += wst
    G.put(63, WV("w1_47"), "end")
    G.put(79, WV("w1_63"), "end")
    MR, RS, TT = 14, 10, T + 32
    MR, RS = T + 40, T + 42
    L = [WV("stt")]
    for q in range(2):
        b = T + 16 * q
        L.append(f"v_add_f32 v{MR+q}, v{b}, v{b+2}")
        for i in range(2, 8): L.append(f"v_add_f32 v{MR+q}, v{MR+q}, v{b+2*i}")
    L += [f"v_mov_b32 v{TT}, v{MR}", f"v_mov_b32 v{TT+1}, v{MR+1}", "s_nop 0",
          f"v_permlane32_swap_b32 v{MR}, v{TT}", f"v_permlane32_swap_b32 v{MR+1}, v{TT+1}", f"s_mov_b32 s{sT0}, 0x42000000"]
    for q in range(2):
        L += [f"v_add_f32 v{MR+q}, v{MR+q}, v{TT+q}", f"v_mul_f32 v{MR+q}, 0x3d800000, v{MR+q}"]
    for q in range(2):
        b = T + 16 * q
        for i in range(8): L.append(f"v_sub_f32 v{b+2*i}, v{b+2*i}, v{MR+q}")
        for i in range(8): L.append(f"v_mul_f32 v{b+2*i}, v{b+2*i}, v{b+2*i}")
        for i in range(8): L.append(f"v_fma_f32 v{b+2*i}, v{b+2*i}, s{sT0}, v{b+2*i+1}")
        L.append(f"v_add_f32 v{RS+q}, v{b}, v{b+2}")
        for i in range(2, 8): L.append(f"v_add_f32 v{RS+q}, v{RS+q}, v{b+2*i}")
    L += [f"v_mov_b32 v{TT}, v{RS}", f"v_mov_b32 v{TT+1}, v{RS+1}", f"v_mov_b32 v{TT+2}, 0x3727c5ac",
          f"v_permlane32_swap_b32 v{RS}, v{TT}", f"v_permlane32_swap_b32 v{RS+1}, v{TT+1}", f"s_mov_b32 s{sT0}, 0x3b000000"]
    for q in range(2): L.append(f"v_add_f32 v{RS+q}, v{RS+q}, v{TT+q}")
    for q in range(2): L.append(f"v_fma_f32 v{RS+q}, v{RS+q}, s{sT0}, v{TT+2}")
    for q in range(2): L.append(f"v_rsq_f32 v{RS+q}, v{RS+q}")
    L.append("s_nop 0")
    for q in range(2): L.append(f"v_mul_f32 v{MR+q}, v{MR+q}, v{RS+q}")
    for q in range(2): L.append(f"v_mul_f32 v{RS+q}, s{sL2E}, v{RS+q}")
    L += [f"s_mul_i32 s{sACT}, s{sRB}, {2*112*1024}", f"s_lshl_b32 s{sA}, s{sCB}, 14", f"s_add_u32 s{sACT}, s{sACT}, s{sA}",
          f"s_lshl_b32 s{sA}, s{sW}, 12", f"s_add_u32 s{sACT}, s{sACT}, s{sA}", f"s_add_u32 s{sACT}, s{sACT}, {WS_ACT}",
          f"s_add_u32 s{sA}, s{sACT}, {112*1024}"]
    g = G.stream(0, L)
    print("KC stats end gap", g)
    def mish(nt, q):
        L = []
        for j in range(2):
            z = ACC + 16 * (2 * q + nt) + 8 * j
            t = T + 16 * j
            for e in range(8): L.append(f"v_fma_f32 v{t+e}, -v{MR+q}, v{G1+16*nt+8*j+e}, v{GACC+16*nt+8*j+e}")
            for e in range(8): L.append(f"v_fma_f32 v{z+e}, v{z+e}, v{RS+q}, v{t+e}")
            for e in range(8): L.append(f"v_exp_f32 v{t+e}, v{z+e}")
            for e in range(8): L.append(f"v_fma_f32 v{t+8+e}, v{t+e}, 0.5, 1.0")
            for e in range(8): L.append(f"v_fma_f32 v{t+e}, v{t+e}, v{t+8+e}, 1.0")
            for e in range(8): L.append(f"v_rcp_f32 v{t+e}, v{t+e}")
            for e in range(8): L.append(f"v_fma_f32 v{z+e}, -v{z+e}, v{t+e}, v{z+e}")
            for i in range(4): L.append(f"v_cvt_pk_bf16_f32 v{z+i}, v{z+2*i}, v{z+2*i+1}")
            L += st2(f"buffer_store_dwordx4 v[{z}:{z+3}], v1, {{srd}}, s{sACT if q==0 else sA} offen offset:{(2*nt+j)*1024} {{fl}}", "st2")
        return L
    nw2 = 0
    W2S = int(os.environ.get("KC_W2S", "3"))
    for n in range(32):
        gg = 66 + n * W2S
        if gg < NM:
            G.put(gg, w2load(n)[0], "mem")
            if len(w2load(n)) > 1: G.put(gg, w2load(n)[1], "end")
            nw2 = n + 1
    CAP2 = int(os.environ.get("KC_CAP2", "24"))
    rest = []
    jobs = [(mish(*units[0]), 36), (mish(*units[1]), 68), (extract(1), 100), (mish(*units[2]), 132)]
    full = False
    for L, st_ in jobs:
        if full:
            rest += L; continue
        start = max(g + 1, st_)
        k = 0
        while k < len(L) and start < NM:
            try:
                g2 = G.stream(start, [L[k]], cap=CAP2)
            except IndexError:
                break
            nxt_mem = k + 1 < len(L) and isinstance(L[k + 1], Item)
            start = g2 + 1 if nxt_mem else g2
            g = g2
            k += 1
        print("   job end gap", g)
        if k < len(L):
            rest += L[k:]; full = True
    print("KC mish leftover", len(rest), "last gap", g, "w2 issued", nw2)
    P += G.items()
    P += stamp_item()
    rest = rest + ["s_nop 7", "s_nop 3"] + mish(*units[3])
    cnt = 0
    for x in rest:
        P.append(x if isinstance(x, Item) else I(x))
        cnt += 1
        if cnt % 12 == 0 and nw2 < 48:
            P += w2load(nw2); nw2 += 1
    P += stamp_item()
    P.append(I(f"s_add_u32 s{sFW}, s{sFW}, 32768"))
    for _ in range(8):
        if nw2 < 56:
            P += w2load(nw2); nw2 += 1
    P += [WV("st2"), I("s_barrier")] + st2(f"buffer_store_dword v{VMG}, v{VF0}, {{srd}}, s{sFW} offen {{fl}}", "fl")
    while nw2 < 56:
        P += w2load(nw2); nw2 += 1
    resolve(P, A, vm0=vmA, lg0=lgA)
    A("s_branch KC_PH3")
    A.label("KC_SKIP2")
    for n in range(56):
        for it in w2load(n): A(it.s)
    poll("KC_P2B", 32768, 0x7f, any_=True, sl=16)
    A.label("KC_PH3")
    A(f"""
    s_mul_i32 s{sT0}, s{sTS}, {112*1024}
    s_mul_i32 s{sT1}, s{sW}, {28*1024}
    s_add_u32 s{sT0}, s{sT0}, s{sT1}
    v_add_u32 v{VA}, s{sT0}, v1
    s_xor_b32 s{sT0}, s{sTS}, 1
    s_mul_i32 s{sT0}, s{sT0}, {112*1024}
    s_add_u32 s{sT0}, s{sT0}, s{sT1}
    v_add_u32 v{VA+1}, s{sT0}, v1
    s_mov_b32 s{sA}, {WS_ACT}
    s_mov_b32 s{sT1}, {5*2048}
    """)
    for i in range(4):
        A(f"buffer_load_dwordx4 v[{GA+4*i}:{GA+4*i+3}], v{VM}, {WS}, s{sT1} offen offset:{32*i}")
    poll("KC_P2", 32768, 0x7f)
    ST.stamp()
    D3 = int(os.environ.get('KC_D3', '8'))
    def aload(i):
        b = RING + 8 * (i % D3)
        post = [I(f"s_add_u32 s{sA}, s{sA}, 4096")] if i % 4 == 3 else []
        return [I(f"buffer_load_dwordx4 v[{b+4*q}:{b+4*q+3}], v{VA+q}, {WS}, s{sA} offen offset:{(i%4)*1024} {LDF}", f"a{i}") for q in range(2)] + post
    P = []
    for i in range(D3 - 1): P += aload(i)
    for e in range(16): P.append(I(f"v_mul_f32 v{GA+e}, 0x3f317218, v{GA+e}"))
    P += [I(f"v_lshrrev_b32 v14, 5, v2"), I(f"v_lshl_add_u32 v{VRM}, v14, 3, v{VRM}")]
    for sp in (1, 2, 3):
        P += lines(f"""
        s_xor_b32 s{sT0}, s{sW}, {sp}
        s_mul_i32 s{sT0}, s{sT0}, 12288
        v_add_u32 v{T+sp}, s{sT0}, v1
        """)
    for i in range(28):
        if i + D3 - 1 < 28: P += aload(i + D3 - 1)
        P.append(WV(f"a{i}"))
        b = RING + 8 * (i % D3)
        for q in range(2):
            for nt in range(2):
                acc = vr(ACC + 16 * (2 * q + nt), 16)
                P.append(I(mfma(acc, ar(w2reg(i, nt), 4), vr(b + 4 * q, 4), acc if i else "0")))
    P += stamp_item()
    P += [I("s_nop 7"), I("s_nop 3")]
    P += reduce_items(lambda: [])
    for e in range(16): P.append(I(f"v_fmac_f32 v{X+e}, v{ACC+e}, v{GA+e}"))
    for i in range(8): P.append(I(f"v_cvt_pk_bf16_f32 v{PK+i}, v{X+2*i}, v{X+2*i+1}"))
    P.append(I("s_nop 0"))
    for k in range(2):
        P.append(I(f"v_permlane32_swap_b32 v{PK+4*k}, v{PK+4*k+2}"))
        P.append(I(f"v_permlane32_swap_b32 v{PK+4*k+1}, v{PK+4*k+3}"))
        P.append(I(f"buffer_store_dwordx4 v[{PK+4*k}:{PK+4*k+3}], v{VRM}, s[{S_O}:{S_O+3}], 0 offen offset:{32*k}", "o"))
    resolve(P, A)
    if STAMPS: A("s_waitcnt vmcnt(0)")
    ST.stamp()
    ST.flush(4, f"s{sW}", 4)
    A("KC_END:")
    A("s_endpgm")
    A("KC_P1_SLOW:")
    poll("KC_P1S", 0, 0xff)
    A("s_branch KC_P1_OK")
    A.lines.append("  .fill 5000, 4, 0xbf800000")
    A("s_endpgm")
    return name, A.text(), kernel_desc(name, 256, 256), f"grid=(256,1,1) block=(256,1,1) lds={131072+2048}"
```

```python
from asmlib import *
from sched import *
import os
LOG2E = 0x3fb8aa3b
MAGIC = 0x5a17
def E(k, d): return int(os.environ.get(k, str(d)))
def lines(s):
    return [I(x.strip()) for x in s.strip().split("\n") if x.strip()]
def its(L):
    return [x if isinstance(x, Item) else I(x) for x in L]

def gen_kc():
    A = Asm()
    name = "kc_kernel"
    A.lines.append(kernel_header(name))
    A("s_cmp_ge_u32 s2, 256")
    A("s_cbranch_scc1 KC_END")
    ST = Stamper(A, 2)
    ST.stamp()
    def stamp_item():
        if not STAMPS: return []
        b = ST.base + 2 * ST.n; ST.n += 1
        return [I(f"s_memtime s[{b}:{b+1}]")]
    S_WS, S_X, S_O, S_B = 12, 16, 20, 24
    sW, sRB, sCB, sTS, sNT = 30, 31, 32, 33, 34
    sA, sWo, sT0, sT1, sT2, sM0, sFL = 35, 36, 37, 38, 39, 40, 41
    sW1, sACT, sFW, sL2E, sPT, sKQ, sHU, sNZ = 42, 43, 44, 45, 46, 47, 48, 49
    VA, VW, VM, VRM, VMG, VRR, VCA, VPL, VF0 = 4, 6, 8, 9, 10, 11, 12, 14, 3
    ACC, FR, T = 16, 80, 192
    WS = f"s[{S_WS}:{S_WS+3}]"
    S_F, S_S, sXC = 52, 56, 50
    FAST = os.environ.get("KC_FAST", "x")
    LOCAL = E("KC_LOCAL", 0)
    def st2(txt, tag, cls):
        if cls not in FAST: return [I(txt.format(srd=WS, fl='sc1'), tag)]
        return [I(txt.format(srd=f's[{S_F}:{S_F+3}]', fl='').rstrip(), tag), I(txt.format(srd=f's[{S_S}:{S_S+3}]', fl='sc1'), tag)]
    MAP = f"""s_bfe_u32 s{sT0}, s2, 0x20001
    s_lshl_b32 s{sT0}, s{sT0}, 2
    s_add_u32 s{sT0}, s{sT0}, s{sT1}
    s_and_b32 s{sT1}, s2, 1""" if not LOCAL else f"""s_and_b32 s{sT0}, s2, 7
    s_lshl_b32 s{sT0}, s{sT0}, 1
    s_lshr_b32 s{sT2}, s{sT1}, 1
    s_add_u32 s{sT0}, s{sT0}, s{sT2}
    s_and_b32 s{sT1}, s{sT1}, 1"""
    A(f"""
    s_load_dwordx2 s[{S_WS}:{S_WS+1}], s[0:1], {KA['ws']}
    s_load_dwordx2 s[{S_X}:{S_X+1}], s[0:1], {KA['x']}
    s_load_dwordx2 s[{S_O}:{S_O+1}], s[0:1], {KA['out']}
    s_load_dwordx2 s[{S_B}:{S_B+1}], s[0:1], {KA['b1']}
    v_lshrrev_b32 v3, 6, v0
    v_and_b32 v2, 63, v0
    v_readfirstlane_b32 s{sW}, v3
    v_lshlrev_b32 v1, 4, v2
    s_lshr_b32 s{sT1}, s2, 3
    s_and_b32 s{sCB}, s{sT1}, 7
    s_lshr_b32 s{sT1}, s{sT1}, 3
    {MAP}
    s_lshl_b32 s{sRB}, s{sT0}, 1
    s_add_u32 s{sRB}, s{sRB}, s{sT1}
    s_lshl_b32 s{sKQ}, s{sT1}, 1
    s_and_b32 s{sT1}, s{sCB}, 1
    s_add_u32 s{sKQ}, s{sKQ}, s{sT1}
    s_lshl_b32 s{sA}, s{sT0}, 2
    s_add_u32 s{sA}, s{sA}, s{sW}
    s_lshl_b32 s{sA}, s{sA}, 18
    s_lshl_b32 s{sT1}, s{sKQ}, 16
    s_add_u32 s{sA}, s{sA}, s{sT1}
    s_add_u32 s{sA}, s{sA}, {WS_CTX}
    s_lshl_b32 s{sPT}, s{sT0}, 17
    s_and_b32 s{sWo}, s{sCB}, 6
    s_lshr_b32 s{sT1}, s{sW}, 1
    s_add_u32 s{sWo}, s{sWo}, s{sT1}
    s_lshl_b32 s{sWo}, s{sWo}, 19
    s_lshl_b32 s{sT1}, s{sKQ}, 17
    s_add_u32 s{sWo}, s{sWo}, s{sT1}
    s_and_b32 s{sT1}, s{sW}, 1
    s_lshl_b32 s{sT1}, s{sT1}, 12
    s_add_u32 s{sWo}, s{sWo}, s{sT1}
    s_add_u32 s{sWo}, s{sWo}, {WS_WOF}
    s_lshl_b32 s{sM0}, s{sW}, 12
    s_mov_b32 s{S_WS+2}, {WS_END}
    s_mov_b32 s{S_WS+3}, 0x00020000
    s_waitcnt lgkmcnt(0)
    """)
    def sdma(slot, tag):
        c = [I(f"buffer_load_dwordx4 v1, {WS}, s{sA} offen offset:{i*1024} lds", tag) for i in range(4)]
        w = [I(f"buffer_load_dwordx4 v1, {WS}, s{sWo} offen offset:{i*1024} lds", tag) for i in range(4)]
        return ([f"s_add_u32 m0, s{sM0}, {slot*32768}"], c, [f"s_add_u32 s{sA}, s{sA}, 4096"]), \
               ([f"s_add_u32 m0, s{sM0}, {slot*32768+16384}"], w, [f"s_add_u32 s{sWo}, s{sWo}, 8192"])
    P = []
    for st in range(2):
        for pre, d, post in sdma(st, f"S{st}"):
            P += its(pre) + [I("s_nop 0")] + d + its(post)
    P += lines(f"""
    s_getreg_b32 s{sXC}, hwreg(HW_REG_XCC_ID, 0, 4)
    s_add_u32 s{sXC}, s{sXC}, {MAGIC}
    s_lshl_b32 s{sFL}, s{sRB}, 10
    s_add_u32 s{sFL}, s{sFL}, {WS_FLAG}
    s_lshl_b32 s{sFW}, s{sCB}, 7
    s_add_u32 s{sFW}, s{sFW}, s{sFL}
    s_cmp_eq_u32 s{sW}, 0
    s_cselect_b32 s{sFW}, s{sFW}, 0x80000000
    v_mov_b32 v{VMG}, s{sXC}
    v_lshlrev_b32 v{VF0}, 28, v2
    v_lshrrev_b32 v15, 4, v2
    v_lshlrev_b32 v15, 28, v15
    v_or_b32 v{VF0}, v{VF0}, v15
    v_lshrrev_b32 v{VF0}, 1, v{VF0}
    v_and_b32 v{VPL}, 15, v2
    v_lshlrev_b32 v{VPL}, 7, v{VPL}
    s_add_u32 s{sT0}, s{sFW}, 98304
    """)
    P.append(I(f"buffer_store_dword v{VMG}, v{VF0}, {WS}, s{sT0} offen sc1", "xc"))
    P += lines(f"""
    s_lshr_b32 s{sT0}, s{sW}, 1
    s_lshl_b32 s{sT0}, s{sT0}, 13
    v_add_u32 v{VA}, s{sT0}, v1
    v_add_u32 v{VA+1}, 0x10000, v{VA}
    s_and_b32 s{sT0}, s{sW}, 1
    s_lshl_b32 s{sT0}, s{sT0}, 13
    s_add_u32 s{sT0}, s{sT0}, 16384
    v_add_u32 v{VW}, s{sT0}, v1
    v_add_u32 v{VW+1}, 0x10000, v{VW}
    """)
    NS = 4
    def freads(k):
        st, ks = k // 4, k % 4
        slot = st % 4
        b = FR + 16 * (k % NS)
        hi, off = slot // 2, (slot % 2) * 32768
        return [I(f"ds_read_b128 v[{b}:{b+3}], v{VA+hi} offset:{off+ks*1024}", f"f{k}"),
                I(f"ds_read_b128 v[{b+8}:{b+11}], v{VW+hi} offset:{off+ks*2048}", f"f{k}"),
                I(f"ds_read_b128 v[{b+4}:{b+7}], v{VA+hi} offset:{off+4096+ks*1024}", f"f{k}"),
                I(f"ds_read_b128 v[{b+12}:{b+15}], v{VW+hi} offset:{off+ks*2048+1024}", f"f{k}")]
    mf = []
    for k in range(64):
        b = FR + 16 * (k % NS)
        for q, nt in ((0, 0), (1, 0), (0, 1), (1, 1)):
            acc = vr(ACC + 16 * (2 * q + nt), 16)
            mf.append(mfma(acc, vr(b + 8 + 4 * nt, 4), vr(b + 4 * q, 4), acc if k else "0"))
    G = Gaps(mf)
    for k in range(64):
        g0 = 4 * k
        if k + 2 < 64:
            if (k + 2) % 4 == 0: G.put(g0, "s_barrier", "mem")
            for i, r in enumerate(freads(k + 2)): G.put(g0 + i, r)
        if k + 1 < 64:
            if (k + 3) % 4 == 0 and k + 3 < 64:
                G.put(g0 + 3, WVL([f"S{(k+3)//4}"], [f"f{k+1}"]), "end")
            else:
                G.put(g0 + 3, WL(f"f{k+1}"), "end")
    def place(g, grp, step):
        pre, d, post = grp
        G.put(g - 1, pre, "end")
        for i, x in enumerate(d): G.put(g + i * step, x, "mem")
        G.put(g + 3 * step, post, "oth")
    c, w = sdma(2, "S2"); place(1, c, 1); place(5, w, 1)
    for st in range(3, 16):
        gb = 4 * (4 * (st - 2) - 2)
        c, w = sdma(st % 4, f"S{st}")
        place(gb + 1, c, 2); place(gb + 9, w, 2)
    lastdma = 4 * (4 * 13 - 2) + 15
    XR, GA, CB1, SB, B1 = 144, 152, 168, T, T + 16
    B1F = T + 32
    SET = [f"s_mov_b32 s{S_X+2}, 0x200000", f"s_mov_b32 s{S_X+3}, 0x00020000", f"s_mov_b32 s{S_O+2}, 0x200000", f"s_mov_b32 s{S_O+3}, 0x00020000",
           f"s_mov_b32 s{S_B+2}, 3584", f"s_mov_b32 s{S_B+3}, 0x00020000", f"s_mov_b32 s{sL2E}, {LOG2E}",
           f"v_lshrrev_b32 v15, 4, v2", f"v_bfe_u32 v{VCA}, v2, 3, 1", f"v_lshlrev_b32 v{VM}, 6, v15", f"v_lshl_add_u32 v{VM}, v{VCA}, 4, v{VM}",
           f"s_lshl_b32 s{sT0}, s{sW}, 9", f"v_add_u32 v{VM}, s{sT0}, v{VM}",
           f"v_and_b32 v{VCA+1}, 7, v2", f"v_lshrrev_b32 v{VRM}, 1, v{VM}", f"v_lshl_add_u32 v{VRM}, v{VCA+1}, 10, v{VRM}",
           f"s_lshl_b32 s{sT0}, s{sRB}, 3", f"s_add_u32 s{sT0}, s{sT0}, s{sCB}", f"s_lshl_b32 s{sT0}, s{sT0}, 13"]
    for m in range(2):
        for qd in range(2):
            SET.append(I(f"buffer_load_dwordx2 v[{XR+4*m+2*qd}:{XR+4*m+2*qd+1}], v{VRM}, s[{S_X}:{S_X+3}], s{sT0} offen offset:{128*m+16*qd}", "sm"))
    for dst, idx in ((GA, 2), (CB1, 4), (SB, 3)):
        SET.append(f"s_mov_b32 s{sT1}, {idx*2048}")
        for m in range(2):
            for qd in range(2):
                SET.append(I(f"buffer_load_dwordx4 v[{dst+8*m+4*qd}:{dst+8*m+4*qd+3}], v{VM}, {WS}, s{sT1} offen offset:{256*m+32*qd}", "sm"))
    SET += [f"v_lshlrev_b32 v{VCA}, 9, v{VCA}", f"v_lshl_add_u32 v{VCA}, v{VCA+1}, 4, v{VCA}",
            f"v_lshl_add_u32 v{VCA+1}, v15, 10, v{VCA}",
            f"s_lshl_b32 s{sW1}, s{sCB}, 2", f"s_add_u32 s{sW1}, s{sW1}, s{sW}", f"s_lshl_b32 s{sT0}, s{sW1}, 7",
            f"v_lshrrev_b32 v15, 5, v2", f"v_lshlrev_b32 v15, 3, v15"]
    for nt in range(2):
        for i in range(4):
            SET.append(I(f"buffer_load_dwordx2 v[{B1+8*nt+2*i}:{B1+8*nt+2*i+1}], v15, s[{S_B}:{S_B+3}], s{sT0} offen offset:{64*nt+16*i}", "sm"))
    SET += [f"s_lshl_b32 s{sW1}, s{sW1}, 16", f"s_add_u32 s{sW1}, s{sW1}, {WS_W1F}",
            [f"s_cmp_eq_u32 s{sCB}, 7", f"s_cselect_b32 s{sW1}, 0x80000000, s{sW1}"],
            f"s_and_b32 s{sT2}, s{sFL}, 0xfffffbff", f"s_add_u32 s{sT2}, s{sT2}, 98304",
            I(f"buffer_load_dword v{VRR}, v{VPL}, {WS}, s{sT2} offen sc1", "sm"),
            [f"s_cmp_eq_u32 s{sW}, 0", f"s_cselect_b32 s{sFL}, s{sFL}, 0x80000000", f"s_cselect_b32 s{sNZ}, 0, -1"],
            f"v_mov_b32 v{VMG}, {MAGIC}",
            f"s_lshr_b32 s{sT0}, s{sW}, 1", f"s_lshl_b32 s{sTS}, s{sRB}, 1", f"s_add_u32 s{sTS}, s{sTS}, s{sT0}",
            f"s_and_b32 s{sT1}, s{sW}, 1", f"s_lshl_b32 s{sNT}, s{sCB}, 1", f"s_add_u32 s{sNT}, s{sNT}, s{sT1}",
            f"s_lshl_b32 s{sACT}, s{sKQ}, 21", f"s_add_u32 s{sACT}, s{sACT}, s{sPT}", f"s_lshl_b32 s{sT0}, s{sT0}, 16", f"s_add_u32 s{sACT}, s{sACT}, s{sT0}",
            f"s_and_b32 s{sT0}, s{sCB}, 6", f"s_add_u32 s{sT0}, s{sT0}, s{sT1}", f"s_lshl_b32 s{sT0}, s{sT0}, 12", f"s_add_u32 s{sACT}, s{sACT}, s{sT0}",
            f"s_add_u32 s{sACT}, s{sACT}, {WS_PART}",
            f"s_lshr_b32 s{sT0}, s{sCB}, 2", f"s_lshl_b32 s{sT1}, s{sRB}, 1", f"s_add_u32 s{sT0}, s{sT0}, s{sT1}",
            f"s_and_b32 s{sT1}, s{sCB}, 3", f"s_lshl_b32 s{sT1}, s{sT1}, 7",
            f"s_lshl_b32 s{sHU}, s{sT0}, 15", f"s_add_u32 s{sHU}, s{sHU}, s{sT1}", f"s_lshl_b32 s{sT2}, s{sW}, 13", f"s_add_u32 s{sHU}, s{sHU}, s{sT2}"]
    g = G.stream(E("KC_SETG", 120), SET)
    print("KC set end", g)
    X = 184 - 40
    XF = T + 16
    PREP = [WV("sm"), f"v_cmp_eq_u32 vcc, s{sXC}, v{VRR}", f"s_mov_b32 s{S_F}, s{S_WS}", f"s_mov_b32 s{S_F+1}, s{S_WS+1}", f"s_mov_b32 s{S_F+3}, 0x00020000",
            f"s_mov_b32 s{S_S}, s{S_WS}", f"s_mov_b32 s{S_S+1}, s{S_WS+1}", f"s_mov_b32 s{S_S+3}, 0x00020000",
            [f"s_cmp_eq_u32 vcc_lo, -1", f"s_cselect_b32 s{S_F+2}, {WS_END}, 0", f"s_cselect_b32 s{S_S+2}, 0, {WS_END}"]]
    for i in range(16):
        PREP += [f"v_lshlrev_b32 v{B1F+2*i}, 16, v{B1+i}", f"v_and_b32 v{B1F+2*i+1}, 0xffff0000, v{B1+i}"]
    for e in range(32): PREP.append(f"v_mul_f32 v{B1F+e}, s{sL2E}, v{B1F+e}")
    for i in range(8):
        PREP += [f"v_lshlrev_b32 v{XF+2*i}, 16, v{XR+i}", f"v_and_b32 v{XF+2*i+1}, 0xffff0000, v{XR+i}"]
    for e in range(16): PREP.append(f"v_add_f32 v{CB1+e}, 1.0, v{CB1+e}")
    for e in range(16): PREP.append(f"v_cvt_pk_bf16_f32 v{CB1+e}, v{CB1+e}, v{CB1+e}")
    for e in range(16): PREP.append(f"v_lshlrev_b32 v{CB1+e}, 16, v{CB1+e}")
    for e in range(16): PREP.append(f"v_mul_f32 v{SB+e}, s{sL2E}, v{SB+e}")
    g = G.stream(g + 24, PREP)
    print("KC prep end", g)
    nw1 = 0
    def w1load(n):
        nt, ks = n // 32, n % 32
        pre = []
        if n == 32: pre = [I(f"s_sub_u32 s{sW1}, s{sW1}, {15*4096}")]
        elif ks % 2 == 0 and ks: pre = [I(f"s_add_u32 s{sW1}, s{sW1}, 4096")]
        return pre + [I(f"buffer_load_dwordx4 {ar(8*ks+4*nt,4)}, v1, {WS}, s{sW1} offen offset:{(ks%2)*2048+nt*1024}", f"w1_{n}")]
    gg = lastdma + 3
    while gg < E("KC_W1T", 250):
        w = w1load(nw1); nw1 += 1
        if len(w) > 1: G.put(gg - 1, w[0], "end")
        G.put(gg, w[-1], "mem"); gg += 3
    def more(n):
        nonlocal nw1
        R = []
        for _ in range(n):
            if nw1 < 64:
                R += w1load(nw1); nw1 += 1
        return R
    P += [WV("S0"), I("s_barrier")] + freads(0) + freads(1) + [WL("f0")]
    P += stamp_item()
    P += G.items()
    P += stamp_item()
    if E("KC_XLIN", 0):
        P += lines(f"""
        s_lshl_b32 s{sACT}, s2, 2
        s_add_u32 s{sACT}, s{sACT}, s{sW}
        s_lshl_b32 s{sACT}, s{sACT}, 13
        s_add_u32 s{sACT}, s{sACT}, {WS_PART}
        """)
    if E("KC_XWAIT", 0):
        P += [I("s_sleep 127")] * E("KC_XWAIT", 0) + stamp_item()
    P += [I("s_nop 7"), I(f"s_add_u32 s{sT0}, s{sACT}, {4096 if E('KC_XLIN', 0) else 32768}")]
    for q, nt in ((0, 0), (1, 0), (0, 1), (1, 1)):
        for j in range(2):
            a0 = ACC + 16 * (2 * q + nt) + 8 * j
            for i in range(4): P.append(I(f"v_cvt_pk_bf16_f32 v{a0+i}, v{a0+2*i}, v{a0+2*i+1}"))
            P += st2(f"buffer_store_dwordx4 v[{a0}:{a0+3}], v1, {{srd}}, s{sACT if q == 0 else sT0} offen offset:{(2*nt+j)*1024} {{fl}}", "pst", "a")
    P += stamp_item()
    P += more(E("KC_MA", 10))
    P += [WV("pst"), I("s_barrier")] + st2(f"buffer_store_dword v{VMG}, v{VF0}, {{srd}}, s{sFW} offen {{fl}}", "fl", "a")
    P += stamp_item()
    P += more(E("KC_MB", 16))
    P += [I(f"s_and_b32 s{sT2}, s{sFL}, 0xfffffbff"), I(f"buffer_load_dword v15, v{VPL}, {WS}, s{sT2} offen sc1", "pl")]
    P += more(E("KC_MC", 4))
    P += [WV("pl")] + lines(f"""
    v_cmp_eq_u32 vcc, {MAGIC}, v15
    s_or_b32 s{sT0}, vcc_lo, s{sNZ}
    s_cmp_eq_u32 s{sT0}, -1
    s_cbranch_scc0 KC_PA_SLOW
    KC_PA_OK:
    s_barrier
    """)
    P += stamp_item()
    PR = 80
    for kq in range(4):
        for m in range(2):
            P.append(I(f"s_add_u32 s{sT0}, s{sHU}, {WS_PART+kq*2*MB+m*4096}"))
            d = PR + 8 * kq + 4 * m
            P.append(I(f"buffer_load_dwordx4 v[{d}:{d+3}], v{VCA+1}, {WS}, s{sT0} offen sc1", f"pr{kq}"))
    P += more(E("KC_MD", 6))
    for kq in range(4):
        P.append(WV(f"pr{kq}"))
        dst = ACC if kq == 0 else ACC + 16
        for i in range(8):
            P.append(I(f"v_lshlrev_b32 v{dst+2*i}, 16, v{PR+8*kq+i}"))
            P.append(I(f"v_and_b32 v{dst+2*i+1}, 0xffff0000, v{PR+8*kq+i}"))
        if kq:
            for e in range(16): P.append(I(f"v_add_f32 v{ACC+e}, v{ACC+e}, v{ACC+16+e}"))
    for e in range(16): P.append(I(f"v_fmac_f32 v{XF+e}, v{ACC+e}, v{GA+e}"))
    PK = ACC + 16
    for i in range(8): P.append(I(f"v_cvt_pk_bf16_f32 v{PK+i}, v{XF+2*i}, v{XF+2*i+1}"))
    P.append(I(f"s_add_u32 s{sT0}, s{sHU}, {WS_X2}"))
    P.append(I(f"s_add_u32 s{sT1}, s{sT0}, 4096"))
    P += st2(f"buffer_store_dwordx4 v[{PK}:{PK+3}], v{VCA+1}, {{srd}}, s{sT0} offen {{fl}}", "st1", "b")
    P += st2(f"buffer_store_dwordx4 v[{PK+4}:{PK+7}], v{VCA+1}, {{srd}}, s{sT1} offen {{fl}}", "st1", "b")
    for i in range(8):
        P.append(I(f"v_lshlrev_b32 v{XF+2*i}, 16, v{PK+i}"))
        P.append(I(f"v_and_b32 v{XF+2*i+1}, 0xffff0000, v{PK+i}"))
    Q = ACC + 32
    def red(r, t):
        return lines(f"""
        s_nop 1
        v_add_f32_dpp v{r}, v{r}, v{r} row_ror:8 row_mask:0xf bank_mask:0xf
        v_mov_b32 v{t}, v{r}
        s_nop 1
        v_permlane16_swap_b32 v{r}, v{t}
        s_nop 0
        v_add_f32 v{r}, v{r}, v{t}
        v_mov_b32 v{t}, v{r}
        s_nop 1
        v_permlane32_swap_b32 v{r}, v{t}
        s_nop 0
        v_add_f32 v{r}, v{r}, v{t}
        """)
    P.append(I(f"v_add_f32 v{Q}, v{XF}, v{XF+1}"))
    for e in range(2, 16): P.append(I(f"v_add_f32 v{Q}, v{Q}, v{XF+e}"))
    P += red(Q, Q + 2)
    P.append(I(f"v_mul_f32 v{Q}, 0x3c000000, v{Q}"))
    for e in range(16): P.append(I(f"v_sub_f32 v{Q+8+e}, v{XF+e}, v{Q}"))
    P.append(I(f"v_mul_f32 v{Q+1}, v{Q+8}, v{Q+8}"))
    for e in range(1, 16): P.append(I(f"v_fmac_f32 v{Q+1}, v{Q+8+e}, v{Q+8+e}"))
    P += red(Q + 1, Q + 2)
    P += lines(f"""
    v_and_b32 v15, 7, v2
    v_lshlrev_b32 v15, 5, v15
    v_add_u32 v15, 0x20000, v15
    s_lshl_b32 s{sT0}, s{sW}, 3
    v_add_u32 v{Q+2}, s{sT0}, v15
    """)
    P += [I(f"ds_write_b64 v{Q+2}, v[{Q}:{Q+1}]", "lw"), WL("lw"), I("s_barrier"),
          I(f"ds_read_b128 v[{Q+8}:{Q+11}], v15", "lr"), I(f"ds_read_b128 v[{Q+12}:{Q+15}], v15 offset:16", "lr")]
    P += [I(f"s_mov_b32 s{sT2}, 0x43000000"), WL("lr")]
    R_ = Q + 8
    P += lines(f"""
    v_add_f32 v{Q}, v{R_}, v{R_+2}
    v_add_f32 v{Q+1}, v{R_+4}, v{R_+6}
    v_add_f32 v{Q}, v{Q}, v{Q+1}
    v_mul_f32 v{Q}, 0.25, v{Q}
    v_sub_f32 v{R_}, v{R_}, v{Q}
    v_sub_f32 v{R_+2}, v{R_+2}, v{Q}
    v_sub_f32 v{R_+4}, v{R_+4}, v{Q}
    v_sub_f32 v{R_+6}, v{R_+6}, v{Q}
    v_mul_f32 v{R_}, v{R_}, v{R_}
    v_fmac_f32 v{R_}, v{R_+2}, v{R_+2}
    v_fmac_f32 v{R_}, v{R_+4}, v{R_+4}
    v_fmac_f32 v{R_}, v{R_+6}, v{R_+6}
    v_add_f32 v{R_+1}, v{R_+1}, v{R_+3}
    v_add_f32 v{R_+5}, v{R_+5}, v{R_+7}
    v_add_f32 v{R_+1}, v{R_+1}, v{R_+5}
    v_fma_f32 v{R_}, v{R_}, s{sT2}, v{R_+1}
    v_mov_b32 v{Q+1}, 0x3727c5ac
    v_fmac_f32 v{Q+1}, 0x3b000000, v{R_}
    v_rsq_f32 v{Q+1}, v{Q+1}
    s_add_u32 s{sT0}, s{sHU}, {WS_U}
    v_mul_f32 v{Q+1}, s{sL2E}, v{Q+1}
    s_add_u32 s{sT1}, s{sT0}, 4096
    """.replace("0.25", "0x3e800000"))
    for e in range(16): P.append(I(f"v_sub_f32 v{XF+e}, v{XF+e}, v{Q}"))
    for e in range(16): P.append(I(f"v_mul_f32 v{XF+e}, v{XF+e}, v{Q+1}"))
    for e in range(16): P.append(I(f"v_fma_f32 v{XF+e}, v{XF+e}, v{CB1+e}, v{SB+e}"))
    PH = ACC + 24
    for i in range(8): P.append(I(f"v_cvt_pk_bf16_f32 v{PH+i}, v{XF+2*i}, v{XF+2*i+1}"))
    P += st2(f"buffer_store_dwordx4 v[{PH}:{PH+3}], v{VCA+1}, {{srd}}, s{sT0} offen {{fl}}", "st1", "b")
    P += st2(f"buffer_store_dwordx4 v[{PH+4}:{PH+7}], v{VCA+1}, {{srd}}, s{sT1} offen {{fl}}", "st1", "b")
    i0 = max(i for i, it in enumerate(P) if it.s == "WAITVM" and it.tag == ("pr3",))
    seg = P[i0 + 1:]; P = P[:i0 + 1]
    cnt = 0
    for it in seg:
        P.append(it)
        if it.s.startswith("v_") and not it.s.startswith("v_permlane") and "dpp" not in it.s:
            cnt += 1
            if cnt % E("KC_EV", 16) == 0 and cnt < E("KC_EVM", 180): P += more(1)
    print("w1 at LN end", nw1)
    P += stamp_item()
    P += more(E("KC_ME", 8))
    P += lines(f"""
    s_add_u32 s{sFW}, s{sFW}, 32768
    v_and_b32 v{VPL}, 0x380, v{VPL}
    s_mul_i32 s{sWo}, s{sCB}, {112*2048}
    s_mul_i32 s{sT0}, s{sW}, {28*2048}
    s_add_u32 s{sWo}, s{sWo}, s{sT0}
    s_add_u32 s{sWo}, s{sWo}, {WS_W2F}
    s_and_b32 s{sT1}, s{sW}, 1
    s_lshl_b32 s{sT1}, s{sT1}, 10
    v_add_u32 v{VW}, s{sT1}, v1
    v_xor_b32 v{VW+1}, 0x400, v{VW}
    """)
    P += [WV("st1"), I("s_barrier")] + st2(f"buffer_store_dword v{VMG}, v{VF0}, {{srd}}, s{sFW} offen {{fl}}", "fl", "b")
    P += more(64)
    P += lines(f"""
    s_cmp_eq_u32 s{sCB}, 7
    s_cbranch_scc1 KC_SKIP2
    """)
    resolve(P, A)
    def poll(tag, base, cond, sl=None, first=None, bar=True):
        A(f"""
        s_cmp_lg_u32 s{sW}, 0
        s_cbranch_scc1 {tag}_OK
        s_mov_b32 s{sT1}, 100000
        {base}
        {'s_sleep %d' % first if first else ''}
        {tag}_L:
        buffer_load_dword v15, v{VPL}, {WS}, s{sT2} offen sc1
        s_waitcnt vmcnt(0)
        v_cmp_eq_u32 vcc, {MAGIC}, v15
        {cond}
        s_cbranch_scc1 {tag}_OK
        s_sleep {sl or E('KC_PS', 4)}
        s_sub_u32 s{sT1}, s{sT1}, 1
        s_cmp_lg_u32 s{sT1}, 0
        s_cbranch_scc1 {tag}_L
        {tag}_OK:
        """)
        if bar:
            A("s_waitcnt vmcnt(0)")
            A("s_barrier")
    ALL = "s_cmp_eq_u32 vcc_lo, -1"
    poll("KC_PB", f"s_add_u32 s{sT2}, s{sFL}, 32768", ALL, first=E("KC_FB", 12))
    ST.stamp()
    def w2reg(i, nt):
        n = 2 * i + nt
        if n < 20: return vr(144 + 4 * n, 4)
        n -= 20
        return ar(8 * n if n < 32 else 8 * (n - 32) + 4, 4)
    def w2load(n):
        i, nt = n // 2, n % 2
        post = [I(f"s_add_u32 s{sWo}, s{sWo}, 4096")] if n % 4 == 3 else []
        return [I(f"buffer_load_dwordx4 {w2reg(i,nt)}, v{VW+nt}, {WS}, s{sWo} offen offset:{(i%2)*2048}", "w2")] + post
    P = lines(f"""
    s_lshl_b32 s{sT0}, s{sRB}, 16
    s_add_u32 s{sT0}, s{sT0}, s{sM0}
    s_add_u32 s{sT0}, s{sT0}, {WS_U}
    """)
    for g in range(4):
        P.append(I(f"s_add_u32 m0, s{sM0}, {0x10000+g*16384}"))
        P.append(I(f"s_add_u32 s{sT2}, s{sT0}, {g*16384}"))
        for i in range(4):
            P.append(I(f"buffer_load_dwordx4 v1, {WS}, s{sT2} offen offset:{i*1024} sc1 lds", f"u{g}"))
    P += lines(f"""
    v_add_u32 v{VCA}, 0x10000, v1
    s_mul_i32 s{sACT}, s{sRB}, {2*112*1024}
    s_lshl_b32 s{sA}, s{sCB}, 14
    s_add_u32 s{sACT}, s{sACT}, s{sA}
    s_add_u32 s{sACT}, s{sACT}, s{sM0}
    s_add_u32 s{sACT}, s{sACT}, {WS_ACT}
    s_add_u32 s{sA}, s{sACT}, {112*1024}
    """)
    units = [(0, 0), (0, 1), (1, 0), (1, 1)]
    UF, NU, LEAD = 80, 8, 6
    mf = []; seq = []
    for nt, q in units:
        for ks in range(32):
            acc = vr(ACC + 16 * (2 * q + nt), 16)
            n = len(mf)
            mf.append(mfma(acc, ar(8 * ks + 4 * nt, 4), vr(UF + 4 * (n % NU), 4), acc if ks else vr(B1F + 16 * nt, 16)))
            seq.append((q, ks))
    NM = len(mf)
    def uread(n):
        q, ks = seq[n]
        return I(f"ds_read_b128 v[{UF+4*(n%NU)}:{UF+4*(n%NU)+3}], v{VCA} offset:{q*32768+ks*1024}", f"r{n}")
    P += [WV("u0"), I("s_barrier")] + [uread(i) for i in range(LEAD)] + [WL("r1")]
    P += stamp_item()
    G = Gaps(mf)
    for n in range(NM):
        if n + LEAD < NM:
            if n + LEAD == 16:
                G.put(n - 1, WV("u1"), "end"); G.put(n, "s_barrier", "mem")
            if n + LEAD == 32:
                G.put(n - 1, WV("u3"), "end"); G.put(n, "s_barrier", "mem")
            G.put(n, uread(n + LEAD))
        if n % 2 == 1 and n + 1 < NM: G.put(n, WL(f"r{n+2}"), "end")
    MT = 112
    def mish(nt, q):
        L = []
        for j in range(2):
            z = ACC + 16 * (2 * q + nt) + 8 * j
            t = MT + 16 * j
            for e in range(8): L.append(f"v_exp_f32 v{t+e}, v{z+e}")
            for e in range(8): L.append(f"v_fma_f32 v{t+8+e}, v{t+e}, 0.5, 1.0")
            for e in range(8): L.append(f"v_fma_f32 v{t+e}, v{t+e}, v{t+8+e}, 1.0")
            for e in range(8): L.append(f"v_rcp_f32 v{t+e}, v{t+e}")
            for e in range(8): L.append(f"v_fma_f32 v{z+e}, -v{z+e}, v{t+e}, v{z+e}")
            for i in range(4): L.append(f"v_cvt_pk_bf16_f32 v{z+i}, v{z+2*i}, v{z+2*i+1}")
            L += st2(f"buffer_store_dwordx4 v[{z}:{z+3}], v1, {{srd}}, s{sACT if q==0 else sA} offen offset:{(2*nt+j)*1024} {{fl}}", "st2", "c")
        return L
    nw2 = 0
    gg = 2
    while gg < NM and nw2 < 56:
        if nw2 >= 20: gg = max(gg, 34 + (nw2 - 20) if nw2 < 52 else 98 + nw2 - 52)
        w = w2load(nw2)
        G.put(gg, w[0], "mem")
        if len(w) > 1: G.put(gg, w[1], "end")
        nw2 += 1; gg += 2 + (nw2 % 2)
    print("w2 in stream", nw2)
    g = 0
    for ui in range(3):
        g = G.stream(max(g + 1, 32 * (ui + 1) + 5), mish(*units[ui]), cap=(28 if ui == 2 else 24))
        print("   mish end gap", g)
    P += G.items()
    P += stamp_item()
    P += [I("s_nop 7"), I("s_nop 3")] + its(mish(*units[3]))
    P.append(I(f"s_add_u32 s{sFW}, s{sFW}, 32768"))
    while nw2 < 56:
        P += w2load(nw2); nw2 += 1
    P += [WV("st2"), I("s_barrier")] + st2(f"buffer_store_dword v{VMG}, v{VF0}, {{srd}}, s{sFW} offen {{fl}}", "fl", "c")
    resolve(P, A)
    A("s_branch KC_PH3")
    A.label("KC_SKIP2")
    for n in range(56):
        for it in w2load(n): A(it.s)
    SEVEN = f"s_and_b32 s{sT0}, vcc_lo, 0x7f\ns_cmp_eq_u32 s{sT0}, 0x7f"
    poll("KC_PB7", f"s_add_u32 s{sT2}, s{sFL}, 32768", ALL, sl=16, bar=False)
    poll("KC_PC7", f"s_add_u32 s{sT2}, s{sFL}, 65536", f"s_and_b32 s{sT0}, vcc_lo, 0x7f", sl=16)
    A.label("KC_PH3")
    X2R, X, GA, T = 224, 80, 232, 248
    A(f"""
    s_mul_i32 s{sT0}, s{sTS}, {112*1024}
    s_mul_i32 s{sT1}, s{sW}, {28*1024}
    s_add_u32 s{sT0}, s{sT0}, s{sT1}
    v_add_u32 v{VA}, s{sT0}, v1
    s_xor_b32 s{sT0}, s{sTS}, 1
    s_mul_i32 s{sT0}, s{sT0}, {112*1024}
    s_add_u32 s{sT0}, s{sT0}, s{sT1}
    v_add_u32 v{VA+1}, s{sT0}, v1
    s_mov_b32 s{sA}, {WS_ACT}
    v_lshrrev_b32 v15, 5, v2
    s_lshl_b32 s{sT0}, s{sNT}, 7
    v_lshlrev_b32 v{VM}, 4, v15
    v_add_u32 v{VM}, s{sT0}, v{VM}
    s_mov_b32 s{sT1}, {5*2048}
    buffer_load_dwordx4 v[{GA}:{GA+3}], v{VM}, {WS}, s{sT1} offen
    buffer_load_dwordx4 v[{GA+4}:{GA+7}], v{VM}, {WS}, s{sT1} offen offset:32
    buffer_load_dwordx4 v[{GA+8}:{GA+11}], v{VM}, {WS}, s{sT1} offen offset:64
    buffer_load_dwordx4 v[{GA+12}:{GA+15}], v{VM}, {WS}, s{sT1} offen offset:96
    s_lshl_b32 s{sT0}, s{sTS}, 15
    s_lshl_b32 s{sT1}, s{sNT}, 11
    s_add_u32 s{sT1}, s{sT1}, s{sT0}
    s_add_u32 s{sT1}, s{sT1}, {WS_X2}
    buffer_load_dwordx4 v[{X2R}:{X2R+3}], v1, {WS}, s{sT1} offen sc1
    buffer_load_dwordx4 v[{X2R+4}:{X2R+7}], v1, {WS}, s{sT1} offen offset:1024 sc1
    s_lshl_b32 s{sT1}, s{sNT}, 6
    s_add_u32 s{sT1}, s{sT1}, s{sT0}
    v_and_b32 v{VRM}, 31, v2
    v_lshlrev_b32 v{VRM}, 10, v{VRM}
    v_lshl_add_u32 v{VRM}, v15, 4, v{VRM}
    v_add_u32 v{VRM}, s{sT1}, v{VRM}
    s_mul_i32 s{sT0}, s{sW}, 12288
    v_add_u32 v{VRR}, s{sT0}, v1
    """)
    for sp in (1, 2, 3):
        A(f"""
        s_xor_b32 s{sT0}, s{sW}, {sp}
        s_mul_i32 s{sT0}, s{sT0}, 12288
        v_add_u32 v{T+sp}, s{sT0}, v1
        """)
    poll("KC_PC", f"s_add_u32 s{sT2}, s{sFL}, 65536", SEVEN, first=E("KC_FC", 8))
    ST.stamp()
    D3, RING = 8, 80
    def aload(i):
        b = RING + 8 * (i % D3)
        post = [I(f"s_add_u32 s{sA}, s{sA}, 4096")] if i % 4 == 3 else []
        return [I(f"buffer_load_dwordx4 v[{b+4*q}:{b+4*q+3}], v{VA+q}, {WS}, s{sA} offen offset:{(i%4)*1024} sc1", f"a{i}") for q in range(2)] + post
    P = []
    for i in range(5): P += aload(i)
    for e in range(16): P.append(I(f"v_mul_f32 v{GA+e}, 0x3f317218, v{GA+e}"))
    mf = []
    for i in range(28):
        b = RING + 8 * (i % D3)
        for q, nt in ((1, 1), (1, 0), (0, 1), (0, 0)):
            acc = vr(ACC + 16 * (2 * q + nt), 16)
            mf.append(mfma(acc, w2reg(i, nt), vr(b + 4 * q, 4), acc if i else "0"))
    G = Gaps(mf)
    na = 5
    for i in range(28):
        todo = 2 if i < 2 else 1
        for t_ in range(todo):
            if na < 28:
                al = aload(na); na += 1
                G.put(4 * i + 2 * t_, al[0], "mem"); G.put(4 * i + 2 * t_ + 1, al[1], "mem")
                if len(al) > 2: G.put(4 * i + 2 * t_ + 1, al[2], "end")
        if i + 1 < 28: G.put(4 * i + 3, WV(f"a{i+1}"), "end")
    P += [WV("a0")] + G.items()
    P += stamp_item()
    P += [I("s_nop 7"), I("s_nop 1")]
    for sp in (3, 2, 1):
        for i in range(4):
            P.append(I(f"ds_write_b128 v{T+sp}, v[{ACC+16*sp+4*i}:{ACC+16*sp+4*i+3}] offset:{(sp-1)*4096+i*1024}", "rw"))
    for i in range(8):
        P.append(I(f"v_lshlrev_b32 v{X+2*i}, 16, v{X2R+i}"))
        P.append(I(f"v_and_b32 v{X+2*i+1}, 0xffff0000, v{X2R+i}"))
    P += [WL("rw"), I("s_barrier")]
    for sp in (1, 2, 3):
        for i in range(4):
            P.append(I(f"ds_read_b128 v[{ACC+16*sp+4*i}:{ACC+16*sp+4*i+3}], v{VRR} offset:{(sp-1)*4096+i*1024}", f"rr{sp}"))
    for sp in (1, 2, 3):
        P.append(WL(f"rr{sp}"))
        for e in range(16): P.append(I(f"v_add_f32 v{ACC+e}, v{ACC+e}, v{ACC+16*sp+e}"))
    for e in range(16): P.append(I(f"v_fmac_f32 v{X+e}, v{ACC+e}, v{GA+e}"))
    for i in range(8): P.append(I(f"v_cvt_pk_bf16_f32 v{PK+i}, v{X+2*i}, v{X+2*i+1}"))
    P.append(I("s_nop 0"))
    for k in range(2):
        P.append(I(f"v_permlane32_swap_b32 v{PK+4*k}, v{PK+4*k+2}"))
        P.append(I(f"v_permlane32_swap_b32 v{PK+4*k+1}, v{PK+4*k+3}"))
        P.append(I(f"buffer_store_dwordx4 v[{PK+4*k}:{PK+4*k+3}], v{VRM}, s[{S_O}:{S_O+3}], 0 offen offset:{32*k}", "o"))
    resolve(P, A)
    if STAMPS: A("s_waitcnt vmcnt(0)")
    ST.stamp()
    ST.flush(4, f"s{sW}", 4)
    A("KC_END:")
    A("s_endpgm")
    A("KC_PA_SLOW:")
    poll("KC_PAS", f"s_and_b32 s{sT2}, s{sFL}, 0xfffffbff", ALL, bar=False, first=E('KC_PS', 4))
    A("s_branch KC_PA_OK")
    A.lines.append("  .fill 5000, 4, 0xbf800000")
    A("s_endpgm")
    return name, A.text(), kernel_desc(name, 256, 256), f"grid=(256,1,1) block=(256,1,1) lds={131072+2048}"
```

```python
from asmlib import *

import os
FREESLOT = os.environ.get("FREESLOT", "1") == "1"
class Item:
    __slots__ = ("s", "tag")
    def __init__(self, s, tag=None):
        self.s = s; self.tag = tag

def I(s, tag=None): return Item(s, tag)
def WV(*tags): return Item("WAITVM", tuple(tags))
def WL(*tags): return Item("WAITLG", tuple(tags))
def WVL(vt, lt): return Item("WAITBOTH", (tuple(vt), tuple(lt)))

def icost(it):
    if it.s.startswith("WAIT"): return 4
    if it.s.endswith(":"): return 0
    return cost(it.s)
def imem(it):
    return (not it.s.startswith("WAIT")) and (is_mem(it.s) or it.s == "s_barrier")

def is_vm(s):
    op = s.split()[0]
    return op.startswith("buffer_") or op.startswith("global_")
def is_lg(s):
    return s.split()[0].startswith("ds_")

def resolve(items, A, vm0=None, lg0=None):
    vm = list(vm0 or []); lg = list(lg0 or [])
    waited = set()
    for it in items:
        if it.s.startswith("WAIT"):
            vt, lt = ((it.tag, ()) if it.s == "WAITVM" else ((), it.tag) if it.s == "WAITLG" else it.tag)
            waited |= {("v", t) for t in vt} | {("l", t) for t in lt}
        elif it.tag is not None and not it.s.endswith(":"):
            k = "v" if is_vm(it.s) else "l"
            assert (k, it.tag) not in waited, f"op with tag {it.tag} issued after wait: {it.s}"
    def cnt(lst, tags, cap):
        last = -1
        for i, t in enumerate(lst):
            if t in tags: last = i
        if last < 0: return None
        return min(len(lst) - 1 - last, cap)
    for it in items:
        s = it.s
        if s.startswith("WAIT"):
            vt, lt = ((it.tag, ()) if s == "WAITVM" else ((), it.tag) if s == "WAITLG" else it.tag)
            parts = []
            if vt:
                n = 0 if "*" in vt else cnt(vm, vt, 63)
                if n is not None:
                    parts.append(f"vmcnt({n})"); vm = vm[len(vm) - n:] if n else []
            if lt:
                n = 0 if "*" in lt else cnt(lg, lt, 15)
                if n is not None:
                    parts.append(f"lgkmcnt({n})"); lg = lg[len(lg) - n:] if n else []
            if parts: A("s_waitcnt " + " ".join(parts))
            else: A("s_nop 0")
            continue
        A(s)
        if s.endswith(":"): continue
        if is_vm(s): vm.append(it.tag)
        elif is_lg(s): lg.append(it.tag)
    return vm, lg

class Gaps:
    def __init__(self, mfmas, cap=24):
        self.m = mfmas; n = len(mfmas)
        self.mem = [[] for _ in range(n)]
        self.oth = [[] for _ in range(n)]
        self.end = [[] for _ in range(n)]
        self.used = [0] * n
        self.cap = cap
    def _it(self, x): return x if isinstance(x, Item) else Item(x)
    def put(self, g, x, where=None):
        xs = x if isinstance(x, list) else [x]
        for y in xs:
            y = self._it(y)
            w = where or ("mem" if imem(y) else "end")
            c = icost(y)
            if w == "mem" and not self.mem[g] and FREESLOT: c -= 4
            getattr(self, w)[g].append(y)
            self.used[g] += c
    def stream(self, start, xs, cap=None):
        cap = cap or self.cap
        g = start
        placed_here = False
        for x in xs:
            grp = [self._it(y) for y in (x if isinstance(x, list) else [x])]
            c = sum(icost(y) for y in grp)
            ismem = imem(grp[0])
            if ismem and placed_here:
                g += 1; placed_here = False
            while self.used[g] + c > cap and not (self.used[g] <= 4 and c > cap - 4):
                g += 1; placed_here = False
            if ismem:
                self.mem[g].append(grp[0]); self.oth[g] = grp[1:] + self.oth[g] if False else self.oth[g] + grp[1:]
                if len(grp) > 1: placed_here = True
            else:
                self.oth[g] += grp; placed_here = True
            self.used[g] += c
        return g
    def items(self):
        out = []
        for g, m in enumerate(self.m):
            out.append(Item(m))
            out += self.mem[g] + self.oth[g] + self.end[g]
        return out
```

```python
import sys, os
from asmlib import *

HEADER = open("adaLN_cond__compressed_kv_cla__dense_activation_mish__prompt.s.ref").read().split("; Override launch")[0]

def build(kernels, path):
    out = HEADER
    for name, body, desc, launch in kernels:
        out += f"; @launch kernel={name} {launch}\n"
    out += '.amdgcn_target "amdgcn-amd-amdhsa--gfx950"\n.text\n'
    for name, body, desc, launch in kernels:
        out += body
    out += '.section .rodata,"a"\n'
    for name, body, desc, launch in kernels:
        out += desc
    open(path, "w").write(out)

if __name__ == "__main__":
    import ka, k2
    if os.environ.get("KCOLD"):
        import kc
    else:
        import kc2 as kc
    ks = [ka.gen_ka(), k2.gen_k2(), kc.gen_kc()]
    path = sys.argv[1] if len(sys.argv) > 1 else "adaLN_cond__compressed_kv_cla__dense_activation_mish__prompt.s"
    build(ks, path)
    print("wrote", path)
```

```python
from asmlib import *
from sched import *
import k2
import os, struct, math
LOG2E = 0x3fb8aa3b
QSCALE = k2.QSCALE
MAGIC = 0x5a17
def E(k, d): return int(os.environ.get(k, str(d)))
def lines(s): return [I(x.strip()) for x in s.strip().split("\n") if x.strip()]
def sl(s): return [x.strip() for x in s.strip().split("\n") if x.strip()]

def gen_front(tailfn=None, name="kf_kernel"):
    k2.rare_sites.clear()
    STF = os.environ.get("KA_ST", "sc1")
    PFN = os.environ.get("KA_PFNT", "nt")
    A = Asm()
    A.lines.append(kernel_header(name))
    A("s_getpc_b64 s[64:65]")
    A("s_cmp_ge_u32 s2, 256")
    A("s_cbranch_scc1 K2_END")
    ST = Stamper(A, 0)
    ST.stamp()
    VOT, VOW, VT, VW, VWH = 4, 12, 16, 20, 30
    WF, ACC, J = 32, 64, 192
    S_T, S_WK, S_WS, S_WV, S_X, S_M, S_C, S_D = 12, 16, 20, 24, 36, 40, 56, 60
    S_WQ = 24
    sW, sR, sP_, sHD, sMT = k2.sW, k2.sR, k2.sP_, k2.sHD, k2.sPR
    sXC, sJ, sT0, sT1, sM0T, sM0W, sKV = 44, 45, 46, 47, 49, 50, 51
    sA, sB, sC_, sD, sE, sF = 52, 53, 54, 55, 48, 3
    WSR = f"s[{S_WS}:{S_WS+3}]"
    A(f"""
    s_load_dwordx16 s[36:51], s[0:1], 0
    s_load_dwordx8 s[52:59], s[0:1], 64
    s_load_dwordx2 s[{S_D}:{S_D+1}], s[0:1], {KA['dbg']}
    s_load_dwordx2 s[{S_WS}:{S_WS+1}], s[0:1], {KA['ws']}
    v_lshrrev_b32 v3, 6, v0
    v_and_b32 v2, 63, v0
    v_readfirstlane_b32 s{sW}, v3
    v_lshlrev_b32 v1, 4, v2
    s_and_b32 s4, s2, 7
    s_lshr_b32 s5, s2, 3
    s_and_b32 s{sHD}, s5, 3
    s_lshl_b32 s4, s4, 2
    s_add_u32 s{sHD}, s{sHD}, s4
    s_lshr_b32 s{sMT}, s5, 2
    s_and_b32 s{sR}, s{sW}, 1
    s_lshr_b32 s{sP_}, s{sW}, 1
    v_lshrrev_b32 v22, 3, v2
    v_lshrrev_b32 v23, 4, v2
    v_and_b32 v24, 7, v2
    v_xor_b32 v25, v24, v23
    v_lshlrev_b32 v25, 4, v25
    v_lshl_add_u32 v25, v22, 10, v25
    s_lshl_b32 s4, s{sW}, 16
    v_add_u32 v25, s4, v25
    """)
    for i in range(8):
        A(f"v_add_u32 v{VOT+i}, {8*i*1024-(i%4)*1024}, v25")
        if i % 2: A(f"v_xor_b32 v{VOT+i}, 64, v{VOT+i}")
    A(f"""
    v_and_b32 v23, 1, v23
    v_lshlrev_b32 v23, 2, v23
    v_xor_b32 v25, v24, v23
    v_lshlrev_b32 v25, 4, v25
    v_lshl_add_u32 v25, v22, 13, v25
    s_lshl_b32 s4, s{sW}, 18
    v_add_u32 v25, s4, v25
    """)
    for i in range(4):
        A(f"v_add_u32 v{VOW+i}, {8*i*8192-i*1024}, v25")
    A(f"""
    v_lshlrev_b32 v22, 7, v2
    v_lshlrev_b32 v28, 13, v2
    s_lshl_b32 s4, s{sMT}, 18
    s_lshl_b32 s6, s{sHD}, 8
    s_mov_b32 s{S_T+2}, 0x40000
    s_mov_b32 s{S_T+3}, 0x00020000
    s_mov_b32 s{S_WK+2}, {511*8192+256}
    s_mov_b32 s{S_WK+3}, 0x00020000
    s_waitcnt lgkmcnt(0)
    s_add_u32 s{S_T}, s38, s4
    s_addc_u32 s{S_T+1}, s39, 0
    s_add_u32 s{S_WK}, s42, s6
    s_addc_u32 s{S_WK+1}, s43, 0
    s_cmp_eq_u32 s{sW}, 0
    s_cbranch_scc1 KA_PF0
    s_cmp_eq_u32 s{sW}, 3
    s_cbranch_scc0 KA_PF1
    s_and_b32 s7, s5, 7
    s_lshl_b32 s7, s7, 12
    v_lshrrev_b32 v22, 1, v22
    v_add_u32 v22, s7, v22
    global_load_dword v26, v22, s[64:65]
    s_branch KA_PFD
    KA_PF0:
    s_lshl_b32 s7, s{sHD}, 13
    buffer_load_dword v26, v22, s[{S_T}:{S_T+3}], s7 offen
    s_branch KA_PFD
    KA_PF1:
    s_lshl_b32 s7, s{sMT}, 19
    s_lshl_b32 s4, s{sW}, 7
    s_add_u32 s7, s7, s4
    s_sub_u32 s7, s7, 128
    buffer_load_dword v26, v28, s[{S_WK}:{S_WK+3}], s7 offen {PFN}
    KA_PFD:
    s_add_u32 s{S_WV}, s44, s6
    s_addc_u32 s{S_WV+1}, s45, 0
    s_add_u32 s8, s40, s6
    s_addc_u32 s9, s41, 0
    s_mov_b32 s4, s46
    s_mov_b32 s5, s47
    s_mov_b32 s62, s50
    s_mov_b32 s63, s51
    s_lshl_b32 s{sM0W}, s{sW}, 12
    s_lshl_b32 s{sM0T}, s{sW}, 14
    s_add_u32 s{sM0T}, s{sM0T}, 98304
    """)
    WSLOT = {0: 0, 1: 1, 2: 2, 3: 3, 4: 4, 5: 5, 6: 0, 7: 1, 8: 6, 9: 7, 10: 4, 11: 5, 12: 2, 13: 3, 14: 0, 15: 1}
    def wdma(u):
        c = u // 4
        srdr = S_WK if c < 2 else S_WV
        pre = [f"s_add_u32 m0, s{sM0W}, {WSLOT[u]*16384}", f"s_mov_b32 s{sT0}, {(u%4)*128*8192+(c&1)*128}"]
        return pre, [I(f"buffer_load_dwordx4 v{VOW+i}, s[{srdr}:{srdr+3}], s{sT0} offen offset:{i*1024} lds", f"W{u}") for i in range(4)]
    def tdma(s, grp):
        pre = [f"s_add_u32 m0, s{sM0T}, {(s%2)*8192+grp*4096}", f"s_mov_b32 s{sT0}, {s*128}"]
        return pre, [I(f"buffer_load_dwordx4 v{VOT+i}, s[{S_T}:{S_T+3}], s{sT0} offen offset:{(i%4)*1024} lds", f"T{s}") for i in range(4 * grp, 4 * grp + 4)]
    def seq(g):
        pre, d = g
        return [I(x) for x in pre] + d
    P = seq(wdma(0)) + seq(tdma(0, 0)) + seq(tdma(0, 1))
    P += lines(f"""
    s_lshl_b32 s48, s2, 2
    s_add_u32 s48, s48, s{sW}
    s_mov_b32 s6, {4096*1024}
    s_mov_b32 s7, 0x00020000
    s_cmp_ge_u32 s48, 736
    s_cselect_b32 s4, s54, s4
    s_cselect_b32 s5, s55, s5
    s_cselect_b32 s6, {1792*1024}, s6
    s_cselect_b32 s40, 736, 0
    s_cselect_b32 s28, {WS_W2F - WS_WOF}, 0
    s_mov_b32 s29, {256*2048}
    s_cselect_b32 s29, {112*2048}, s29
    s_sub_u32 s40, s48, s40
    s_lshr_b32 s41, s40, 1
    s_and_b32 s42, s40, 1
    s_mov_b32 s11, 1024
    s_sub_u32 s40, s48, 512
    s_mul_i32 s43, s40, 9363
    s_lshr_b32 s43, s43, 16
    s_mul_i32 s52, s43, 7
    s_sub_u32 s52, s40, s52
    s_cmp_lt_u32 s40, 224
    s_cselect_b32 s41, s43, s41
    s_cselect_b32 s42, s52, s42
    s_cselect_b32 s11, 3584, s11
    s_cselect_b32 s29, {32*2048}, s29
    s_cselect_b32 s28, {WS_W1F - WS_WOF}, s28
    s_cselect_b32 s4, s62, s4
    s_cselect_b32 s5, s63, s5
    s_cselect_b32 s6, {512*3584}, s6
    s_mul_i32 s10, s41, s11
    s_lshl_b32 s10, s10, 4
    s_lshl_b32 s43, s42, 9
    s_add_u32 s10, s10, s43
    s_mul_i32 s43, s42, s29
    s_lshl_b32 s43, s43, 2
    s_add_u32 s28, s28, s43
    s_lshl_b32 s43, s41, 11
    s_add_u32 s28, s28, s43
    s_add_u32 s28, s28, {WS_WOF}
    s_cmp_ge_u32 s48, 960
    s_cselect_b32 s28, 0x80000000, s28
    s_lshl_b32 s35, s{sW}, 13
    s_add_u32 s35, s35, 0x20000
    s_mov_b32 s{S_M}, s58
    s_mov_b32 s{S_M+1}, s59
    s_mov_b32 s{S_M+2}, {512*6144}
    s_mov_b32 s{S_M+3}, 0x00020000
    s_mov_b32 s{S_C+2}, 1024
    s_mov_b32 s{S_C+3}, 0x00020000
    s_mov_b32 s{S_X+2}, 0x200000
    s_mov_b32 s{S_X+3}, 0x00020000
    s_mov_b32 s{S_D+2}, 256
    s_mov_b32 s{S_D+3}, 0x00020000
    s_mov_b32 s{S_WV+2}, {511*8192+256}
    s_mov_b32 s{S_WV+3}, 0x00020000
    s_mov_b32 s{S_WS+2}, {WS_END}
    s_mov_b32 s{S_WS+3}, 0x00020000
    s_and_b32 s{sXC}, s2, 7
    s_lshr_b32 s{sJ}, s2, 3
    v_and_b32 v22, 31, v2
    v_lshrrev_b32 v23, 5, v2
    v_bfe_u32 v24, v2, 1, 3
    v_lshlrev_b32 v25, 7, v22
    v_add_u32 v25, s{sM0T}, v25
    """)
    for ks in range(4):
        P += [I(f"v_add_u32 v27, {2*ks}, v23"), I(f"v_xor_b32 v27, v27, v24"), I(f"v_lshl_add_u32 v{VT+ks}, v27, 4, v25")]
    P += lines(f"""
    v_bfe_u32 v22, v2, 2, 2
    v_lshl_add_u32 v25, v23, 3, v22
    v_lshlrev_b32 v25, 7, v25
    v_bfe_u32 v24, v2, 4, 1
    v_lshl_add_u32 v25, v24, 5, v25
    v_and_b32 v24, 3, v2
    v_lshl_add_u32 v25, v24, 3, v25
    v_lshrrev_b32 v22, 1, v22
    v_lshl_add_u32 v{VW}, v22, 6, v25
    v_xor_b32 v{VW+1}, 64, v{VW}
    v_add_u32 v{VWH}, 0x10000, v{VW}
    v_add_u32 v{VWH+1}, 0x10000, v{VW+1}
    s_lshl_b32 s{sKV}, s{sHD}, 19
    s_lshl_b32 s{sT1}, s{sMT}, 16
    s_add_u32 s{sKV}, s{sKV}, s{sT1}
    s_lshl_b32 s{sT1}, s{sW}, 14
    s_add_u32 s{sKV}, s{sKV}, s{sT1}
    v_lshrrev_b32 v22, 1, v0
    v_and_b32 v23, 1, v0
    v_mul_u32_u24 v24, 6144, v22
    v_lshl_add_u32 v24, v23, 4, v24
    s_mul_i32 s{sD}, s{sXC}, 768
    s_lshl_b32 s{sB}, s{sJ}, 5
    s_add_u32 s{sA}, s{sD}, s{sB}
    s_cmp_lt_u32 s{sJ}, 24
    s_cselect_b32 s{sA}, s{sA}, 0x40000000
    v_lshlrev_b32 v22, 1, v22
    s_mov_b32 s{sB}, s{sA}
    v_subrev_u32 v29, 128, v0
    v_and_b32 v25, 7, v29
    v_lshrrev_b32 v29, 3, v29
    v_mul_u32_u24 v29, 6144, v29
    v_lshl_add_u32 v29, v25, 7, v29
    v_cmp_lt_u32 vcc, 5, v25
    v_mov_b32 v25, 0x40000000
    s_mul_i32 s{sC_}, s{sJ}, {16*6144}
    v_cndmask_b32 v29, v29, v25, vcc
    s_add_u32 s{sC_}, s{sC_}, s{sD}
    s_cmp_ge_u32 s{sW}, 2
    s_cselect_b32 s{sC_}, s{sC_}, 0x80000000
    v_and_b32 v29, 0x4fffffff, v29
    """)
    P.append(I(f"buffer_load_dword v26, v29, s[{S_M}:{S_M+3}], s{sC_} offen {PFN}", "pf"))
    P += lines(f"""
    s_lshl_b32 s{sF}, s2, 7
    s_add_u32 s{sF}, s{sF}, {WS_FLAG}
    s_cmp_eq_u32 s{sW}, 0
    s_cselect_b32 s{sF}, s{sF}, 0x80000000
    """)
    P += seq(tdma(1, 0)) + seq(tdma(1, 1))
    def treads(s):
        return [I(f"ds_read_b128 {ar(((4*s+k)*2+q)*4,4)}, v{VT+k} offset:{(s%2)*8192+q*4096}", f"t{s}") for k in range(4) for q in range(2)]
    def wreads(gk):
        u, ksl, st = gk // 8, gk % 8, gk & 3
        s_ = WSLOT[u]
        base = VW if s_ < 4 else VWH
        return [I(f"ds_read_b64_tr_b16 v[{WF+8*st+4*nt+2*e}:{WF+8*st+4*nt+2*e+1}], v{base+nt} offset:{(s_%4)*16384+ksl*2048+e*512}", f"w{gk}")
                for nt in range(2) for e in range(2)]
    def stamp_item():
        if not STAMPS: return []
        b = ST.base + 2 * ST.n; ST.n += 1
        return [I(f"s_memtime s[{b}:{b+1}]")]
    P += [WV("W0", "T0"), I("s_barrier")] + stamp_item()
    P += wreads(0) + treads(0) + wreads(1) + [WL("w0", "t0")]
    mf = []
    for c in range(4):
        for ks in range(32):
            for nt in range(2):
                for q in range(2):
                    acc = vr(ACC + 64 * (c & 1) + 16 * (2 * q + nt), 16)
                    wf = vr(WF + 8 * (ks & 3) + 4 * nt, 4)
                    tk = ar((ks * 2 + q) * 4, 4)
                    cc = acc if ks else "0"
                    mf.append(mfma(acc, wf, tk, cc) if c < 2 else mfma(acc, tk, wf, cc))
    qa = lambda q: 64 if q == 0 else 192
    for ks in range(32):
        for dt in range(4):
            for q in range(2):
                acc = vr(qa(q) + 16 * dt, 16)
                mf.append(mfma(acc, vr(WF + 16 * (ks & 1) + 4 * dt, 4), ar(8 * ks + 4 * q, 4), acc if ks else "0"))
    G = Gaps(mf)
    busy = set()
    def put_dma(g0, grp, step=1):
        pre, d = grp
        G.put(g0 - 1, pre, "end")
        for i, x in enumerate(d): G.put(g0 + i * step, x, "mem")
        for g in range(g0, g0 + (len(d) - 1) * step + 1):
            assert g not in busy, g
            busy.add(g)
        return g0 + len(d) * step
    def BG(u): return 4 * (8 * u - 2)
    bars = []
    for gk in range(128):
        g0 = 4 * gk
        if gk + 2 < 128:
            if (gk + 2) % 8 == 0:
                G.put(g0, "s_barrier", "mem"); bars.append(g0)
            for i, r in enumerate(wreads(gk + 2)): G.put(g0 + i, r)
        if gk + 1 < 128:
            tags = [f"w{gk+1}"]
            if gk + 1 < 32 and (gk + 1) % 4 == 0: tags.append(f"t{(gk+1)//4}")
            if (gk + 3) % 8 == 0 and gk + 3 < 128: G.put(g0 + 3, WVL([f"W{(gk+3)//8}"], tags), "end")
            else: G.put(g0 + 3, WL(*tags), "end")
    for s in range(1, 8):
        g0 = 4 * (4 * s - 2)
        G.put(g0 - 1, WV(f"T{s}"), "end")
        rd = treads(s)
        for i in range(4): G.put(g0 + i, rd[2 * i:2 * i + 2])
    put_dma(1, wdma(1))
    put_dma(5, tdma(2, 0)); put_dma(9, tdma(2, 1))
    put_dma(16, tdma(3, 0)); put_dma(20, tdma(3, 1))
    put_dma(24, wdma(2))
    put_dma(32, tdma(4, 0)); put_dma(36, tdma(4, 1))
    put_dma(48, tdma(5, 0)); put_dma(52, tdma(5, 1))
    put_dma(56, wdma(3))
    put_dma(64, tdma(6, 0)); put_dma(68, tdma(6, 1))
    put_dma(80, tdma(7, 0)); put_dma(84, tdma(7, 1))
    GW6 = E("KA_GW6", 150)
    put_dma(90, wdma(4), 2); put_dma(98, wdma(5), 2); put_dma(GW6, wdma(6), 3); put_dma(GW6 + 12, wdma(7), 3)
    g = E("KA_GW8", 188)
    fa = {8: BG(4), 9: BG(4), 10: BG(6), 11: BG(7), 12: BG(4), 13: BG(5), 14: BG(8), 15: BG(9)}
    for u in range(8, 16):
        g = put_dma(max(g, fa[u] + 2), wdma(u), 3)
    gW = g
    def QG(ks): return 512 + 8 * ks
    VQR, VOQ, VH = 16, 12, 13
    def qreads(ks):
        return [I(f"ds_read_b64_tr_b16 v[{WF+16*(ks&1)+4*nt+2*e}:{WF+16*(ks&1)+4*nt+2*e+1}], v{VQR+nt} offset:{(ks%8)*4096+e*1024}", f"qw{ks}")
                for nt in range(4) for e in range(2)]
    for ks in range(32):
        g0 = QG(ks) - 8
        if ks % 8 == 0:
            G.put(g0 - 1, WV(f"Q{ks//8}"), "end"); G.put(g0, "s_barrier", "mem"); bars.append(g0)
            if ks: G.put(g0 - 2, [f"v_subrev_u32 v{VQR+i}, 0x8000, v{VQR+i}" for i in range(4)], "end")
        rd = qreads(ks)
        for i in range(4): G.put(g0 + i, rd[2 * i:2 * i + 2])
        G.put(g0 + 7, WVL([f"h{ks}"], [f"qw{ks}"]), "end")
    G.put(QG(31), "s_barrier", "mem")
    L = [f"s_lshl_b32 s{sE}, s{sMT}, 19", f"s_lshl_b32 s{sD}, s{sW}, 7", f"s_add_u32 s{sE}, s{sE}, s{sD}",
         [f"s_cmp_lt_u32 s{sW}, 2", f"s_cselect_b32 s{sE}, s{sE}, 0x80000000"]]
    G.stream(40, L)
    GB2 = E("KA_B2", 108)
    G.put(GB2, I(f"buffer_load_dword v26, v28, s[{S_WV}:{S_WV+3}], s{sE} offen", "pf"), "mem")
    L = [f"v_lshrrev_b32 v27, 2, v2", f"v_lshlrev_b32 v27, 15, v27", f"v_and_b32 v3, 3, v2", f"v_lshl_add_u32 v27, v3, 7, v27",
         [f"v_cmp_lt_u32 vcc, 31, v2", f"v_mov_b32 v3, 0", "s_nop 0", f"v_cndmask_b32 v27, v27, v25, vcc"],
         f"s_lshl_b32 s{sC_}, s{sA}, 4", f"s_add_u32 s{sC_}, s{sC_}, {WS_FLAG}",
         [f"s_cmp_lt_u32 s{sA}, 2048", f"s_cselect_b32 s{sC_}, s{sC_}, 0x80000000", f"s_cmp_eq_u32 s{sW}, 0", f"s_cselect_b32 s{sC_}, s{sC_}, 0x80000000"],
         I(f"buffer_store_dword v3, v27, {WSR}, s{sC_} offen sc1", "zf"),
         f"v_lshlrev_b32 v27, 12, v0", f"v_mov_b32 v29, 1"]
    G.stream(E("KA_ZF", 30), L)
    def epi(c):
        R = []
        base = WS_KF if c < 2 else WS_VF
        for q in range(2):
            for nt in range(2):
                for j in range(2):
                    dt = 2 * (c & 1) + nt
                    fi = (2 * dt + j) if c < 2 else (4 * j + dt)
                    off = q * 8192 + fi * 1024
                    a0 = ACC + 64 * (c & 1) + 16 * (2 * q + nt) + 8 * j
                    L = [f"v_cvt_pk_bf16_f32 v{a0+i}, v{a0+2*i}, v{a0+2*i+1}" for i in range(4)]
                    L.append(f"s_add_u32 s{sT1}, s{sKV}, {base + (off & ~4095)}")
                    L.append(I(f"buffer_store_dwordx4 v[{a0}:{a0+3}], v1, {WSR}, s{sT1} offen offset:{off & 4095} {STF}", "st" if c < 3 else "stl"))
                    R.append(L)
        return R
    ES = E("KA_ES", 12)
    for c in range(4):
        for n, L in enumerate(epi(c)):
            gl = G.stream(128 * (c + 1) + 6 + (ES if c < 3 else E("KA_ES3", 8)) * n, L)
    W4, C4, AC, T1 = J, J + 16, J + 20, J + 28
    for i in range(4):
        L = [I(f"buffer_load_dwordx4 v[{W4+4*i}:{W4+4*i+3}], v24, s[{S_M}:{S_M+3}], s{sB} offen", "j1")]
        if i < 3: L.append(f"s_add_u32 s{sB}, s{sB}, {128*6144}")
        g = G.stream(E("KA_GJ1", 4) + 8 * i, L)
    g = G.stream(g + 1, [I(f"buffer_load_ushort v{C4+i}, v22, s[{S_C}:{S_C+3}], 0 offen offset:{256*i}", "j1") for i in range(4)])
    L = [WV("j1"), f"s_mov_b32 s{sB}, {LOG2E}"]
    for op in ("v_lshlrev_b32 v{c}, 16, v{c}", "v_mul_f32 v{t}, s%d, v{c}" % sB, "v_exp_f32 v{t}, -v{t}", "v_add_f32 v{t}, 1.0, v{t}", "v_rcp_f32 v{t}, v{t}",
               "v_mul_f32 v{c}, v{c}, v{t}", "v_cvt_pk_bf16_f32 v{c}, v{c}, v{c}", "v_lshlrev_b32 v{c}, 16, v{c}"):
        L += [op.format(c=C4 + i, t=T1 + i) for i in range(4)]
    for i in range(4):
        for qd in range(4):
            w = W4 + 4 * i + qd
            op = "v_mul_f32" if i == 0 else "v_fmac_f32"
            L += [f"v_lshlrev_b32 v{T1}, 16, v{w}", f"v_and_b32 v{T1+1}, 0xffff0000, v{w}", f"{op} v{AC+2*qd}, v{C4+i}, v{T1}", f"{op} v{AC+2*qd+1}, v{C4+i}, v{T1+1}"]
    L.append("s_nop 1")
    for ror in (8, 4, 2):
        L += [f"v_add_f32_dpp v{AC+e}, v{AC+e}, v{AC+e} row_ror:{ror} row_mask:0xf bank_mask:0xf" for e in range(8)]
    L += [f"v_lshrrev_b32 v22, 4, v0", f"v_lshlrev_b32 v22, 6, v22", f"v_lshl_add_u32 v22, v23, 5, v22",
          I(f"ds_write_b128 v22, v[{AC}:{AC+3}]", "j1w"), I(f"ds_write_b128 v22, v[{AC+4}:{AC+7}] offset:16", "j1w"),
          f"v_and_b32 v22, 15, v2", f"v_lshrrev_b32 v23, 4, v2", f"v_lshlrev_b32 v23, 8, v23", f"v_lshl_add_u32 v23, v22, 2, v23",
          f"v_lshlrev_b32 v22, 2, v22", WL("j1w")]
    g = G.stream(max(g + 8, E("KA_J1", 44)), L)
    assert g > 60
    gb = min(b for b in bars if b > g)
    assert gb < GW6 - 40
    L = [I(f"ds_read_b32 v{T1+i}, v23 offset:{64*i}", "j1r") for i in range(4)]
    L += [f"s_lshl_b32 s{sB}, s{sA}, 1", [f"s_cmp_eq_u32 s{sW}, 0", f"s_cselect_b32 s{sB}, s{sB}, 0x80000000"], WL("j1r"),
          f"v_add_f32 v{T1}, v{T1}, v{T1+1}", f"v_add_f32 v{T1+2}, v{T1+2}, v{T1+3}", f"v_add_f32 v{T1}, v{T1}, v{T1+2}"]
    for sw in ("v_permlane16_swap_b32", "v_permlane32_swap_b32"):
        L += [f"v_mov_b32 v{T1+1}, v{T1}", "s_nop 1", f"{sw} v{T1}, v{T1+1}", "s_nop 0", f"v_add_f32 v{T1}, v{T1}, v{T1+1}"]
    L += [f"v_cvt_pk_bf16_f32 v{T1}, v{T1}, v{T1}", f"v_lshlrev_b32 v{T1}, 16, v{T1}",
          I(f"buffer_store_dword v{T1}, v22, {WSR}, s{sB} offen sc1", "j1s"),
          [f"s_cmp_lt_u32 s{sB}, 4096", f"s_cselect_b32 s{sC_}, 0, 0x1000"]]
    g = G.stream(gb + 1, L)
    gsig = G.stream(g + E("KA_SIGD", 24), [WV("j1s"), I(f"buffer_atomic_add v29, v27, s[{S_D}:{S_D+3}], s{sC_} offen sc1", "j1a")])
    print("J1 store", g, "signal", gsig)
    XR, F, CA, SA, T = J + 32, J + 40, J, J + 16, 4
    L = [f"v_and_b32 v{T+4}, 7, v2", f"v_lshrrev_b32 v{T+5}, 3, v2", f"v_lshlrev_b32 v{T+6}, 10, v{T+4}", f"v_lshl_add_u32 v{T+6}, v{T+5}, 4, v{T+6}",
         f"s_lshl_b32 s{sD}, s2, 13", f"s_lshl_b32 s{sA}, s{sW}, 8", f"s_add_u32 s{sD}, s{sD}, s{sA}",
         I(f"buffer_load_dwordx4 v[{XR}:{XR+3}], v{T+6}, s[{S_X}:{S_X+3}], s{sD} offen", "j3"),
         I(f"buffer_load_dwordx4 v[{XR+4}:{XR+7}], v{T+6}, s[{S_X}:{S_X+3}], s{sD} offen offset:128", "j3")]
    gx = G.stream(max(E("KA_GX", 104), g + 1), L)
    def red(r, t):
        return ["s_nop 1", f"v_add_f32_dpp v{r}, v{r}, v{r} row_ror:8 row_mask:0xf bank_mask:0xf", f"v_mov_b32 v{t}, v{r}", "s_nop 1",
                f"v_permlane16_swap_b32 v{r}, v{t}", "s_nop 0", f"v_add_f32 v{r}, v{r}, v{t}", f"v_mov_b32 v{t}, v{r}", "s_nop 1",
                f"v_permlane32_swap_b32 v{r}, v{t}", "s_nop 0", f"v_add_f32 v{r}, v{r}, v{t}"]
    L = [WV("j3")]
    for i in range(8): L += [f"v_lshlrev_b32 v{F+2*i}, 16, v{XR+i}", f"v_and_b32 v{F+2*i+1}, 0xffff0000, v{XR+i}"]
    L.append(f"v_add_f32 v{T}, v{F}, v{F+1}")
    L += [f"v_add_f32 v{T}, v{T}, v{F+e}" for e in range(2, 16)]
    L += red(T, T + 2) + [f"v_mul_f32 v{T}, 0x3c000000, v{T}"]
    L += [f"v_sub_f32 v{CA+e}, v{F+e}, v{T}" for e in range(16)]
    L.append(f"v_mul_f32 v{T+1}, v{CA}, v{CA}")
    L += [f"v_fmac_f32 v{T+1}, v{CA+e}, v{CA+e}" for e in range(1, 16)]
    L += red(T + 1, T + 2)
    L += [f"v_lshlrev_b32 v{T+7}, 5, v{T+4}", f"v_add_u32 v{T+7}, 0x20000, v{T+7}", f"s_lshl_b32 s{sA}, s{sW}, 3", f"v_add_u32 v{T+2}, s{sA}, v{T+7}",
          I(f"ds_write_b64 v{T+2}, v[{T}:{T+1}]", "lw"), f"v_mov_b32 v{T+3}, 0", f"v_lshlrev_b32 v{T+6}, 5, v{T+5}", "s_nop 3", WL("lw")]
    g = G.stream(max(gsig + 1, E("KA_J3", 186)), L)
    gb = min(b for b in bars if b > g)
    print("LN stats end", g, "bar", gb)
    gp = max(g + 1, E("KA_POLL", 226))
    G.put(gp, I(f"buffer_load_dword v{T}, v{T+3}, s[{S_D}:{S_D+3}], 0 offen sc1", "pl"), "mem")
    L = [f"s_lshl_b32 s{sD}, s{sW}, 9", [WV("pl"), f"v_readfirstlane_b32 s{sA}, v{T}"],
         [f"s_cmp_lg_u32 s{sA}, 64", "s_cbranch_scc1 KA_SPIN", "KA_SPIN_RET:"]]
    for dst, off in ((SA, 0), (CA, 2048)):
        for m in range(2):
            for hh in range(2):
                L.append(I(f"buffer_load_dwordx4 v[{dst+8*m+4*hh}:{dst+8*m+4*hh+3}], v{T+6}, {WSR}, s{sD} offen offset:{off+256*m+16*hh} sc1", "md"))
    g = G.stream(gp + 26, L)
    R_ = XR
    L = [I(f"ds_read_b128 v[{R_}:{R_+3}], v{T+7}", "lr"), I(f"ds_read_b128 v[{R_+4}:{R_+7}], v{T+7} offset:16", "lr"), f"s_mov_b32 s{sA}, 0x43000000", "s_nop 3", WL("lr")]
    L += sl(f"""
    v_add_f32 v{T}, v{R_}, v{R_+2}
    v_add_f32 v{T+1}, v{R_+4}, v{R_+6}
    v_add_f32 v{T}, v{T}, v{T+1}
    v_mul_f32 v{T}, 0x3e800000, v{T}
    v_sub_f32 v{R_}, v{R_}, v{T}
    v_sub_f32 v{R_+2}, v{R_+2}, v{T}
    v_sub_f32 v{R_+4}, v{R_+4}, v{T}
    v_sub_f32 v{R_+6}, v{R_+6}, v{T}
    v_mul_f32 v{R_}, v{R_}, v{R_}
    v_fmac_f32 v{R_}, v{R_+2}, v{R_+2}
    v_fmac_f32 v{R_}, v{R_+4}, v{R_+4}
    v_fmac_f32 v{R_}, v{R_+6}, v{R_+6}
    v_add_f32 v{R_+1}, v{R_+1}, v{R_+3}
    v_add_f32 v{R_+5}, v{R_+5}, v{R_+7}
    v_add_f32 v{R_+1}, v{R_+1}, v{R_+5}
    v_fma_f32 v{R_}, v{R_}, s{sA}, v{R_+1}
    v_mov_b32 v{T+1}, 0x3727c5ac
    v_fmac_f32 v{T+1}, 0x3b000000, v{R_}
    v_rsq_f32 v{T+1}, v{T+1}
    s_nop 0
    v_mul_f32 v{T+1}, 0x{QSCALE:x}, v{T+1}
    """)
    L += [f"v_sub_f32 v{F+e}, v{F+e}, v{T}" for e in range(16)]
    L += [f"v_mul_f32 v{F+e}, v{F+e}, v{T+1}" for e in range(16)]
    L += [f"v_lshlrev_b32 v{T+2}, 9, v{T+5}", f"v_lshl_add_u32 v{T+2}, v{T+4}, 4, v{T+2}",
          f"s_lshr_b32 s{sA}, s2, 2", f"s_lshl_b32 s{sA}, s{sA}, 15", f"s_and_b32 s{sD}, s2, 3", f"s_lshl_b32 s{sD}, s{sD}, 7", f"s_add_u32 s{sA}, s{sA}, s{sD}",
          f"s_lshl_b32 s{sD}, s{sW}, 13", f"s_add_u32 s{sA}, s{sA}, s{sD}", f"s_add_u32 s{sA}, s{sA}, {WS_H1}", f"s_add_u32 s{sD}, s{sA}, 4096"]
    g = G.stream(max(g, gb) + 1, L)
    L = [WV("md")]
    for op in ("v_add_f32 v{c}, 1.0, v{c}", "v_cvt_pk_bf16_f32 v{c}, v{c}, v{c}", "v_lshlrev_b32 v{c}, 16, v{c}"):
        L += [op.format(c=CA + e) for e in range(16)]
    L += [f"v_mul_f32 v{SA+e}, 0x{QSCALE:x}, v{SA+e}" for e in range(16)]
    L += [f"v_fma_f32 v{F+e}, v{F+e}, v{CA+e}, v{SA+e}" for e in range(16)]
    L += [f"v_cvt_pk_bf16_f32 v{XR+i}, v{F+2*i}, v{F+2*i+1}" for i in range(8)]
    L += [I(f"buffer_store_dwordx4 v[{XR}:{XR+3}], v{T+2}, {WSR}, s{sA} offen sc1", "hs"), I(f"buffer_store_dwordx4 v[{XR+4}:{XR+7}], v{T+2}, {WSR}, s{sD} offen sc1", "hs")]
    g = G.stream(g + 6, L)
    gb = min(b for b in bars if b > g + E("KA_HD", 20))
    G.put(gb - 1, WV("hs"), "end")
    G.stream(g + 1, [f"v_mov_b32 v25, {MAGIC}", f"v_min_u32 v27, 1, v2", f"v_lshlrev_b32 v27, 30, v27", f"s_add_u32 s{sA}, s{sF}, {FL_H}"])
    G.put(gb + 1, I(f"buffer_store_dword v25, v27, {WSR}, s{sA} offen sc1", "fl"), "mem")
    print("h stored", g, "flag", gb + 1)
    gh = gb + 1
    L = [[f"s_mov_b32 s{S_WQ}, s8", f"s_mov_b32 s{S_WQ+1}, s9"],
         I(f"buffer_load_dword v26, v28, s[{S_WQ}:{S_WQ+3}], s{sE} offen", "pf"),
         f"v_lshrrev_b32 v22, 4, v2", f"v_and_b32 v23, 15, v2", f"v_lshlrev_b32 v24, 2, v22", f"v_xor_b32 v23, v23, v24", f"v_lshlrev_b32 v23, 4, v23",
         f"v_lshl_add_u32 v23, v22, 13, v23", f"s_lshl_b32 s{sB}, s{sW}, 15", f"v_add_u32 v{VOQ}, s{sB}, v23",
         f"s_sub_u32 s{sB}, 15, s{sMT}", [f"s_cmp_eq_u32 s{sP_}, 0", f"s_cselect_b32 s{sB}, s{sB}, s{sMT}"], f"s_lshl_b32 s{sB}, s{sB}, 1", f"s_add_u32 s{sB}, s{sB}, s{sR}",
         f"s_lshl_b32 s{sC_}, s{sB}, 10", f"s_add_u32 s{sC_}, s{sC_}, {WS_FLAG+FL_H}",
         f"s_lshl_b32 s{sB}, s{sB}, 16", f"s_add_u32 s{sB}, s{sB}, {WS_H1}", f"v_add_u32 v{VH}, s{sB}, v1", f"v_add_u32 v{VH+1}, 32768, v{VH}",
         f"v_bfe_u32 v22, v2, 2, 2", f"v_lshrrev_b32 v23, 5, v2", f"v_lshl_add_u32 v23, v23, 3, v22", f"v_lshlrev_b32 v23, 8, v23",
         f"v_bfe_u32 v24, v2, 4, 1", f"v_lshl_add_u32 v23, v24, 5, v23", f"v_and_b32 v24, 3, v2", f"v_lshl_add_u32 v23, v24, 3, v23", f"v_add_u32 v23, 0x20000, v23"]
    for nt in range(4): L += [f"v_xor_b32 v24, {nt}, v22", f"v_lshl_add_u32 v{VQR+nt}, v24, 6, v23"]
    L += [f"v_and_b32 v15, 7, v2", f"v_lshlrev_b32 v15, 7, v15", f"s_lshl_b32 s{sM0T}, s{sW}, 10"]
    g = G.stream(max(gW + 1, E("KA_PFG", 300)), L)
    print("q setup end", g)
    gq = max(g + 2, gh + 2, E("KA_GQ", 366))
    qfree = lambda ks: BG(4) if ks < 8 else BG(10) if ks < 12 else BG(11) if ks < 16 else BG(12) if ks < 20 else BG(13) if ks < 24 else BG(14) if ks < 28 else BG(15)
    QS = E("KA_QS", 4)
    for ks in range(32):
        gq = max(gq, qfree(ks) + 2)
        put_dma(gq, ([f"s_add_u32 m0, s{sM0T}, {131072-32768*(ks//8)+(ks%8)*4096}", f"s_mov_b32 s{sT0}, {ks*16*8192}"],
                     [I(f"buffer_load_dwordx4 v{VOQ}, s[{S_WQ}:{S_WQ+3}], s{sT0} offen lds", f"Q{ks//8}")]))
        gq += QS
    print("W_q dma end", gq)
    gp = E("KA_HP", 420)
    G.put(gp, I(f"buffer_load_dword v22, v15, {WSR}, s{sC_} offen sc1", "hp"), "mem")
    g = G.stream(gp + 24, [[WV("hp"), f"v_cmp_ne_u32 vcc, v25, v22"], ["s_cbranch_vccnz KA_HSPIN", "KA_HSPIN_RET:"]])
    g += 1
    n = 0
    for ks in range(32):
        for q in range(2):
            g = max(g, 384 + 4 * ks + 4)
            while g in busy: g += 1
            if ks % 4 == 0 and q == 0: G.put(g - 1, f"s_mov_b32 s{sB}, {(ks//4)*4096}", "end")
            G.put(g, I(f"buffer_load_dwordx4 {ar(8*ks+4*q,4)}, v{VH+q}, {WSR}, s{sB} offen offset:{(ks%4)*1024} sc1", f"h{ks}"), "mem")
            assert g < QG(ks) - 12, (ks, g)
            g += E("KA_HS", 4) if g < gq else 3
    print("h loads end", g)
    ghl = g
    gb = min(b for b in bars if b > gl + E("KA_KD", 30))
    G.put(gb - 2, WV("stl"), "end")
    G.put(gb - 2, f"s_add_u32 s{sA}, s{sF}, {FL_KV}", "end")
    G.put(gb + 1, I(f"buffer_store_dword v25, v27, {WSR}, s{sA} offen sc1", "fl"), "mem")
    print("kv flag", gb + 1)
    K = k2
    L = sl(f"""
    s_and_b32 s{sC_}, s2, 31
    s_lshl_b32 s{sC_}, s{sC_}, 7
    s_add_u32 s{sC_}, s{sC_}, {WS_FLAG+FL_KV}
    v_lshlrev_b32 v15, 5, v15
    v_mov_b32 v28, v2
    s_lshl_b32 s{sD}, s{sHD}, 19
    s_add_u32 s{sE}, s{sD}, {WS_KF}
    """) + [[f"s_add_u32 s{K.S_K}, s{S_WS}, s{sE}", f"s_addc_u32 s{K.S_K+1}, s{S_WS+1}, 0"], f"s_add_u32 s{sE}, s{sD}, {WS_VF}",
            [f"s_add_u32 s{K.S_V}, s{S_WS}, s{sE}", f"s_addc_u32 s{K.S_V+1}, s{S_WS+1}, 0"]] + sl(f"""
    s_mov_b32 s{K.S_V+2}, 0x80000
    s_lshl_b32 s{sD}, s{K.sPR}, 1
    s_sub_u32 s{K.sN}, 32, s{sD}
    s_lshl_b32 s{K.sKEND}, s{K.sN}, 14
    s_mov_b32 s{K.S_K+2}, s{K.sKEND}
    s_add_u32 s{K.sN2B}, s{sD}, 2
    s_lshl_b32 s{K.sN2B}, s{K.sN2B}, 14
    s_mov_b32 s{K.sKOFF}, 0
    s_lshl_b32 s{K.sKDST}, s{sW}, 12
    s_mov_b32 s{K.sBLK}, 0
    s_sub_u32 s{K.sQB}, 15, s{K.sPR}
    v_add_u32 v{K.V_DMA}, s{K.sKDST}, v1
    s_lshl_b32 s{sD}, s{sP_}, 13
    v_add_u32 v{K.V_KADDR}, s{sD}, v1
    v_mov_b32 v{K.V_NINF}, 0xff800000
    s_lshl_b32 s{sE}, s{sR}, 14
    s_add_u32 s{sE}, s{sE}, s{sD}
    v_add_u32 v{K.V_QA}, s{sE}, v1
    v_xor_b32 v{K.V_QA+1}, 0x2000, v{K.V_QA}
    v_and_b32 v23, 31, v28
    v_lshrrev_b32 v24, 5, v28
    v_lshlrev_b32 v24, 2, v24
    v_sub_u32 v23, v23, v24
    """)
    for z in range(2):
        for q in range(2):
            L += [f"s_xor_b32 s{sD}, s{sP_}, {q}", f"s_lshl_b32 s{sE}, s{sR}, 1", f"s_add_u32 s{sD}, s{sD}, s{sE}", f"s_sub_u32 s{sD}, s{sD}, s{sP_}",
                  f"s_sub_u32 s{sD}, s{sD}, {2*z}", f"s_lshl_b32 s{sD}, s{sD}, 5", f"v_add_u32 v{K.V_LIM+2*z+q}, s{sD}, v23"]
    L += sl(f"""
    v_lshrrev_b32 v24, 5, v28
    v_mul_lo_u32 v20, v24, s11
    v_and_b32 v23, 31, v28
    v_lshl_add_u32 v20, v23, 4, v20
    s_lshl_b32 s11, s11, 1
    v_bfe_u32 v23, v28, 2, 2
    v_lshl_add_u32 v23, v24, 2, v23
    v_lshlrev_b32 v23, 9, v23
    v_bfe_u32 v24, v28, 4, 1
    v_lshl_add_u32 v23, v24, 5, v23
    v_and_b32 v24, 3, v28
    v_lshl_add_u32 v23, v24, 3, v23
    v_add_u32 v21, s35, v23
    """)
    g = G.stream(530, L)
    print("attn setup end", g)
    gp = max(E("KA_KP", 700), g + 1, ghl)
    G.put(gp, I(f"buffer_load_dword v22, v15, {WSR}, s{sC_} offen sc1", "kp"), "mem")
    g = G.stream(gp + 22, [[WV("kp"), f"v_cmp_ne_u32 vcc, v25, v22"], ["s_cbranch_vccnz KA_KSPIN", "KA_KSPIN_RET:"]])
    g += 2
    for t in range(2):
        pre, d, post = K.kdma()
        g = put_dma(g, (pre, [I(x, "K") for x in d]), 2)
        G.put(g - 2, I("\n".join(post)), "oth")
    print("K dma end", g)
    items = P + G.items()
    print("front gaps over cap:", [(g, u) for g, u in enumerate(G.used) if u > 24][:20])
    if STAMPS:
        pos = [i for i, it in enumerate(items) if it.s.startswith("v_mfma")]
        stg = [int(x) for x in os.environ.get("STG", "128,512").split(",")]
        for k in range(len(stg) - 1, -1, -1):
            b = ST.base + 2 * (ST.n + k)
            items.insert(pos[stg[k]], I(f"s_memtime s[{b}:{b+1}]"))
        ST.n += len(stg)
    resolve(items, A, vm0=["pf"])
    if os.environ.get("STG"):
        import asmlib
        class Dummy:
            base = 100; n = 0
            def stamp(self): pass
            def flush(self, *a, **k): return ST.flush(*a, **k)
        class D2(Dummy):
            @property
            def n(self): return 0
            @n.setter
            def n(self, v): pass
        ST.stamp()
        k2.gen_attn(A, D2(), qa, j2src=20, tailfn=tailfn)
    else:
        k2.gen_attn(A, ST, qa, j2src=20, tailfn=tailfn)
    A(f"""
    KA_SPIN:
    s_mov_b32 s{sB}, 200000
    KA_SPIN_L:
    s_sleep 8
    buffer_load_dword v{T}, v{T+3}, s[{S_D}:{S_D+3}], 0 offen sc1
    s_waitcnt vmcnt(0)
    v_readfirstlane_b32 s{sA}, v{T}
    s_cmp_eq_u32 s{sA}, 64
    s_cbranch_scc1 KA_SPIN_RET
    s_sub_u32 s{sB}, s{sB}, 1
    s_cmp_lg_u32 s{sB}, 0
    s_cbranch_scc1 KA_SPIN_L
    s_branch KA_SPIN_RET
    """)
    for tag in ("KA_HSPIN", "KA_KSPIN"):
        A(f"""
        {tag}:
        s_mov_b32 s{sD}, 200000
        {tag}_L:
        s_sleep 4
        buffer_load_dword v22, v15, {WSR}, s{sC_} offen sc1
        s_waitcnt vmcnt(0)
        v_cmp_ne_u32 vcc, v25, v22
        s_cbranch_vccz {tag}_RET
        s_sub_u32 s{sD}, s{sD}, 1
        s_cmp_lg_u32 s{sD}, 0
        s_cbranch_scc1 {tag}_L
        s_branch {tag}_RET
        """)
    return name, A.text(), kernel_desc(name, 256, 256), "grid=(256,1,1) block=(256,1,1) lds=163840"
```

```python
from asmlib import *
from sched import I, WV, WL, WVL, Item, resolve, Gaps

QSCALE = 0x3e0293ee
import struct, math, os
QSCALE = struct.unpack("<I", struct.pack("<f", math.log2(math.e) / math.sqrt(128.0)))[0]
THR = struct.unpack("<I", struct.pack("<f", 2.0 ** 40))[0]
NEGBIG = struct.unpack("<I", struct.pack("<f", -1e30))[0]

AO, AQ, AK, AV = 0, 128, 192, 224
V_LANE16 = 1
V_KADDR = 2
V_VADDR = 3
V_DMA = 4
V_NINF = 5
V_LIM = 6
V_QA = 10
V_T0 = 12
VS = 16
VP = 80
VN = 112
VL = 144
VE = 148
VX = 156
V_J2 = 250
def S(par, q, e=None):
    b = VS + 32 * par + 16 * q
    return vr(b, 16) if e is None else f"v{b+e}"
def P(par, q, ks=None, i=None):
    b = VP + 16 * par + 8 * q
    if i is not None: return f"v{b+i}"
    return vr(b + 4 * ks, 4)
def L(par, q): return f"v{VL+2*par+q}"
def O(q, dt): return ar(AO + 64 * q + 16 * dt, 16)

S_K, S_V, S_WS, S_WQ = 12, 16, 20, 24
sW, sR, sP_, sHD, sPR = 30, 31, 32, 33, 34
sKOFF, sKEND, sN2B, sKDST, sVOFF = 36, 37, 38, 39, 40
sCNT, sTHR, sBLK, sQB, sN = 41, 42, 43, 44, 45
sT0, sT1, sT2 = 46, 47, 48
MASKP = [52, 54, 56, 58]

def kdma():
    pre = [f"s_and_b32 m0, s{sKDST}, 0xffff"]
    d = [f"buffer_load_dwordx4 v{V_DMA}, s[{S_K}:{S_K+3}], s{sKOFF} offen offset:{i*1024} lds" for i in range(4)]
    post = [f"s_add_u32 s{sKDST}, s{sKDST}, 16384",
            f"s_add_u32 s{sKOFF}, s{sKOFF}, 16384",
            f"s_cmp_eq_u32 s{sKOFF}, s{sKEND}",
            f"s_cselect_b32 s{sKOFF}, 0, s{sKOFF}",
            f"s_cselect_b32 s{S_K+2}, s{sN2B}, s{S_K+2}"]
    return pre, d, post
def vdma():
    pre = [f"s_and_b32 s{sT2}, s{sVOFF}, 0xffff", f"s_or_b32 m0, s{sT2}, 0x10000"]
    d = [f"buffer_load_dwordx4 v{V_LANE16}, s[{S_V}:{S_V+3}], s{sVOFF} offen offset:{i*1024} lds" for i in range(4)]
    post = [f"s_add_u32 s{sVOFF}, s{sVOFF}, 16384"]
    return pre, d, post

def kread(kk, odd):
    return f"ds_read_b128 {ar(AK+4*kk,4)}, v{V_KADDR} offset:{odd*16384+kk*1024}"
def vread(f, odd):
    return f"ds_read_b128 {ar(AV+4*f,4)}, v{V_VADDR} offset:{odd*16384+f*1024}"

def qk_mfmas(dst_par, czero=False):
    out = []
    for kk in range(8):
        for q in range(2):
            c = S(dst_par, q) if kk else ("0" if czero else vr(VN + 16 * q, 16))
            out.append(mfma(S(dst_par, q), ar(AK + 4 * kk, 4), ar(AQ + 32 * q + 4 * kk, 4), c))
    return out
def pv_mfmas(src_par, qmajor=False):
    out = []
    if qmajor:
        for q in (1, 0):
            for f in range(8):
                ks, dt = f // 4, f % 4
                out.append(mfma(O(q, dt), ar(AV + 4 * f, 4), P(src_par, q, ks), O(q, dt)))
    else:
        for f in range(8):
            ks, dt = f // 4, f % 4
            for q in range(2):
                out.append(mfma(O(q, dt), ar(AV + 4 * f, 4), P(src_par, q, ks), O(q, dt)))
    return out

def rho(e):
    return 8 * (e >> 2) + (e & 3)

def mask_stream(par, z):
    out = []
    els = [(q, e) for q in range(2) for e in range(16)]
    def cmp(i):
        q, e = els[i]
        mp = MASKP[i % 4]
        return f"v_cmp_le_i32 s[{mp}:{mp+1}], {rho(e)}, v{V_LIM+2*z+q}"
    def cnd(i):
        q, e = els[i]
        mp = MASKP[i % 4]
        return f"v_cndmask_b32 {S(par,q,e)}, v{V_NINF}, {S(par,q,e)}, s[{mp}:{mp+1}]"
    out += [cmp(0), cmp(1), cmp(2)]
    for i in range(32):
        out.append(cnd(i))
        if i + 3 < 32: out.append(cmp(i + 3))
    return out

def sm_stream(par, z=None):
    out = []
    els = [(q, e) for q in range(2) for e in range(16)]
    def cmp(i):
        q, e = els[i]
        mp = MASKP[i % 4]
        return f"v_cmp_le_i32 s[{mp}:{mp+1}], {rho(e)}, v{V_LIM+2*z+q}"
    def cnd(i):
        q, e = els[i]
        mp = MASKP[i % 4]
        return f"v_cndmask_b32 {S(par,q,e)}, v{V_NINF}, {S(par,q,e)}, s[{mp}:{mp+1}]"
    def ex(i):
        q, e = els[i]
        return f"v_exp_f32 v{VE+i%8}, {S(par,q,e)}"
    def add(i):
        q, e = els[i]
        src = L(1 - par, q) if e == 0 else L(par, q)
        return f"v_add_f32 {L(par,q)}, {src}, v{VE+i%8}"
    def cvt(i):
        q, e = els[i]
        return f"v_cvt_pk_bf16_f32 {P(par,q,i=e//2)}, v{VE+(i-1)%8}, v{VE+i%8}"
    if z is not None:
        out += [cmp(0), cmp(1), cmp(2), cnd(0)]
    for i in range(32):
        if z is not None:
            if i + 3 < 32: out.append(cmp(i + 3))
            if i + 1 < 32: out.append(cnd(i + 1))
        out.append(ex(i))
        if i >= 1:
            out.append(add(i - 1))
            if (i - 1) % 2 == 1:
                out.append(cvt(i - 1))
    out.append("s_nop 0")
    out.append(add(31))
    out.append(cvt(31))
    return out

def check_stream(par, label):
    return [f"v_add_f32 v{V_T0}, {L(par,0)}, {L(par,1)}",
            f"v_cmp_nle_f32 vcc, v{V_T0}, v{V_T0+1}",
            f"s_cbranch_vccnz {label}",
            f"{label}_ret:"]

def pack(ngaps, fixed, stream, last_gap, cap=24):
    gaps = [list(fixed.get(g, [])) for g in range(ngaps)]
    used = [sum(cost(i) for i in g) for g in gaps]
    total = sum(cost(i) for i in stream)
    while True:
        u = list(used); placed = [[] for _ in range(ngaps)]
        g = 0; ok = True
        for ins in stream:
            c = cost(ins)
            while g <= last_gap and u[g] + c > cap:
                g += 1
            if g > last_gap:
                ok = False; break
            placed[g].append(ins); u[g] += c
        if ok: break
        cap += 4
    res = []
    for g in range(ngaps):
        mem = [i for i in gaps[g] if is_mem(i) or i.startswith("s_barrier")]
        oth = [i for i in gaps[g] if not (is_mem(i) or i.startswith("s_barrier"))]
        res.append(mem + placed[g] + oth)
    return res, cap

def add_fixed(fx, g, ins):
    fx.setdefault(g, [])
    if isinstance(ins, list): fx[g] += ins
    else: fx[g].append(ins)

def place_dma(fx, grp, gaps4):
    pre, d, post = grp
    add_fixed(fx, gaps4[0] - 1, pre)
    for g, i in zip(gaps4, d):
        add_fixed(fx, g, i)
    g = gaps4[3]
    if len(post) == 5:
        add_fixed(fx, g, post[:2]); add_fixed(fx, g + 1, post[2:])
    else:
        add_fixed(fx, g, post)

rare_sites = []

def gen_rare(A, label, par, has_next):
    A.label(label)
    A("s_nop 15"); A("s_nop 7")
    T, T2 = VX, VX + 1
    for q in range(2):
        A(f"v_max3_f32 v{T}, {S(par,q,0)}, {S(par,q,1)}, {S(par,q,2)}")
        for e in range(3, 15, 2):
            A(f"v_max3_f32 v{T}, v{T}, {S(par,q,e)}, {S(par,q,e+1)}")
        A(f"v_max3_f32 v{T}, v{T}, {S(par,q,15)}, 0")
        A(f"v_mov_b32 v{T2}, v{T}")
        A("s_nop 1")
        A(f"v_permlane32_swap_b32 v{T}, v{T2}")
        A("s_nop 1")
        A(f"v_max_f32 v{T}, v{T}, v{T2}")
        A(f"v_exp_f32 v{T2}, -v{T}")
        for e in range(16):
            A(f"v_sub_f32 v{VN+16*q+e}, v{VN+16*q+e}, v{T}")
            A(f"v_sub_f32 {S(par,q,e)}, {S(par,q,e)}, v{T}")
            if has_next:
                A(f"v_sub_f32 {S(1-par,q,e)}, {S(1-par,q,e)}, v{T}")
        A(f"v_mul_f32 {L(1-par,q)}, {L(1-par,q)}, v{T2}")
        for i in range(0, 64, 4):
            for j in range(4):
                A(f"v_accvgpr_read_b32 v{VX+2+j}, a{AO+64*q+i+j}")
            for j in range(4):
                A(f"v_mul_f32 v{VX+2+j}, v{VX+2+j}, v{T2}")
            for j in range(4):
                A(f"v_accvgpr_write_b32 a{AO+64*q+i+j}, v{VX+2+j}")
    A.ext(sm_stream(par))
    A("s_nop 3")
    A(f"s_branch {label}_ret")

def gen_k2():
    rare_sites.clear()
    A = Asm()
    name = "k2attn_kernel"
    A.lines.append(kernel_header(name))
    A("""
    s_cmp_ge_u32 s2, 256
    s_cbranch_scc1 K2_END
    """)
    for _ in range(int(os.environ.get("K2_XPRE", "0"))): A("s_sleep 127")
    ST = Stamper(A, 1)
    ST.stamp()
    A(f"""
    s_load_dwordx2 s[4:5], s[0:1], {KA['wq']}
    s_load_dwordx2 s[8:9], s[0:1], {KA['ws']}
    s_load_dwordx2 s[52:53], s[0:1], {KA['wo']}
    s_load_dwordx2 s[54:55], s[0:1], {KA['w1']}
    s_load_dwordx2 s[56:57], s[0:1], {KA['w2']}
    v_lshrrev_b32 v12, 6, v0
    v_and_b32 v13, 63, v0
    v_readfirstlane_b32 s{sW}, v12
    v_lshlrev_b32 v{V_LANE16}, 4, v13
    s_and_b32 s{sT0}, s2, 7
    s_lshr_b32 s{sT1}, s2, 3
    s_and_b32 s{sHD}, s{sT1}, 3
    s_lshl_b32 s{sT0}, s{sT0}, 2
    s_add_u32 s{sHD}, s{sHD}, s{sT0}
    s_lshr_b32 s{sPR}, s{sT1}, 2
    s_and_b32 s{sR}, s{sW}, 1
    s_lshr_b32 s{sP_}, s{sW}, 1
    """)
    QA = 16
    WF = 144
    VOW = 176
    VWR = 184
    VH = 188
    def hreg(ks, q):
        return ar(8 * ks + 4 * q, 4)
    A(f"""
    v_lshrrev_b32 v14, 4, v13
    v_and_b32 v15, 15, v13
    v_lshlrev_b32 v12, 2, v14
    v_xor_b32 v15, v15, v12
    v_lshlrev_b32 v15, 4, v15
    v_lshl_add_u32 v15, v14, 13, v15
    s_lshl_b32 s{sT0}, s{sW}, 15
    v_add_u32 v{VOW}, s{sT0}, v15
    """)
    A(f"""
    s_sub_u32 s{sQB}, 15, s{sPR}
    s_cmp_eq_u32 s{sP_}, 0
    s_cselect_b32 s{sT0}, s{sQB}, s{sPR}
    s_lshl_b32 s{sT0}, s{sT0}, 2
    s_lshl_b32 s{sT1}, s{sR}, 1
    s_add_u32 s{sT0}, s{sT0}, s{sT1}
    s_lshl_b32 s{sT0}, s{sT0}, 15
    s_add_u32 s{sT0}, s{sT0}, {WS_H1}
    v_add_u32 v{VH}, s{sT0}, v{V_LANE16}
    v_add_u32 v{VH+1}, 32768, v{VH}
    s_waitcnt lgkmcnt(0)
    s_lshl_b32 s{sT0}, s{sHD}, 8
    s_add_u32 s{S_WQ}, s4, s{sT0}
    s_addc_u32 s{S_WQ+1}, s5, 0
    s_mov_b32 s{S_WQ+2}, {511*8192+256}
    s_mov_b32 s{S_WQ+3}, 0x00020000
    """)
    srd(A, S_WS, 8, 9, WS_END)
    A(f"s_lshl_b32 s60, s{sW}, 10")
    def qloads(ks):
        return [([f"s_mov_b32 s61, {ks*16*8192}", f"s_add_u32 m0, s60, {32768+ks*4096}"],
                 I(f"buffer_load_dwordx4 v{VOW}, s[{S_WQ}:{S_WQ+3}], s61 offen lds", f"q{ks}")),
                ([f"s_mov_b32 s62, {(ks//4)*4096}"] if ks % 4 == 0 else [],
                 I(f"buffer_load_dwordx4 {hreg(ks,0)}, v{VH}, s[{S_WS}:{S_WS+3}], s62 offen offset:{(ks%4)*1024}", f"q{ks}")),
                ([], I(f"buffer_load_dwordx4 {hreg(ks,1)}, v{VH+1}, s[{S_WS}:{S_WS+3}], s62 offen offset:{(ks%4)*1024}", f"q{ks}"))]
    NPRE = int(os.environ.get("K2_NPRE", "3"))
    vm0 = []
    for ks in range(NPRE):
        for pre, ld in qloads(ks):
            A.ext(pre)
            if pre: A("s_nop 0")
            A(ld.s); vm0.append(ld.tag)
    ST.stamp()
    A(f"""
    s_lshl_b32 s{sT0}, s{sHD}, 19
    s_add_u32 s{sT1}, s{sT0}, {WS_KF}
    s_add_u32 s{S_K}, s8, s{sT1}
    s_addc_u32 s{S_K+1}, s9, 0
    s_mov_b32 s{S_K+3}, 0x00020000
    s_add_u32 s{sT1}, s{sT0}, {WS_VF}
    s_add_u32 s{S_V}, s8, s{sT1}
    s_addc_u32 s{S_V+1}, s9, 0
    s_mov_b32 s{S_V+2}, 0x80000
    s_mov_b32 s{S_V+3}, 0x00020000
    s_lshl_b32 s{sT0}, s{sPR}, 1
    s_sub_u32 s{sN}, 32, s{sT0}
    s_lshl_b32 s{sKEND}, s{sN}, 14
    s_mov_b32 s{S_K+2}, s{sKEND}
    s_add_u32 s{sN2B}, s{sT0}, 2
    s_lshl_b32 s{sN2B}, s{sN2B}, 14
    s_mov_b32 s{sKOFF}, 0
    s_lshl_b32 s{sKDST}, s{sW}, 12
    s_mov_b32 s{sBLK}, 0
    v_add_u32 v{V_DMA}, s{sKDST}, v{V_LANE16}
    s_lshl_b32 s{sT0}, s{sP_}, 13
    v_add_u32 v{V_KADDR}, s{sT0}, v{V_LANE16}
    v_mov_b32 v{V_NINF}, 0xff800000
    s_lshl_b32 s{sT1}, s{sR}, 14
    s_add_u32 s{sT1}, s{sT1}, s{sT0}
    v_add_u32 v{V_QA}, s{sT1}, v{V_LANE16}
    v_xor_b32 v{V_QA+1}, 0x2000, v{V_QA}
    v_and_b32 v12, 31, v13
    v_lshrrev_b32 v14, 5, v13
    v_lshlrev_b32 v14, 2, v14
    v_sub_u32 v12, v12, v14
    """)
    A(f"""
    s_lshl_b32 s49, s2, 2
    s_add_u32 s49, s49, s{sW}
    s_mov_b32 s4, s52
    s_mov_b32 s5, s53
    s_mov_b32 s6, {4096*1024}
    s_mov_b32 s7, 0x00020000
    s_cmp_ge_u32 s49, 736
    s_cselect_b32 s4, s56, s4
    s_cselect_b32 s5, s57, s5
    s_cselect_b32 s6, {1792*1024}, s6
    s_cselect_b32 s50, 736, 0
    s_cselect_b32 s28, {WS_W2F - WS_WOF}, 0
    s_mov_b32 s29, {256*2048}
    s_cselect_b32 s29, {112*2048}, s29
    s_sub_u32 s50, s49, s50
    s_lshr_b32 s52, s50, 1
    s_and_b32 s53, s50, 1
    s_mov_b32 s11, 1024
    s_sub_u32 s50, s49, 512
    s_mul_i32 s56, s50, 9363
    s_lshr_b32 s56, s56, 16
    s_mul_i32 s57, s56, 7
    s_sub_u32 s57, s50, s57
    s_cmp_lt_u32 s50, 224
    s_cselect_b32 s52, s56, s52
    s_cselect_b32 s53, s57, s53
    s_cselect_b32 s11, 3584, s11
    s_cselect_b32 s29, {32*2048}, s29
    s_cselect_b32 s28, {WS_W1F - WS_WOF}, s28
    s_cselect_b32 s4, s54, s4
    s_cselect_b32 s5, s55, s5
    s_cselect_b32 s6, {512*3584}, s6
    s_mul_i32 s10, s52, s11
    s_lshl_b32 s10, s10, 4
    s_lshl_b32 s56, s53, 9
    s_add_u32 s10, s10, s56
    s_mul_i32 s56, s53, s29
    s_lshl_b32 s56, s56, 2
    s_add_u32 s28, s28, s56
    s_lshl_b32 s56, s52, 11
    s_add_u32 s28, s28, s56
    s_add_u32 s28, s28, {WS_WOF}
    s_cmp_ge_u32 s49, 960
    s_cselect_b32 s28, 0x80000000, s28
    v_lshrrev_b32 v15, 5, v13
    v_mul_lo_u32 v{V_J2}, v15, s11
    v_and_b32 v14, 31, v13
    v_lshl_add_u32 v{V_J2}, v14, 4, v{V_J2}
    s_lshl_b32 s11, s11, 1
    v_bfe_u32 v14, v13, 2, 2
    v_lshl_add_u32 v14, v15, 2, v14
    v_lshlrev_b32 v14, 9, v14
    v_bfe_u32 v15, v13, 4, 1
    v_lshl_add_u32 v14, v15, 5, v14
    v_and_b32 v15, 3, v13
    v_lshl_add_u32 v14, v15, 3, v14
    s_lshl_b32 s35, s{sW}, 13
    s_add_u32 s35, s35, 0x20000
    v_add_u32 v{V_J2+1}, s35, v14
    """)
    for z in range(2):
        for q in range(2):
            A(f"s_xor_b32 s{sT0}, s{sP_}, {q}")
            A(f"s_lshl_b32 s{sT1}, s{sR}, 1")
            A(f"s_add_u32 s{sT0}, s{sT0}, s{sT1}")
            A(f"s_sub_u32 s{sT0}, s{sT0}, s{sP_}")
            A(f"s_sub_u32 s{sT0}, s{sT0}, {2*z}")
            A(f"s_lshl_b32 s{sT0}, s{sT0}, 5")
            A(f"v_add_u32 v{V_LIM+2*z+q}, s{sT0}, v12")
    A(f"""
    v_bfe_u32 v12, v13, 2, 2
    v_lshrrev_b32 v14, 5, v13
    v_lshl_add_u32 v14, v14, 3, v12
    v_lshlrev_b32 v14, 8, v14
    v_bfe_u32 v15, v13, 4, 1
    v_lshl_add_u32 v14, v15, 5, v14
    v_and_b32 v15, 3, v13
    v_lshl_add_u32 v14, v15, 3, v14
    v_add_u32 v14, 0x8000, v14
    """)
    for nt in range(4):
        A(f"v_xor_b32 v15, {nt}, v12")
        A(f"v_lshl_add_u32 v{VWR+nt}, v15, 6, v14")
    for nt in range(4):
        A(f"v_add_u32 v{VWR+8+nt}, 0x10000, v{VWR+nt}")
    def wreads(ks):
        s = ks & 1
        L_ = []
        for nt in range(4):
            for e in range(2):
                b = WF + 16 * s + 4 * nt + 2 * e
                base = VWR + nt if ks < 16 else VWR + 8 + nt
                L_.append(I(f"ds_read_b64_tr_b16 v[{b}:{b+1}], v{base} offset:{(ks%16)*4096+e*1024}", f"w{ks}"))
        return L_
    mf = []
    for ks in range(32):
        for dt in range(4):
            for q in range(2):
                acc = vr(QA + 64 * q + 16 * dt, 16)
                mf.append(mfma(acc, vr(WF + 16 * (ks & 1) + 4 * dt, 4), hreg(ks, q), acc if ks else "0"))
    G = Gaps(mf)
    for ks in range(32):
        g0 = 8 * ks
        if ks % 2 == 0 or ks == 31:
            G.put(g0, "s_barrier", "mem")
        if ks + 1 < 32:
            rd = wreads(ks + 1)
            for i in range(4): G.put(g0 + i, rd[2 * i:2 * i + 2])
            if (ks + 1) % 2 == 0:
                G.put(g0 + 7, WVL([f"q{min(ks+3,31)}"], [f"w{ks+1}"]), "end")
            else:
                G.put(g0 + 7, WL(f"w{ks+1}"), "end")
    pend = []
    for ks in range(NPRE, 32): pend += qloads(ks)
    lastpost = []
    for t in range(2):
        pre, d, post = kdma()
        pend.append((lastpost + pre, I(d[0], "K")))
        pend += [([], I(x, "K")) for x in d[1:]]
        lastpost = post
    LD = int(os.environ.get("K2_LD", "6"))
    g = 1; n = 0
    while pend:
        ksn = NPRE + n // 3
        if ksn < 32 and g < 8 * (ksn - LD): g = 8 * (ksn - LD)
        pre, ld = pend.pop(0)
        G.put(g - 1, pre, "end"); G.put(g, ld, "mem")
        n += 1
        g += 1 if ksn <= LD else 2
    G.put(g - 1, lastpost, "end")
    print("K2 qproj last load gap", g)
    assert g < 246
    PP = [WV("q0"), I("s_barrier")]
    if STAMPS:
        b_ = ST.base + 2 * ST.n; ST.n += 1
        PP.append(I(f"s_memtime s[{b_}:{b_+1}]"))
    PP += wreads(0) + [WVL(["q2"], ["w0"])] + G.items()
    resolve(PP, A, vm0=vm0)
    ST.stamp()
    gen_attn(A, ST, lambda q: QA + 64 * q)
    return name, A.text(), kernel_desc(name, 256, 256), "grid=(256,1,1) block=(256,1,1) lds=163840"

def gen_attn(A, ST, qa, j2src=None, tailfn=None):
    FUSE = tailfn is not None
    A(f"""
    s_lshl_b32 s{sT1}, s{sP_}, 15
    s_lshl_b32 s{sT0}, s{sR}, 14
    s_add_u32 s{sT1}, s{sT1}, s{sT0}
    s_add_u32 s{sT1}, s{sT1}, 98304
    v_add_u32 v12, s{sT1}, v{V_LANE16}
    s_lshl_b32 s{sVOFF}, s{sW}, 12
    """)
    dl = []
    for grp in (kdma(), kdma(), vdma(), vdma()):
        pre, d, post = grp
        dl += [(pre if i == 0 else [], x, post if i == 3 else []) for i, x in enumerate(d)]
    n = 0
    for dt in range(4):
        for q in range(2):
            for j in range(2):
                a0 = qa(q) + 16 * dt + 8 * j
                pre, x, post = dl[n]; n += 1
                A.ext(pre)
                for i in range(4):
                    A(f"v_cvt_pk_bf16_f32 v{a0+i}, v{a0+2*i}, v{a0+2*i+1}")
                A(f"ds_write_b128 v12, v[{a0}:{a0+3}] offset:{(q*8+2*dt+j)*1024}")
                A(x); A.ext(post)
    if j2src is not None:
        A(f"v_mov_b32 v14, v{j2src}"); A(f"v_mov_b32 v15, v{j2src+1}")
    A(f"""
    v_add_u32 v12, 98304, v{V_QA}
    v_add_u32 v13, 98304, v{V_QA+1}
    v_add_u32 v{V_QA}, 0x20000, v{V_QA}
    v_add_u32 v{V_QA+1}, 0x20000, v{V_QA+1}
    s_waitcnt vmcnt(16) lgkmcnt(0)
    s_barrier
    """)
    if j2src is not None:
        A(f"v_mov_b32 v{V_J2}, v14"); A(f"v_mov_b32 v{V_J2+1}, v15")
    PP = []
    for kk in range(8):
        PP.append(I(kread(kk, 0), f"a{kk}"))
        PP.append(I(f"ds_read_b128 {ar(AQ+4*kk,4)}, v12 offset:{kk*1024}", f"a{kk}"))
    for kk in range(8):
        PP.append(I(f"ds_read_b128 {ar(AQ+32+4*kk,4)}, v13 offset:{kk*1024}", "qb"))
    def stamp_item():
        if not STAMPS: return []
        b_ = ST.base + 2 * ST.n; ST.n += 1
        return [I(f"s_memtime s[{b_}:{b_+1}]")]
    PP += stamp_item()
    VZ = 244
    for x in f"""
    s_lshl_b32 s{sT0}, s{sP_}, 13
    s_add_u32 s{sT0}, s{sT0}, 0x18000
    v_add_u32 v{V_VADDR}, s{sT0}, v{V_LANE16}
    v_mov_b32 {L(1,0)}, 0
    v_mov_b32 {L(1,1)}, 0
    s_lshr_b32 s{sCNT}, s{sN}, 1
    s_sub_u32 s{sCNT}, s{sCNT}, 1
    v_mov_b32 v{VZ}, 0
    v_mov_b32 v{VZ+1}, 0
    v_mov_b32 v{VZ+2}, 0
    v_mov_b32 v{VZ+3}, 0
    s_mov_b32 s{sTHR}, {NEGBIG}
    """.strip().split("\n"): PP.append(I(x.strip()))
    def qk_q(dst_par, q, czero):
        return [mfma(S(dst_par, q), ar(AK + 4 * kk, 4), ar(AQ + 32 * q + 4 * kk, 4),
                     S(dst_par, q) if kk else ("0" if czero else vr(VN + 16 * q, 16))) for kk in range(8)]
    def zero_mfmas(qs=(0, 1)):
        return [mfma(O(q, dt), vr(VZ, 4), vr(VZ, 4), "0") for q in qs for dt in range(4)]
    def init_q(q):
        T = VX + q
        R = [f"v_max3_f32 v{T}, {S(0,q,0)}, {S(0,q,1)}, {S(0,q,2)}", f"v_max3_f32 v{T+2}, {S(0,q,3)}, {S(0,q,4)}, {S(0,q,5)}"]
        for e in range(6, 14, 4):
            R.append(f"v_max3_f32 v{T}, v{T}, {S(0,q,e)}, {S(0,q,e+1)}")
            R.append(f"v_max3_f32 v{T+2}, v{T+2}, {S(0,q,e+2)}, {S(0,q,e+3)}")
        R += [f"v_max3_f32 v{T}, v{T}, {S(0,q,14)}, {S(0,q,15)}", f"v_max3_f32 v{T}, v{T}, v{T+2}, s{sTHR}",
              f"v_mov_b32 v{T+2}, v{T}", "s_nop 1", f"v_permlane32_swap_b32 v{T}, v{T+2}", "s_nop 0", f"v_max_f32 v{T}, v{T}, v{T+2}"]
        R += [f"v_sub_f32 v{VN+16*q+e}, 0, v{T}" for e in range(16)]
        return R
    def sm0_stream():
        subs = [f"v_sub_f32 {S(0,q,e)}, {S(0,q,e)}, v{VX+q}" for q in range(2) for e in range(16)]
        stream = subs[:2]; si = 2
        for ins in sm_stream(0):
            stream.append(ins)
            if ins.startswith("v_exp") and si < 32:
                stream.append(subs[si]); si += 1
        return stream
    def gdma(G, grp, gaps4, tag):
        pre, d, post = grp
        G.put(gaps4[0] - 1, pre, "end")
        for g, x in zip(gaps4, d): G.put(g, I(x, tag), "mem")
        G.put(gaps4[3], I("\n".join(post)), "end"); G.used[gaps4[3]] += 4 * (len(post) - 1)
    def fit(G, start, stream, last, cap0=24):
        import copy
        cap = cap0
        while True:
            H = copy.deepcopy(G)
            try:
                g = H.stream(start, stream, cap=cap)
                if g <= last: break
            except IndexError:
                pass
            cap += 4
        G.stream(start, stream, cap=cap)
        return cap
    G = Gaps(qk_q(0, 0, True) + qk_q(0, 1, True) + zero_mfmas() + qk_q(1, 0, False) + qk_q(1, 1, False))
    PP.append(WL("a0"))
    for kk in range(7): G.put(kk, WL(f"a{kk+1}"), "end")
    G.put(7, WL("qb"), "end")
    G.put(0, f"v_mov_b32 v{V_T0+1}, {THR}", "end")
    for kk in range(8): G.put(8 + kk, I(kread(kk, 1), "k1"))
    G.put(20, f"v_xor_b32 v{V_KADDR}, 0x8000, v{V_KADDR}", "end")
    G.put(22, WVL(["K2"], ["k1"]), "end")
    G.put(23, "s_barrier", "mem")
    for kk in range(8): G.put(32 + kk, I(kread(kk, 0), "k2"))
    gdma(G, kdma(), [24, 25, 26, 27], "K4"); gdma(G, kdma(), [29, 30, 31, 32], "K5"); gdma(G, vdma(), [34, 35, 36, 37], "V2")
    for g in range(8, 12): G.put(g, "s_nop 0", "end")
    g = G.stream(12, init_q(0)); assert g <= 21, g
    g = G.stream(max(g, 19), init_q(1)); assert g <= 29, g
    cap = fit(G, g, sm0_stream(), 39)
    print("P0 cap", cap)
    PP += G.items() + [WVL(["V0"], ["*"])]
    resolve(PP, A, vm0=["K2"] * 4 + ["K3"] * 4 + ["V0"] * 4 + ["V1"] * 4)

    def full_step(par, lab, tail=None, extra=None):
        fx = {}
        add_fixed(fx, 0, "s_barrier")
        if par == 1:
            add_fixed(fx, 0, f"v_xor_b32 v{V_VADDR}, 0x8000, v{V_VADDR}")
        for f in range(8):
            add_fixed(fx, 1 + f, vread(f, 1 - par))
        add_fixed(fx, 15, "s_waitcnt lgkmcnt(0)")
        if par == 0:
            add_fixed(fx, 12, f"v_xor_b32 v{V_KADDR}, 0x8000, v{V_KADDR}")
        for kk in range(8):
            add_fixed(fx, 16 + kk, kread(kk, par))
        place_dma(fx, kdma(), [2, 6, 10, 13])
        place_dma(fx, vdma(), [18, 22, 25, 28])
        for g_, l_ in (extra or {}).items(): add_fixed(fx, g_, l_)
        rare_sites.append((lab, par, True))
        chk = check_stream(par, lab)
        add_fixed(fx, 30, chk[:2] + (tail or []))
        add_fixed(fx, 31, chk[2:] + [f"s_waitcnt vmcnt(16) lgkmcnt(0)"])
        gaps, cap = pack(32, fx, sm_stream(par), 30)
        print(lab, "cap", cap)
        weave(A, qk_mfmas(1 - par) + pv_mfmas(1 - par), gaps)

    ST.stamp()
    A.lines.append(".p2align 3")
    A.label("K2_LOOP")
    full_step(1, "K2_RARE_O", tail=[f"s_sub_u32 s{sCNT}, s{sCNT}, 1", f"s_cmp_eq_u32 s{sCNT}, 0"])
    A("s_cbranch_scc1 K2_X")
    CPF = os.environ.get("K2_CPF", "1") == "1"
    full_step(0, "K2_RARE_E", extra=({9: [f"s_cmp_eq_u32 s{sCNT}, 1", "s_cbranch_scc1 K2_CPFS", "K2_CPFS_ret:"]} if CPF else None))
    A("s_branch K2_LOOP")
    A.label("K2_X")
    A(f"s_cmp_eq_u32 s{sBLK}, 0")
    A("s_cbranch_scc0 K2_NM2")
    ST.stamp()
    def chk_put(G, par, lab, hn, gv, gb):
        rare_sites.append((lab, par, hn))
        chk = check_stream(par, lab)
        G.put(gv, chk[:2], "end"); G.put(gb, chk[2:], "end")
    PP = []
    G = Gaps(qk_mfmas(1) + pv_mfmas(1))
    G.put(0, "s_barrier", "mem")
    for f in range(8): G.put(1 + f, I(vread(f, 1), "v1"))
    G.put(15, WL("v1"), "end")
    G.put(12, f"v_xor_b32 v{V_KADDR}, 0x8000, v{V_KADDR}", "end")
    for kk in range(8):
        G.put(16 + kk, I(kread(kk, 0), "t1r"))
    for i in range(16):
        q, kk = i % 2, i // 2
        G.put(9 + i,
              I(f"ds_read_b128 {ar(AQ+32*q+4*kk,4)}, v{V_QA+q} offset:{kk*1024}", "t1r"))
    gdma(G, kdma(), [2, 6, 10, 13], "KB3")
    G.put(14, I(f"s_sub_u32 s{S_V}, s{S_V}, s{sKEND}\ns_subb_u32 s{S_V+1}, s{S_V+1}, 0\ns_add_u32 s{S_V+2}, s{S_V+2}, s{sKEND}"), "end")
    gdma(G, vdma(), [18, 22, 26, 28], "VB0")
    G.put(3, [f"v_lshrrev_b32 v240, 6, v{V_LANE16}", f"v_mul_lo_u32 v240, v240, s11", f"v_lshrrev_b32 v240, 1, v240",
              ], "end")
    G.put(5, [f"v_and_b32 v241, 48, v{V_LANE16}", f"v_lshl_add_u32 v240, v241, 3, v240"], "end")
    G.put(30, I(f"buffer_load_dword v241, v240, s[4:7], s10 offen", "pf"), "mem")
    chk_put(G, 0, "K2_RARE_T1", True, 30, 31)
    G.put(31, WVL(["VAl"], ["*"]), "end")
    print("T1 cap", fit(G, 0, sm_stream(0, 0), 30))
    PP += G.items()
    G = Gaps(qk_mfmas(0, czero=True) + pv_mfmas(0))
    G.put(0, "s_barrier", "mem")
    G.put(0, f"v_xor_b32 v{V_VADDR}, 0x8000, v{V_VADDR}", "end")
    for f in range(8): G.put(1 + f, I(vread(f, 0), "v2"))
    G.put(15, WL("v2"), "end")
    for kk in range(8):
        G.put(16 + 2 * kk, I(kread(kk, 1), "t2r"))
        G.put(17 + 2 * kk, I(vread(kk, 1), f"t2v{kk}"))
    gdma(G, kdma(), [2, 6, 10, 13], "KB4")
    gdma(G, vdma(), [18, 22, 26, 28], "VB1")
    chk_put(G, 1, "K2_RARE_T2", False, 30, 31)
    G.put(31, [f"s_cmp_lg_u32 s{sN2B}, 0x8000", "s_cbranch_scc1 K2_NOMASK0"], "end")
    print("T2 cap", fit(G, 0, sm_stream(1, 1), 30))
    PP += G.items() + [I(x) for x in mask_stream(0, 0)] + [I("K2_NOMASK0:")]
    PP += stamp_item()
    PO = 176
    XM = VX + 4
    def lsum_save():
        R = [f"v_mov_b32 v{XM+1}, {L(1,1)}", f"v_mov_b32 v{XM+3}, {L(1,0)}", f"v_mov_b32 v{XM}, v{VN+16}", f"v_mov_b32 v{XM+2}, v{VN}",
             f"v_permlane32_swap_b32 {L(1,1)}, v{XM+1}", f"v_permlane32_swap_b32 {L(1,0)}, v{XM+3}", "s_nop 0",
             f"v_add_f32 v{XM+1}, v{XM+1}, {L(1,1)}", f"v_add_f32 v{XM+3}, v{XM+3}, {L(1,0)}"]
        return R
    def ctx_addr():
        return [f"s_lshl_b32 s{sT0}, s{sQB}, 2", f"s_lshl_b32 s{sT1}, s{sR}, 1", f"s_add_u32 s{sT0}, s{sT0}, s{sT1}", f"s_add_u32 s{sT0}, s{sT0}, s{sP_}",
                f"s_lshl_b32 s{sT0}, s{sT0}, 18", f"s_lshl_b32 s{sT1}, s{sHD}, 13", f"s_add_u32 s{sT0}, s{sT0}, s{sT1}",
                f"s_add_u32 s63, s{sT0}, {WS_CTX}", f"s_add_u32 s64, s63, 4096"]
    def factors():
        F = XM + 10
        return [f"v_min_f32 v{F}, v{XM+2}, v{XM+4}", f"v_sub_f32 v{F+1}, v{F}, v{XM+2}", f"v_sub_f32 v{F+2}, v{F}, v{XM+4}",
                f"v_exp_f32 v{F+1}, v{F+1}", f"v_exp_f32 v{F+2}, v{F+2}", "s_nop 0",
                f"v_mul_f32 v{F}, v{F+1}, v{XM+3}", f"v_fmac_f32 v{F}, v{F+2}, v{XM+5}", f"v_rcp_f32 v{F}, v{F}", "s_nop 0",
                f"v_mul_f32 v{F+1}, v{F+1}, v{F}", f"v_mul_f32 v{F+2}, v{F+2}, v{F}"]
    CST = os.environ.get("K2_CST", "sc1")
    def combine(fi, tmp):
        F = XM + 10
        R = []
        for e in range(8): R.append(f"v_accvgpr_read_b32 v{tmp+e}, a{AO+8*fi+e}")
        for e in range(8): R.append(f"v_mul_f32 v{PO+8*fi+e}, v{PO+8*fi+e}, v{F+2}")
        for e in range(8): R.append(f"v_fmac_f32 v{PO+8*fi+e}, v{tmp+e}, v{F+1}")
        for i in range(4): R.append(f"v_cvt_pk_bf16_f32 v{PO+8*fi+i}, v{PO+8*fi+2*i}, v{PO+8*fi+2*i+1}")
        R.append(I(f"buffer_store_dwordx4 v[{PO+8*fi}:{PO+8*fi+3}], v{V_LANE16}, s[{S_WS}:{S_WS+3}], s{63+fi//4} offen offset:{(fi%4)*1024} {CST}", "cst"))
        return R
    PP.append(WL("t2v3"))
    G = Gaps(pv_mfmas(1, qmajor=True) + qk_q(1, 0, False) + qk_q(1, 1, False) + zero_mfmas((1,)))
    G.put(3, WL("t2v7"), "end")
    G.put(4, "s_barrier", "mem")
    addr = [f"s_and_b32 s{sT0}, s{sVOFF}, 0x8000", f"s_or_b32 s{sT0}, s{sT0}, 0x10000",
            [f"s_cmp_eq_u32 s{sP_}, 0", f"s_cselect_b32 s{sT1}, s{sT0}, 0x20000", f"s_cselect_b32 s{sT0}, 0x20000, s{sT0}"],
            f"s_lshl_b32 s{sT2}, s{sR}, 14", f"s_add_u32 s{sT1}, s{sT1}, s{sT2}", f"s_add_u32 s{sT0}, s{sT0}, s{sT2}",
            f"v_add_u32 v{XM+6}, s{sT1}, v{V_LANE16}", f"v_add_u32 v{XM+7}, s{sT0}, v{V_LANE16}",
            f"s_and_b32 s{sT0}, s{sKDST}, 0xffff", f"v_add_u32 v{XM+8}, s{sT0}, v{V_LANE16}", f"v_xor_b32 v{XM+9}, 0x2000, v{XM+8}"]
    for i in range(16):
        G.put(12 + i, I(f"ds_write_b128 v{XM+6}, {ar(AO+64+4*i,4)} offset:{i*1024}", "xw"), "mem"); G.used[12 + i] += 8
    G.put(11, I(f"ds_write_b64 v{XM+8}, v[{XM}:{XM+1}]", "xw"), "mem")
    G.put(20, f"v_xor_b32 v{V_KADDR}, 0x8000, v{V_KADDR}", "end")
    for kk in range(8): G.put(24 + kk, I(kread(kk, 0), "t3k"))
    G.put(31, WL("xw"), "end")
    G.put(32, "s_barrier", "mem")
    G.put(32, I(f"ds_read_b64 v[{XM+4}:{XM+5}], v{XM+9}", "xr"), "mem")
    for i in range(16):
        G.put(32 + i // 4, I(f"ds_read_b128 v[{PO+4*i}:{PO+4*i+3}], v{XM+7} offset:{i*1024}", "xr"), "mem")
    g = G.stream(0, lsum_save() + [f"v_mov_b32 {L(1,0)}, 0", f"v_mov_b32 {L(1,1)}, 0"] + addr); assert g <= 9, g
    g = G.stream(g, init_q(0)); assert g <= 14, g
    g = G.stream(g, init_q(1), cap=28); assert g <= 22, g
    sm0 = sm0_stream()
    NH = int(os.environ.get("K2_T3H", "70"))
    print("T3 cap", fit(G, g, sm0[:NH], 35))
    PP += G.items() + [I(x) for x in sm0[NH:] + ctx_addr()]
    PP += [WL("*"), I("s_barrier")]
    misc = []
    for grp, tag in ((kdma(), "KB5"), (vdma(), "VB2")):
        pre, d, post = grp
        misc.append([I(x) for x in pre] + [I("s_nop 0"), I(d[0], tag), I(d[1], tag)])
        misc.append([I(d[2], tag), I(d[3], tag)] + [I(x) for x in post])
    for i in range(0, 8, 2):
        grp = []
        for k in (i, i + 1):
            grp += [I(f"s_add_u32 m0, s35, {k*1024}"), I("s_nop 0"), I(f"buffer_load_dwordx4 v{V_J2}, s[4:7], s10 offen lds", "j2"), I("s_add_u32 s10, s10, s11")]
        misc.append(grp)
    if FUSE: misc = misc[4:] + misc[:4]
    PP += misc[0] + misc[1]
    PP += [I(x) for x in factors()]
    for fi in range(8):
        PP += [x if isinstance(x, Item) else I(x) for x in combine(fi, VP + 16 + 8 * (fi % 2))]
        if fi + 2 < len(misc): PP += misc[fi + 2]
        if fi % 2 == 1: PP.append(I(mfma(O(0, fi // 2), vr(VZ, 4), vr(VZ, 4), "0")))
    if FUSE:
        PP.append(WV("j2"))
        for f in range(8):
            for e in range(2):
                PP.append(I(f"ds_read_b64_tr_b16 v[{PO+8*f+4+2*e}:{PO+8*f+5+2*e}], v{V_J2+1} offset:{e*4096+f*64}", f"jr{f}"))
        for f in range(8):
            PP.append(WL(f"jr{f}"))
            PP.append(I(f"buffer_store_dwordx4 v[{PO+8*f+4}:{PO+8*f+7}], v{V_LANE16}, s[{S_WS}:{S_WS+3}], s28 offen offset:{(f&1)*1024} sc1", "j2s"))
            if f & 1: PP.append(I("s_add_u32 s28, s28, s29"))
    for x in f"""
    s_getpc_b64 s[52:53]
    s_add_u32 s52, s52, {'KC_START' if FUSE else 'kc_kernel'}-.
    s_addc_u32 s53, s53, 0
    v_lshlrev_b32 v240, 6, v0
    global_load_dword v241, v240, s[52:53]
    s_mov_b32 s{sBLK}, 1
    s_mov_b32 s{sQB}, s{sPR}
    s_mov_b32 s{sCNT}, s{sPR}
    s_cmp_eq_u32 s{sPR}, 0
    """.strip().split("\n"): PP.append(I(x.strip()))
    PP.append(WV("VB1"))
    PP += stamp_item()
    resolve(PP, A, vm0=["KB1"] * 4 + ["VAm"] * 4 + ["KB2"] * 4 + ["VAl"] * 4)
    A("s_cbranch_scc0 K2_LOOP")
    A("s_waitcnt vmcnt(0)")
    A("s_branch K2_LAST")
    A.label("K2_NM2")
    ST.stamp()
    G = Gaps(qk_mfmas(1) + pv_mfmas(1))
    G.put(0, "s_barrier", "mem")
    for f in range(8): G.put(1 + f, I(vread(f, 1), "v1"))
    G.put(15, WL("v1"), "end")
    chk_put(G, 0, "K2_RARE_M", True, 30, 31)
    G.put(31, WV("*"), "end")
    print("NM2 cap", fit(G, 0, sm_stream(0, 0), 30))
    resolve(G.items(), A)
    A.label("K2_LAST")
    PP = [I("s_barrier"), I(f"v_xor_b32 v{V_VADDR}, 0x8000, v{V_VADDR}")]
    PP += [I(vread(f, 0), "v2") for f in range(8)]
    if FUSE:
        PP += [I(f"v_mov_b32 v242, 0x5a17"), I(f"v_min_u32 v243, 1, v{V_LANE16}"), I("v_lshlrev_b32 v243, 30, v243"), I(f"s_add_u32 s{sT0}, s3, {FL_J2}"),
               I(f"buffer_store_dword v242, v243, s[{S_WS}:{S_WS+3}], s{sT0} offen sc1", "fl")]
    for f in range(8):
        for e in range(2):
            if not FUSE: PP.append(I(f"ds_read_b64_tr_b16 {ar(AQ+4*f+2*e,2)}, v{V_J2+1} offset:{e*4096+f*64}", "j2r"))
    sm = sm_stream(1, 1)
    PP += [I(x) for x in sm[:20]] + [WL("v2")]
    G = Gaps(pv_mfmas(0))
    for f in range(8): G.put(2 * f + 1, I(vread(f, 1), "v3"))
    if not FUSE: G.put(1, WL("j2r"), "end")
    for f in range(8):
        if FUSE: break
        G.put(2 * f + 2 if f < 7 else 15, I(f"buffer_store_dwordx4 {ar(AQ+4*f,4)}, v{V_LANE16}, s[{S_WS}:{S_WS+3}], s28 offen offset:{(f&1)*1024} {CST}", "j2s"), "mem")
        if f & 1 and f < 7: G.put(2 * f + 2, "s_add_u32 s28, s28, s29", "end")
    chk_put(G, 1, "K2_RARE_L", False, 15, 15)
    G.put(15, WL("v3"), "end")
    print("LAST cap", fit(G, 0, sm[20:], 15))
    PP += G.items()
    PP += stamp_item()
    G = Gaps(pv_mfmas(1, qmajor=True))
    addr = [f"s_lshl_b32 s{sT0}, s{sW}, 14", f"v_add_u32 v{XM+6}, s{sT0}, v{V_LANE16}", f"v_xor_b32 v{XM+7}, 0x8000, v{XM+6}",
            f"v_add_u32 v{XM+8}, s35, v{V_LANE16}", f"v_xor_b32 v{XM+9}, 0x4000, v{XM+8}"]
    G.put(0, "s_nop 1", "oth")
    g = G.stream(0, lsum_save() + addr + ctx_addr()); assert g <= 6, g
    G.put(7, I(f"ds_write_b64 v{XM+8}, v[{XM}:{XM+1}]", "xw"), "mem")
    for g in range(5, 10): G.put(g, "s_nop 1", "end")
    for i in range(12):
        G.put(10 + i // 2, I(f"ds_write_b128 v{XM+6}, {ar(AO+64+4*i,4)} offset:{i*1024}", "xw"), "mem")
    PP += G.items()
    for i in range(12, 16):
        PP.append(I(f"ds_write_b128 v{XM+6}, {ar(AO+64+4*i,4)} offset:{i*1024}", "xw"))
    PP += [WL("xw"), I("s_barrier"), I(f"ds_read_b64 v[{XM+4}:{XM+5}], v{XM+9}", "ml")]
    for i in range(16):
        PP.append(I(f"ds_read_b128 v[{PO+4*i}:{PO+4*i+3}], v{XM+7} offset:{i*1024}", f"x{i//2}"))
    PP += stamp_item()
    if FUSE:
        PP += [I("v_lshlrev_b32 v240, 7, v0"), I(f"s_mov_b32 s{sT0}, {WS_FLAG+FL_J2}"), I(f"buffer_load_dword v241, v240, s[{S_WS}:{S_WS+3}], s{sT0} offen sc1", "jp")]
    PP.append(WL("ml"))
    PP += [I(x) for x in factors()]
    for fi in range(8):
        c = combine(fi, VP + 8 * (fi % 2))
        PP += [I(x) for x in c[:8]] + [WL(f"x{fi}")] + [x if isinstance(x, Item) else I(x) for x in c[8:]]
    vmE, lgE = resolve(PP, A)
    ST.stamp()
    if FUSE:
        if STAMPS:
            vmE = vmE + ["stamp"] * ST.flush(4, f"s{sW}", 12)
        tailfn(A, vmE)
    else:
        if STAMPS: A("s_waitcnt vmcnt(0)")
        ST.stamp()
        ST.flush(4, f"s{sW}", 12)
    A("K2_END:")
    A("s_endpgm")
    if CPF:
        A(f"""
        K2_CPFS:
        s_getpc_b64 s[52:53]
        s_sub_u32 s52, s52, .-K2_X
        s_subb_u32 s53, s53, 0
        s_mul_i32 s54, s{sBLK}, K2_NM2-K2_X
        s_add_u32 s52, s52, s54
        s_addc_u32 s53, s53, 0
        v_lshlrev_b32 v240, 5, v0
        v_add_u32 v240, v240, v0
        v_lshlrev_b32 v240, 0, v240
        v_and_b32 v240, 0xffffffe0, v240
        global_load_dword v242, v240, s[52:53]
        s_branch K2_CPFS_ret
        """)
    for lab, par, hn in rare_sites:
        gen_rare(A, lab, par, hn)
```

```python
from asmlib import *
from sched import *
import os, struct, math
LOG2E = 0x3fb8aa3b
QSCALE = struct.unpack('<I', struct.pack('<f', math.log2(math.e) / math.sqrt(128.0)))[0]
def E(k, d): return int(os.environ.get(k, str(d)))
def lines(s): return [I(x.strip()) for x in s.strip().split("\n") if x.strip()]
def flat(L):
    o = []
    for x in L: o += x if isinstance(x, list) else [x]
    return [y if isinstance(y, Item) else I(y) for y in o]

def gen_ka():
    STF = os.environ.get("KA_ST", "sc1")
    PFN = os.environ.get("KA_PFNT", "nt")
    A = Asm()
    name = "k1a_kernel"
    A.lines.append(kernel_header(name))
    A("s_getpc_b64 s[64:65]")
    A("s_cmp_ge_u32 s2, 256")
    A("s_cbranch_scc1 KA_END")
    ST = Stamper(A, 0)
    ST.stamp()
    VOT, VOK, VT, VWK = 4, 12, 16, 20
    VOV, VWV = 4, 8
    WF, ACA, ACB = 32, 64, 192
    S_T, S_WK, S_WV, S_WS, S_X, S_C, S_D, S_M = 12, 16, 20, 24, 28, 32, 36, 60
    sW, sHD, sMT, sXC, sJ = 40, 41, 42, 43, 44
    sM0T, sM0W, sT0, sT1, sKV = 45, 46, 47, 48, 49
    sA, sB, sC_, sD, sE, sF = 50, 51, 52, 53, 54, 55
    WSR = f"s[{S_WS}:{S_WS+3}]"
    A(f"""
    s_load_dwordx8 s[4:11], s[0:1], 0
    s_load_dwordx2 s[{S_WV}:{S_WV+1}], s[0:1], {KA['wuv']}
    s_load_dwordx2 s[{S_WS}:{S_WS+1}], s[0:1], {KA['ws']}
    s_load_dwordx4 s[{S_C}:{S_C+3}], s[0:1], {KA['c']}
    s_load_dwordx2 s[{S_D}:{S_D+1}], s[0:1], {KA['dbg']}
    v_lshrrev_b32 v3, 6, v0
    v_and_b32 v2, 63, v0
    v_readfirstlane_b32 s{sW}, v3
    v_lshlrev_b32 v1, 4, v2
    s_and_b32 s{sXC}, s2, 7
    s_lshr_b32 s{sJ}, s2, 3
    s_and_b32 s{sHD}, s{sJ}, 3
    s_lshl_b32 s{sT0}, s{sXC}, 2
    s_add_u32 s{sHD}, s{sHD}, s{sT0}
    s_lshr_b32 s{sMT}, s{sJ}, 2
    v_lshrrev_b32 v24, 3, v2
    v_lshrrev_b32 v25, 4, v2
    v_and_b32 v27, 7, v2
    v_xor_b32 v27, v27, v25
    v_lshlrev_b32 v27, 4, v27
    v_lshl_add_u32 v27, v24, 10, v27
    s_lshl_b32 s{sT0}, s{sW}, 16
    v_add_u32 v27, s{sT0}, v27
    """)
    for i in range(8):
        A(f"v_add_u32 v{VOT+i}, {8*i*1024-(i%4)*1024}, v27")
        if i % 2: A(f"v_xor_b32 v{VOT+i}, 64, v{VOT+i}")
    A(f"""
    v_and_b32 v27, 15, v2
    v_lshlrev_b32 v24, 2, v25
    v_xor_b32 v27, v27, v24
    v_lshlrev_b32 v27, 4, v27
    v_lshl_add_u32 v27, v25, 13, v27
    s_lshl_b32 s{sT0}, s{sW}, 17
    v_add_u32 v27, s{sT0}, v27
    """)
    for i in range(4):
        A(f"v_add_u32 v{VOK+i}, {4*i*8192-i*1024}, v27")
    A(f"""
    s_lshl_b32 s{sM0W}, s{sW}, 12
    s_lshl_b32 s{sM0T}, s{sW}, 14
    s_add_u32 s{sM0T}, s{sM0T}, 98304
    v_lshlrev_b32 v28, 7, v2
    v_lshlrev_b32 v29, 13, v2
    s_waitcnt lgkmcnt(0)
    s_lshl_b32 s{sT0}, s{sMT}, 18
    s_add_u32 s{S_T}, s6, s{sT0}
    s_addc_u32 s{S_T+1}, s7, 0
    s_mov_b32 s{S_T+2}, 0x40000
    s_mov_b32 s{S_T+3}, 0x00020000
    s_lshl_b32 s{sKV}, s{sHD}, 8
    s_add_u32 s{S_WK}, s10, s{sKV}
    s_addc_u32 s{S_WK+1}, s11, 0
    s_mov_b32 s{S_WK+2}, {511*8192+256}
    s_mov_b32 s{S_WK+3}, 0x00020000
    """)
    PF1 = f"""
    s_cmp_eq_u32 s{sW}, 0
    s_cbranch_scc1 KA_PF0
    s_cmp_eq_u32 s{sW}, 3
    s_cbranch_scc0 KA_PF1
    s_and_b32 s{sT1}, s{sJ}, 7
    s_lshl_b32 s{sT1}, s{sT1}, 12
    v_lshrrev_b32 v28, 1, v28
    v_add_u32 v28, s{sT1}, v28
    global_load_dword v26, v28, s[64:65]
    s_branch KA_PFD
    KA_PF0:
    s_lshl_b32 s{sT1}, s{sHD}, 13
    buffer_load_dword v26, v28, s[{S_T}:{S_T+3}], s{sT1} offen
    s_branch KA_PFD
    KA_PF1:
    s_lshl_b32 s{sT1}, s{sMT}, 19
    s_lshl_b32 s{sA}, s{sW}, 7
    s_add_u32 s{sT1}, s{sT1}, s{sA}
    s_sub_u32 s{sT1}, s{sT1}, 128
    buffer_load_dword v26, v29, s[{S_WK}:{S_WK+3}], s{sT1} offen {PFN}
    KA_PFD:
    """
    WSLOT = {0: 0, 1: 1, 2: 2, 3: 3, 4: 4, 5: 5, 6: 0, 7: 1, 8: 2, 9: 3, 10: 4, 11: 5, 12: 6, 13: 7, 14: 0, 15: 1}
    def wdma(u):
        if u < 8:
            pre = [f"s_add_u32 m0, s{sM0W}, {WSLOT[u]*16384}", f"s_mov_b32 s{sT0}, {u*64*8192}"]
            return pre, [I(f"buffer_load_dwordx4 v{VOK+i}, s[{S_WK}:{S_WK+3}], s{sT0} offen offset:{i*1024} lds", f"W{u}") for i in range(4)]
        c = (u - 8) // 4
        pre = [f"s_add_u32 m0, s{sM0W}, {WSLOT[u]*16384}", f"s_mov_b32 s{sT0}, {(u%4)*128*8192+c*128}"]
        return pre, [I(f"buffer_load_dwordx4 v{VOV+i}, s[{S_WV}:{S_WV+3}], s{sT0} offen offset:{i*1024} lds", f"W{u}") for i in range(4)]
    def tdma(s, grp):
        pre = [f"s_add_u32 m0, s{sM0T}, {(s%2)*8192+grp*4096}", f"s_mov_b32 s{sT0}, {s*128}"]
        return pre, [I(f"buffer_load_dwordx4 v{VOT+i}, s[{S_T}:{S_T+3}], s{sT0} offen offset:{(i%4)*1024} lds", f"T{s}") for i in range(4 * grp, 4 * grp + 4)]
    def seq(g):
        pre, d = g
        return [I(x) for x in pre] + d
    PFFIRST = E("KA_PFF", 0)
    vm0 = []
    if PFFIRST:
        A(PF1); vm0.append("pf")
    for it in seq(wdma(0)) + seq(tdma(0, 0)) + seq(tdma(0, 1)):
        A(it.s)
        if it.tag: vm0.append(it.tag)
    if not PFFIRST:
        A(PF1); vm0.append("pf")
    P = lines(f"""
    s_add_u32 s{S_WV}, s{S_WV}, s{sKV}
    s_addc_u32 s{S_WV+1}, s{S_WV+1}, 0
    s_mov_b32 s{S_WV+2}, {511*8192+256}
    s_mov_b32 s{S_WV+3}, 0x00020000
    s_mov_b32 s{S_WS+2}, {WS_END}
    s_mov_b32 s{S_WS+3}, 0x00020000
    s_mov_b32 s{S_X}, s4
    s_mov_b32 s{S_X+1}, s5
    s_mov_b32 s{S_X+2}, 0x200000
    s_mov_b32 s{S_X+3}, 0x00020000
    v_and_b32 v24, 31, v2
    v_lshrrev_b32 v25, 5, v2
    v_bfe_u32 v27, v2, 1, 3
    v_lshlrev_b32 v24, 7, v24
    v_add_u32 v24, s{sM0T}, v24
    """)
    for ks in range(4):
        P += [I(f"v_add_u32 v30, {2*ks}, v25"), I(f"v_xor_b32 v30, v30, v27"), I(f"v_lshl_add_u32 v{VT+ks}, v30, 4, v24")]
    P += lines(f"""
    v_bfe_u32 v24, v2, 2, 2
    v_lshl_add_u32 v27, v25, 3, v24
    v_lshlrev_b32 v27, 8, v27
    v_bfe_u32 v30, v2, 4, 1
    v_lshl_add_u32 v27, v30, 5, v27
    v_and_b32 v30, 3, v2
    v_lshl_add_u32 v27, v30, 3, v27
    """)
    for nt in range(4):
        P += [I(f"v_xor_b32 v30, {nt}, v24"), I(f"v_lshl_add_u32 v{VWK+nt}, v30, 6, v27")]
    P += lines(f"""
    s_lshl_b32 s{sKV}, s{sHD}, 19
    s_lshl_b32 s{sT1}, s{sMT}, 16
    s_add_u32 s{sKV}, s{sKV}, s{sT1}
    s_lshl_b32 s{sT1}, s{sW}, 14
    s_add_u32 s{sKV}, s{sKV}, s{sT1}
    """)
    if E("KA_T1P", 0):
        P += seq(tdma(1, 0)) + seq(tdma(1, 1))
    def treads(s):
        return [I(f"ds_read_b128 {ar(((4*s+k)*2+q)*4,4)}, v{VT+k} offset:{(s%2)*8192+q*4096}", f"t{s}") for k in range(4) for q in range(2)]
    def kreads(ks):
        u, st = ks // 4, ks & 1
        sl = WSLOT[u]
        return [I(f"ds_read_b64_tr_b16 v[{WF+16*st+4*nt+2*e}:{WF+16*st+4*nt+2*e+1}], v{VWK+nt} offset:{(sl%4)*16384+(ks%4)*4096+e*1024}", f"k{ks}")
                for nt in range(4) for e in range(2)]
    def stamp_item():
        if not STAMPS: return []
        b = ST.base + 2 * ST.n; ST.n += 1
        return [I(f"s_memtime s[{b}:{b+1}]")]
    P += stamp_item()
    P += [WV("W0", "T0"), I("s_barrier")] + stamp_item()
    P += kreads(0)[:4] + treads(0)[:2] + kreads(0)[4:] + treads(0)[2:] + [WL("k0", "t0")]
    mf = []
    for ks in range(32):
        for nt in range(4):
            for q in range(2):
                acc = vr(ACA + 64 * (nt // 2) + 16 * (2 * q + nt % 2), 16)
                mf.append(mfma(acc, vr(WF + 16 * (ks & 1) + 4 * nt, 4), ar((ks * 2 + q) * 4, 4), acc if ks else "0"))
    vf = [(0, ks, nt) for ks in range(32) for nt in range(2)]
    if E("KA_SPLIT", 1): vf += [(1, ks, nt) for nt in range(2) for ks in range(32)]
    else: vf += [(1, ks, nt) for ks in range(32) for nt in range(2)]
    ACV = {0: ACB, 1: ACA}
    for n, (c, ks, nt) in enumerate(vf):
        for q in range(2):
            acc = vr(ACV[c] + 16 * (2 * q + nt), 16)
            mf.append(mfma(acc, ar((ks * 2 + q) * 4, 4), vr(WF + 4 * (n % 8), 4), acc if ks else "0"))
    def vreads(n):
        c, ks, nt = vf[n]
        u = 8 + 4 * c + ks // 8
        sl = WSLOT[u]
        b = WF + 4 * (n % 8)
        return [I(f"ds_read_b64_tr_b16 v[{b+2*e}:{b+2*e+1}], v{VWV+2*(sl//4)+nt} offset:{(sl%4)*16384+(ks%8)*2048+e*512}", f"v{n}") for e in range(2)]
    G = Gaps(mf)
    BG = {}
    for ks in range(32):
        g0 = 8 * ks
        if ks + 1 < 32:
            if (ks + 1) % 4 == 0:
                u = (ks + 1) // 4
                G.put(g0, "s_barrier", "mem"); BG[u] = g0
                if u in (4, 6):
                    G.put(g0 - 2, [f"v_xor_b32 v{VWK+i}, 0x10000, v{VWK+i}" for i in range(4)], "end")
            rd = kreads(ks + 1)
            for i in range(4): G.put(g0 + i, rd[2 * i:2 * i + 2])
            tags = [f"k{ks+1}"] + ([f"t{(ks+1)//4}"] if (ks + 1) % 4 == 0 else [])
            if (ks + 2) % 4 == 0:
                G.put(g0 + 7, WVL([f"W{(ks+2)//4}"], tags), "end")
            else:
                G.put(g0 + 7, WL(*tags), "end")
    for s in range(1, 8):
        g0 = 8 * (4 * s - 2) + 4
        G.put(g0 - 1, WV(f"T{s}"), "end")
        rd = treads(s)
        for i in range(4): G.put(g0 + i, rd[2 * i:2 * i + 2])
    seen = set()
    for n in range(128):
        g = 256 + 2 * (n - 4)
        c, ks, nt = vf[n]
        u = 8 + 4 * c + ks // 8
        if u not in seen:
            seen.add(u)
            if u > 8: G.put(g - 1, WV(f"W{u}"), "end")
            G.put(g, "s_barrier", "mem"); BG[u] = g
        rd = vreads(n)
        G.put(g, rd[0]); G.put(g + 1, rd[1])
        if n % 2 == 0: G.put(256 + 2 * n - 1, WL(f"v{n+1}"), "end")
    print("KA barriers", BG)
    busy = set()
    def put_dma(g0, grp, step=1):
        pre, d = grp
        G.put(g0 - 1, pre, "end")
        for i, x in enumerate(d): G.put(g0 + i * step, x, "mem")
        for g in range(g0, g0 + (len(d) - 1) * step + 1):
            assert g not in busy, g
            busy.add(g)
        return g0 + len(d) * step
    S1 = E("KA_S1", 2)
    g = 1
    if not E("KA_T1P", 0):
        g = put_dma(g, tdma(1, 0)); g = put_dma(g, tdma(1, 1))
    g = put_dma(g, wdma(1))
    for s in range(2, 8):
        g = max(g, 32 * (s - 2))
        g = put_dma(g, tdma(s, 0), S1); g = put_dma(g, tdma(s, 1), S1)
        if s >= 6: g = max(g, BG[s - 4] + 1)
        g = put_dma(g, wdma(s), S1)
    gA = g
    print("KA phase A loads end", gA)
    L = [f"v_lshrrev_b32 v24, 3, v2", f"v_and_b32 v25, 7, v2", f"v_bfe_u32 v27, v2, 4, 1", f"v_lshlrev_b32 v27, 2, v27", f"v_xor_b32 v25, v25, v27",
         f"v_lshlrev_b32 v25, 4, v25", f"v_lshl_add_u32 v25, v24, 13, v25", f"s_lshl_b32 s{sE}, s{sW}, 18", f"v_add_u32 v25, s{sE}, v25"]
    L += [f"v_add_u32 v{VOV+i}, {8*i*8192-i*1024}, v25" for i in range(4)]
    L += [f"v_bfe_u32 v24, v2, 2, 2", f"v_lshrrev_b32 v25, 5, v2", f"v_lshl_add_u32 v25, v25, 3, v24", f"v_lshlrev_b32 v25, 7, v25",
          f"v_bfe_u32 v27, v2, 4, 1", f"v_lshl_add_u32 v25, v27, 5, v25", f"v_and_b32 v27, 3, v2", f"v_lshl_add_u32 v25, v27, 3, v25",
          f"v_lshrrev_b32 v24, 1, v24", f"v_lshl_add_u32 v{VWV}, v24, 6, v25", f"v_xor_b32 v{VWV+1}, 64, v{VWV}",
          f"v_add_u32 v{VWV+2}, 0x10000, v{VWV}", f"v_add_u32 v{VWV+3}, 0x10000, v{VWV+1}"]
    g = G.stream(gA - 4 * S1, L)
    GW8 = max(E("KA_GW8", 216), g + 2, gA)
    S2 = E("KA_S2", 3)
    g = GW8
    free_after = {8: BG[4], 9: BG[5], 10: BG[6], 11: BG[7], 12: BG[8], 13: BG[8], 14: BG[8], 15: BG[9]}
    for u in range(8, 16):
        if u == 12: g = max(g, E("KA_GW12", 0))
        g = max(g, free_after[u] + 2)
        g = put_dma(g, wdma(u), S2)
        assert g - S2 < BG[u] - 1, (u, g)
    print("KA W loads end", g)
    gW = g
    L = [f"s_lshl_b32 s{sD}, s{sMT}, 19", f"s_lshl_b32 s{sF}, s{sW}, 7", f"s_add_u32 s{sD}, s{sD}, s{sF}",
         [f"s_cmp_lt_u32 s{sW}, 2", f"s_cselect_b32 s{sD}, s{sD}, 0x80000000"],
         f"s_mov_b32 s{S_M}, s{S_C+2}", f"s_mov_b32 s{S_M+1}, s{S_C+3}", f"s_mov_b32 s{S_M+2}, {512*6144}", f"s_mov_b32 s{S_M+3}, 0x00020000",
         f"s_mov_b32 s{S_C+2}, 1024", f"s_mov_b32 s{S_C+3}, 0x00020000",
         f"v_subrev_u32 v28, 128, v0", f"v_and_b32 v30, 7, v28", f"v_lshrrev_b32 v28, 3, v28", f"v_mul_u32_u24 v28, 6144, v28",
         f"v_lshl_add_u32 v28, v30, 7, v28", [f"v_cmp_lt_u32 vcc, 5, v30", f"v_mov_b32 v30, 0x40000000", "s_nop 0", f"v_cndmask_b32 v28, v28, v30, vcc"],
         f"s_mul_i32 s{sC_}, s{sJ}, {16*6144}", f"s_mul_i32 s{sA}, s{sXC}, 768", f"s_add_u32 s{sC_}, s{sC_}, s{sA}",
         [f"s_cmp_ge_u32 s{sW}, 2", f"s_cselect_b32 s{sC_}, s{sC_}, 0x80000000"], f"v_and_b32 v28, 0x4fffffff, v28",
         f"s_lshl_b32 s{sB}, s{sJ}, 5", f"s_add_u32 s{sA}, s{sA}, s{sB}",
         [f"s_cmp_lt_u32 s{sJ}, 24", f"s_cselect_b32 s{sA}, s{sA}, 0x40000000"], f"s_mov_b32 s{sB}, s{sA}",
         f"v_lshrrev_b32 v30, 1, v0", f"v_and_b32 v3, 1, v0", f"v_mul_u32_u24 v31, 6144, v30", f"v_lshl_add_u32 v31, v3, 4, v31", f"v_lshlrev_b32 v30, 1, v30"]
    g = G.stream(2, L)
    GPV, GPM = E("KA_GPV", 122), E("KA_GPM", 123)
    assert min(GPV, GPM) > g
    G.put(GPV, I(f"buffer_load_dword v26, v29, s[{S_WV}:{S_WV+3}], s{sD} offen", "pf"), "mem")
    G.put(GPM, I(f"buffer_load_dword v26, v28, s[{S_M}:{S_M+3}], s{sC_} offen {PFN}", "pf"), "mem")
    def frag_store(a0, off):
        L = [f"v_cvt_pk_bf16_f32 v{a0+i}, v{a0+2*i}, v{a0+2*i+1}" for i in range(4)]
        L.append(f"s_add_u32 s{sT1}, s{sKV}, {off & ~4095}")
        L.append(I(f"buffer_store_dwordx4 v[{a0}:{a0+3}], v1, {WSR}, s{sT1} offen offset:{off & 4095} {STF}", "st"))
        return L
    kst = [frag_store(ACA + 64 * (dt // 2) + 16 * (2 * q + dt % 2) + 8 * j, WS_KF + q * 8192 + (2 * dt + j) * 1024)
           for dt in (2, 3, 0, 1) for q in range(2) for j in range(2)]
    def vst(c, nts):
        return [frag_store(ACV[c] + 16 * (2 * q + nt) + 8 * j, WS_VF + q * 8192 + (4 * j + 2 * c + nt) * 1024) for nt in nts for q in range(2) for j in range(2)]
    KS = E("KA_KS", 7)
    for n, L in enumerate(kst):
        g = G.stream(262 + KS * n, L)
        if n == 7: gK1 = g
    assert g < 382, g
    VS = E("KA_VS", 8)
    for n, L in enumerate(vst(0, (0, 1))): g = G.stream(390 + VS * n, L)
    tail = vst(1, (0, 1))
    if E("KA_SPLIT", 1):
        for n, L in enumerate(tail[:4]): g = G.stream(max(g + 2, 456 + VS * n), L)
        tail = tail[4:]
    J = 128
    JA = E("KA_JA", 1)
    if JA:
        W4, C4, AC, TL = ACB, ACB + 16, 12, [24, 25, 27, 28]
        GJ1 = E("KA_GJ1", gA + 4)
    else:
        W4, C4, AC, TL = J, J + 16, J + 20, [J + 28, J + 29, J + 30, J + 31]
        GJ1 = max(E("KA_GJ1", 0), gK1 + 2)
    JS = E("KA_JS", 5)
    for i in range(4):
        L = [I(f"buffer_load_dwordx4 v[{W4+4*i}:{W4+4*i+3}], v31, s[{S_M}:{S_M+3}], s{sB} offen", "j1")]
        if i < 3: L.append(f"s_add_u32 s{sB}, s{sB}, {128*6144}")
        g = G.stream(GJ1 + JS * i, L)
    g = G.stream(g + 1, [I(f"buffer_load_ushort v{C4+i}, v30, s[{S_C}:{S_C+3}], 0 offen offset:{256*i}", "j1") for i in range(4)])
    XR = J + 32
    L = [f"s_lshl_b32 s{sD}, s2, 13", f"s_lshl_b32 s{sE}, s{sW}, 11", f"s_add_u32 s{sD}, s{sD}, s{sE}",
         I(f"buffer_load_dwordx4 v[{XR}:{XR+3}], v1, s[{S_X}:{S_X+3}], s{sD} offen", "j3"),
         I(f"buffer_load_dwordx4 v[{XR+4}:{XR+7}], v1, s[{S_X}:{S_X+3}], s{sD} offen offset:1024", "j3")]
    gx = G.stream(max(g + 1, gW, gK1 + 2), L)
    print("J1 loads end", g, "x", gx)
    L = [WV("j1"), f"s_mov_b32 s{sB}, {LOG2E}"]
    for op in ("v_lshlrev_b32 v{c}, 16, v{c}", "v_mul_f32 v{t}, s%d, v{c}" % sB, "v_exp_f32 v{t}, -v{t}", "v_add_f32 v{t}, 1.0, v{t}", "v_rcp_f32 v{t}, v{t}",
               "v_mul_f32 v{c}, v{c}, v{t}", "v_cvt_pk_bf16_f32 v{c}, v{c}, v{c}", "v_lshlrev_b32 v{c}, 16, v{c}"):
        L += [op.format(c=C4 + i, t=TL[i]) for i in range(4)]
    for i in range(4):
        for qd in range(4):
            w = W4 + 4 * i + qd
            op = "v_mul_f32" if i == 0 else "v_fmac_f32"
            L += [f"v_lshlrev_b32 v{TL[0]}, 16, v{w}", f"v_and_b32 v{TL[1]}, 0xffff0000, v{w}", f"{op} v{AC+2*qd}, v{C4+i}, v{TL[0]}", f"{op} v{AC+2*qd+1}, v{C4+i}, v{TL[1]}"]
    L.append("s_nop 1")
    for ror in (8, 4, 2):
        L += [f"v_add_f32_dpp v{AC+e}, v{AC+e}, v{AC+e} row_ror:{ror} row_mask:0xf bank_mask:0xf" for e in range(8)]
    SCR = 131072
    L += [f"v_lshrrev_b32 v30, 4, v0", f"v_lshlrev_b32 v30, 6, v30", f"v_lshl_add_u32 v30, v3, 5, v30", f"v_add_u32 v30, {SCR}, v30",
          I(f"ds_write_b128 v30, v[{AC}:{AC+3}]", "j1w"), I(f"ds_write_b128 v30, v[{AC+4}:{AC+7}] offset:16", "j1w"),
          f"v_and_b32 v30, 15, v2", f"v_lshrrev_b32 v31, 4, v2", f"v_lshlrev_b32 v31, 8, v31", f"v_lshl_add_u32 v31, v30, 2, v31", f"v_add_u32 v31, {SCR}, v31",
          f"v_lshlrev_b32 v30, 2, v30", WL("j1w")]
    g = G.stream(max(g + E("KA_J1D", 16), 217 if JA else 0), L)
    assert not JA or g < 254, g
    gb = min(b for b in BG.values() if b > g)
    print("J1 compute end", g, "barrier", gb)
    L = [I(f"ds_read_b32 v{TL[i]}, v31 offset:{64*i}", "j1r") for i in range(4)]
    L += [f"s_lshl_b32 s{sB}, s{sA}, 1", [f"s_cmp_eq_u32 s{sW}, 0", f"s_cselect_b32 s{sB}, s{sB}, 0x80000000"], WL("j1r"),
          f"v_add_f32 v{TL[0]}, v{TL[0]}, v{TL[1]}", f"v_add_f32 v{TL[2]}, v{TL[2]}, v{TL[3]}", f"v_add_f32 v{TL[0]}, v{TL[0]}, v{TL[2]}"]
    for sw in ("v_permlane16_swap_b32", "v_permlane32_swap_b32"):
        L += [f"v_mov_b32 v{TL[1]}, v{TL[0]}", "s_nop 1", f"{sw} v{TL[0]}, v{TL[1]}", "s_nop 0", f"v_add_f32 v{TL[0]}, v{TL[0]}, v{TL[1]}"]
    L += [f"v_cvt_pk_bf16_f32 v{TL[0]}, v{TL[0]}, v{TL[0]}", f"v_lshlrev_b32 v{TL[0]}, 16, v{TL[0]}",
          I(f"buffer_store_dword v{TL[0]}, v30, {WSR}, s{sB} offen sc1", "j1s"),
          f"s_mov_b32 s{S_D+2}, 256", f"s_mov_b32 s{S_D+3}, 0x00020000",
          [f"s_cmp_lt_u32 s{sB}, 4096", f"s_cselect_b32 s{sC_}, 0, 0x1000"], f"v_lshlrev_b32 v31, 12, v2", f"v_mov_b32 v{TL[2]}, 1"]
    g = G.stream(gb + 1, L)
    gsig = G.stream(g + E("KA_SIGD", 24), [WV("j1s"), I(f"buffer_atomic_add v{TL[2]}, v31, s[{S_D}:{S_D+3}], s{sC_} offen sc1", "j1a")])
    print("J1 store", g, "signal", gsig)
    F, T = J + 40, 16
    L = [WV("j3")]
    for rr in range(2):
        for qd in range(4):
            L += [f"v_lshlrev_b32 v{F+8*rr+2*qd}, 16, v{XR+4*rr+qd}", f"v_and_b32 v{F+8*rr+2*qd+1}, 0xffff0000, v{XR+4*rr+qd}"]
    for rr in range(2): L.append(f"v_add_f32 v{T+rr}, v{F+8*rr}, v{F+8*rr+1}")
    for e in range(2, 8):
        for rr in range(2): L.append(f"v_add_f32 v{T+rr}, v{T+rr}, v{F+8*rr+e}")
    def allred():
        R = ["s_nop 0"]
        for ror in (8, 4, 2, 1):
            R += [f"v_add_f32_dpp v{T+rr}, v{T+rr}, v{T+rr} row_ror:{ror} row_mask:0xf bank_mask:0xf" for rr in range(2)] + ["s_nop 0"]
        for sw in ("v_permlane16_swap_b32", "v_permlane32_swap_b32"):
            R += [f"v_mov_b32 v{T+2}, v{T}", f"v_mov_b32 v{T+3}, v{T+1}", "s_nop 0", f"{sw} v{T}, v{T+2}", f"{sw} v{T+1}, v{T+3}", "s_nop 0",
                  f"v_add_f32 v{T}, v{T}, v{T+2}", f"v_add_f32 v{T+1}, v{T+1}, v{T+3}"]
        return R
    L += allred()
    for rr in range(2): L.append(f"v_mul_f32 v{T+rr}, 0x3b000000, v{T+rr}")
    for rr in range(2):
        for e in range(8): L.append(f"v_sub_f32 v{F+8*rr+e}, v{F+8*rr+e}, v{T+rr}")
    for rr in range(2): L.append(f"v_mul_f32 v{T+rr}, v{F+8*rr}, v{F+8*rr}")
    for e in range(1, 8):
        for rr in range(2): L.append(f"v_fmac_f32 v{T+rr}, v{F+8*rr+e}, v{F+8*rr+e}")
    L += allred()
    L += [f"v_mov_b32 v{T+2}, 0x3727c5ac", f"v_mov_b32 v{T+3}, 0x3727c5ac", f"v_fmac_f32 v{T+2}, 0x3b000000, v{T}", f"v_fmac_f32 v{T+3}, 0x3b000000, v{T+1}",
          f"v_rsq_f32 v{T}, v{T+2}", f"v_rsq_f32 v{T+1}, v{T+3}", "s_nop 0"]
    for rr in range(2): L.append(f"v_mul_f32 v{T+rr}, 0x{QSCALE:x}, v{T+rr}")
    for rr in range(2):
        for e in range(8): L.append(f"v_mul_f32 v{F+8*rr+e}, v{F+8*rr+e}, v{T+rr}")
    L += [f"s_lshl_b32 s{sE}, s2, 3", f"s_lshl_b32 s{sD}, s{sW}, 1", f"s_add_u32 s{sE}, s{sE}, s{sD}", f"s_lshr_b32 s{sD}, s{sE}, 5",
          f"s_lshl_b32 s{sD}, s{sD}, 15", f"s_and_b32 s{sE}, s{sE}, 31", f"s_lshl_b32 s{sE}, s{sE}, 4", f"s_add_u32 s{sE}, s{sE}, s{sD}",
          f"s_add_u32 s{sE}, s{sE}, {WS_H1}", f"v_lshlrev_b32 v21, 9, v2", f"v_lshlrev_b32 v22, 5, v2", f"v_mov_b32 v20, 0"]
    g = G.stream(max(g + 1, gx + E("KA_XD", 60)), L)
    print("LN stats end", g)
    L = [f"s_lshl_b32 s56, s{sHD}, 8", [f"s_add_u32 s{S_M}, s8, s56", f"s_addc_u32 s{S_M+1}, s9, 0"], f"s_mov_b32 s{S_M+2}, {511*8192+256}",
         f"s_lshl_b32 s56, s{sMT}, 19", f"s_lshl_b32 s57, s{sW}, 7", f"s_add_u32 s56, s56, s57",
         [f"s_cmp_lt_u32 s{sW}, 2", f"s_cselect_b32 s56, s56, 0x80000000"],
         I(f"buffer_load_dword v26, v29, s[{S_M}:{S_M+3}], s56 offen", "pf")]
    L += [f"v_mov_b32 v{12+i}, 0" for i in range(4)] + [f"v_lshlrev_b32 v28, 4, v0", f"s_lshl_b32 s56, s2, 12", f"s_add_u32 s56, s56, {WS_FLAG}",
          [f"s_cmp_lt_u32 s2, 32", f"s_cselect_b32 s56, s56, 0x80000000"],
          I(f"buffer_store_dwordx4 v[12:15], v28, {WSR}, s56 offen sc1", "st")]
    G.stream(gx + 1, L)
    gp = max(g + 1, E("KA_POLL", 440))
    G.put(gp, I(f"buffer_load_dword v23, v20, s[{S_D}:{S_D+3}], 0 offen sc1", "pl"), "mem")
    CA, SA = J, J + 8
    L = [[WV("pl"), f"v_readfirstlane_b32 s{sA}, v23"], [f"s_cmp_lg_u32 s{sA}, 64", "s_cbranch_scc1 KA_SPIN", "KA_SPIN_RET:"],
         I(f"buffer_load_dwordx4 v[{SA}:{SA+3}], v22, {WSR}, 0 offen sc1", "md"), I(f"buffer_load_dwordx4 v[{SA+4}:{SA+7}], v22, {WSR}, 0 offen offset:16 sc1", "md"),
         I(f"buffer_load_dwordx4 v[{CA}:{CA+3}], v22, {WSR}, 0 offen offset:2048 sc1", "md"), I(f"buffer_load_dwordx4 v[{CA+4}:{CA+7}], v22, {WSR}, 0 offen offset:2064 sc1", "md")]
    g = G.stream(min(gp + 22, 506), L)
    LN = [WV("md")]
    for op in ("v_add_f32 v{c}, 1.0, v{c}", "v_cvt_pk_bf16_f32 v{c}, v{c}, v{c}", "v_lshlrev_b32 v{c}, 16, v{c}"):
        LN += [op.format(c=CA + e) for e in range(8)]
    LN += [f"v_mul_f32 v{SA+e}, 0x{QSCALE:x}, v{SA+e}" for e in range(8)]
    for rr in range(2):
        LN += [f"v_fma_f32 v{F+8*rr+e}, v{F+8*rr+e}, v{CA+e}, v{SA+e}" for e in range(8)]
    for rr in range(2):
        LN += [f"v_cvt_pk_bf16_f32 v{XR+4*rr+qd}, v{F+8*rr+2*qd}, v{F+8*rr+2*qd+1}" for qd in range(4)]
    LN += [I(f"buffer_store_dwordx4 v[{XR}:{XR+3}], v21, {WSR}, s{sE} offen", "st"), I(f"buffer_store_dwordx4 v[{XR+4}:{XR+7}], v21, {WSR}, s{sE} offen offset:16", "st")]
    inl = g + 24 + 14 < 511
    if inl: G.stream(g + 24, LN)
    items = P + G.items()
    print("KA gaps over cap:", [(g, u) for g, u in enumerate(G.used) if u > 24][:20])
    if STAMPS:
        pos = [i for i, it in enumerate(items) if it.s.startswith("v_mfma")]
        stg = [int(x) for x in os.environ.get("STG", "64,128,192,256,320,384,448,511").split(",")]
        for k in range(len(stg) - 1, -1, -1):
            b = ST.base + 2 * (ST.n + k)
            items.insert(pos[stg[k]], I(f"s_memtime s[{b}:{b+1}]"))
        ST.n += len(stg)
    items += [I("s_nop 7"), I("s_nop 3")]
    for L in tail: items += flat(L)
    if not inl: items += flat(LN)
    resolve(items, A, vm0=vm0)
    ST.stamp()
    if STAMPS: A("s_waitcnt vmcnt(0)")
    ST.stamp()
    ST.flush(4, f"s{sW}", 24)
    A("KA_END:")
    A("s_endpgm")
    A(f"""
    KA_SPIN:
    s_mov_b32 s{sD}, 200000
    KA_SPIN_L:
    s_sleep 8
    buffer_load_dword v23, v20, s[{S_D}:{S_D+3}], 0 offen sc1
    s_waitcnt vmcnt(0)
    v_readfirstlane_b32 s{sA}, v23
    s_cmp_eq_u32 s{sA}, 64
    s_cbranch_scc1 KA_SPIN_RET
    s_sub_u32 s{sD}, s{sD}, 1
    s_cmp_lg_u32 s{sD}, 0
    s_cbranch_scc1 KA_SPIN_L
    s_branch KA_SPIN_RET
    """)
    return name, A.text(), kernel_desc(name, 256, 256), "grid=(256,1,1) block=(256,1,1) lds=163840"
```

```python
from asmlib import *
from sched import *
import os
LOG2E = 0x3fb8aa3b
MAGIC = 0x5a17
def E(k, d): return int(os.environ.get(k, str(d)))
def lines(s):
    return [I(x.strip()) for x in s.strip().split("\n") if x.strip()]
def its(L):
    return [x if isinstance(x, Item) else I(x) for x in L]

def gen_kc(A=None, vmE=None):
    FUSED = A is not None
    name = "kc_kernel"
    if not FUSED:
        A = Asm()
        A.lines.append(kernel_header(name))
        A("s_cmp_ge_u32 s2, 256")
        A("s_cbranch_scc1 KC_END")
    else:
        A("KC_START:")
    ST = Stamper(A, 2 if os.environ.get('NOFUSE') else 1)
    ST.stamp()
    def stamp_item():
        if not STAMPS: return []
        b = ST.base + 2 * ST.n; ST.n += 1
        return [I(f"s_memtime s[{b}:{b+1}]")]
    S_WS, S_X, S_O, S_B = 20, 16, 12, 24
    sW, sRB, sCB, sTS, sNT = 30, 31, 32, 33, 34
    sA, sWo, sT0, sT1, sT2, sM0, sFL = 35, 36, 37, 38, 39, 40, 41
    sW1, sACT, sFW, sL2E, sPT, sKQ, sHU, sNZ = 42, 43, 44, 45, 46, 47, 48, 49
    VA, VW, VM, VRM, VMG, VRR, VCA, VPL, VF0 = 4, 6, 8, 9, 10, 11, 12, 14, 3
    ACC, FR, T = 16, 80, 192
    WS = f"s[{S_WS}:{S_WS+3}]"
    S_F, S_S, sXC = 52, 56, 50
    FAST = os.environ.get("KC_FAST", "bc")
    LOCAL = E("KC_LOCAL", 0)
    def st2(txt, tag, cls):
        if cls not in FAST: return [I(txt.format(srd=WS, fl='sc1'), tag)]
        return [I(txt.format(srd=f's[{S_F}:{S_F+3}]', fl='').rstrip(), tag), I(txt.format(srd=f's[{S_S}:{S_S+3}]', fl='sc1'), tag)]
    MAP = f"""s_bfe_u32 s{sT0}, s2, 0x20001
    s_lshl_b32 s{sT0}, s{sT0}, 2
    s_add_u32 s{sT0}, s{sT0}, s{sT1}
    s_and_b32 s{sT1}, s2, 1""" if not LOCAL else f"""s_and_b32 s{sT0}, s2, 7
    s_lshl_b32 s{sT0}, s{sT0}, 1
    s_lshr_b32 s{sT2}, s{sT1}, 1
    s_add_u32 s{sT0}, s{sT0}, s{sT2}
    s_and_b32 s{sT1}, s{sT1}, 1"""
    A(f"""
    {"" if FUSED else "s_load_dwordx2 s[%d:%d], s[0:1], %d" % (S_WS, S_WS+1, KA['ws'])}
    s_load_dwordx2 s[{S_X}:{S_X+1}], s[0:1], {KA['x']}
    s_load_dwordx2 s[{S_O}:{S_O+1}], s[0:1], {KA['out']}
    s_load_dwordx2 s[{S_B}:{S_B+1}], s[0:1], {KA['b1']}
    v_lshrrev_b32 v3, 6, v0
    v_and_b32 v2, 63, v0
    v_readfirstlane_b32 s{sW}, v3
    v_lshlrev_b32 v1, 4, v2
    s_lshr_b32 s{sT1}, s2, 3
    s_and_b32 s{sCB}, s{sT1}, 7
    s_lshr_b32 s{sT1}, s{sT1}, 3
    {MAP}
    s_lshl_b32 s{sRB}, s{sT0}, 1
    s_add_u32 s{sRB}, s{sRB}, s{sT1}
    s_lshl_b32 s{sKQ}, s{sT1}, 1
    s_and_b32 s{sT1}, s{sCB}, 1
    s_add_u32 s{sKQ}, s{sKQ}, s{sT1}
    s_lshl_b32 s{sA}, s{sT0}, 2
    s_add_u32 s{sA}, s{sA}, s{sW}
    s_lshl_b32 s{sA}, s{sA}, 18
    s_lshl_b32 s{sT1}, s{sKQ}, 16
    s_add_u32 s{sA}, s{sA}, s{sT1}
    s_add_u32 s{sA}, s{sA}, {WS_CTX}
    s_lshl_b32 s{sPT}, s{sT0}, 17
    s_and_b32 s{sWo}, s{sCB}, 6
    s_lshr_b32 s{sT1}, s{sW}, 1
    s_add_u32 s{sWo}, s{sWo}, s{sT1}
    s_lshl_b32 s{sWo}, s{sWo}, 19
    s_lshl_b32 s{sT1}, s{sKQ}, 17
    s_add_u32 s{sWo}, s{sWo}, s{sT1}
    s_and_b32 s{sT1}, s{sW}, 1
    s_lshl_b32 s{sT1}, s{sT1}, 12
    s_add_u32 s{sWo}, s{sWo}, s{sT1}
    s_add_u32 s{sWo}, s{sWo}, {WS_WOF}
    s_lshl_b32 s{sM0}, s{sW}, 12
    s_mov_b32 s{S_WS+2}, {WS_END}
    s_mov_b32 s{S_WS+3}, 0x00020000
    s_waitcnt lgkmcnt(0)
    """)
    def sdma(slot, tag):
        c = [I(f"buffer_load_dwordx4 v1, {WS}, s{sA} offen offset:{i*1024} lds", tag) for i in range(4)]
        w = [I(f"buffer_load_dwordx4 v1, {WS}, s{sWo} offen offset:{i*1024} lds", tag) for i in range(4)]
        return ([f"s_add_u32 m0, s{sM0}, {slot*32768}"], c, [f"s_add_u32 s{sA}, s{sA}, 4096"]), \
               ([f"s_add_u32 m0, s{sM0}, {slot*32768+16384}"], w, [f"s_add_u32 s{sWo}, s{sWo}, 8192"])
    P = []
    nw1 = 0
    def w1load(n):
        nt, ks = n // 32, n % 32
        pre = []
        if n == 32: pre = [I(f"s_sub_u32 s{sW1}, s{sW1}, {15*4096}")]
        elif ks % 2 == 0 and ks: pre = [I(f"s_add_u32 s{sW1}, s{sW1}, 4096")]
        return pre + [I(f"buffer_load_dwordx4 {ar(8*ks+4*nt,4)}, v1, {WS}, s{sW1} offen offset:{(ks%2)*2048+nt*1024}", f"w1_{n}")]
    def more(n):
        nonlocal nw1
        R = []
        for _ in range(n):
            if nw1 < 64:
                R += w1load(nw1); nw1 += 1
        return R
    W1SET = [f"s_lshl_b32 s{sW1}, s{sCB}, 2", f"s_add_u32 s{sW1}, s{sW1}, s{sW}", f"s_lshl_b32 s{sW1}, s{sW1}, 16", f"s_add_u32 s{sW1}, s{sW1}, {WS_W1F}",
             f"s_cmp_eq_u32 s{sCB}, 7", f"s_cselect_b32 s{sW1}, 0x80000000, s{sW1}"]
    NPW = E("KC_NPW", 4) if FUSED else 2
    if not FUSED:
        for st in range(2):
            for pre, d, post in sdma(st, f"S{st}"):
                P += its(pre) + [I("s_nop 0")] + d + its(post)
        P += its(W1SET)
    else:
        P += its(W1SET) + lines(f"""
        s_lshr_b32 s{sT0}, s{sRB}, 1
        s_lshl_b32 s{sT1}, s{sT0}, 12
        s_lshl_b32 s{sT2}, s{sKQ}, 8
        s_add_u32 s{sT1}, s{sT1}, s{sT2}
        s_add_u32 s{sHU}, s{sT1}, {WS_FLAG+FL_CTX}
        s_cmp_lt_u32 s{sT0}, 8
        s_cselect_b32 s{sHU}, s{sHU}, {WS_FLAG+FL_J2}
        v_and_b32 v5, 3, v2
        v_bfe_u32 v6, v2, 2, 1
        v_lshlrev_b32 v5, 10, v5
        v_lshl_add_u32 v5, v6, 7, v5
        s_add_u32 s{sT0}, s3, {FL_CTX}
        """)
        P += [WV("jp")] + lines("""
        v_cmp_ne_u32 vcc, v242, v241
        s_cbranch_vccnz KC_JSPIN
        KC_JSPIN_RET:
        s_barrier
        """)
        for st in range(NPW):
            pre, d, post = sdma(st, f"S{st}")[1]
            P += its(pre) + [I("s_nop 0")] + d + its(post)
            if st == E("KC_FLS", 1):
                P += [WV("cst"), I("s_barrier"), I(f"buffer_store_dword v242, v243, {WS}, s{sT0} offen sc1", "fl")]
        P += more(E("KC_P1", 12))
        P.append(I(f"buffer_load_dword v241, v5, {WS}, s{sHU} offen sc1", "cp"))
        P += more(E("KC_P2", 4))
    P += lines(f"""
    s_getreg_b32 s{sXC}, hwreg(HW_REG_XCC_ID, 0, 4)
    s_add_u32 s{sXC}, s{sXC}, {MAGIC}
    s_lshl_b32 s{sFL}, s{sRB}, 10
    s_add_u32 s{sFL}, s{sFL}, {WS_FLAG}
    s_lshl_b32 s{sFW}, s{sCB}, 7
    s_add_u32 s{sFW}, s{sFW}, s{sFL}
    s_cmp_eq_u32 s{sW}, 0
    s_cselect_b32 s{sFW}, s{sFW}, 0x80000000
    v_mov_b32 v{VMG}, s{sXC}
    v_lshlrev_b32 v{VF0}, 28, v2
    v_lshrrev_b32 v15, 4, v2
    v_lshlrev_b32 v15, 28, v15
    v_or_b32 v{VF0}, v{VF0}, v15
    v_lshrrev_b32 v{VF0}, 1, v{VF0}
    v_and_b32 v{VPL}, 15, v2
    v_lshlrev_b32 v{VPL}, 7, v{VPL}
    s_add_u32 s{sT0}, s{sFW}, 98304
    """)
    P.append(I(f"buffer_store_dword v{VMG}, v{VF0}, {WS}, s{sT0} offen sc1", "xc"))
    if FUSED:
        P += [WV("cp")] + lines("""
        v_cmp_ne_u32 vcc, v242, v241
        s_cbranch_vccnz KC_CSPIN
        KC_CSPIN_RET:
        """) + stamp_item()
        for st in range(2):
            pre, d, post = sdma(st, f"S{st}")[0]
            P += its(pre) + [I("s_nop 0")] + d + its(post)
    P += lines(f"""
    s_lshr_b32 s{sT0}, s{sW}, 1
    s_lshl_b32 s{sT0}, s{sT0}, 13
    v_add_u32 v{VA}, s{sT0}, v1
    v_add_u32 v{VA+1}, 0x10000, v{VA}
    s_and_b32 s{sT0}, s{sW}, 1
    s_lshl_b32 s{sT0}, s{sT0}, 13
    s_add_u32 s{sT0}, s{sT0}, 16384
    v_add_u32 v{VW}, s{sT0}, v1
    v_add_u32 v{VW+1}, 0x10000, v{VW}
    """)
    NS = 4
    def freads(k):
        st, ks = k // 4, k % 4
        slot = st % 4
        b = FR + 16 * (k % NS)
        hi, off = slot // 2, (slot % 2) * 32768
        return [I(f"ds_read_b128 v[{b}:{b+3}], v{VA+hi} offset:{off+ks*1024}", f"f{k}"),
                I(f"ds_read_b128 v[{b+8}:{b+11}], v{VW+hi} offset:{off+ks*2048}", f"f{k}"),
                I(f"ds_read_b128 v[{b+4}:{b+7}], v{VA+hi} offset:{off+4096+ks*1024}", f"f{k}"),
                I(f"ds_read_b128 v[{b+12}:{b+15}], v{VW+hi} offset:{off+ks*2048+1024}", f"f{k}")]
    mf = []
    for k in range(64):
        b = FR + 16 * (k % NS)
        for q, nt in ((0, 0), (1, 0), (0, 1), (1, 1)):
            acc = vr(ACC + 16 * (2 * q + nt), 16)
            mf.append(mfma(acc, vr(b + 8 + 4 * nt, 4), vr(b + 4 * q, 4), acc if k else "0"))
    G = Gaps(mf)
    for k in range(64):
        g0 = 4 * k
        if k + 2 < 64:
            if (k + 2) % 4 == 0: G.put(g0, "s_barrier", "mem")
            for i, r in enumerate(freads(k + 2)): G.put(g0 + i, r)
        if k + 1 < 64:
            if (k + 3) % 4 == 0 and k + 3 < 64:
                G.put(g0 + 3, WVL([f"S{(k+3)//4}"], [f"f{k+1}"]), "end")
            else:
                G.put(g0 + 3, WL(f"f{k+1}"), "end")
    def place(g, grp, step):
        pre, d, post = grp
        G.put(g - 1, pre, "end")
        for i, x in enumerate(d): G.put(g + i * step, x, "mem")
        G.put(g + 3 * step, post, "oth")
    c, w = sdma(2, "S2"); place(1, c, 1)
    if NPW <= 2: place(5, w, 1)
    for st in range(3, 16):
        gb = 4 * (4 * (st - 2) - 2)
        c, w = sdma(st % 4, f"S{st}")
        place(gb + 1, c, 2)
        if st >= NPW: place(gb + 9, w, 2)
    lastdma = 4 * (4 * 13 - 2) + 15
    XR, GA, CB1, SB, B1 = 144, 152, 168, T, T + 16
    B1F = T + 32
    SET = [f"s_mov_b32 s{S_X+2}, 0x200000", f"s_mov_b32 s{S_X+3}, 0x00020000", f"s_mov_b32 s{S_O+2}, 0x200000", f"s_mov_b32 s{S_O+3}, 0x00020000",
           f"s_mov_b32 s{S_B+2}, 3584", f"s_mov_b32 s{S_B+3}, 0x00020000", f"s_mov_b32 s{sL2E}, {LOG2E}",
           f"v_lshrrev_b32 v15, 4, v2", f"v_bfe_u32 v{VCA}, v2, 3, 1", f"v_lshlrev_b32 v{VM}, 6, v15", f"v_lshl_add_u32 v{VM}, v{VCA}, 4, v{VM}",
           f"s_lshl_b32 s{sT0}, s{sW}, 9", f"v_add_u32 v{VM}, s{sT0}, v{VM}",
           f"v_and_b32 v{VCA+1}, 7, v2", f"v_lshrrev_b32 v{VRM}, 1, v{VM}", f"v_lshl_add_u32 v{VRM}, v{VCA+1}, 10, v{VRM}",
           f"s_lshl_b32 s{sT0}, s{sRB}, 3", f"s_add_u32 s{sT0}, s{sT0}, s{sCB}", f"s_lshl_b32 s{sT0}, s{sT0}, 13"]
    for m in range(2):
        for qd in range(2):
            SET.append(I(f"buffer_load_dwordx2 v[{XR+4*m+2*qd}:{XR+4*m+2*qd+1}], v{VRM}, s[{S_X}:{S_X+3}], s{sT0} offen offset:{128*m+16*qd}", "sm"))
    for dst, idx in ((GA, 2), (CB1, 4), (SB, 3)):
        SET.append(f"s_mov_b32 s{sT1}, {idx*2048}")
        for m in range(2):
            for qd in range(2):
                SET.append(I(f"buffer_load_dwordx4 v[{dst+8*m+4*qd}:{dst+8*m+4*qd+3}], v{VM}, {WS}, s{sT1} offen offset:{256*m+32*qd}", "sm"))
    SET += [f"v_lshlrev_b32 v{VCA}, 9, v{VCA}", f"v_lshl_add_u32 v{VCA}, v{VCA+1}, 4, v{VCA}",
            f"v_lshl_add_u32 v{VCA+1}, v15, 10, v{VCA}",
            f"s_lshl_b32 s{sT0}, s{sCB}, 2", f"s_add_u32 s{sT0}, s{sT0}, s{sW}", f"s_lshl_b32 s{sT0}, s{sT0}, 7",
            f"v_lshrrev_b32 v15, 5, v2", f"v_lshlrev_b32 v15, 3, v15"]
    for nt in range(2):
        for i in range(4):
            SET.append(I(f"buffer_load_dwordx2 v[{B1+8*nt+2*i}:{B1+8*nt+2*i+1}], v15, s[{S_B}:{S_B+3}], s{sT0} offen offset:{64*nt+16*i}", "sm"))
    SET += [
            (f"s_and_b32 s{sT2}, s{sFL}, 0xfffffbff" if "a" in FAST else f"s_mov_b32 s{sT2}, s{sFL}"), f"s_add_u32 s{sT2}, s{sT2}, 98304",
            f"v_and_b32 v15, {'0x780' if 'a' in FAST else '0x380'}, v{VPL}",
            I(f"buffer_load_dword v{VRR}, v15, {WS}, s{sT2} offen sc1", "sm"),
            [f"s_cmp_eq_u32 s{sW}, 0", f"s_cselect_b32 s{sFL}, s{sFL}, 0x80000000", f"s_cselect_b32 s{sNZ}, 0, -1"],
            f"v_mov_b32 v{VMG}, {MAGIC}",
            f"s_lshr_b32 s{sT0}, s{sW}, 1", f"s_lshl_b32 s{sTS}, s{sRB}, 1", f"s_add_u32 s{sTS}, s{sTS}, s{sT0}",
            f"s_and_b32 s{sT1}, s{sW}, 1", f"s_lshl_b32 s{sNT}, s{sCB}, 1", f"s_add_u32 s{sNT}, s{sNT}, s{sT1}",
            f"s_lshl_b32 s{sACT}, s{sKQ}, 21", f"s_add_u32 s{sACT}, s{sACT}, s{sPT}", f"s_lshl_b32 s{sT0}, s{sT0}, 16", f"s_add_u32 s{sACT}, s{sACT}, s{sT0}",
            f"s_and_b32 s{sT0}, s{sCB}, 6", f"s_add_u32 s{sT0}, s{sT0}, s{sT1}", f"s_lshl_b32 s{sT0}, s{sT0}, 12", f"s_add_u32 s{sACT}, s{sACT}, s{sT0}",
            f"s_add_u32 s{sACT}, s{sACT}, {WS_PART}",
            f"s_lshr_b32 s{sT0}, s{sCB}, 2", f"s_lshl_b32 s{sT1}, s{sRB}, 1", f"s_add_u32 s{sT0}, s{sT0}, s{sT1}",
            f"s_and_b32 s{sT1}, s{sCB}, 3", f"s_lshl_b32 s{sT1}, s{sT1}, 7",
            f"s_lshl_b32 s{sHU}, s{sT0}, 15", f"s_add_u32 s{sHU}, s{sHU}, s{sT1}", f"s_lshl_b32 s{sT2}, s{sW}, 13", f"s_add_u32 s{sHU}, s{sHU}, s{sT2}"]
    g = G.stream(E("KC_SETG", 120), SET)
    print("KC set end", g)
    X = 184 - 40
    XF = T + 16
    PREP = [WV("sm"), f"v_cmp_eq_u32 vcc, s{sXC}, v{VRR}", f"s_mov_b32 s{S_F}, s{S_WS}", f"s_mov_b32 s{S_F+1}, s{S_WS+1}", f"s_mov_b32 s{S_F+3}, 0x00020000",
            f"s_mov_b32 s{S_S}, s{S_WS}", f"s_mov_b32 s{S_S+1}, s{S_WS+1}", f"s_mov_b32 s{S_S+3}, 0x00020000",
            [f"s_cmp_eq_u32 vcc_lo, -1", f"s_cselect_b32 s{S_F+2}, {WS_END}, 0", f"s_cselect_b32 s{S_S+2}, 0, {WS_END}"]]
    for i in range(16):
        PREP += [f"v_lshlrev_b32 v{B1F+2*i}, 16, v{B1+i}", f"v_and_b32 v{B1F+2*i+1}, 0xffff0000, v{B1+i}"]
    for e in range(32): PREP.append(f"v_mul_f32 v{B1F+e}, s{sL2E}, v{B1F+e}")
    for i in range(8):
        PREP += [f"v_lshlrev_b32 v{XF+2*i}, 16, v{XR+i}", f"v_and_b32 v{XF+2*i+1}, 0xffff0000, v{XR+i}"]
    for e in range(16): PREP.append(f"v_add_f32 v{CB1+e}, 1.0, v{CB1+e}")
    for e in range(16): PREP.append(f"v_cvt_pk_bf16_f32 v{CB1+e}, v{CB1+e}, v{CB1+e}")
    for e in range(16): PREP.append(f"v_lshlrev_b32 v{CB1+e}, 16, v{CB1+e}")
    for e in range(16): PREP.append(f"v_mul_f32 v{SB+e}, s{sL2E}, v{SB+e}")
    g = G.stream(g + 24, PREP)
    print("KC prep end", g)
    gg = lastdma + 3
    while gg < E("KC_W1T", 250) and nw1 < 64:
        w = w1load(nw1); nw1 += 1
        if len(w) > 1: G.put(gg - 1, w[0], "end")
        G.put(gg, w[-1], "mem"); gg += 3
    P += [WV("S0"), I("s_barrier")] + freads(0) + freads(1) + [WL("f0")]
    P += stamp_item()
    P += G.items()
    P += stamp_item()
    if E("KC_XLIN", 0):
        P += lines(f"""
        s_lshl_b32 s{sACT}, s2, 2
        s_add_u32 s{sACT}, s{sACT}, s{sW}
        s_lshl_b32 s{sACT}, s{sACT}, 13
        s_add_u32 s{sACT}, s{sACT}, {WS_PART}
        """)
    if E("KC_XWAIT", 0):
        P += [I("s_sleep 127")] * E("KC_XWAIT", 0) + stamp_item()
    P += [I("s_nop 7"), I(f"s_add_u32 s{sT0}, s{sACT}, {4096 if E('KC_XLIN', 0) else 32768}")]
    for q, nt in ((0, 0), (1, 0), (0, 1), (1, 1)):
        for j in range(2):
            a0 = ACC + 16 * (2 * q + nt) + 8 * j
            for i in range(4): P.append(I(f"v_cvt_pk_bf16_f32 v{a0+i}, v{a0+2*i}, v{a0+2*i+1}"))
            P += st2(f"buffer_store_dwordx4 v[{a0}:{a0+3}], v1, {{srd}}, s{sACT if q == 0 else sT0} offen offset:{(2*nt+j)*1024} {{fl}}", "pst", "a")
    P += stamp_item()
    P += more(E("KC_MA", 10))
    P += [WV("pst"), I("s_barrier")] + st2(f"buffer_store_dword v{VMG}, v{VF0}, {{srd}}, s{sFW} offen {{fl}}", "fl", "a")
    P += stamp_item()
    P += more(E("KC_MB", 16))
    P += [I(f"s_and_b32 s{sT2}, s{sFL}, 0xfffffbff"), I(f"buffer_load_dword v15, v{VPL}, {WS}, s{sT2} offen sc1", "pl")]
    P += more(E("KC_MC", 4))
    P += [WV("pl")] + lines(f"""
    v_cmp_eq_u32 vcc, {MAGIC}, v15
    s_or_b32 s{sT0}, vcc_lo, s{sNZ}
    s_cmp_eq_u32 s{sT0}, -1
    s_cbranch_scc0 KC_PA_SLOW
    KC_PA_OK:
    s_barrier
    """)
    P += stamp_item()
    PR = 80
    for kq in range(4):
        for m in range(2):
            P.append(I(f"s_add_u32 s{sT0}, s{sHU}, {WS_PART+kq*2*MB+m*4096}"))
            d = PR + 8 * kq + 4 * m
            P.append(I(f"buffer_load_dwordx4 v[{d}:{d+3}], v{VCA+1}, {WS}, s{sT0} offen sc1", f"pr{kq}"))
    P += more(E("KC_MD", 6))
    for kq in range(4):
        P.append(WV(f"pr{kq}"))
        dst = ACC if kq == 0 else ACC + 16
        for i in range(8):
            P.append(I(f"v_lshlrev_b32 v{dst+2*i}, 16, v{PR+8*kq+i}"))
            P.append(I(f"v_and_b32 v{dst+2*i+1}, 0xffff0000, v{PR+8*kq+i}"))
        if kq:
            for e in range(16): P.append(I(f"v_add_f32 v{ACC+e}, v{ACC+e}, v{ACC+16+e}"))
    for e in range(16): P.append(I(f"v_fmac_f32 v{XF+e}, v{ACC+e}, v{GA+e}"))
    PK = ACC + 16
    for i in range(8): P.append(I(f"v_cvt_pk_bf16_f32 v{PK+i}, v{XF+2*i}, v{XF+2*i+1}"))
    P.append(I(f"s_add_u32 s{sT0}, s{sHU}, {WS_X2}"))
    P.append(I(f"s_add_u32 s{sT1}, s{sT0}, 4096"))
    P += st2(f"buffer_store_dwordx4 v[{PK}:{PK+3}], v{VCA+1}, {{srd}}, s{sT0} offen {{fl}}", "st1", "b")
    P += st2(f"buffer_store_dwordx4 v[{PK+4}:{PK+7}], v{VCA+1}, {{srd}}, s{sT1} offen {{fl}}", "st1", "b")
    for i in range(8):
        P.append(I(f"v_lshlrev_b32 v{XF+2*i}, 16, v{PK+i}"))
        P.append(I(f"v_and_b32 v{XF+2*i+1}, 0xffff0000, v{PK+i}"))
    Q = ACC + 32
    def red(r, t):
        return lines(f"""
        s_nop 1
        v_add_f32_dpp v{r}, v{r}, v{r} row_ror:8 row_mask:0xf bank_mask:0xf
        v_mov_b32 v{t}, v{r}
        s_nop 1
        v_permlane16_swap_b32 v{r}, v{t}
        s_nop 0
        v_add_f32 v{r}, v{r}, v{t}
        v_mov_b32 v{t}, v{r}
        s_nop 1
        v_permlane32_swap_b32 v{r}, v{t}
        s_nop 0
        v_add_f32 v{r}, v{r}, v{t}
        """)
    P.append(I(f"v_add_f32 v{Q}, v{XF}, v{XF+1}"))
    for e in range(2, 16): P.append(I(f"v_add_f32 v{Q}, v{Q}, v{XF+e}"))
    P += red(Q, Q + 2)
    P.append(I(f"v_mul_f32 v{Q}, 0x3c000000, v{Q}"))
    for e in range(16): P.append(I(f"v_sub_f32 v{Q+8+e}, v{XF+e}, v{Q}"))
    P.append(I(f"v_mul_f32 v{Q+1}, v{Q+8}, v{Q+8}"))
    for e in range(1, 16): P.append(I(f"v_fmac_f32 v{Q+1}, v{Q+8+e}, v{Q+8+e}"))
    P += red(Q + 1, Q + 2)
    P += lines(f"""
    v_and_b32 v15, 7, v2
    v_lshlrev_b32 v15, 5, v15
    v_add_u32 v15, 0x20000, v15
    s_lshl_b32 s{sT0}, s{sW}, 3
    v_add_u32 v{Q+2}, s{sT0}, v15
    """)
    P += [I(f"ds_write_b64 v{Q+2}, v[{Q}:{Q+1}]", "lw"), WL("lw"), I("s_barrier"),
          I(f"ds_read_b128 v[{Q+8}:{Q+11}], v15", "lr"), I(f"ds_read_b128 v[{Q+12}:{Q+15}], v15 offset:16", "lr")]
    P += [I(f"s_mov_b32 s{sT2}, 0x43000000"), WL("lr")]
    R_ = Q + 8
    P += lines(f"""
    v_add_f32 v{Q}, v{R_}, v{R_+2}
    v_add_f32 v{Q+1}, v{R_+4}, v{R_+6}
    v_add_f32 v{Q}, v{Q}, v{Q+1}
    v_mul_f32 v{Q}, 0.25, v{Q}
    v_sub_f32 v{R_}, v{R_}, v{Q}
    v_sub_f32 v{R_+2}, v{R_+2}, v{Q}
    v_sub_f32 v{R_+4}, v{R_+4}, v{Q}
    v_sub_f32 v{R_+6}, v{R_+6}, v{Q}
    v_mul_f32 v{R_}, v{R_}, v{R_}
    v_fmac_f32 v{R_}, v{R_+2}, v{R_+2}
    v_fmac_f32 v{R_}, v{R_+4}, v{R_+4}
    v_fmac_f32 v{R_}, v{R_+6}, v{R_+6}
    v_add_f32 v{R_+1}, v{R_+1}, v{R_+3}
    v_add_f32 v{R_+5}, v{R_+5}, v{R_+7}
    v_add_f32 v{R_+1}, v{R_+1}, v{R_+5}
    v_fma_f32 v{R_}, v{R_}, s{sT2}, v{R_+1}
    v_mov_b32 v{Q+1}, 0x3727c5ac
    v_fmac_f32 v{Q+1}, 0x3b000000, v{R_}
    v_rsq_f32 v{Q+1}, v{Q+1}
    s_add_u32 s{sT0}, s{sHU}, {WS_U}
    v_mul_f32 v{Q+1}, s{sL2E}, v{Q+1}
    s_add_u32 s{sT1}, s{sT0}, 4096
    """.replace("0.25", "0x3e800000"))
    for e in range(16): P.append(I(f"v_sub_f32 v{XF+e}, v{XF+e}, v{Q}"))
    for e in range(16): P.append(I(f"v_mul_f32 v{XF+e}, v{XF+e}, v{Q+1}"))
    for e in range(16): P.append(I(f"v_fma_f32 v{XF+e}, v{XF+e}, v{CB1+e}, v{SB+e}"))
    PH = ACC + 24
    for i in range(8): P.append(I(f"v_cvt_pk_bf16_f32 v{PH+i}, v{XF+2*i}, v{XF+2*i+1}"))
    P += st2(f"buffer_store_dwordx4 v[{PH}:{PH+3}], v{VCA+1}, {{srd}}, s{sT0} offen {{fl}}", "st1", "b")
    P += st2(f"buffer_store_dwordx4 v[{PH+4}:{PH+7}], v{VCA+1}, {{srd}}, s{sT1} offen {{fl}}", "st1", "b")
    i0 = max(i for i, it in enumerate(P) if it.s == "WAITVM" and it.tag == ("pr3",))
    seg = P[i0 + 1:]; P = P[:i0 + 1]
    cnt = 0
    for it in seg:
        P.append(it)
        if it.s.startswith("v_") and not it.s.startswith("v_permlane") and "dpp" not in it.s:
            cnt += 1
            if cnt % E("KC_EV", 16) == 0 and cnt < E("KC_EVM", 180): P += more(1)
    print("w1 at LN end", nw1)
    P += stamp_item()
    P += more(E("KC_ME", 8))
    P += lines(f"""
    s_add_u32 s{sFW}, s{sFW}, 32768
    v_and_b32 v{VPL}, 0x380, v{VPL}
    s_mul_i32 s{sWo}, s{sCB}, {112*2048}
    s_mul_i32 s{sT0}, s{sW}, {28*2048}
    s_add_u32 s{sWo}, s{sWo}, s{sT0}
    s_add_u32 s{sWo}, s{sWo}, {WS_W2F}
    s_and_b32 s{sT1}, s{sW}, 1
    s_lshl_b32 s{sT1}, s{sT1}, 10
    v_add_u32 v{VW}, s{sT1}, v1
    v_xor_b32 v{VW+1}, 0x400, v{VW}
    """)
    P += [WV("st1"), I("s_barrier")] + st2(f"buffer_store_dword v{VMG}, v{VF0}, {{srd}}, s{sFW} offen {{fl}}", "fl", "b")
    P += more(64)
    P += lines(f"""
    s_cmp_eq_u32 s{sCB}, 7
    s_cbranch_scc1 KC_SKIP2
    """)
    resolve(P, A, vm0=vmE)
    def poll(tag, base, cond, sl=None, first=None, bar=True):
        A(f"""
        s_cmp_lg_u32 s{sW}, 0
        s_cbranch_scc1 {tag}_OK
        s_mov_b32 s{sT1}, 100000
        {base}
        {'s_sleep %d' % first if first else ''}
        {tag}_L:
        buffer_load_dword v15, v{VPL}, {WS}, s{sT2} offen sc1
        s_waitcnt vmcnt(0)
        v_cmp_eq_u32 vcc, {MAGIC}, v15
        {cond}
        s_cbranch_scc1 {tag}_OK
        s_sleep {sl or E('KC_PS', 4)}
        s_sub_u32 s{sT1}, s{sT1}, 1
        s_cmp_lg_u32 s{sT1}, 0
        s_cbranch_scc1 {tag}_L
        {tag}_OK:
        """)
        if bar:
            A("s_waitcnt vmcnt(0)")
            A("s_barrier")
    ALL = "s_cmp_eq_u32 vcc_lo, -1"
    poll("KC_PB", f"s_add_u32 s{sT2}, s{sFL}, 32768", ALL, first=E("KC_FB", 4))
    ST.stamp()
    def w2reg(i, nt):
        n = 2 * i + nt
        if n < 20: return vr(144 + 4 * n, 4)
        n -= 20
        return ar(8 * n if n < 32 else 8 * (n - 32) + 4, 4)
    def w2load(n):
        i, nt = n // 2, n % 2
        post = [I(f"s_add_u32 s{sWo}, s{sWo}, 4096")] if n % 4 == 3 else []
        return [I(f"buffer_load_dwordx4 {w2reg(i,nt)}, v{VW+nt}, {WS}, s{sWo} offen offset:{(i%2)*2048}", "w2")] + post
    P = lines(f"""
    s_lshl_b32 s{sT0}, s{sRB}, 16
    s_add_u32 s{sT0}, s{sT0}, s{sM0}
    s_add_u32 s{sT0}, s{sT0}, {WS_U}
    """)
    for g in range(4):
        P.append(I(f"s_add_u32 m0, s{sM0}, {0x10000+g*16384}"))
        P.append(I(f"s_add_u32 s{sT2}, s{sT0}, {g*16384}"))
        for i in range(4):
            P.append(I(f"buffer_load_dwordx4 v1, {WS}, s{sT2} offen offset:{i*1024} sc1 lds", f"u{g}"))
    P += lines(f"""
    v_add_u32 v{VCA}, 0x10000, v1
    s_mul_i32 s{sACT}, s{sRB}, {2*112*1024}
    s_lshl_b32 s{sA}, s{sCB}, 14
    s_add_u32 s{sACT}, s{sACT}, s{sA}
    s_add_u32 s{sACT}, s{sACT}, s{sM0}
    s_add_u32 s{sACT}, s{sACT}, {WS_ACT}
    s_add_u32 s{sA}, s{sACT}, {112*1024}
    """)
    units = [(0, 0), (0, 1), (1, 0), (1, 1)]
    UF, NU, LEAD = 80, 8, 6
    mf = []; seq = []
    for nt, q in units:
        for ks in range(32):
            acc = vr(ACC + 16 * (2 * q + nt), 16)
            n = len(mf)
            mf.append(mfma(acc, ar(8 * ks + 4 * nt, 4), vr(UF + 4 * (n % NU), 4), acc if ks else vr(B1F + 16 * nt, 16)))
            seq.append((q, ks))
    NM = len(mf)
    def uread(n):
        q, ks = seq[n]
        return I(f"ds_read_b128 v[{UF+4*(n%NU)}:{UF+4*(n%NU)+3}], v{VCA} offset:{q*32768+ks*1024}", f"r{n}")
    P += [WV("u0"), I("s_barrier")] + [uread(i) for i in range(LEAD)] + [WL("r1")]
    P += stamp_item()
    G = Gaps(mf)
    for n in range(NM):
        if n + LEAD < NM:
            if n + LEAD == 16:
                G.put(n - 1, WV("u1"), "end"); G.put(n, "s_barrier", "mem")
            if n + LEAD == 32:
                G.put(n - 1, WV("u3"), "end"); G.put(n, "s_barrier", "mem")
            G.put(n, uread(n + LEAD))
        if n % 2 == 1 and n + 1 < NM: G.put(n, WL(f"r{n+2}"), "end")
    MT = 112
    def mish(nt, q):
        L = []
        for j in range(2):
            z = ACC + 16 * (2 * q + nt) + 8 * j
            t = MT + 16 * j
            for e in range(8): L.append(f"v_exp_f32 v{t+e}, v{z+e}")
            for e in range(8): L.append(f"v_fma_f32 v{t+8+e}, v{t+e}, 0.5, 1.0")
            for e in range(8): L.append(f"v_fma_f32 v{t+e}, v{t+e}, v{t+8+e}, 1.0")
            for e in range(8): L.append(f"v_rcp_f32 v{t+e}, v{t+e}")
            for e in range(8): L.append(f"v_fma_f32 v{z+e}, -v{z+e}, v{t+e}, v{z+e}")
            for i in range(4): L.append(f"v_cvt_pk_bf16_f32 v{z+i}, v{z+2*i}, v{z+2*i+1}")
            L += st2(f"buffer_store_dwordx4 v[{z}:{z+3}], v1, {{srd}}, s{sACT if q==0 else sA} offen offset:{(2*nt+j)*1024} {{fl}}", "st2", "c")
        return L
    nw2 = 0
    gg = 2
    while gg < NM and nw2 < 56:
        if nw2 >= 20: gg = max(gg, 34 + (nw2 - 20) if nw2 < 52 else 98 + nw2 - 52)
        w = w2load(nw2)
        G.put(gg, w[0], "mem")
        if len(w) > 1: G.put(gg, w[1], "end")
        nw2 += 1; gg += 2 + (nw2 % 2)
    print("w2 in stream", nw2)
    g = 0
    for ui in range(3):
        g = G.stream(max(g + 1, 32 * (ui + 1) + 5), mish(*units[ui]), cap=(28 if ui == 2 else 24))
        print("   mish end gap", g)
    P += G.items()
    P += stamp_item()
    P += [I("s_nop 7"), I("s_nop 3")] + its(mish(*units[3]))
    P.append(I(f"s_add_u32 s{sFW}, s{sFW}, 32768"))
    while nw2 < 56:
        P += w2load(nw2); nw2 += 1
    P += [WV("st2"), I("s_barrier")] + st2(f"buffer_store_dword v{VMG}, v{VF0}, {{srd}}, s{sFW} offen {{fl}}", "fl", "c")
    resolve(P, A)
    A("s_branch KC_PH3")
    A.label("KC_SKIP2")
    for n in range(56):
        for it in w2load(n): A(it.s)
    SEVEN = f"s_and_b32 s{sT0}, vcc_lo, 0x7f\ns_cmp_eq_u32 s{sT0}, 0x7f"
    poll("KC_PB7", f"s_add_u32 s{sT2}, s{sFL}, 32768", ALL, sl=16, bar=False)
    poll("KC_PC7", f"s_add_u32 s{sT2}, s{sFL}, 65536", f"s_and_b32 s{sT0}, vcc_lo, 0x7f", sl=16)
    A.label("KC_PH3")
    X2R, X, GA, T = 224, 80, 232, 248
    A(f"""
    s_mul_i32 s{sT0}, s{sTS}, {112*1024}
    s_mul_i32 s{sT1}, s{sW}, {28*1024}
    s_add_u32 s{sT0}, s{sT0}, s{sT1}
    v_add_u32 v{VA}, s{sT0}, v1
    s_xor_b32 s{sT0}, s{sTS}, 1
    s_mul_i32 s{sT0}, s{sT0}, {112*1024}
    s_add_u32 s{sT0}, s{sT0}, s{sT1}
    v_add_u32 v{VA+1}, s{sT0}, v1
    s_mov_b32 s{sA}, {WS_ACT}
    v_lshrrev_b32 v15, 5, v2
    s_lshl_b32 s{sT0}, s{sNT}, 7
    v_lshlrev_b32 v{VM}, 4, v15
    v_add_u32 v{VM}, s{sT0}, v{VM}
    s_mov_b32 s{sT1}, {5*2048}
    buffer_load_dwordx4 v[{GA}:{GA+3}], v{VM}, {WS}, s{sT1} offen
    buffer_load_dwordx4 v[{GA+4}:{GA+7}], v{VM}, {WS}, s{sT1} offen offset:32
    buffer_load_dwordx4 v[{GA+8}:{GA+11}], v{VM}, {WS}, s{sT1} offen offset:64
    buffer_load_dwordx4 v[{GA+12}:{GA+15}], v{VM}, {WS}, s{sT1} offen offset:96
    s_lshl_b32 s{sT0}, s{sTS}, 15
    s_lshl_b32 s{sT1}, s{sNT}, 11
    s_add_u32 s{sT1}, s{sT1}, s{sT0}
    s_add_u32 s{sT1}, s{sT1}, {WS_X2}
    buffer_load_dwordx4 v[{X2R}:{X2R+3}], v1, {WS}, s{sT1} offen sc1
    buffer_load_dwordx4 v[{X2R+4}:{X2R+7}], v1, {WS}, s{sT1} offen offset:1024 sc1
    s_lshl_b32 s{sT1}, s{sNT}, 6
    s_add_u32 s{sT1}, s{sT1}, s{sT0}
    v_and_b32 v{VRM}, 31, v2
    v_lshlrev_b32 v{VRM}, 10, v{VRM}
    v_lshl_add_u32 v{VRM}, v15, 4, v{VRM}
    v_add_u32 v{VRM}, s{sT1}, v{VRM}
    s_mul_i32 s{sT0}, s{sW}, 12288
    v_add_u32 v{VRR}, s{sT0}, v1
    """)
    for sp in (1, 2, 3):
        A(f"""
        s_xor_b32 s{sT0}, s{sW}, {sp}
        s_mul_i32 s{sT0}, s{sT0}, 12288
        v_add_u32 v{T+sp}, s{sT0}, v1
        """)
    poll("KC_PC", f"s_add_u32 s{sT2}, s{sFL}, 65536", SEVEN, first=E("KC_FC", 2))
    ST.stamp()
    D3, RING = 8, 80
    def aload(i):
        b = RING + 8 * (i % D3)
        post = [I(f"s_add_u32 s{sA}, s{sA}, 4096")] if i % 4 == 3 else []
        return [I(f"buffer_load_dwordx4 v[{b+4*q}:{b+4*q+3}], v{VA+q}, {WS}, s{sA} offen offset:{(i%4)*1024} sc1", f"a{i}") for q in range(2)] + post
    P = []
    for i in range(5): P += aload(i)
    for e in range(16): P.append(I(f"v_mul_f32 v{GA+e}, 0x3f317218, v{GA+e}"))
    mf = []
    for i in range(28):
        b = RING + 8 * (i % D3)
        for q, nt in ((1, 1), (1, 0), (0, 1), (0, 0)):
            acc = vr(ACC + 16 * (2 * q + nt), 16)
            mf.append(mfma(acc, w2reg(i, nt), vr(b + 4 * q, 4), acc if i else "0"))
    G = Gaps(mf)
    na = 5
    for i in range(28):
        todo = 2 if i < 2 else 1
        for t_ in range(todo):
            if na < 28:
                al = aload(na); na += 1
                G.put(4 * i + 2 * t_, al[0], "mem"); G.put(4 * i + 2 * t_ + 1, al[1], "mem")
                if len(al) > 2: G.put(4 * i + 2 * t_ + 1, al[2], "end")
        if i + 1 < 28: G.put(4 * i + 3, WV(f"a{i+1}"), "end")
    P += [WV("a0")] + G.items()
    P += stamp_item()
    P += [I("s_nop 7"), I("s_nop 1")]
    for sp in (3, 2, 1):
        for i in range(4):
            P.append(I(f"ds_write_b128 v{T+sp}, v[{ACC+16*sp+4*i}:{ACC+16*sp+4*i+3}] offset:{(sp-1)*4096+i*1024}", "rw"))
    for i in range(8):
        P.append(I(f"v_lshlrev_b32 v{X+2*i}, 16, v{X2R+i}"))
        P.append(I(f"v_and_b32 v{X+2*i+1}, 0xffff0000, v{X2R+i}"))
    P += [WL("rw"), I("s_barrier")]
    for sp in (1, 2, 3):
        for i in range(4):
            P.append(I(f"ds_read_b128 v[{ACC+16*sp+4*i}:{ACC+16*sp+4*i+3}], v{VRR} offset:{(sp-1)*4096+i*1024}", f"rr{sp}"))
    for sp in (1, 2, 3):
        P.append(WL(f"rr{sp}"))
        for e in range(16): P.append(I(f"v_add_f32 v{ACC+e}, v{ACC+e}, v{ACC+16*sp+e}"))
    for e in range(16): P.append(I(f"v_fmac_f32 v{X+e}, v{ACC+e}, v{GA+e}"))
    for i in range(8): P.append(I(f"v_cvt_pk_bf16_f32 v{PK+i}, v{X+2*i}, v{X+2*i+1}"))
    P.append(I("s_nop 0"))
    for k in range(2):
        P.append(I(f"v_permlane32_swap_b32 v{PK+4*k}, v{PK+4*k+2}"))
        P.append(I(f"v_permlane32_swap_b32 v{PK+4*k+1}, v{PK+4*k+3}"))
        P.append(I(f"buffer_store_dwordx4 v[{PK+4*k}:{PK+4*k+3}], v{VRM}, s[{S_O}:{S_O+3}], 0 offen offset:{32*k}", "o"))
    resolve(P, A)
    if STAMPS: A("s_waitcnt vmcnt(0)")
    ST.stamp()
    ST.flush(4, f"s{sW}", 4)
    A("KC_END:")
    A("s_endpgm")
    A("KC_PA_SLOW:")
    poll("KC_PAS", f"s_and_b32 s{sT2}, s{sFL}, 0xfffffbff", ALL, bar=False, first=E('KC_PS', 4))
    A("s_branch KC_PA_OK")
    if FUSED:
        for tag, va, so in (("KC_JSPIN", "v240", f"s_mov_b32 s{sT1}, {WS_FLAG+FL_J2}"), ("KC_CSPIN", "v5", f"s_mov_b32 s{sT1}, s{sHU}")):
            A(f"""
            {tag}:
            s_mov_b32 s{sT2}, 200000
            {so}
            {tag}_L:
            s_sleep 4
            buffer_load_dword v241, {va}, {WS}, s{sT1} offen sc1
            s_waitcnt vmcnt(0)
            v_cmp_ne_u32 vcc, v242, v241
            s_cbranch_vccz {tag}_RET
            s_sub_u32 s{sT2}, s{sT2}, 1
            s_cmp_lg_u32 s{sT2}, 0
            s_cbranch_scc1 {tag}_L
            s_branch {tag}_RET
            """)
        return
    A.lines.append("  .fill 5000, 4, 0xbf800000")
    A("s_endpgm")
    return name, A.text(), kernel_desc(name, 256, 256), f"grid=(256,1,1) block=(256,1,1) lds={131072+2048}"
```

```python
import sys, os
from asmlib import *

HEADER = open("adaLN_cond__compressed_kv_cla__dense_activation_mish__prompt.s.ref").read().split("; Override launch")[0]

def build(kernels, path):
    out = HEADER
    for name, body, desc, launch in kernels:
        if len(kernels) == 1 and name.startswith("adaLN"): out += f"; @launch {launch}\n"
        else: out += f"; @launch kernel={name} {launch}\n"
    out += '.amdgcn_target "amdgcn-amd-amdhsa--gfx950"\n.text\n'
    for name, body, desc, launch in kernels:
        out += body
    out += '.section .rodata,"a"\n'
    for name, body, desc, launch in kernels:
        out += desc
    open(path, "w").write(out)

if __name__ == "__main__":
    import k2
    if not os.environ.get("KA3"):
        import ka
    else:
        import ka3 as ka
    if os.environ.get("KCOLD"):
        import kc
    else:
        import kc2 as kc
    if os.environ.get('NOFUSE'):
        ks = [ka.gen_ka(), k2.gen_k2(), kc.gen_kc()]
    else:
        import front
        if os.environ.get('NOFUSE2'):
            ks = [front.gen_front(), kc.gen_kc()]
        else:
            ks = [front.gen_front(tailfn=kc.gen_kc, name=('adaLN_cond__compressed_kv_cla__dense_activation_mish__prompt_kernel' if os.environ.get('CANON') else 'kf_kernel'))]
    path = sys.argv[1] if len(sys.argv) > 1 else "adaLN_cond__compressed_kv_cla__dense_activation_mish__prompt.s"
    build(ks, path)
    print("wrote", path)
```

```python
from asmlib import *
from sched import *
import k2
import os, struct, math
LOG2E = 0x3fb8aa3b
QSCALE = k2.QSCALE
MAGIC = 0x5a17
def E(k, d): return int(os.environ.get(k, str(d)))
def lines(s): return [I(x.strip()) for x in s.strip().split("\n") if x.strip()]
def sl(s): return [x.strip() for x in s.strip().split("\n") if x.strip()]

def gen_front(tailfn=None, name="kf_kernel"):
    k2.rare_sites.clear()
    STF = os.environ.get("KA_ST", "sc1")
    PFN = os.environ.get("KA_PFNT", "nt")
    A = Asm()
    A.lines.append(kernel_header(name))
    A("s_getpc_b64 s[64:65]")
    A("s_cmp_ge_u32 s2, 256")
    A("s_cbranch_scc1 K2_END")
    ST = Stamper(A, 0)
    ST.stamp()
    VOT, VOW, VT, VW, VWH = 4, 12, 16, 20, 30
    WF, ACC, J = 32, 64, 192
    S_T, S_WK, S_WS, S_WV, S_X, S_M, S_C, S_D = 12, 16, 20, 24, 36, 40, 56, 60
    S_WQ = 24
    sW, sR, sP_, sHD, sMT = k2.sW, k2.sR, k2.sP_, k2.sHD, k2.sPR
    sXC, sJ, sT0, sT1, sM0T, sM0W, sKV = 44, 45, 46, 47, 49, 50, 51
    sA, sB, sC_, sD, sE, sF = 52, 53, 54, 55, 48, 3
    WSR = f"s[{S_WS}:{S_WS+3}]"
    A(f"""
    s_load_dwordx16 s[36:51], s[0:1], 0
    s_load_dwordx8 s[52:59], s[0:1], 64
    s_load_dwordx2 s[{S_D}:{S_D+1}], s[0:1], {KA['dbg']}
    s_load_dwordx2 s[{S_WS}:{S_WS+1}], s[0:1], {KA['ws']}
    v_lshrrev_b32 v3, 6, v0
    v_and_b32 v2, 63, v0
    v_readfirstlane_b32 s{sW}, v3
    v_lshlrev_b32 v1, 4, v2
    s_and_b32 s4, s2, 7
    s_lshr_b32 s5, s2, 3
    s_and_b32 s{sHD}, s5, 3
    s_lshl_b32 s4, s4, 2
    s_add_u32 s{sHD}, s{sHD}, s4
    s_lshr_b32 s{sMT}, s5, 2
    s_and_b32 s{sR}, s{sW}, 1
    s_lshr_b32 s{sP_}, s{sW}, 1
    v_lshrrev_b32 v22, 3, v2
    v_lshrrev_b32 v23, 4, v2
    v_and_b32 v24, 7, v2
    v_xor_b32 v25, v24, v23
    v_lshlrev_b32 v25, 4, v25
    v_lshl_add_u32 v25, v22, 10, v25
    s_lshl_b32 s4, s{sW}, 16
    v_add_u32 v25, s4, v25
    """)
    for i in range(8):
        A(f"v_add_u32 v{VOT+i}, {8*i*1024-(i%4)*1024}, v25")
        if i % 2: A(f"v_xor_b32 v{VOT+i}, 64, v{VOT+i}")
    A(f"""
    v_and_b32 v23, 1, v23
    v_lshlrev_b32 v23, 2, v23
    v_xor_b32 v25, v24, v23
    v_lshlrev_b32 v25, 4, v25
    v_lshl_add_u32 v25, v22, 13, v25
    s_lshl_b32 s4, s{sW}, 18
    v_add_u32 v25, s4, v25
    """)
    for i in range(4):
        A(f"v_add_u32 v{VOW+i}, {8*i*8192-i*1024}, v25")
    A(f"""
    v_lshlrev_b32 v22, 7, v2
    v_lshlrev_b32 v28, 13, v2
    s_lshl_b32 s4, s{sMT}, 18
    s_lshl_b32 s6, s{sHD}, 8
    s_mov_b32 s{S_T+2}, 0x40000
    s_mov_b32 s{S_T+3}, 0x00020000
    s_mov_b32 s{S_WK+2}, {511*8192+256}
    s_mov_b32 s{S_WK+3}, 0x00020000
    s_waitcnt lgkmcnt(0)
    s_add_u32 s{S_T}, s38, s4
    s_addc_u32 s{S_T+1}, s39, 0
    s_add_u32 s{S_WK}, s42, s6
    s_addc_u32 s{S_WK+1}, s43, 0
    s_cmp_eq_u32 s{sW}, 0
    s_cbranch_scc1 KA_PF0
    s_cmp_eq_u32 s{sW}, 3
    s_cbranch_scc0 KA_PF1
    s_and_b32 s7, s5, 7
    s_lshl_b32 s7, s7, 12
    v_lshrrev_b32 v22, 1, v22
    v_add_u32 v22, s7, v22
    global_load_dword v26, v22, s[64:65]
    s_branch KA_PFD
    KA_PF0:
    s_lshl_b32 s7, s{sHD}, 13
    buffer_load_dword v26, v22, s[{S_T}:{S_T+3}], s7 offen
    s_branch KA_PFD
    KA_PF1:
    s_lshl_b32 s7, s{sMT}, 19
    s_lshl_b32 s4, s{sW}, 7
    s_add_u32 s7, s7, s4
    s_sub_u32 s7, s7, 128
    buffer_load_dword v26, v28, s[{S_WK}:{S_WK+3}], s7 offen {PFN}
    KA_PFD:
    s_add_u32 s{S_WV}, s44, s6
    s_addc_u32 s{S_WV+1}, s45, 0
    s_add_u32 s8, s40, s6
    s_addc_u32 s9, s41, 0
    s_mov_b32 s4, s46
    s_mov_b32 s5, s47
    s_mov_b32 s62, s50
    s_mov_b32 s63, s51
    s_lshl_b32 s{sM0W}, s{sW}, 12
    s_lshl_b32 s{sM0T}, s{sW}, 14
    s_add_u32 s{sM0T}, s{sM0T}, 98304
    """)
    WSLOT = {0: 0, 1: 1, 2: 2, 3: 3, 4: 4, 5: 5, 6: 0, 7: 1, 8: 6, 9: 7, 10: 4, 11: 5, 12: 2, 13: 3, 14: 0, 15: 1}
    def wdma(u):
        c = u // 4
        srdr = S_WK if c < 2 else S_WV
        pre = [f"s_add_u32 m0, s{sM0W}, {WSLOT[u]*16384}", f"s_mov_b32 s{sT0}, {(u%4)*128*8192+(c&1)*128}"]
        return pre, [I(f"buffer_load_dwordx4 v{VOW+i}, s[{srdr}:{srdr+3}], s{sT0} offen offset:{i*1024} lds", f"W{u}") for i in range(4)]
    def tdma(s, grp):
        pre = [f"s_add_u32 m0, s{sM0T}, {(s%2)*8192+grp*4096}", f"s_mov_b32 s{sT0}, {s*128}"]
        return pre, [I(f"buffer_load_dwordx4 v{VOT+i}, s[{S_T}:{S_T+3}], s{sT0} offen offset:{(i%4)*1024} lds", f"T{s}") for i in range(4 * grp, 4 * grp + 4)]
    def seq(g):
        pre, d = g
        return [I(x) for x in pre] + d
    P = seq(wdma(0)) + seq(tdma(0, 0)) + seq(tdma(0, 1))
    P += lines(f"""
    s_lshl_b32 s48, s2, 2
    s_add_u32 s48, s48, s{sW}
    s_mov_b32 s6, {4096*1024}
    s_mov_b32 s7, 0x00020000
    s_cmp_ge_u32 s48, 736
    s_cselect_b32 s4, s54, s4
    s_cselect_b32 s5, s55, s5
    s_cselect_b32 s6, {1792*1024}, s6
    s_cselect_b32 s40, 736, 0
    s_cselect_b32 s28, {WS_W2F - WS_WOF}, 0
    s_mov_b32 s29, {256*2048}
    s_cselect_b32 s29, {112*2048}, s29
    s_sub_u32 s40, s48, s40
    s_lshr_b32 s41, s40, 1
    s_and_b32 s42, s40, 1
    s_mov_b32 s11, 1024
    s_sub_u32 s40, s48, 512
    s_mul_i32 s43, s40, 9363
    s_lshr_b32 s43, s43, 16
    s_mul_i32 s52, s43, 7
    s_sub_u32 s52, s40, s52
    s_cmp_lt_u32 s40, 224
    s_cselect_b32 s41, s43, s41
    s_cselect_b32 s42, s52, s42
    s_cselect_b32 s11, 3584, s11
    s_cselect_b32 s29, {32*2048}, s29
    s_cselect_b32 s28, {WS_W1F - WS_WOF}, s28
    s_cselect_b32 s4, s62, s4
    s_cselect_b32 s5, s63, s5
    s_cselect_b32 s6, {512*3584}, s6
    s_mul_i32 s10, s41, s11
    s_lshl_b32 s10, s10, 4
    s_lshl_b32 s43, s42, 9
    s_add_u32 s10, s10, s43
    s_mul_i32 s43, s42, s29
    s_lshl_b32 s43, s43, 2
    s_add_u32 s28, s28, s43
    s_lshl_b32 s43, s41, 11
    s_add_u32 s28, s28, s43
    s_add_u32 s28, s28, {WS_WOF}
    s_cmp_ge_u32 s48, 960
    s_cselect_b32 s28, 0x80000000, s28
    s_lshl_b32 s35, s{sW}, 13
    s_add_u32 s35, s35, 0x20000
    s_mov_b32 s{S_M}, s58
    s_mov_b32 s{S_M+1}, s59
    s_mov_b32 s{S_M+2}, {512*6144}
    s_mov_b32 s{S_M+3}, 0x00020000
    s_mov_b32 s{S_C+2}, 1024
    s_mov_b32 s{S_C+3}, 0x00020000
    s_mov_b32 s{S_X+2}, 0x200000
    s_mov_b32 s{S_X+3}, 0x00020000
    s_mov_b32 s{S_D+2}, 256
    s_mov_b32 s{S_D+3}, 0x00020000
    s_mov_b32 s{S_WV+2}, {511*8192+256}
    s_mov_b32 s{S_WV+3}, 0x00020000
    s_mov_b32 s{S_WS+2}, {WS_END}
    s_mov_b32 s{S_WS+3}, 0x00020000
    s_and_b32 s{sXC}, s2, 7
    s_lshr_b32 s{sJ}, s2, 3
    v_and_b32 v22, 31, v2
    v_lshrrev_b32 v23, 5, v2
    v_bfe_u32 v24, v2, 1, 3
    v_lshlrev_b32 v25, 7, v22
    v_add_u32 v25, s{sM0T}, v25
    """)
    for ks in range(4):
        P += [I(f"v_add_u32 v27, {2*ks}, v23"), I(f"v_xor_b32 v27, v27, v24"), I(f"v_lshl_add_u32 v{VT+ks}, v27, 4, v25")]
    P += lines(f"""
    v_bfe_u32 v22, v2, 2, 2
    v_lshl_add_u32 v25, v23, 3, v22
    v_lshlrev_b32 v25, 7, v25
    v_bfe_u32 v24, v2, 4, 1
    v_lshl_add_u32 v25, v24, 5, v25
    v_and_b32 v24, 3, v2
    v_lshl_add_u32 v25, v24, 3, v25
    v_lshrrev_b32 v22, 1, v22
    v_lshl_add_u32 v{VW}, v22, 6, v25
    v_xor_b32 v{VW+1}, 64, v{VW}
    v_add_u32 v{VWH}, 0x10000, v{VW}
    v_add_u32 v{VWH+1}, 0x10000, v{VW+1}
    s_lshl_b32 s{sKV}, s{sHD}, 19
    s_lshl_b32 s{sT1}, s{sMT}, 16
    s_add_u32 s{sKV}, s{sKV}, s{sT1}
    s_lshl_b32 s{sT1}, s{sW}, 14
    s_add_u32 s{sKV}, s{sKV}, s{sT1}
    v_lshrrev_b32 v22, 1, v0
    v_and_b32 v23, 1, v0
    v_mul_u32_u24 v24, 6144, v22
    v_lshl_add_u32 v24, v23, 4, v24
    s_mul_i32 s{sD}, s{sXC}, 768
    s_lshl_b32 s{sB}, s{sJ}, 5
    s_add_u32 s{sA}, s{sD}, s{sB}
    s_cmp_lt_u32 s{sJ}, 24
    s_cselect_b32 s{sA}, s{sA}, 0x40000000
    v_lshlrev_b32 v22, 1, v22
    s_mov_b32 s{sB}, s{sA}
    v_subrev_u32 v29, 128, v0
    v_and_b32 v25, 7, v29
    v_lshrrev_b32 v29, 3, v29
    v_mul_u32_u24 v29, 6144, v29
    v_lshl_add_u32 v29, v25, 7, v29
    v_cmp_lt_u32 vcc, 5, v25
    v_mov_b32 v25, 0x40000000
    s_mul_i32 s{sC_}, s{sJ}, {16*6144}
    v_cndmask_b32 v29, v29, v25, vcc
    s_add_u32 s{sC_}, s{sC_}, s{sD}
    s_cmp_ge_u32 s{sW}, 2
    s_cselect_b32 s{sC_}, s{sC_}, 0x80000000
    v_and_b32 v29, 0x4fffffff, v29
    """)
    P.append(I(f"buffer_load_dword v26, v29, s[{S_M}:{S_M+3}], s{sC_} offen {PFN}", "pf"))
    P += lines(f"""
    s_lshl_b32 s{sF}, s2, 7
    s_add_u32 s{sF}, s{sF}, {WS_FLAG}
    s_cmp_eq_u32 s{sW}, 0
    s_cselect_b32 s{sF}, s{sF}, 0x80000000
    """)
    P += seq(tdma(1, 0)) + seq(tdma(1, 1))
    def treads(s):
        return [I(f"ds_read_b128 {ar(((4*s+k)*2+q)*4,4)}, v{VT+k} offset:{(s%2)*8192+q*4096}", f"t{s}") for k in range(4) for q in range(2)]
    def wreads(gk):
        u, ksl, st = gk // 8, gk % 8, gk & 3
        s_ = WSLOT[u]
        base = VW if s_ < 4 else VWH
        return [I(f"ds_read_b64_tr_b16 v[{WF+8*st+4*nt+2*e}:{WF+8*st+4*nt+2*e+1}], v{base+nt} offset:{(s_%4)*16384+ksl*2048+e*512}", f"w{gk}")
                for nt in range(2) for e in range(2)]
    def stamp_item():
        if not STAMPS: return []
        b = ST.base + 2 * ST.n; ST.n += 1
        return [I(f"s_memtime s[{b}:{b+1}]")]
    P += [WV("W0", "T0"), I("s_barrier")] + stamp_item()
    P += wreads(0) + treads(0) + wreads(1) + [WL("w0", "t0")]
    mf = []
    for c in range(4):
        for ks in range(32):
            for nt in range(2):
                for q in range(2):
                    acc = vr(ACC + 64 * (c & 1) + 16 * (2 * q + nt), 16)
                    wf = vr(WF + 8 * (ks & 3) + 4 * nt, 4)
                    tk = ar((ks * 2 + q) * 4, 4)
                    cc = acc if ks else "0"
                    mf.append(mfma(acc, wf, tk, cc) if c < 2 else mfma(acc, tk, wf, cc))
    qa = lambda q: 64 if q == 0 else 192
    for ks in range(32):
        for dt in range(4):
            for q in range(2):
                acc = vr(qa(q) + 16 * dt, 16)
                mf.append(mfma(acc, vr(WF + 16 * (ks & 1) + 4 * dt, 4), ar(8 * ks + 4 * q, 4), acc if ks else "0"))
    G = Gaps(mf)
    busy = set()
    def put_dma(g0, grp, step=1):
        pre, d = grp
        G.put(g0 - 1, pre, "end")
        for i, x in enumerate(d): G.put(g0 + i * step, x, "mem")
        for g in range(g0, g0 + (len(d) - 1) * step + 1):
            assert g not in busy, g
            busy.add(g)
        return g0 + len(d) * step
    def BG(u): return 4 * (8 * u - 2)
    bars = []
    for gk in range(128):
        g0 = 4 * gk
        if gk + 2 < 128:
            if (gk + 2) % 8 == 0:
                G.put(g0, "s_barrier", "mem"); bars.append(g0)
            for i, r in enumerate(wreads(gk + 2)): G.put(g0 + i, r)
        if gk + 1 < 128:
            tags = [f"w{gk+1}"]
            if gk + 1 < 32 and (gk + 1) % 4 == 0: tags.append(f"t{(gk+1)//4}")
            if (gk + 3) % 8 == 0 and gk + 3 < 128: G.put(g0 + 3, WVL([f"W{(gk+3)//8}"], tags), "end")
            else: G.put(g0 + 3, WL(*tags), "end")
    for s in range(1, 8):
        g0 = 4 * (4 * s - 2)
        G.put(g0 - 1, WV(f"T{s}"), "end")
        rd = treads(s)
        for i in range(4): G.put(g0 + i, rd[2 * i:2 * i + 2])
    put_dma(1, wdma(1))
    put_dma(5, tdma(2, 0)); put_dma(9, tdma(2, 1))
    put_dma(16, tdma(3, 0)); put_dma(20, tdma(3, 1))
    put_dma(24, wdma(2))
    put_dma(32, tdma(4, 0)); put_dma(36, tdma(4, 1))
    put_dma(48, tdma(5, 0)); put_dma(52, tdma(5, 1))
    put_dma(56, wdma(3))
    put_dma(64, tdma(6, 0)); put_dma(68, tdma(6, 1))
    put_dma(80, tdma(7, 0)); put_dma(84, tdma(7, 1))
    GW6 = E("KA_GW6", 150)
    put_dma(90, wdma(4), 2); put_dma(98, wdma(5), 2); put_dma(GW6, wdma(6), 3); put_dma(GW6 + 12, wdma(7), 3)
    g = E("KA_GW8", 188)
    fa = {8: BG(4), 9: BG(4), 10: BG(6), 11: BG(7), 12: BG(4), 13: BG(5), 14: BG(8), 15: BG(9)}
    for u in range(8, 16):
        g = put_dma(max(g, fa[u] + 2), wdma(u), 3)
    gW = g
    def QG(ks): return 512 + 8 * ks
    VQR, VOQ, VH = 16, 12, 13
    def qreads(ks):
        return [I(f"ds_read_b64_tr_b16 v[{WF+16*(ks&1)+4*nt+2*e}:{WF+16*(ks&1)+4*nt+2*e+1}], v{VQR+nt} offset:{(ks%8)*4096+e*1024}", f"qw{ks}")
                for nt in range(4) for e in range(2)]
    for ks in range(32):
        g0 = QG(ks) - 8
        if ks % 8 == 0:
            G.put(g0 - 1, WV(f"Q{ks//8}"), "end"); G.put(g0, "s_barrier", "mem"); bars.append(g0)
            if ks: G.put(g0 - 2, [f"v_subrev_u32 v{VQR+i}, 0x8000, v{VQR+i}" for i in range(4)], "end")
        rd = qreads(ks)
        for i in range(4): G.put(g0 + i, rd[2 * i:2 * i + 2])
        G.put(g0 + 7, WVL([f"h{ks}"], [f"qw{ks}"]), "end")
    G.put(QG(31), "s_barrier", "mem")
    L = [f"s_lshl_b32 s{sE}, s{sMT}, 19", f"s_lshl_b32 s{sD}, s{sW}, 7", f"s_add_u32 s{sE}, s{sE}, s{sD}",
         [f"s_cmp_lt_u32 s{sW}, 2", f"s_cselect_b32 s{sE}, s{sE}, 0x80000000"]]
    G.stream(40, L)
    GB2 = E("KA_B2", 108)
    G.put(GB2, I(f"buffer_load_dword v26, v28, s[{S_WV}:{S_WV+3}], s{sE} offen", "pf"), "mem")
    L = [f"v_lshrrev_b32 v27, 2, v2", f"v_lshlrev_b32 v27, 15, v27", f"v_and_b32 v3, 3, v2", f"v_lshl_add_u32 v27, v3, 7, v27",
         [f"v_cmp_lt_u32 vcc, 35, v2", f"v_mov_b32 v3, 0", "s_nop 0", f"v_cndmask_b32 v27, v27, v25, vcc"],
         f"s_lshl_b32 s{sC_}, s{sA}, 4", f"s_add_u32 s{sC_}, s{sC_}, {WS_FLAG}",
         [f"s_cmp_lt_u32 s{sA}, 2048", f"s_cselect_b32 s{sC_}, s{sC_}, 0x80000000", f"s_cmp_eq_u32 s{sW}, 0", f"s_cselect_b32 s{sC_}, s{sC_}, 0x80000000"],
         I(f"buffer_store_dword v3, v27, {WSR}, s{sC_} offen sc1", "zf"),
         f"v_lshlrev_b32 v27, 12, v0", f"v_mov_b32 v29, 1"]
    G.stream(E("KA_ZF", 30), L)
    def epi(c):
        R = []
        base = WS_KF if c < 2 else WS_VF
        for q in range(2):
            for nt in range(2):
                for j in range(2):
                    dt = 2 * (c & 1) + nt
                    fi = (2 * dt + j) if c < 2 else (4 * j + dt)
                    off = q * 8192 + fi * 1024
                    a0 = ACC + 64 * (c & 1) + 16 * (2 * q + nt) + 8 * j
                    L = [f"v_cvt_pk_bf16_f32 v{a0+i}, v{a0+2*i}, v{a0+2*i+1}" for i in range(4)]
                    L.append(f"s_add_u32 s{sT1}, s{sKV}, {base + (off & ~4095)}")
                    L.append(I(f"buffer_store_dwordx4 v[{a0}:{a0+3}], v1, {WSR}, s{sT1} offen offset:{off & 4095} {STF}", "st" if c < 3 else "stl"))
                    R.append(L)
        return R
    ES = E("KA_ES", 12)
    for c in range(4):
        for n, L in enumerate(epi(c)):
            gl = G.stream(128 * (c + 1) + 6 + (ES if c < 3 else E("KA_ES3", 8)) * n, L)
    W4, C4, AC, T1 = J, J + 16, J + 20, J + 28
    for i in range(4):
        L = [I(f"buffer_load_dwordx4 v[{W4+4*i}:{W4+4*i+3}], v24, s[{S_M}:{S_M+3}], s{sB} offen", "j1")]
        if i < 3: L.append(f"s_add_u32 s{sB}, s{sB}, {128*6144}")
        g = G.stream(E("KA_GJ1", 4) + 8 * i, L)
    g = G.stream(g + 1, [I(f"buffer_load_ushort v{C4+i}, v22, s[{S_C}:{S_C+3}], 0 offen offset:{256*i}", "j1") for i in range(4)])
    L = [WV("j1"), f"s_mov_b32 s{sB}, {LOG2E}"]
    for op in ("v_lshlrev_b32 v{c}, 16, v{c}", "v_mul_f32 v{t}, s%d, v{c}" % sB, "v_exp_f32 v{t}, -v{t}", "v_add_f32 v{t}, 1.0, v{t}", "v_rcp_f32 v{t}, v{t}",
               "v_mul_f32 v{c}, v{c}, v{t}", "v_cvt_pk_bf16_f32 v{c}, v{c}, v{c}", "v_lshlrev_b32 v{c}, 16, v{c}"):
        L += [op.format(c=C4 + i, t=T1 + i) for i in range(4)]
    for i in range(4):
        for qd in range(4):
            w = W4 + 4 * i + qd
            op = "v_mul_f32" if i == 0 else "v_fmac_f32"
            L += [f"v_lshlrev_b32 v{T1}, 16, v{w}", f"v_and_b32 v{T1+1}, 0xffff0000, v{w}", f"{op} v{AC+2*qd}, v{C4+i}, v{T1}", f"{op} v{AC+2*qd+1}, v{C4+i}, v{T1+1}"]
    L.append("s_nop 1")
    for ror in (8, 4, 2):
        L += [f"v_add_f32_dpp v{AC+e}, v{AC+e}, v{AC+e} row_ror:{ror} row_mask:0xf bank_mask:0xf" for e in range(8)]
    L += [f"v_lshrrev_b32 v22, 4, v0", f"v_lshlrev_b32 v22, 6, v22", f"v_lshl_add_u32 v22, v23, 5, v22",
          I(f"ds_write_b128 v22, v[{AC}:{AC+3}]", "j1w"), I(f"ds_write_b128 v22, v[{AC+4}:{AC+7}] offset:16", "j1w"),
          f"v_and_b32 v22, 15, v2", f"v_lshrrev_b32 v23, 4, v2", f"v_lshlrev_b32 v23, 8, v23", f"v_lshl_add_u32 v23, v22, 2, v23",
          f"v_lshlrev_b32 v22, 2, v22", WL("j1w")]
    g = G.stream(max(g + 8, E("KA_J1", 44)), L)
    assert g > 60
    gb = min(b for b in bars if b > g)
    assert gb < GW6 - 40
    L = [I(f"ds_read_b32 v{T1+i}, v23 offset:{64*i}", "j1r") for i in range(4)]
    L += [f"s_lshl_b32 s{sB}, s{sA}, 1", [f"s_cmp_eq_u32 s{sW}, 0", f"s_cselect_b32 s{sB}, s{sB}, 0x80000000"], WL("j1r"),
          f"v_add_f32 v{T1}, v{T1}, v{T1+1}", f"v_add_f32 v{T1+2}, v{T1+2}, v{T1+3}", f"v_add_f32 v{T1}, v{T1}, v{T1+2}"]
    for sw in ("v_permlane16_swap_b32", "v_permlane32_swap_b32"):
        L += [f"v_mov_b32 v{T1+1}, v{T1}", "s_nop 1", f"{sw} v{T1}, v{T1+1}", "s_nop 0", f"v_add_f32 v{T1}, v{T1}, v{T1+1}"]
    L += [f"v_cvt_pk_bf16_f32 v{T1}, v{T1}, v{T1}", f"v_lshlrev_b32 v{T1}, 16, v{T1}",
          I(f"buffer_store_dword v{T1}, v22, {WSR}, s{sB} offen sc1", "j1s"),
          [f"s_cmp_lt_u32 s{sB}, 4096", f"s_cselect_b32 s{sC_}, 0, 0x1000"]]
    g = G.stream(gb + 1, L)
    gsig = G.stream(g + E("KA_SIGD", 24), [WV("j1s"), I(f"buffer_atomic_add v29, v27, s[{S_D}:{S_D+3}], s{sC_} offen sc1", "j1a")])
    print("J1 store", g, "signal", gsig)
    XR, F, CA, SA, T = J + 32, J + 40, J, J + 16, 4
    L = [f"v_and_b32 v{T+4}, 7, v2", f"v_lshrrev_b32 v{T+5}, 3, v2", f"v_lshlrev_b32 v{T+6}, 10, v{T+4}", f"v_lshl_add_u32 v{T+6}, v{T+5}, 4, v{T+6}",
         f"s_lshl_b32 s{sD}, s2, 13", f"s_lshl_b32 s{sA}, s{sW}, 8", f"s_add_u32 s{sD}, s{sD}, s{sA}",
         I(f"buffer_load_dwordx4 v[{XR}:{XR+3}], v{T+6}, s[{S_X}:{S_X+3}], s{sD} offen", "j3"),
         I(f"buffer_load_dwordx4 v[{XR+4}:{XR+7}], v{T+6}, s[{S_X}:{S_X+3}], s{sD} offen offset:128", "j3")]
    gx = G.stream(max(E("KA_GX", 104), g + 1), L)
    def red(r, t):
        return ["s_nop 1", f"v_add_f32_dpp v{r}, v{r}, v{r} row_ror:8 row_mask:0xf bank_mask:0xf", f"v_mov_b32 v{t}, v{r}", "s_nop 1",
                f"v_permlane16_swap_b32 v{r}, v{t}", "s_nop 0", f"v_add_f32 v{r}, v{r}, v{t}", f"v_mov_b32 v{t}, v{r}", "s_nop 1",
                f"v_permlane32_swap_b32 v{r}, v{t}", "s_nop 0", f"v_add_f32 v{r}, v{r}, v{t}"]
    L = [WV("j3")]
    for i in range(8): L += [f"v_lshlrev_b32 v{F+2*i}, 16, v{XR+i}", f"v_and_b32 v{F+2*i+1}, 0xffff0000, v{XR+i}"]
    L.append(f"v_add_f32 v{T}, v{F}, v{F+1}")
    L += [f"v_add_f32 v{T}, v{T}, v{F+e}" for e in range(2, 16)]
    L += red(T, T + 2) + [f"v_mul_f32 v{T}, 0x3c000000, v{T}"]
    L += [f"v_sub_f32 v{CA+e}, v{F+e}, v{T}" for e in range(16)]
    L.append(f"v_mul_f32 v{T+1}, v{CA}, v{CA}")
    L += [f"v_fmac_f32 v{T+1}, v{CA+e}, v{CA+e}" for e in range(1, 16)]
    L += red(T + 1, T + 2)
    L += [f"v_lshlrev_b32 v{T+7}, 5, v{T+4}", f"v_add_u32 v{T+7}, 0x20000, v{T+7}", f"s_lshl_b32 s{sA}, s{sW}, 3", f"v_add_u32 v{T+2}, s{sA}, v{T+7}",
          I(f"ds_write_b64 v{T+2}, v[{T}:{T+1}]", "lw"), f"v_mov_b32 v{T+3}, 0", f"v_lshlrev_b32 v{T+6}, 5, v{T+5}", "s_nop 3", WL("lw")]
    g = G.stream(max(gsig + 1, E("KA_J3", 186)), L)
    gb = min(b for b in bars if b > g)
    print("LN stats end", g, "bar", gb)
    gp = max(g + 1, E("KA_POLL", 226))
    G.put(gp, I(f"buffer_load_dword v{T}, v{T+3}, s[{S_D}:{S_D+3}], 0 offen sc1", "pl"), "mem")
    L = [f"s_lshl_b32 s{sD}, s{sW}, 9", [WV("pl"), f"v_readfirstlane_b32 s{sA}, v{T}"],
         [f"s_cmp_lt_u32 s{sA}, 64", "s_cbranch_scc1 KA_SPIN", "KA_SPIN_RET:"]]
    for dst, off in ((SA, 0), (CA, 2048)):
        for m in range(2):
            for hh in range(2):
                L.append(I(f"buffer_load_dwordx4 v[{dst+8*m+4*hh}:{dst+8*m+4*hh+3}], v{T+6}, {WSR}, s{sD} offen offset:{off+256*m+16*hh} sc1", "md"))
    g = G.stream(gp + 26, L)
    R_ = XR
    L = [I(f"ds_read_b128 v[{R_}:{R_+3}], v{T+7}", "lr"), I(f"ds_read_b128 v[{R_+4}:{R_+7}], v{T+7} offset:16", "lr"), f"s_mov_b32 s{sA}, 0x43000000", "s_nop 3", WL("lr")]
    L += sl(f"""
    v_add_f32 v{T}, v{R_}, v{R_+2}
    v_add_f32 v{T+1}, v{R_+4}, v{R_+6}
    v_add_f32 v{T}, v{T}, v{T+1}
    v_mul_f32 v{T}, 0x3e800000, v{T}
    v_sub_f32 v{R_}, v{R_}, v{T}
    v_sub_f32 v{R_+2}, v{R_+2}, v{T}
    v_sub_f32 v{R_+4}, v{R_+4}, v{T}
    v_sub_f32 v{R_+6}, v{R_+6}, v{T}
    v_mul_f32 v{R_}, v{R_}, v{R_}
    v_fmac_f32 v{R_}, v{R_+2}, v{R_+2}
    v_fmac_f32 v{R_}, v{R_+4}, v{R_+4}
    v_fmac_f32 v{R_}, v{R_+6}, v{R_+6}
    v_add_f32 v{R_+1}, v{R_+1}, v{R_+3}
    v_add_f32 v{R_+5}, v{R_+5}, v{R_+7}
    v_add_f32 v{R_+1}, v{R_+1}, v{R_+5}
    v_fma_f32 v{R_}, v{R_}, s{sA}, v{R_+1}
    v_mov_b32 v{T+1}, 0x3727c5ac
    v_fmac_f32 v{T+1}, 0x3b000000, v{R_}
    v_rsq_f32 v{T+1}, v{T+1}
    s_nop 0
    v_mul_f32 v{T+1}, 0x{QSCALE:x}, v{T+1}
    """)
    L += [f"v_sub_f32 v{F+e}, v{F+e}, v{T}" for e in range(16)]
    L += [f"v_mul_f32 v{F+e}, v{F+e}, v{T+1}" for e in range(16)]
    L += [f"v_lshlrev_b32 v{T+2}, 9, v{T+5}", f"v_lshl_add_u32 v{T+2}, v{T+4}, 4, v{T+2}",
          f"s_lshr_b32 s{sA}, s2, 2", f"s_lshl_b32 s{sA}, s{sA}, 15", f"s_and_b32 s{sD}, s2, 3", f"s_lshl_b32 s{sD}, s{sD}, 7", f"s_add_u32 s{sA}, s{sA}, s{sD}",
          f"s_lshl_b32 s{sD}, s{sW}, 13", f"s_add_u32 s{sA}, s{sA}, s{sD}", f"s_add_u32 s{sA}, s{sA}, {WS_H1}", f"s_add_u32 s{sD}, s{sA}, 4096"]
    g = G.stream(max(g, gb) + 1, L)
    L = [WV("md")]
    for op in ("v_add_f32 v{c}, 1.0, v{c}", "v_cvt_pk_bf16_f32 v{c}, v{c}, v{c}", "v_lshlrev_b32 v{c}, 16, v{c}"):
        L += [op.format(c=CA + e) for e in range(16)]
    L += [f"v_mul_f32 v{SA+e}, 0x{QSCALE:x}, v{SA+e}" for e in range(16)]
    L += [f"v_fma_f32 v{F+e}, v{F+e}, v{CA+e}, v{SA+e}" for e in range(16)]
    L += [f"v_cvt_pk_bf16_f32 v{XR+i}, v{F+2*i}, v{F+2*i+1}" for i in range(8)]
    L += [I(f"buffer_store_dwordx4 v[{XR}:{XR+3}], v{T+2}, {WSR}, s{sA} offen sc1", "hs"), I(f"buffer_store_dwordx4 v[{XR+4}:{XR+7}], v{T+2}, {WSR}, s{sD} offen sc1", "hs")]
    g = G.stream(g + 6, L)
    gb = min(b for b in bars if b > g + E("KA_HD", 20))
    G.put(gb - 1, WV("hs"), "end")
    G.stream(g + 1, [f"v_mov_b32 v25, {MAGIC}", f"v_min_u32 v27, 1, v2", f"v_lshlrev_b32 v27, 30, v27", f"s_add_u32 s{sA}, s{sF}, {FL_H}"])
    G.put(gb + 1, I(f"buffer_store_dword v25, v27, {WSR}, s{sA} offen sc1", "fl"), "mem")
    print("h stored", g, "flag", gb + 1)
    gh = gb + 1
    L = [[f"s_mov_b32 s{S_WQ}, s8", f"s_mov_b32 s{S_WQ+1}, s9"],
         I(f"buffer_load_dword v26, v28, s[{S_WQ}:{S_WQ+3}], s{sE} offen", "pf"),
         f"v_lshrrev_b32 v22, 4, v2", f"v_and_b32 v23, 15, v2", f"v_lshlrev_b32 v24, 2, v22", f"v_xor_b32 v23, v23, v24", f"v_lshlrev_b32 v23, 4, v23",
         f"v_lshl_add_u32 v23, v22, 13, v23", f"s_lshl_b32 s{sB}, s{sW}, 15", f"v_add_u32 v{VOQ}, s{sB}, v23",
         f"s_sub_u32 s{sB}, 15, s{sMT}", [f"s_cmp_eq_u32 s{sP_}, 0", f"s_cselect_b32 s{sB}, s{sB}, s{sMT}"], f"s_lshl_b32 s{sB}, s{sB}, 1", f"s_add_u32 s{sB}, s{sB}, s{sR}",
         f"s_lshl_b32 s{sC_}, s{sB}, 10", f"s_add_u32 s{sC_}, s{sC_}, {WS_FLAG+FL_H}",
         f"s_lshl_b32 s{sB}, s{sB}, 16", f"s_add_u32 s{sB}, s{sB}, {WS_H1}", f"v_add_u32 v{VH}, s{sB}, v1", f"v_add_u32 v{VH+1}, 32768, v{VH}",
         f"v_bfe_u32 v22, v2, 2, 2", f"v_lshrrev_b32 v23, 5, v2", f"v_lshl_add_u32 v23, v23, 3, v22", f"v_lshlrev_b32 v23, 8, v23",
         f"v_bfe_u32 v24, v2, 4, 1", f"v_lshl_add_u32 v23, v24, 5, v23", f"v_and_b32 v24, 3, v2", f"v_lshl_add_u32 v23, v24, 3, v23", f"v_add_u32 v23, 0x20000, v23"]
    for nt in range(4): L += [f"v_xor_b32 v24, {nt}, v22", f"v_lshl_add_u32 v{VQR+nt}, v24, 6, v23"]
    L += [f"v_and_b32 v15, 7, v2", f"v_lshlrev_b32 v15, 7, v15", f"s_lshl_b32 s{sM0T}, s{sW}, 10"]
    g = G.stream(max(gW + 1, E("KA_PFG", 300)), L)
    print("q setup end", g)
    gq = max(g + 2, gh + 2, E("KA_GQ", 366))
    qfree = lambda ks: BG(4) if ks < 8 else BG(10) if ks < 12 else BG(11) if ks < 16 else BG(12) if ks < 20 else BG(13) if ks < 24 else BG(14) if ks < 28 else BG(15)
    QS = E("KA_QS", 4)
    for ks in range(32):
        gq = max(gq, qfree(ks) + 2)
        put_dma(gq, ([f"s_add_u32 m0, s{sM0T}, {131072-32768*(ks//8)+(ks%8)*4096}", f"s_mov_b32 s{sT0}, {ks*16*8192}"],
                     [I(f"buffer_load_dwordx4 v{VOQ}, s[{S_WQ}:{S_WQ+3}], s{sT0} offen lds", f"Q{ks//8}")]))
        gq += QS
    print("W_q dma end", gq)
    gp = E("KA_HP", 420)
    G.put(gp, I(f"buffer_load_dword v22, v15, {WSR}, s{sC_} offen sc1", "hp"), "mem")
    g = G.stream(gp + 24, [[WV("hp"), f"v_cmp_ne_u32 vcc, v25, v22"], ["s_cbranch_vccnz KA_HSPIN", "KA_HSPIN_RET:"]])
    g += 1
    n = 0
    for ks in range(32):
        for q in range(2):
            g = max(g, 384 + 4 * ks + 4)
            while g in busy: g += 1
            if ks % 4 == 0 and q == 0: G.put(g - 1, f"s_mov_b32 s{sB}, {(ks//4)*4096}", "end")
            G.put(g, I(f"buffer_load_dwordx4 {ar(8*ks+4*q,4)}, v{VH+q}, {WSR}, s{sB} offen offset:{(ks%4)*1024} sc1", f"h{ks}"), "mem")
            assert g < QG(ks) - 12, (ks, g)
            g += E("KA_HS", 4) if g < gq else 3
    print("h loads end", g)
    ghl = g
    L = sl(f"""
    v_lshrrev_b32 v24, 5, v2
    v_mul_lo_u32 v29, v24, s11
    v_and_b32 v23, 31, v2
    v_lshl_add_u32 v29, v23, 4, v29
    s_lshl_b32 s11, s11, 1
    v_bfe_u32 v23, v2, 2, 2
    v_lshl_add_u32 v23, v24, 2, v23
    v_lshlrev_b32 v23, 9, v23
    v_bfe_u32 v24, v2, 4, 1
    v_lshl_add_u32 v23, v24, 5, v23
    v_and_b32 v24, 3, v2
    v_lshl_add_u32 v23, v24, 3, v23
    v_add_u32 v26, s35, v23
    """)
    g = G.stream(470, L)
    gj = max(E("KA_GJ2", 0), ghl)
    assert gj > QG(16) - 8
    for i in range(8):
        while G.mem[gj] and any("buffer_" in x.s for x in G.mem[gj]): gj += 1
        put_dma(gj, ([f"s_add_u32 m0, s35, {i*1024}"], [I(f"buffer_load_dwordx4 v29, s[4:7], s10 offen {os.environ.get('KA_J2F', 'nt')} lds", "j2")]))
        G.put(gj, "s_add_u32 s10, s10, s11", "end")
        gj += 2
    L = [WV("j2")]
    for f in range(8):
        for e in range(2):
            L.append(I(f"ds_read_b64_tr_b16 v[{160+4*f+2*e}:{161+4*f+2*e}], v26 offset:{e*4096+f*64}", "j2r"))
    g = G.stream(E("KA_J2R", 747), L)
    assert g < QG(31) - 2, g
    G.put(QG(31) - 1, WL("j2r"), "end")
    print("J2 dma", gj, "reads end", g)
    gb = min(b for b in bars if b > gl + E("KA_KD", 30))
    G.put(gb - 2, WV("stl"), "end")
    G.put(gb - 2, f"s_add_u32 s{sA}, s{sF}, {FL_KV}", "end")
    G.put(gb + 1, I(f"buffer_store_dword v25, v27, {WSR}, s{sA} offen sc1", "fl"), "mem")
    print("kv flag", gb + 1)
    K = k2
    L = sl(f"""
    s_and_b32 s{sC_}, s2, 31
    s_lshl_b32 s{sC_}, s{sC_}, 7
    s_add_u32 s{sC_}, s{sC_}, {WS_FLAG+FL_KV}
    v_lshlrev_b32 v15, 5, v15
    v_mov_b32 v28, v2
    s_lshl_b32 s{sD}, s{sHD}, 19
    s_add_u32 s{sE}, s{sD}, {WS_KF}
    """) + [[f"s_add_u32 s{K.S_K}, s{S_WS}, s{sE}", f"s_addc_u32 s{K.S_K+1}, s{S_WS+1}, 0"], f"s_add_u32 s{sE}, s{sD}, {WS_VF}",
            [f"s_add_u32 s{K.S_V}, s{S_WS}, s{sE}", f"s_addc_u32 s{K.S_V+1}, s{S_WS+1}, 0"]] + sl(f"""
    s_mov_b32 s{K.S_V+2}, 0x80000
    s_lshl_b32 s{sD}, s{K.sPR}, 1
    s_sub_u32 s{K.sN}, 32, s{sD}
    s_lshl_b32 s{K.sKEND}, s{K.sN}, 14
    s_mov_b32 s{K.S_K+2}, s{K.sKEND}
    s_add_u32 s{K.sN2B}, s{sD}, 2
    s_lshl_b32 s{K.sN2B}, s{K.sN2B}, 14
    s_mov_b32 s{K.sKOFF}, 0
    s_lshl_b32 s{K.sKDST}, s{sW}, 12
    s_mov_b32 s{K.sBLK}, 0
    s_sub_u32 s{K.sQB}, 15, s{K.sPR}
    v_add_u32 v{K.V_DMA}, s{K.sKDST}, v1
    s_lshl_b32 s{sD}, s{sP_}, 13
    v_add_u32 v{K.V_KADDR}, s{sD}, v1
    v_mov_b32 v{K.V_NINF}, 0xff800000
    s_lshl_b32 s{sE}, s{sR}, 14
    s_add_u32 s{sE}, s{sE}, s{sD}
    v_add_u32 v{K.V_QA}, s{sE}, v1
    v_xor_b32 v{K.V_QA+1}, 0x2000, v{K.V_QA}
    v_and_b32 v23, 31, v28
    v_lshrrev_b32 v24, 5, v28
    v_lshlrev_b32 v24, 2, v24
    v_sub_u32 v23, v23, v24
    """)
    for z in range(2):
        for q in range(2):
            L += [f"s_xor_b32 s{sD}, s{sP_}, {q}", f"s_lshl_b32 s{sE}, s{sR}, 1", f"s_add_u32 s{sD}, s{sD}, s{sE}", f"s_sub_u32 s{sD}, s{sD}, s{sP_}",
                  f"s_sub_u32 s{sD}, s{sD}, {2*z}", f"s_lshl_b32 s{sD}, s{sD}, 5", f"v_add_u32 v{K.V_LIM+2*z+q}, s{sD}, v23"]
    g = G.stream(530, L)
    print("attn setup end", g)
    gp = max(E("KA_KP", 736), g + 1, ghl)
    G.put(gp, I(f"buffer_load_dword v22, v15, {WSR}, s{sC_} offen sc1", "kp"), "mem")
    g = G.stream(gp + 22, [[WV("kp"), f"v_cmp_ne_u32 vcc, v25, v22"], ["s_cbranch_vccnz KA_KSPIN", "KA_KSPIN_RET:"]])
    items = P + G.items()
    print("front gaps over cap:", [(g, u) for g, u in enumerate(G.used) if u > 24][:20])
    if STAMPS:
        pos = [i for i, it in enumerate(items) if it.s.startswith("v_mfma")]
        stg = [int(x) for x in os.environ.get("STG", "128,512").split(",")]
        for k in range(len(stg) - 1, -1, -1):
            b = ST.base + 2 * (ST.n + k)
            items.insert(pos[stg[k]], I(f"s_memtime s[{b}:{b+1}]"))
        ST.n += len(stg)
    resolve(items, A, vm0=["pf"])
    if os.environ.get("STG"):
        import asmlib
        class Dummy:
            base = 100; n = 0
            def stamp(self): pass
            def flush(self, *a, **k): return ST.flush(*a, **k)
        class D2(Dummy):
            @property
            def n(self): return 0
            @n.setter
            def n(self, v): pass
        ST.stamp()
        k2.gen_attn(A, D2(), qa, tailfn=tailfn)
    else:
        k2.gen_attn(A, ST, qa, tailfn=tailfn)
    A(f"""
    KA_SPIN:
    s_mov_b32 s{sB}, 200000
    KA_SPIN_L:
    s_sleep 8
    buffer_load_dword v{T}, v{T+3}, s[{S_D}:{S_D+3}], 0 offen sc1
    s_waitcnt vmcnt(0)
    v_readfirstlane_b32 s{sA}, v{T}
    s_cmp_ge_u32 s{sA}, 64
    s_cbranch_scc1 KA_SPIN_RET
    s_sub_u32 s{sB}, s{sB}, 1
    s_cmp_lg_u32 s{sB}, 0
    s_cbranch_scc1 KA_SPIN_L
    s_branch KA_SPIN_RET
    """)
    for tag in ("KA_HSPIN", "KA_KSPIN"):
        A(f"""
        {tag}:
        s_mov_b32 s{sD}, 200000
        {tag}_L:
        s_sleep 4
        buffer_load_dword v22, v15, {WSR}, s{sC_} offen sc1
        s_waitcnt vmcnt(0)
        v_cmp_ne_u32 vcc, v25, v22
        s_cbranch_vccz {tag}_RET
        s_sub_u32 s{sD}, s{sD}, 1
        s_cmp_lg_u32 s{sD}, 0
        s_cbranch_scc1 {tag}_L
        s_branch {tag}_RET
        """)
    return name, A.text(), kernel_desc(name, 256, 256), "grid=(256,1,1) block=(256,1,1) lds=163840"
```

```python
from asmlib import *
from sched import I, WV, WL, WVL, Item, resolve, Gaps

QSCALE = 0x3e0293ee
import struct, math, os
QSCALE = struct.unpack("<I", struct.pack("<f", math.log2(math.e) / math.sqrt(128.0)))[0]
THR = struct.unpack("<I", struct.pack("<f", 2.0 ** 40))[0]
NEGBIG = struct.unpack("<I", struct.pack("<f", -1e30))[0]

AO, AQ, AK, AV = 0, 128, 192, 224
V_LANE16 = 1
V_KADDR = 2
V_VADDR = 3
V_DMA = 4
V_NINF = 5
V_LIM = 6
V_QA = 10
V_T0 = 12
VS = 16
VP = 80
VN = 112
VL = 144
VE = 148
VX = 156
V_J2 = 250
def S(par, q, e=None):
    b = VS + 32 * par + 16 * q
    return vr(b, 16) if e is None else f"v{b+e}"
def P(par, q, ks=None, i=None):
    b = VP + 16 * par + 8 * q
    if i is not None: return f"v{b+i}"
    return vr(b + 4 * ks, 4)
def L(par, q): return f"v{VL+2*par+q}"
def O(q, dt): return ar(AO + 64 * q + 16 * dt, 16)

S_K, S_V, S_WS, S_WQ = 12, 16, 20, 24
sW, sR, sP_, sHD, sPR = 30, 31, 32, 33, 34
sKOFF, sKEND, sN2B, sKDST, sVOFF = 36, 37, 38, 39, 40
sCNT, sTHR, sBLK, sQB, sN = 41, 42, 43, 44, 45
sT0, sT1, sT2 = 46, 47, 48
MASKP = [52, 54, 56, 58]

def kdma():
    pre = [f"s_and_b32 m0, s{sKDST}, 0xffff"]
    d = [f"buffer_load_dwordx4 v{V_DMA}, s[{S_K}:{S_K+3}], s{sKOFF} offen offset:{i*1024} lds" for i in range(4)]
    post = [f"s_add_u32 s{sKDST}, s{sKDST}, 16384",
            f"s_add_u32 s{sKOFF}, s{sKOFF}, 16384",
            f"s_cmp_eq_u32 s{sKOFF}, s{sKEND}",
            f"s_cselect_b32 s{sKOFF}, 0, s{sKOFF}",
            f"s_cselect_b32 s{S_K+2}, s{sN2B}, s{S_K+2}"]
    return pre, d, post
def vdma():
    pre = [f"s_and_b32 s{sT2}, s{sVOFF}, 0xffff", f"s_or_b32 m0, s{sT2}, 0x10000"]
    d = [f"buffer_load_dwordx4 v{V_LANE16}, s[{S_V}:{S_V+3}], s{sVOFF} offen offset:{i*1024} lds" for i in range(4)]
    post = [f"s_add_u32 s{sVOFF}, s{sVOFF}, 16384"]
    return pre, d, post

def kread(kk, odd):
    return f"ds_read_b128 {ar(AK+4*kk,4)}, v{V_KADDR} offset:{odd*16384+kk*1024}"
def vread(f, odd):
    return f"ds_read_b128 {ar(AV+4*f,4)}, v{V_VADDR} offset:{odd*16384+f*1024}"

def qk_mfmas(dst_par, czero=False):
    out = []
    for kk in range(8):
        for q in range(2):
            c = S(dst_par, q) if kk else ("0" if czero else vr(VN + 16 * q, 16))
            out.append(mfma(S(dst_par, q), ar(AK + 4 * kk, 4), ar(AQ + 32 * q + 4 * kk, 4), c))
    return out
def pv_mfmas(src_par, qmajor=False):
    out = []
    if qmajor:
        for q in (1, 0):
            for f in range(8):
                ks, dt = f // 4, f % 4
                out.append(mfma(O(q, dt), ar(AV + 4 * f, 4), P(src_par, q, ks), O(q, dt)))
    else:
        for f in range(8):
            ks, dt = f // 4, f % 4
            for q in range(2):
                out.append(mfma(O(q, dt), ar(AV + 4 * f, 4), P(src_par, q, ks), O(q, dt)))
    return out

def rho(e):
    return 8 * (e >> 2) + (e & 3)

def mask_stream(par, z):
    out = []
    els = [(q, e) for q in range(2) for e in range(16)]
    def cmp(i):
        q, e = els[i]
        mp = MASKP[i % 4]
        return f"v_cmp_le_i32 s[{mp}:{mp+1}], {rho(e)}, v{V_LIM+2*z+q}"
    def cnd(i):
        q, e = els[i]
        mp = MASKP[i % 4]
        return f"v_cndmask_b32 {S(par,q,e)}, v{V_NINF}, {S(par,q,e)}, s[{mp}:{mp+1}]"
    out += [cmp(0), cmp(1), cmp(2)]
    for i in range(32):
        out.append(cnd(i))
        if i + 3 < 32: out.append(cmp(i + 3))
    return out

def sm_stream(par, z=None):
    out = []
    els = [(q, e) for q in range(2) for e in range(16)]
    def cmp(i):
        q, e = els[i]
        mp = MASKP[i % 4]
        return f"v_cmp_le_i32 s[{mp}:{mp+1}], {rho(e)}, v{V_LIM+2*z+q}"
    def cnd(i):
        q, e = els[i]
        mp = MASKP[i % 4]
        return f"v_cndmask_b32 {S(par,q,e)}, v{V_NINF}, {S(par,q,e)}, s[{mp}:{mp+1}]"
    def ex(i):
        q, e = els[i]
        return f"v_exp_f32 v{VE+i%8}, {S(par,q,e)}"
    def add(i):
        q, e = els[i]
        src = L(1 - par, q) if e == 0 else L(par, q)
        return f"v_add_f32 {L(par,q)}, {src}, v{VE+i%8}"
    def cvt(i):
        q, e = els[i]
        return f"v_cvt_pk_bf16_f32 {P(par,q,i=e//2)}, v{VE+(i-1)%8}, v{VE+i%8}"
    if z is not None:
        out += [cmp(0), cmp(1), cmp(2), cnd(0)]
    for i in range(32):
        if z is not None:
            if i + 3 < 32: out.append(cmp(i + 3))
            if i + 1 < 32: out.append(cnd(i + 1))
        out.append(ex(i))
        if i >= 1:
            out.append(add(i - 1))
            if (i - 1) % 2 == 1:
                out.append(cvt(i - 1))
    out.append("s_nop 0")
    out.append(add(31))
    out.append(cvt(31))
    return out

def check_stream(par, label):
    return [f"v_add_f32 v{V_T0}, {L(par,0)}, {L(par,1)}",
            f"v_cmp_nle_f32 vcc, v{V_T0}, v{V_T0+1}",
            f"s_cbranch_vccnz {label}",
            f"{label}_ret:"]

def pack(ngaps, fixed, stream, last_gap, cap=24):
    gaps = [list(fixed.get(g, [])) for g in range(ngaps)]
    used = [sum(cost(i) for i in g) for g in gaps]
    total = sum(cost(i) for i in stream)
    while True:
        u = list(used); placed = [[] for _ in range(ngaps)]
        g = 0; ok = True
        for ins in stream:
            c = cost(ins)
            while g <= last_gap and u[g] + c > cap:
                g += 1
            if g > last_gap:
                ok = False; break
            placed[g].append(ins); u[g] += c
        if ok: break
        cap += 4
    res = []
    for g in range(ngaps):
        mem = [i for i in gaps[g] if is_mem(i) or i.startswith("s_barrier")]
        oth = [i for i in gaps[g] if not (is_mem(i) or i.startswith("s_barrier"))]
        res.append(mem + placed[g] + oth)
    return res, cap

def add_fixed(fx, g, ins):
    fx.setdefault(g, [])
    if isinstance(ins, list): fx[g] += ins
    else: fx[g].append(ins)

def place_dma(fx, grp, gaps4):
    pre, d, post = grp
    add_fixed(fx, gaps4[0] - 1, pre)
    for g, i in zip(gaps4, d):
        add_fixed(fx, g, i)
    g = gaps4[3]
    if len(post) == 5:
        add_fixed(fx, g, post[:2]); add_fixed(fx, g + 1, post[2:])
    else:
        add_fixed(fx, g, post)

rare_sites = []

def gen_rare(A, label, par, has_next):
    A.label(label)
    A("s_nop 15"); A("s_nop 7")
    T, T2 = 252, 253
    for q in range(2):
        A(f"v_max3_f32 v{T}, {S(par,q,0)}, {S(par,q,1)}, {S(par,q,2)}")
        for e in range(3, 15, 2):
            A(f"v_max3_f32 v{T}, v{T}, {S(par,q,e)}, {S(par,q,e+1)}")
        A(f"v_max3_f32 v{T}, v{T}, {S(par,q,15)}, 0")
        A(f"v_mov_b32 v{T2}, v{T}")
        A("s_nop 1")
        A(f"v_permlane32_swap_b32 v{T}, v{T2}")
        A("s_nop 1")
        A(f"v_max_f32 v{T}, v{T}, v{T2}")
        A(f"v_exp_f32 v{T2}, -v{T}")
        for e in range(16):
            A(f"v_sub_f32 v{VN+16*q+e}, v{VN+16*q+e}, v{T}")
            A(f"v_sub_f32 {S(par,q,e)}, {S(par,q,e)}, v{T}")
            if has_next:
                A(f"v_sub_f32 {S(1-par,q,e)}, {S(1-par,q,e)}, v{T}")
        A(f"v_mul_f32 {L(1-par,q)}, {L(1-par,q)}, v{T2}")
        for i in range(0, 64, 4):
            for j in range(4):
                A(f"v_accvgpr_read_b32 v{VX+j}, a{AO+64*q+i+j}")
            for j in range(4):
                A(f"v_mul_f32 v{VX+j}, v{VX+j}, v{T2}")
            for j in range(4):
                A(f"v_accvgpr_write_b32 a{AO+64*q+i+j}, v{VX+j}")
    A.ext(sm_stream(par))
    A("s_nop 3")
    A(f"s_branch {label}_ret")

def gen_k2():
    rare_sites.clear()
    A = Asm()
    name = "k2attn_kernel"
    A.lines.append(kernel_header(name))
    A("""
    s_cmp_ge_u32 s2, 256
    s_cbranch_scc1 K2_END
    """)
    for _ in range(int(os.environ.get("K2_XPRE", "0"))): A("s_sleep 127")
    ST = Stamper(A, 1)
    ST.stamp()
    A(f"""
    s_load_dwordx2 s[4:5], s[0:1], {KA['wq']}
    s_load_dwordx2 s[8:9], s[0:1], {KA['ws']}
    s_load_dwordx2 s[52:53], s[0:1], {KA['wo']}
    s_load_dwordx2 s[54:55], s[0:1], {KA['w1']}
    s_load_dwordx2 s[56:57], s[0:1], {KA['w2']}
    v_lshrrev_b32 v12, 6, v0
    v_and_b32 v13, 63, v0
    v_readfirstlane_b32 s{sW}, v12
    v_lshlrev_b32 v{V_LANE16}, 4, v13
    s_and_b32 s{sT0}, s2, 7
    s_lshr_b32 s{sT1}, s2, 3
    s_and_b32 s{sHD}, s{sT1}, 3
    s_lshl_b32 s{sT0}, s{sT0}, 2
    s_add_u32 s{sHD}, s{sHD}, s{sT0}
    s_lshr_b32 s{sPR}, s{sT1}, 2
    s_and_b32 s{sR}, s{sW}, 1
    s_lshr_b32 s{sP_}, s{sW}, 1
    """)
    QA = 16
    WF = 144
    VOW = 176
    VWR = 184
    VH = 188
    def hreg(ks, q):
        return ar(8 * ks + 4 * q, 4)
    A(f"""
    v_lshrrev_b32 v14, 4, v13
    v_and_b32 v15, 15, v13
    v_lshlrev_b32 v12, 2, v14
    v_xor_b32 v15, v15, v12
    v_lshlrev_b32 v15, 4, v15
    v_lshl_add_u32 v15, v14, 13, v15
    s_lshl_b32 s{sT0}, s{sW}, 15
    v_add_u32 v{VOW}, s{sT0}, v15
    """)
    A(f"""
    s_sub_u32 s{sQB}, 15, s{sPR}
    s_cmp_eq_u32 s{sP_}, 0
    s_cselect_b32 s{sT0}, s{sQB}, s{sPR}
    s_lshl_b32 s{sT0}, s{sT0}, 2
    s_lshl_b32 s{sT1}, s{sR}, 1
    s_add_u32 s{sT0}, s{sT0}, s{sT1}
    s_lshl_b32 s{sT0}, s{sT0}, 15
    s_add_u32 s{sT0}, s{sT0}, {WS_H1}
    v_add_u32 v{VH}, s{sT0}, v{V_LANE16}
    v_add_u32 v{VH+1}, 32768, v{VH}
    s_waitcnt lgkmcnt(0)
    s_lshl_b32 s{sT0}, s{sHD}, 8
    s_add_u32 s{S_WQ}, s4, s{sT0}
    s_addc_u32 s{S_WQ+1}, s5, 0
    s_mov_b32 s{S_WQ+2}, {511*8192+256}
    s_mov_b32 s{S_WQ+3}, 0x00020000
    """)
    srd(A, S_WS, 8, 9, WS_END)
    A(f"s_lshl_b32 s60, s{sW}, 10")
    def qloads(ks):
        return [([f"s_mov_b32 s61, {ks*16*8192}", f"s_add_u32 m0, s60, {32768+ks*4096}"],
                 I(f"buffer_load_dwordx4 v{VOW}, s[{S_WQ}:{S_WQ+3}], s61 offen lds", f"q{ks}")),
                ([f"s_mov_b32 s62, {(ks//4)*4096}"] if ks % 4 == 0 else [],
                 I(f"buffer_load_dwordx4 {hreg(ks,0)}, v{VH}, s[{S_WS}:{S_WS+3}], s62 offen offset:{(ks%4)*1024}", f"q{ks}")),
                ([], I(f"buffer_load_dwordx4 {hreg(ks,1)}, v{VH+1}, s[{S_WS}:{S_WS+3}], s62 offen offset:{(ks%4)*1024}", f"q{ks}"))]
    NPRE = int(os.environ.get("K2_NPRE", "3"))
    vm0 = []
    for ks in range(NPRE):
        for pre, ld in qloads(ks):
            A.ext(pre)
            if pre: A("s_nop 0")
            A(ld.s); vm0.append(ld.tag)
    ST.stamp()
    A(f"""
    s_lshl_b32 s{sT0}, s{sHD}, 19
    s_add_u32 s{sT1}, s{sT0}, {WS_KF}
    s_add_u32 s{S_K}, s8, s{sT1}
    s_addc_u32 s{S_K+1}, s9, 0
    s_mov_b32 s{S_K+3}, 0x00020000
    s_add_u32 s{sT1}, s{sT0}, {WS_VF}
    s_add_u32 s{S_V}, s8, s{sT1}
    s_addc_u32 s{S_V+1}, s9, 0
    s_mov_b32 s{S_V+2}, 0x80000
    s_mov_b32 s{S_V+3}, 0x00020000
    s_lshl_b32 s{sT0}, s{sPR}, 1
    s_sub_u32 s{sN}, 32, s{sT0}
    s_lshl_b32 s{sKEND}, s{sN}, 14
    s_mov_b32 s{S_K+2}, s{sKEND}
    s_add_u32 s{sN2B}, s{sT0}, 2
    s_lshl_b32 s{sN2B}, s{sN2B}, 14
    s_mov_b32 s{sKOFF}, 0
    s_lshl_b32 s{sKDST}, s{sW}, 12
    s_mov_b32 s{sBLK}, 0
    v_add_u32 v{V_DMA}, s{sKDST}, v{V_LANE16}
    s_lshl_b32 s{sT0}, s{sP_}, 13
    v_add_u32 v{V_KADDR}, s{sT0}, v{V_LANE16}
    v_mov_b32 v{V_NINF}, 0xff800000
    s_lshl_b32 s{sT1}, s{sR}, 14
    s_add_u32 s{sT1}, s{sT1}, s{sT0}
    v_add_u32 v{V_QA}, s{sT1}, v{V_LANE16}
    v_xor_b32 v{V_QA+1}, 0x2000, v{V_QA}
    v_and_b32 v12, 31, v13
    v_lshrrev_b32 v14, 5, v13
    v_lshlrev_b32 v14, 2, v14
    v_sub_u32 v12, v12, v14
    """)
    A(f"""
    s_lshl_b32 s49, s2, 2
    s_add_u32 s49, s49, s{sW}
    s_mov_b32 s4, s52
    s_mov_b32 s5, s53
    s_mov_b32 s6, {4096*1024}
    s_mov_b32 s7, 0x00020000
    s_cmp_ge_u32 s49, 736
    s_cselect_b32 s4, s56, s4
    s_cselect_b32 s5, s57, s5
    s_cselect_b32 s6, {1792*1024}, s6
    s_cselect_b32 s50, 736, 0
    s_cselect_b32 s28, {WS_W2F - WS_WOF}, 0
    s_mov_b32 s29, {256*2048}
    s_cselect_b32 s29, {112*2048}, s29
    s_sub_u32 s50, s49, s50
    s_lshr_b32 s52, s50, 1
    s_and_b32 s53, s50, 1
    s_mov_b32 s11, 1024
    s_sub_u32 s50, s49, 512
    s_mul_i32 s56, s50, 9363
    s_lshr_b32 s56, s56, 16
    s_mul_i32 s57, s56, 7
    s_sub_u32 s57, s50, s57
    s_cmp_lt_u32 s50, 224
    s_cselect_b32 s52, s56, s52
    s_cselect_b32 s53, s57, s53
    s_cselect_b32 s11, 3584, s11
    s_cselect_b32 s29, {32*2048}, s29
    s_cselect_b32 s28, {WS_W1F - WS_WOF}, s28
    s_cselect_b32 s4, s54, s4
    s_cselect_b32 s5, s55, s5
    s_cselect_b32 s6, {512*3584}, s6
    s_mul_i32 s10, s52, s11
    s_lshl_b32 s10, s10, 4
    s_lshl_b32 s56, s53, 9
    s_add_u32 s10, s10, s56
    s_mul_i32 s56, s53, s29
    s_lshl_b32 s56, s56, 2
    s_add_u32 s28, s28, s56
    s_lshl_b32 s56, s52, 11
    s_add_u32 s28, s28, s56
    s_add_u32 s28, s28, {WS_WOF}
    s_cmp_ge_u32 s49, 960
    s_cselect_b32 s28, 0x80000000, s28
    v_lshrrev_b32 v15, 5, v13
    v_mul_lo_u32 v{V_J2}, v15, s11
    v_and_b32 v14, 31, v13
    v_lshl_add_u32 v{V_J2}, v14, 4, v{V_J2}
    s_lshl_b32 s11, s11, 1
    v_bfe_u32 v14, v13, 2, 2
    v_lshl_add_u32 v14, v15, 2, v14
    v_lshlrev_b32 v14, 9, v14
    v_bfe_u32 v15, v13, 4, 1
    v_lshl_add_u32 v14, v15, 5, v14
    v_and_b32 v15, 3, v13
    v_lshl_add_u32 v14, v15, 3, v14
    s_lshl_b32 s35, s{sW}, 13
    s_add_u32 s35, s35, 0x20000
    v_add_u32 v{V_J2+1}, s35, v14
    """)
    for z in range(2):
        for q in range(2):
            A(f"s_xor_b32 s{sT0}, s{sP_}, {q}")
            A(f"s_lshl_b32 s{sT1}, s{sR}, 1")
            A(f"s_add_u32 s{sT0}, s{sT0}, s{sT1}")
            A(f"s_sub_u32 s{sT0}, s{sT0}, s{sP_}")
            A(f"s_sub_u32 s{sT0}, s{sT0}, {2*z}")
            A(f"s_lshl_b32 s{sT0}, s{sT0}, 5")
            A(f"v_add_u32 v{V_LIM+2*z+q}, s{sT0}, v12")
    A(f"""
    v_bfe_u32 v12, v13, 2, 2
    v_lshrrev_b32 v14, 5, v13
    v_lshl_add_u32 v14, v14, 3, v12
    v_lshlrev_b32 v14, 8, v14
    v_bfe_u32 v15, v13, 4, 1
    v_lshl_add_u32 v14, v15, 5, v14
    v_and_b32 v15, 3, v13
    v_lshl_add_u32 v14, v15, 3, v14
    v_add_u32 v14, 0x8000, v14
    """)
    for nt in range(4):
        A(f"v_xor_b32 v15, {nt}, v12")
        A(f"v_lshl_add_u32 v{VWR+nt}, v15, 6, v14")
    for nt in range(4):
        A(f"v_add_u32 v{VWR+8+nt}, 0x10000, v{VWR+nt}")
    def wreads(ks):
        s = ks & 1
        L_ = []
        for nt in range(4):
            for e in range(2):
                b = WF + 16 * s + 4 * nt + 2 * e
                base = VWR + nt if ks < 16 else VWR + 8 + nt
                L_.append(I(f"ds_read_b64_tr_b16 v[{b}:{b+1}], v{base} offset:{(ks%16)*4096+e*1024}", f"w{ks}"))
        return L_
    mf = []
    for ks in range(32):
        for dt in range(4):
            for q in range(2):
                acc = vr(QA + 64 * q + 16 * dt, 16)
                mf.append(mfma(acc, vr(WF + 16 * (ks & 1) + 4 * dt, 4), hreg(ks, q), acc if ks else "0"))
    G = Gaps(mf)
    for ks in range(32):
        g0 = 8 * ks
        if ks % 2 == 0 or ks == 31:
            G.put(g0, "s_barrier", "mem")
        if ks + 1 < 32:
            rd = wreads(ks + 1)
            for i in range(4): G.put(g0 + i, rd[2 * i:2 * i + 2])
            if (ks + 1) % 2 == 0:
                G.put(g0 + 7, WVL([f"q{min(ks+3,31)}"], [f"w{ks+1}"]), "end")
            else:
                G.put(g0 + 7, WL(f"w{ks+1}"), "end")
    pend = []
    for ks in range(NPRE, 32): pend += qloads(ks)
    lastpost = []
    for t in range(2):
        pre, d, post = kdma()
        pend.append((lastpost + pre, I(d[0], "K")))
        pend += [([], I(x, "K")) for x in d[1:]]
        lastpost = post
    LD = int(os.environ.get("K2_LD", "6"))
    g = 1; n = 0
    while pend:
        ksn = NPRE + n // 3
        if ksn < 32 and g < 8 * (ksn - LD): g = 8 * (ksn - LD)
        pre, ld = pend.pop(0)
        G.put(g - 1, pre, "end"); G.put(g, ld, "mem")
        n += 1
        g += 1 if ksn <= LD else 2
    G.put(g - 1, lastpost, "end")
    print("K2 qproj last load gap", g)
    assert g < 246
    PP = [WV("q0"), I("s_barrier")]
    if STAMPS:
        b_ = ST.base + 2 * ST.n; ST.n += 1
        PP.append(I(f"s_memtime s[{b_}:{b_+1}]"))
    PP += wreads(0) + [WVL(["q2"], ["w0"])] + G.items()
    resolve(PP, A, vm0=vm0)
    ST.stamp()
    gen_attn(A, ST, lambda q: QA + 64 * q)
    return name, A.text(), kernel_desc(name, 256, 256), "grid=(256,1,1) block=(256,1,1) lds=163840"

def gen_attn(A, ST, qa, j2src=None, tailfn=None):
    FUSE = tailfn is not None
    A(f"""
    s_lshl_b32 s{sT1}, s{sP_}, 15
    s_lshl_b32 s{sT0}, s{sR}, 14
    s_add_u32 s{sT1}, s{sT1}, s{sT0}
    s_add_u32 s{sT1}, s{sT1}, 98304
    v_add_u32 v12, s{sT1}, v{V_LANE16}
    s_lshl_b32 s{sVOFF}, s{sW}, 12
    """)
    dl = []
    for grp in (kdma(), kdma(), vdma(), vdma()):
        pre, d, post = grp
        dl += [(pre if i == 0 else [], x, post if i == 3 else []) for i, x in enumerate(d)]
    if FUSE:
        k01 = []
        for grp in (kdma(), kdma()):
            pre, d, post = grp
            k01 += [(pre, d[0] + "\n" + d[1], []), ([], d[2] + "\n" + d[3], post)]
        dl = k01 + [([], "", [])] * 4 + dl[:4] + [([], "", [])] * 4
    n = 0
    for dt in range(4):
        for q in range(2):
            for j in range(2):
                a0 = qa(q) + 16 * dt + 8 * j
                pre, x, post = dl[n]; n += 1
                A.ext(pre)
                for i in range(4):
                    A(f"v_cvt_pk_bf16_f32 v{a0+i}, v{a0+2*i}, v{a0+2*i+1}")
                A(f"ds_write_b128 v12, v[{a0}:{a0+3}] offset:{(q*8+2*dt+j)*1024}")
                A(x); A.ext(post)
    if j2src is not None:
        A(f"v_mov_b32 v14, v{j2src}"); A(f"v_mov_b32 v15, v{j2src+1}")
    A(f"""
    v_add_u32 v12, 98304, v{V_QA}
    v_add_u32 v13, 98304, v{V_QA+1}
    v_add_u32 v{V_QA}, 0x20000, v{V_QA}
    v_add_u32 v{V_QA+1}, 0x20000, v{V_QA+1}
    s_waitcnt vmcnt({4 if FUSE else 16}) lgkmcnt(0)
    s_barrier
    """)
    if j2src is not None:
        A(f"v_mov_b32 v{V_J2}, v14"); A(f"v_mov_b32 v{V_J2+1}, v15")
    PP = []
    if FUSE:
        PP += [I("v_mov_b32 v248, v25"), I("v_mov_b32 v249, v27")]
    for kk in range(8):
        PP.append(I(kread(kk, 0), f"a{kk}"))
        PP.append(I(f"ds_read_b128 {ar(AQ+4*kk,4)}, v12 offset:{kk*1024}", f"a{kk}"))
    for kk in range(8):
        PP.append(I(f"ds_read_b128 {ar(AQ+32+4*kk,4)}, v13 offset:{kk*1024}", "qb"))
    def stamp_item():
        if not STAMPS: return []
        b_ = ST.base + 2 * ST.n; ST.n += 1
        return [I(f"s_memtime s[{b_}:{b_+1}]")]
    PP += stamp_item()
    VZ = 244
    for x in f"""
    s_lshl_b32 s{sT0}, s{sP_}, 13
    s_add_u32 s{sT0}, s{sT0}, 0x18000
    v_add_u32 v{V_VADDR}, s{sT0}, v{V_LANE16}
    v_mov_b32 {L(1,0)}, 0
    v_mov_b32 {L(1,1)}, 0
    s_lshr_b32 s{sCNT}, s{sN}, 1
    s_sub_u32 s{sCNT}, s{sCNT}, 1
    v_mov_b32 v{VZ}, 0
    v_mov_b32 v{VZ+1}, 0
    v_mov_b32 v{VZ+2}, 0
    v_mov_b32 v{VZ+3}, 0
    s_mov_b32 s{sTHR}, {NEGBIG}
    """.strip().split("\n"): PP.append(I(x.strip()))
    def qk_q(dst_par, q, czero):
        return [mfma(S(dst_par, q), ar(AK + 4 * kk, 4), ar(AQ + 32 * q + 4 * kk, 4),
                     S(dst_par, q) if kk else ("0" if czero else vr(VN + 16 * q, 16))) for kk in range(8)]
    def zero_mfmas(qs=(0, 1)):
        return [mfma(O(q, dt), vr(VZ, 4), vr(VZ, 4), "0") for q in qs for dt in range(4)]
    def init_q(q):
        T = VX + q
        R = [f"v_max3_f32 v{T}, {S(0,q,0)}, {S(0,q,1)}, {S(0,q,2)}", f"v_max3_f32 v{T+2}, {S(0,q,3)}, {S(0,q,4)}, {S(0,q,5)}"]
        for e in range(6, 14, 4):
            R.append(f"v_max3_f32 v{T}, v{T}, {S(0,q,e)}, {S(0,q,e+1)}")
            R.append(f"v_max3_f32 v{T+2}, v{T+2}, {S(0,q,e+2)}, {S(0,q,e+3)}")
        R += [f"v_max3_f32 v{T}, v{T}, {S(0,q,14)}, {S(0,q,15)}", f"v_max3_f32 v{T}, v{T}, v{T+2}, s{sTHR}",
              f"v_mov_b32 v{T+2}, v{T}", "s_nop 1", f"v_permlane32_swap_b32 v{T}, v{T+2}", "s_nop 0", f"v_max_f32 v{T}, v{T}, v{T+2}"]
        R += [f"v_sub_f32 v{VN+16*q+e}, 0, v{T}" for e in range(16)]
        return R
    def sm0_stream():
        subs = [f"v_sub_f32 {S(0,q,e)}, {S(0,q,e)}, v{VX+q}" for q in range(2) for e in range(16)]
        stream = subs[:2]; si = 2
        for ins in sm_stream(0):
            stream.append(ins)
            if ins.startswith("v_exp") and si < 32:
                stream.append(subs[si]); si += 1
        return stream
    def gdma(G, grp, gaps4, tag):
        pre, d, post = grp
        G.put(gaps4[0] - 1, pre, "end")
        for g, x in zip(gaps4, d): G.put(g, I(x, tag), "mem")
        G.put(gaps4[3], I("\n".join(post)), "end"); G.used[gaps4[3]] += 4 * (len(post) - 1)
    def fit(G, start, stream, last, cap0=24):
        import copy
        cap = cap0
        while True:
            H = copy.deepcopy(G)
            try:
                g = H.stream(start, stream, cap=cap)
                if g <= last: break
            except IndexError:
                pass
            cap += 4
        G.stream(start, stream, cap=cap)
        return cap
    G = Gaps(qk_q(0, 0, True) + qk_q(0, 1, True) + zero_mfmas() + qk_q(1, 0, False) + qk_q(1, 1, False))
    PP.append(WL("a0"))
    for kk in range(7): G.put(kk, WL(f"a{kk+1}"), "end")
    G.put(7, WL("qb"), "end")
    G.put(0, f"v_mov_b32 v{V_T0+1}, {THR}", "end")
    for kk in range(8): G.put(8 + kk, I(kread(kk, 1), "k1"))
    G.put(20, f"v_xor_b32 v{V_KADDR}, 0x8000, v{V_KADDR}", "end")
    G.put(22, WVL(["K2"], ["k1"]), "end")
    G.put(23, "s_barrier", "mem")
    for kk in range(8): G.put(32 + kk, I(kread(kk, 0), "k2"))
    if FUSE:
        gdma(G, kdma(), [1, 2, 3, 4], "K3"); gdma(G, vdma(), [6, 7, 9, 11], "V0"); gdma(G, vdma(), [16, 17, 18, 19], "V1")
    gdma(G, kdma(), [24, 25, 26, 27], "K4"); gdma(G, kdma(), [29, 30, 31, 32], "K5"); gdma(G, vdma(), [34, 35, 36, 37], "V2")
    for g in range(8, 12): G.put(g, "s_nop 0", "end")
    g = G.stream(12, init_q(0)); assert g <= 21, g
    g = G.stream(max(g, 19), init_q(1)); assert g <= 29, g
    cap = fit(G, g, sm0_stream(), 39)
    print("P0 cap", cap)
    PP += G.items() + [WVL(["V0"], ["*"])]
    resolve(PP, A, vm0=["K2"] * 4 + ([] if FUSE else ["K3"] * 4 + ["V0"] * 4 + ["V1"] * 4))

    def full_step(par, lab, tail=None, extra=None):
        fx = {}
        add_fixed(fx, 0, "s_barrier")
        if par == 1:
            add_fixed(fx, 0, f"v_xor_b32 v{V_VADDR}, 0x8000, v{V_VADDR}")
        for f in range(8):
            add_fixed(fx, 1 + f, vread(f, 1 - par))
        add_fixed(fx, 15, "s_waitcnt lgkmcnt(0)")
        if par == 0:
            add_fixed(fx, 12, f"v_xor_b32 v{V_KADDR}, 0x8000, v{V_KADDR}")
        for kk in range(8):
            add_fixed(fx, 16 + kk, kread(kk, par))
        place_dma(fx, kdma(), [2, 6, 10, 13])
        place_dma(fx, vdma(), [18, 22, 25, 28])
        for g_, l_ in (extra or {}).items(): add_fixed(fx, g_, l_)
        rare_sites.append((lab, par, True))
        chk = check_stream(par, lab)
        add_fixed(fx, 30, chk[:2] + (tail or []))
        add_fixed(fx, 31, chk[2:] + [f"s_waitcnt vmcnt(16) lgkmcnt(0)"])
        gaps, cap = pack(32, fx, sm_stream(par), 30)
        print(lab, "cap", cap)
        weave(A, qk_mfmas(1 - par) + pv_mfmas(1 - par), gaps)

    ST.stamp()
    A.lines.append(".p2align 3")
    A.label("K2_LOOP")
    full_step(1, "K2_RARE_O", tail=[f"s_sub_u32 s{sCNT}, s{sCNT}, 1", f"s_cmp_eq_u32 s{sCNT}, 0"])
    A("s_cbranch_scc1 K2_X")
    CPF = os.environ.get("K2_CPF", "1") == "1"
    full_step(0, "K2_RARE_E", extra=({9: [f"s_cmp_eq_u32 s{sCNT}, 1", "s_cbranch_scc1 K2_CPFS", "K2_CPFS_ret:"]} if CPF else None))
    A("s_branch K2_LOOP")
    A.label("K2_X")
    A(f"s_cmp_eq_u32 s{sBLK}, 0")
    A("s_cbranch_scc0 K2_NM2")
    ST.stamp()
    def chk_put(G, par, lab, hn, gv, gb):
        rare_sites.append((lab, par, hn))
        chk = check_stream(par, lab)
        G.put(gv, chk[:2], "end"); G.put(gb, chk[2:], "end")
    PP = []
    G = Gaps(qk_mfmas(1) + pv_mfmas(1))
    G.put(0, "s_barrier", "mem")
    for f in range(8): G.put(1 + f, I(vread(f, 1), "v1"))
    G.put(15, WL("v1"), "end")
    G.put(12, f"v_xor_b32 v{V_KADDR}, 0x8000, v{V_KADDR}", "end")
    for kk in range(8):
        G.put(16 + kk, I(kread(kk, 0), "t1r"))
    for i in range(16):
        q, kk = i % 2, i // 2
        G.put(9 + i,
              I(f"ds_read_b128 {ar(AQ+32*q+4*kk,4)}, v{V_QA+q} offset:{kk*1024}", "t1r"))
    gdma(G, kdma(), [2, 6, 10, 13], "KB3")
    G.put(14, I(f"s_sub_u32 s{S_V}, s{S_V}, s{sKEND}\ns_subb_u32 s{S_V+1}, s{S_V+1}, 0\ns_add_u32 s{S_V+2}, s{S_V+2}, s{sKEND}"), "end")
    gdma(G, vdma(), [18, 22, 26, 28], "VB0")
    if not FUSE: G.put(3, [f"v_lshrrev_b32 v240, 6, v{V_LANE16}", f"v_mul_lo_u32 v240, v240, s11", f"v_lshrrev_b32 v240, 1, v240",
              ], "end")
    if not FUSE: G.put(5, [f"v_and_b32 v241, 48, v{V_LANE16}", f"v_lshl_add_u32 v240, v241, 3, v240"], "end")
    if not FUSE: G.put(30, I(f"buffer_load_dword v241, v240, s[4:7], s10 offen", "pf"), "mem")
    chk_put(G, 0, "K2_RARE_T1", True, 30, 31)
    G.put(31, WVL(["VAl"], ["*"]), "end")
    print("T1 cap", fit(G, 0, sm_stream(0, 0), 30))
    PP += G.items()
    G = Gaps(qk_mfmas(0, czero=True) + pv_mfmas(0))
    G.put(0, "s_barrier", "mem")
    G.put(0, f"v_xor_b32 v{V_VADDR}, 0x8000, v{V_VADDR}", "end")
    for f in range(8): G.put(1 + f, I(vread(f, 0), "v2"))
    G.put(15, WL("v2"), "end")
    for kk in range(8):
        G.put(16 + 2 * kk, I(kread(kk, 1), "t2r"))
        G.put(17 + 2 * kk, I(vread(kk, 1), f"t2v{kk}"))
    gdma(G, kdma(), [2, 6, 10, 13], "KB4")
    gdma(G, vdma(), [18, 22, 26, 28], "VB1")
    if FUSE:
        for f, g_ in enumerate((9, 11, 12, 14, 20, 24, 27, 29)):
            G.put(g_, I(f"buffer_store_dwordx4 v[{160+4*f}:{163+4*f}], v{V_LANE16}, s[{S_WS}:{S_WS+3}], s28 offen offset:{(f&1)*1024} sc1", "j2s"), "mem")
            if f & 1: G.put(g_, "s_add_u32 s28, s28, s29", "end")
    chk_put(G, 1, "K2_RARE_T2", False, 30, 31)
    G.put(31, [f"s_cmp_lg_u32 s{sN2B}, 0x8000", "s_cbranch_scc1 K2_NOMASK0"], "end")
    print("T2 cap", fit(G, 0, sm_stream(1, 1), 30))
    PP += G.items() + [I(x) for x in mask_stream(0, 0)] + [I("K2_NOMASK0:")]
    PP += stamp_item()
    PO = 176
    XM = VX + 4
    def lsum_save():
        R = [f"v_mov_b32 v{XM+1}, {L(1,1)}", f"v_mov_b32 v{XM+3}, {L(1,0)}", f"v_mov_b32 v{XM}, v{VN+16}", f"v_mov_b32 v{XM+2}, v{VN}",
             f"v_permlane32_swap_b32 {L(1,1)}, v{XM+1}", f"v_permlane32_swap_b32 {L(1,0)}, v{XM+3}", "s_nop 0",
             f"v_add_f32 v{XM+1}, v{XM+1}, {L(1,1)}", f"v_add_f32 v{XM+3}, v{XM+3}, {L(1,0)}"]
        return R
    def ctx_addr():
        return [f"s_lshl_b32 s{sT0}, s{sQB}, 2", f"s_lshl_b32 s{sT1}, s{sR}, 1", f"s_add_u32 s{sT0}, s{sT0}, s{sT1}", f"s_add_u32 s{sT0}, s{sT0}, s{sP_}",
                f"s_lshl_b32 s{sT0}, s{sT0}, 18", f"s_lshl_b32 s{sT1}, s{sHD}, 13", f"s_add_u32 s{sT0}, s{sT0}, s{sT1}",
                f"s_add_u32 s63, s{sT0}, {WS_CTX if not os.environ.get('K2_NOCTX') else 0x70000000}", f"s_add_u32 s64, s63, 4096"]
    def factors():
        F = XM + 10
        return [f"v_min_f32 v{F}, v{XM+2}, v{XM+4}", f"v_sub_f32 v{F+1}, v{F}, v{XM+2}", f"v_sub_f32 v{F+2}, v{F}, v{XM+4}",
                f"v_exp_f32 v{F+1}, v{F+1}", f"v_exp_f32 v{F+2}, v{F+2}", "s_nop 0",
                f"v_mul_f32 v{F}, v{F+1}, v{XM+3}", f"v_fmac_f32 v{F}, v{F+2}, v{XM+5}", f"v_rcp_f32 v{F}, v{F}", "s_nop 0",
                f"v_mul_f32 v{F+1}, v{F+1}, v{F}", f"v_mul_f32 v{F+2}, v{F+2}, v{F}"]
    CST = os.environ.get("K2_CST", "sc1")
    def combine(fi, tmp):
        F = XM + 10
        R = []
        for e in range(8): R.append(f"v_accvgpr_read_b32 v{tmp+e}, a{AO+8*fi+e}")
        for e in range(8): R.append(f"v_mul_f32 v{PO+8*fi+e}, v{PO+8*fi+e}, v{F+2}")
        for e in range(8): R.append(f"v_fmac_f32 v{PO+8*fi+e}, v{tmp+e}, v{F+1}")
        for i in range(4): R.append(f"v_cvt_pk_bf16_f32 v{PO+8*fi+i}, v{PO+8*fi+2*i}, v{PO+8*fi+2*i+1}")
        R.append(I(f"buffer_store_dwordx4 v[{PO+8*fi}:{PO+8*fi+3}], v{V_LANE16}, s[{S_WS}:{S_WS+3}], s{63+fi//4} offen offset:{(fi%4)*1024} {CST}", "cst"))
        return R
    PP.append(WL("t2v3"))
    G = Gaps(pv_mfmas(1, qmajor=True) + qk_q(1, 0, False) + qk_q(1, 1, False) + zero_mfmas((1,)))
    G.put(3, WL("t2v7"), "end")
    G.put(4, "s_barrier", "mem")
    addr = [f"s_and_b32 s{sT0}, s{sVOFF}, 0x8000", f"s_or_b32 s{sT0}, s{sT0}, 0x10000",
            [f"s_cmp_eq_u32 s{sP_}, 0", f"s_cselect_b32 s{sT1}, s{sT0}, 0x20000", f"s_cselect_b32 s{sT0}, 0x20000, s{sT0}"],
            f"s_lshl_b32 s{sT2}, s{sR}, 14", f"s_add_u32 s{sT1}, s{sT1}, s{sT2}", f"s_add_u32 s{sT0}, s{sT0}, s{sT2}",
            f"v_add_u32 v{XM+6}, s{sT1}, v{V_LANE16}", f"v_add_u32 v{XM+7}, s{sT0}, v{V_LANE16}",
            f"s_and_b32 s{sT0}, s{sKDST}, 0xffff", f"v_add_u32 v{XM+8}, s{sT0}, v{V_LANE16}", f"v_xor_b32 v{XM+9}, 0x2000, v{XM+8}"]
    for i in range(16):
        G.put(12 + i, I(f"ds_write_b128 v{XM+6}, {ar(AO+64+4*i,4)} offset:{i*1024}", "xw"), "mem"); G.used[12 + i] += 8
    G.put(11, I(f"ds_write_b64 v{XM+8}, v[{XM}:{XM+1}]", "xw"), "mem")
    G.put(20, f"v_xor_b32 v{V_KADDR}, 0x8000, v{V_KADDR}", "end")
    for kk in range(8): G.put(24 + kk, I(kread(kk, 0), "t3k"))
    G.put(31, WL("xw"), "end")
    G.put(32, "s_barrier", "mem")
    G.put(32, I(f"ds_read_b64 v[{XM+4}:{XM+5}], v{XM+9}", "xr"), "mem")
    for i in range(16):
        G.put(32 + i // 4, I(f"ds_read_b128 v[{PO+4*i}:{PO+4*i+3}], v{XM+7} offset:{i*1024}", "xr"), "mem")
    g = G.stream(0, lsum_save() + [f"v_mov_b32 {L(1,0)}, 0", f"v_mov_b32 {L(1,1)}, 0"] + addr); assert g <= 9, g
    g = G.stream(g, init_q(0)); assert g <= 14, g
    g = G.stream(g, init_q(1), cap=28); assert g <= 22, g
    sm0 = sm0_stream()
    NH = int(os.environ.get("K2_T3H", "70"))
    print("T3 cap", fit(G, g, sm0[:NH], 35))
    PP += G.items() + [I(x) for x in sm0[NH:] + ctx_addr()]
    if FUSE:
        PP += [I(f"s_add_u32 s{sT0}, s3, {FL_W}"), WVL(["j2s"], ["*"]), I("s_barrier"), I(f"buffer_store_dword v248, v249, s[{S_WS}:{S_WS+3}], s{sT0} offen sc1", "fl")]
    else:
        PP += [WL("*"), I("s_barrier")]
    misc = []
    for grp, tag in ((kdma(), "KB5"), (vdma(), "VB2")):
        pre, d, post = grp
        misc.append([I(x) for x in pre] + [I("s_nop 0"), I(d[0], tag), I(d[1], tag)])
        misc.append([I(d[2], tag), I(d[3], tag)] + [I(x) for x in post])
    for i in range(0, 8, 2):
        grp = []
        for k in (i, i + 1):
            grp += [I(f"s_add_u32 m0, s35, {k*1024}"), I("s_nop 0"), I(f"buffer_load_dwordx4 v{V_J2}, s[4:7], s10 offen lds", "j2"), I("s_add_u32 s10, s10, s11")]
        misc.append(grp)
    if FUSE: misc = misc[:4]
    PP += misc[0] + misc[1]
    PP += [I(x) for x in factors()]
    for fi in range(8):
        PP += [x if isinstance(x, Item) else I(x) for x in combine(fi, VP + 16 + 8 * (fi % 2))]
        if fi + 2 < len(misc): PP += misc[fi + 2]
        if fi % 2 == 1: PP.append(I(mfma(O(0, fi // 2), vr(VZ, 4), vr(VZ, 4), "0")))
    for x in f"""
    s_getpc_b64 s[52:53]
    s_add_u32 s52, s52, {'KC_START' if FUSE else 'kc_kernel'}-.
    s_addc_u32 s53, s53, 0
    v_lshlrev_b32 v240, 6, v0
    global_load_dword v241, v240, s[52:53]
    s_mov_b32 s{sBLK}, 1
    s_mov_b32 s{sQB}, s{sPR}
    s_mov_b32 s{sCNT}, s{sPR}
    s_cmp_eq_u32 s{sPR}, 0
    """.strip().split("\n"): PP.append(I(x.strip()))
    PP.append(WV("VB1"))
    PP += stamp_item()
    resolve(PP, A, vm0=["KB1"] * 4 + ["VAm"] * 4 + ["KB2"] * 4 + ["VAl"] * 4)
    A("s_cbranch_scc0 K2_LOOP")
    A("s_waitcnt vmcnt(0)")
    A("s_branch K2_LAST")
    A.label("K2_NM2")
    ST.stamp()
    G = Gaps(qk_mfmas(1) + pv_mfmas(1))
    G.put(0, "s_barrier", "mem")
    for f in range(8): G.put(1 + f, I(vread(f, 1), "v1"))
    G.put(15, WL("v1"), "end")
    chk_put(G, 0, "K2_RARE_M", True, 30, 31)
    G.put(31, WV("*"), "end")
    print("NM2 cap", fit(G, 0, sm_stream(0, 0), 30))
    resolve(G.items(), A)
    A.label("K2_LAST")
    PP = [I("s_barrier"), I(f"v_xor_b32 v{V_VADDR}, 0x8000, v{V_VADDR}")]
    PP += [I(vread(f, 0), "v2") for f in range(8)]
    if FUSE:
        PP += [I(f"v_mov_b32 v242, 0x5a17"), I(f"v_min_u32 v243, 1, v{V_LANE16}"), I("v_lshlrev_b32 v243, 30, v243"), I(f"s_add_u32 s{sT0}, s3, {FL_J2}"),
               I(f"buffer_store_dword v242, v243, s[{S_WS}:{S_WS+3}], s{sT0} offen sc1", "fl")]
    for f in range(8):
        for e in range(2):
            if not FUSE: PP.append(I(f"ds_read_b64_tr_b16 {ar(AQ+4*f+2*e,2)}, v{V_J2+1} offset:{e*4096+f*64}", "j2r"))
    sm = sm_stream(1, 1)
    PP += [I(x) for x in sm[:20]] + [WL("v2")]
    G = Gaps(pv_mfmas(0))
    for f in range(8): G.put(2 * f + 1, I(vread(f, 1), "v3"))
    if not FUSE: G.put(1, WL("j2r"), "end")
    for f in range(8):
        if FUSE: break
        G.put(2 * f + 2 if f < 7 else 15, I(f"buffer_store_dwordx4 {ar(AQ+4*f,4)}, v{V_LANE16}, s[{S_WS}:{S_WS+3}], s28 offen offset:{(f&1)*1024} {CST}", "j2s"), "mem")
        if f & 1 and f < 7: G.put(2 * f + 2, "s_add_u32 s28, s28, s29", "end")
    chk_put(G, 1, "K2_RARE_L", False, 15, 15)
    G.put(15, WL("v3"), "end")
    print("LAST cap", fit(G, 0, sm[20:], 15))
    PP += G.items()
    PP += stamp_item()
    G = Gaps(pv_mfmas(1, qmajor=True))
    addr = [f"s_lshl_b32 s{sT0}, s{sW}, 14", f"v_add_u32 v{XM+6}, s{sT0}, v{V_LANE16}", f"v_xor_b32 v{XM+7}, 0x8000, v{XM+6}",
            f"v_add_u32 v{XM+8}, s35, v{V_LANE16}", f"v_xor_b32 v{XM+9}, 0x4000, v{XM+8}"]
    G.put(0, "s_nop 1", "oth")
    g = G.stream(0, lsum_save() + addr + ctx_addr()); assert g <= 6, g
    G.put(7, I(f"ds_write_b64 v{XM+8}, v[{XM}:{XM+1}]", "xw"), "mem")
    for g in range(5, 10): G.put(g, "s_nop 1", "end")
    for i in range(12):
        G.put(10 + i // 2, I(f"ds_write_b128 v{XM+6}, {ar(AO+64+4*i,4)} offset:{i*1024}", "xw"), "mem")
    PP += G.items()
    for i in range(12, 16):
        PP.append(I(f"ds_write_b128 v{XM+6}, {ar(AO+64+4*i,4)} offset:{i*1024}", "xw"))
    PP += [WL("xw"), I("s_barrier"), I(f"ds_read_b64 v[{XM+4}:{XM+5}], v{XM+9}", "ml")]
    for i in range(16):
        PP.append(I(f"ds_read_b128 v[{PO+4*i}:{PO+4*i+3}], v{XM+7} offset:{i*1024}", f"x{i//2}"))
    PP += stamp_item()
    if FUSE:
        PP += [I("v_lshlrev_b32 v240, 7, v0"), I(f"s_mov_b32 s{sT0}, {WS_FLAG+FL_W}"), I(f"buffer_load_dword v241, v240, s[{S_WS}:{S_WS+3}], s{sT0} offen sc1", "jp")]
    PP.append(WL("ml"))
    PP += [I(x) for x in factors()]
    for fi in range(8):
        c = combine(fi, VP + 8 * (fi % 2))
        PP += [I(x) for x in c[:8]] + [WL(f"x{fi}")] + [x if isinstance(x, Item) else I(x) for x in c[8:]]
    vmE, lgE = resolve(PP, A)
    ST.stamp()
    if FUSE:
        if STAMPS:
            vmE = vmE + ["stamp"] * ST.flush(4, f"s{sW}", 12)
        tailfn(A, vmE)
    else:
        if STAMPS: A("s_waitcnt vmcnt(0)")
        ST.stamp()
        ST.flush(4, f"s{sW}", 12)
    A("K2_END:")
    A("s_endpgm")
    if CPF:
        A(f"""
        K2_CPFS:
        s_getpc_b64 s[52:53]
        s_sub_u32 s52, s52, .-K2_X
        s_subb_u32 s53, s53, 0
        s_mul_i32 s54, s{sBLK}, K2_NM2-K2_X
        s_add_u32 s52, s52, s54
        s_addc_u32 s53, s53, 0
        v_lshlrev_b32 v240, 5, v0
        v_add_u32 v240, v240, v0
        v_lshlrev_b32 v240, 0, v240
        v_and_b32 v240, 0xffffffe0, v240
        global_load_dword v242, v240, s[52:53]
        s_branch K2_CPFS_ret
        """)
    for lab, par, hn in rare_sites:
        gen_rare(A, lab, par, hn)
```

```python
from asmlib import *
from sched import *
import os
LOG2E = 0x3fb8aa3b
MAGIC = 0x5a17
def E(k, d): return int(os.environ.get(k, str(d)))
def lines(s):
    return [I(x.strip()) for x in s.strip().split("\n") if x.strip()]
def its(L):
    return [x if isinstance(x, Item) else I(x) for x in L]

def gen_kc(A=None, vmE=None):
    FUSED = A is not None
    name = "kc_kernel"
    if not FUSED:
        A = Asm()
        A.lines.append(kernel_header(name))
        A("s_cmp_ge_u32 s2, 256")
        A("s_cbranch_scc1 KC_END")
    else:
        A("KC_START:")
    ST = Stamper(A, 2 if os.environ.get('NOFUSE') else 1)
    ST.stamp()
    def stamp_item():
        if not STAMPS: return []
        b = ST.base + 2 * ST.n; ST.n += 1
        return [I(f"s_memtime s[{b}:{b+1}]")]
    S_WS, S_X, S_O, S_B = 20, 16, 12, 24
    sW, sRB, sCB, sTS, sNT = 30, 31, 32, 33, 34
    sA, sWo, sT0, sT1, sT2, sM0, sFL = 35, 36, 37, 38, 39, 40, 41
    sW1, sACT, sFW, sL2E, sPT, sKQ, sHU, sNZ = 42, 43, 44, 45, 46, 47, 48, 49
    VA, VW, VM, VRM, VMG, VRR, VCA, VPL, VF0 = 4, 6, 8, 9, 10, 11, 12, 14, 3
    ACC, FR, T = 16, 80, 192
    WS = f"s[{S_WS}:{S_WS+3}]"
    S_F, S_S, sXC = 52, 56, 50
    sRG, sCG2, sFA = 51, 60, 61
    OMAP = E('KC_OMAP', 1)
    FAST = os.environ.get("KC_FAST", "bc")
    LOCAL = E("KC_LOCAL", 0)
    def st2(txt, tag, cls):
        if cls not in FAST: return [I(txt.format(srd=WS, fl='sc1'), tag)]
        return [I(txt.format(srd=f's[{S_F}:{S_F+3}]', fl='').rstrip(), tag), I(txt.format(srd=f's[{S_S}:{S_S+3}]', fl='sc1'), tag)]
    MAP = f"""s_bfe_u32 s{sT0}, s2, 0x20001
    s_lshl_b32 s{sT0}, s{sT0}, 2
    s_add_u32 s{sT0}, s{sT0}, s{sT1}
    s_and_b32 s{sT1}, s2, 1""" if not LOCAL else f"""s_and_b32 s{sT0}, s2, 7
    s_lshl_b32 s{sT0}, s{sT0}, 1
    s_lshr_b32 s{sT2}, s{sT1}, 1
    s_add_u32 s{sT0}, s{sT0}, s{sT2}
    s_and_b32 s{sT1}, s{sT1}, 1"""
    if OMAP == 0:
        OROLE = f"""s_lshl_b32 s{sKQ}, s{sT1}, 1
        s_and_b32 s{sT1}, s{sCB}, 1
        s_add_u32 s{sKQ}, s{sKQ}, s{sT1}
        s_mov_b32 s{sRG}, s{sT0}
        s_and_b32 s{sCG2}, s{sCB}, 6"""
    else:
        OROLE = f"""s_bfe_u32 s{sKQ}, s2, 0x20001
        s_lshr_b32 s{sRG}, s2, 5
        s_and_b32 s{sT1}, s2, 1
        {"s_lshl_b32 s%d, s%d, 1" % (sRG, sRG) if OMAP == 1 else "s_lshl_b32 s%d, s%d, 3" % (sT1, sT1)}
        s_add_u32 s{sRG}, s{sRG}, s{sT1}
        s_bfe_u32 s{sCG2}, s2, 0x20003
        s_lshl_b32 s{sCG2}, s{sCG2}, 1"""
    A(f"""
    {"" if FUSED else "s_load_dwordx2 s[%d:%d], s[0:1], %d" % (S_WS, S_WS+1, KA['ws'])}
    s_load_dwordx2 s[{S_X}:{S_X+1}], s[0:1], {KA['x']}
    s_load_dwordx2 s[{S_O}:{S_O+1}], s[0:1], {KA['out']}
    s_load_dwordx2 s[{S_B}:{S_B+1}], s[0:1], {KA['b1']}
    v_lshrrev_b32 v3, 6, v0
    v_and_b32 v2, 63, v0
    v_readfirstlane_b32 s{sW}, v3
    v_lshlrev_b32 v1, 4, v2
    s_lshr_b32 s{sT1}, s2, 3
    s_and_b32 s{sCB}, s{sT1}, 7
    s_lshr_b32 s{sT1}, s{sT1}, 3
    {MAP}
    s_lshl_b32 s{sRB}, s{sT0}, 1
    s_add_u32 s{sRB}, s{sRB}, s{sT1}
    {OROLE}
    s_mov_b32 s{sT0}, s{sRG}
    s_lshl_b32 s{sA}, s{sT0}, 2
    s_add_u32 s{sA}, s{sA}, s{sW}
    s_lshl_b32 s{sA}, s{sA}, 18
    s_lshl_b32 s{sT1}, s{sKQ}, 16
    s_add_u32 s{sA}, s{sA}, s{sT1}
    s_add_u32 s{sA}, s{sA}, {WS_CTX}
    s_lshl_b32 s{sPT}, s{sT0}, 17
    s_mov_b32 s{sWo}, s{sCG2}
    s_lshr_b32 s{sT1}, s{sW}, 1
    s_add_u32 s{sWo}, s{sWo}, s{sT1}
    s_lshl_b32 s{sWo}, s{sWo}, 19
    s_lshl_b32 s{sT1}, s{sKQ}, 17
    s_add_u32 s{sWo}, s{sWo}, s{sT1}
    s_and_b32 s{sT1}, s{sW}, 1
    s_lshl_b32 s{sT1}, s{sT1}, 12
    s_add_u32 s{sWo}, s{sWo}, s{sT1}
    s_add_u32 s{sWo}, s{sWo}, {WS_WOF}
    s_lshl_b32 s{sM0}, s{sW}, 12
    s_mov_b32 s{S_WS+2}, {WS_END}
    s_mov_b32 s{S_WS+3}, 0x00020000
    s_waitcnt lgkmcnt(0)
    """)
    def sdma(slot, tag):
        c = [I(f"buffer_load_dwordx4 v1, {WS}, s{sA} offen offset:{i*1024} lds", tag) for i in range(4)]
        w = [I(f"buffer_load_dwordx4 v1, {WS}, s{sWo} offen offset:{i*1024} lds", tag) for i in range(4)]
        return ([f"s_add_u32 m0, s{sM0}, {slot*32768}"], c, [f"s_add_u32 s{sA}, s{sA}, 4096"]), \
               ([f"s_add_u32 m0, s{sM0}, {slot*32768+16384}"], w, [f"s_add_u32 s{sWo}, s{sWo}, 8192"])
    P = []
    nw1 = 0
    def w1load(n):
        nt, ks = n // 32, n % 32
        pre = []
        if n == 32: pre = [I(f"s_sub_u32 s{sW1}, s{sW1}, {15*4096}")]
        elif ks % 2 == 0 and ks: pre = [I(f"s_add_u32 s{sW1}, s{sW1}, 4096")]
        return pre + [I(f"buffer_load_dwordx4 {ar(8*ks+4*nt,4)}, v1, {WS}, s{sW1} offen offset:{(ks%2)*2048+nt*1024}", f"w1_{n}")]
    def more(n):
        nonlocal nw1
        R = []
        for _ in range(n):
            if nw1 < 64:
                R += w1load(nw1); nw1 += 1
        return R
    W1SET = [f"s_lshl_b32 s{sW1}, s{sCB}, 2", f"s_add_u32 s{sW1}, s{sW1}, s{sW}", f"s_lshl_b32 s{sW1}, s{sW1}, 16", f"s_add_u32 s{sW1}, s{sW1}, {WS_W1F}",
             f"s_cmp_eq_u32 s{sCB}, 7", f"s_cselect_b32 s{sW1}, 0x80000000, s{sW1}"]
    NPW = E("KC_NPW", 4) if FUSED else 2
    if not FUSED:
        for st in range(2):
            for pre, d, post in sdma(st, f"S{st}"):
                P += its(pre) + [I("s_nop 0")] + d + its(post)
        P += its(W1SET)
    else:
        P += its(W1SET) + lines(f"""
        s_sub_u32 s{sT1}, 15, s{sRG}
        s_cmp_lt_u32 s{sRG}, 8
        s_cselect_b32 s{sT1}, s{sRG}, s{sT1}
        s_cselect_b32 s{sHU}, 0, {FL_J2-FL_CTX}
        s_lshl_b32 s{sT1}, s{sT1}, 12
        s_lshl_b32 s{sT2}, s{sKQ}, 8
        s_add_u32 s{sT1}, s{sT1}, s{sT2}
        s_add_u32 s{sHU}, s{sHU}, s{sT1}
        s_add_u32 s{sHU}, s{sHU}, {WS_FLAG+FL_CTX}
        v_and_b32 v5, 3, v2
        v_bfe_u32 v6, v2, 2, 1
        v_lshlrev_b32 v5, 10, v5
        v_lshl_add_u32 v5, v6, 7, v5
        s_add_u32 s{sT0}, s3, {FL_CTX}
        """)
        P += [WV("jp")] + lines("""
        v_cmp_ne_u32 vcc, v242, v241
        s_cbranch_vccnz KC_JSPIN
        KC_JSPIN_RET:
        s_barrier
        """)
        for st in range(NPW):
            pre, d, post = sdma(st, f"S{st}")[1]
            P += its(pre) + [I("s_nop 0")] + d + its(post)
            if st == E("KC_FLS", 1):
                P += [WV("cst"), I("s_barrier"), I(f"buffer_store_dword v242, v243, {WS}, s{sT0} offen sc1", "fl")]
        P += more(E("KC_P1", 4))
        P.append(I(f"buffer_load_dword v241, v5, {WS}, s{sHU} offen sc1", "cp"))
        P += more(E("KC_P2", 2))
    P += lines(f"""
    s_getreg_b32 s{sXC}, hwreg(HW_REG_XCC_ID, 0, 4)
    s_add_u32 s{sXC}, s{sXC}, {MAGIC}
    s_lshl_b32 s{sFL}, s{sRB}, 10
    s_add_u32 s{sFL}, s{sFL}, {WS_FLAG}
    s_lshl_b32 s{sFW}, s{sCB}, 7
    s_add_u32 s{sFW}, s{sFW}, s{sFL}
    s_lshl_b32 s{sFA}, s{sRG}, 11
    s_lshl_b32 s{sT0}, s{sKQ}, 9
    s_add_u32 s{sFA}, s{sFA}, s{sT0}
    s_lshl_b32 s{sT0}, s{sCG2}, 6
    s_add_u32 s{sFA}, s{sFA}, s{sT0}
    s_add_u32 s{sFA}, s{sFA}, {WS_FLAG}
    s_cmp_eq_u32 s{sW}, 0
    s_cselect_b32 s{sFW}, s{sFW}, 0x80000000
    s_cselect_b32 s{sFA}, s{sFA}, 0x80000000
    v_mov_b32 v{VMG}, s{sXC}
    v_lshlrev_b32 v{VF0}, 28, v2
    v_lshrrev_b32 v15, 4, v2
    v_lshlrev_b32 v15, 28, v15
    v_or_b32 v{VF0}, v{VF0}, v15
    v_lshrrev_b32 v{VF0}, 1, v{VF0}
    v_and_b32 v{VPL}, 15, v2
    v_lshlrev_b32 v{VPL}, 7, v{VPL}
    s_add_u32 s{sT0}, s{sFW}, 98304
    """)
    P.append(I(f"buffer_store_dword v{VMG}, v{VF0}, {WS}, s{sT0} offen sc1", "xc"))
    if FUSED:
        P += [WV("cp")] + lines("""
        v_cmp_ne_u32 vcc, v242, v241
        s_cbranch_vccnz KC_CSPIN
        KC_CSPIN_RET:
        """) + stamp_item()
        for st in range(2):
            pre, d, post = sdma(st, f"S{st}")[0]
            P += its(pre) + [I("s_nop 0")] + d + its(post)
    P += lines(f"""
    s_lshr_b32 s{sT0}, s{sW}, 1
    s_lshl_b32 s{sT0}, s{sT0}, 13
    v_add_u32 v{VA}, s{sT0}, v1
    v_add_u32 v{VA+1}, 0x10000, v{VA}
    s_and_b32 s{sT0}, s{sW}, 1
    s_lshl_b32 s{sT0}, s{sT0}, 13
    s_add_u32 s{sT0}, s{sT0}, 16384
    v_add_u32 v{VW}, s{sT0}, v1
    v_add_u32 v{VW+1}, 0x10000, v{VW}
    """)
    NS = 4
    def freads(k):
        st, ks = k // 4, k % 4
        slot = st % 4
        b = FR + 16 * (k % NS)
        hi, off = slot // 2, (slot % 2) * 32768
        return [I(f"ds_read_b128 v[{b}:{b+3}], v{VA+hi} offset:{off+ks*1024}", f"f{k}"),
                I(f"ds_read_b128 v[{b+8}:{b+11}], v{VW+hi} offset:{off+ks*2048}", f"f{k}"),
                I(f"ds_read_b128 v[{b+4}:{b+7}], v{VA+hi} offset:{off+4096+ks*1024}", f"f{k}"),
                I(f"ds_read_b128 v[{b+12}:{b+15}], v{VW+hi} offset:{off+ks*2048+1024}", f"f{k}")]
    mf = []
    for k in range(64):
        b = FR + 16 * (k % NS)
        for q, nt in ((0, 0), (1, 0), (0, 1), (1, 1)):
            acc = vr(ACC + 16 * (2 * q + nt), 16)
            mf.append(mfma(acc, vr(b + 8 + 4 * nt, 4), vr(b + 4 * q, 4), acc if k else "0"))
    G = Gaps(mf)
    for k in range(64):
        g0 = 4 * k
        if k + 2 < 64:
            if (k + 2) % 4 == 0: G.put(g0, "s_barrier", "mem")
            for i, r in enumerate(freads(k + 2)): G.put(g0 + i, r)
        if k + 1 < 64:
            if (k + 3) % 4 == 0 and k + 3 < 64:
                G.put(g0 + 3, WVL([f"S{(k+3)//4}"], [f"f{k+1}"]), "end")
            else:
                G.put(g0 + 3, WL(f"f{k+1}"), "end")
    def place(g, grp, step):
        pre, d, post = grp
        G.put(g - 1, pre, "end")
        for i, x in enumerate(d): G.put(g + i * step, x, "mem")
        G.put(g + 3 * step, post, "oth")
    c, w = sdma(2, "S2"); place(1, c, 1)
    if NPW <= 2: place(5, w, 1)
    for st in range(3, 16):
        gb = 4 * (4 * (st - 2) - 2) + E("KC_OD", 0)
        c, w = sdma(st % 4, f"S{st}")
        place(gb + 1, c, 2)
        if st >= NPW: place(gb + 9, w, 2)
    lastdma = 4 * (4 * 13 - 2) + 15 + E('KC_OD', 0)
    XR, GA, CB1, SB, B1 = 144, 152, 168, T, T + 16
    B1F = T + 32
    SET = [f"s_mov_b32 s{S_X+2}, 0x200000", f"s_mov_b32 s{S_X+3}, 0x00020000", f"s_mov_b32 s{S_O+2}, 0x200000", f"s_mov_b32 s{S_O+3}, 0x00020000",
           f"s_mov_b32 s{S_B+2}, 3584", f"s_mov_b32 s{S_B+3}, 0x00020000", f"s_mov_b32 s{sL2E}, {LOG2E}",
           f"v_lshrrev_b32 v15, 4, v2", f"v_bfe_u32 v{VCA}, v2, 3, 1", f"v_lshlrev_b32 v{VM}, 6, v15", f"v_lshl_add_u32 v{VM}, v{VCA}, 4, v{VM}",
           f"s_lshl_b32 s{sT0}, s{sW}, 9", f"v_add_u32 v{VM}, s{sT0}, v{VM}",
           f"v_and_b32 v{VCA+1}, 7, v2", f"v_lshrrev_b32 v{VRM}, 1, v{VM}", f"v_lshl_add_u32 v{VRM}, v{VCA+1}, 10, v{VRM}",
           f"s_lshl_b32 s{sT0}, s{sRB}, 3", f"s_add_u32 s{sT0}, s{sT0}, s{sCB}", f"s_lshl_b32 s{sT0}, s{sT0}, 13"]
    for m in range(2):
        for qd in range(2):
            SET.append(I(f"buffer_load_dwordx2 v[{XR+4*m+2*qd}:{XR+4*m+2*qd+1}], v{VRM}, s[{S_X}:{S_X+3}], s{sT0} offen offset:{128*m+16*qd}", "sm"))
    for dst, idx in ((GA, 2), (CB1, 4), (SB, 3)):
        SET.append(f"s_mov_b32 s{sT1}, {idx*2048}")
        for m in range(2):
            for qd in range(2):
                SET.append(I(f"buffer_load_dwordx4 v[{dst+8*m+4*qd}:{dst+8*m+4*qd+3}], v{VM}, {WS}, s{sT1} offen offset:{256*m+32*qd}", "sm"))
    SET += [f"v_lshlrev_b32 v{VCA}, 9, v{VCA}", f"v_lshl_add_u32 v{VCA}, v{VCA+1}, 4, v{VCA}",
            f"v_lshl_add_u32 v{VCA+1}, v15, 10, v{VCA}",
            f"s_lshl_b32 s{sT0}, s{sCB}, 2", f"s_add_u32 s{sT0}, s{sT0}, s{sW}", f"s_lshl_b32 s{sT0}, s{sT0}, 7",
            f"v_lshrrev_b32 v15, 5, v2", f"v_lshlrev_b32 v15, 3, v15"]
    for nt in range(2):
        for i in range(4):
            SET.append(I(f"buffer_load_dwordx2 v[{B1+8*nt+2*i}:{B1+8*nt+2*i+1}], v15, s[{S_B}:{S_B+3}], s{sT0} offen offset:{64*nt+16*i}", "sm"))
    SET += [
            (f"s_and_b32 s{sT2}, s{sFL}, 0xfffffbff" if "a" in FAST else f"s_mov_b32 s{sT2}, s{sFL}"), f"s_add_u32 s{sT2}, s{sT2}, 98304",
            f"v_and_b32 v15, {'0x780' if 'a' in FAST else '0x380'}, v{VPL}",
            I(f"buffer_load_dword v{VRR}, v15, {WS}, s{sT2} offen sc1", "sm"),
            [f"s_cmp_eq_u32 s{sW}, 0", f"s_cselect_b32 s{sFL}, s{sFL}, 0x80000000", f"s_cselect_b32 s{sNZ}, 0, -1"],
            f"v_mov_b32 v{VMG}, {MAGIC}",
            f"s_lshr_b32 s{sT0}, s{sW}, 1", f"s_lshl_b32 s{sTS}, s{sRB}, 1", f"s_add_u32 s{sTS}, s{sTS}, s{sT0}",
            f"s_and_b32 s{sT1}, s{sW}, 1", f"s_lshl_b32 s{sNT}, s{sCB}, 1", f"s_add_u32 s{sNT}, s{sNT}, s{sT1}",
            f"s_lshl_b32 s{sACT}, s{sKQ}, 21", f"s_add_u32 s{sACT}, s{sACT}, s{sPT}", f"s_lshl_b32 s{sT0}, s{sT0}, 16", f"s_add_u32 s{sACT}, s{sACT}, s{sT0}",
            f"s_add_u32 s{sT0}, s{sCG2}, s{sT1}", f"s_lshl_b32 s{sT0}, s{sT0}, 12", f"s_add_u32 s{sACT}, s{sACT}, s{sT0}",
            f"s_add_u32 s{sACT}, s{sACT}, {WS_PART}",
            f"s_lshr_b32 s{sT0}, s{sCB}, 2", f"s_lshl_b32 s{sT1}, s{sRB}, 1", f"s_add_u32 s{sT0}, s{sT0}, s{sT1}",
            f"s_and_b32 s{sT1}, s{sCB}, 3", f"s_lshl_b32 s{sT1}, s{sT1}, 7",
            f"s_lshl_b32 s{sHU}, s{sT0}, 15", f"s_add_u32 s{sHU}, s{sHU}, s{sT1}", f"s_lshl_b32 s{sT2}, s{sW}, 13", f"s_add_u32 s{sHU}, s{sHU}, s{sT2}"]
    if FUSED:
        G.stream(40, ["v_lshlrev_b32 v184, 7, v0", f"v_mov_b32 v186, {MAGIC}", f"s_mov_b32 s62, {WS_FLAG+FL_J2}"])
        G.put(168, I(f"buffer_load_dword v185, v184, {WS}, s62 offen sc1", "lp"), "mem")
        gl_ = G.stream(210, [[WV("lp"), "v_cmp_ne_u32 vcc, v186, v185"], ["s_cbranch_vccnz KC_LSPIN", "KC_LSPIN_RET:"]])
        assert gl_ < 232
    g = G.stream(E("KC_SETG", 120), SET)
    print("KC set end", g)
    X = 184 - 40
    XF = T + 16
    PREP = [WV("sm"), f"v_cmp_eq_u32 vcc, s{sXC}, v{VRR}", f"s_mov_b32 s{S_F}, s{S_WS}", f"s_mov_b32 s{S_F+1}, s{S_WS+1}", f"s_mov_b32 s{S_F+3}, 0x00020000",
            f"s_mov_b32 s{S_S}, s{S_WS}", f"s_mov_b32 s{S_S+1}, s{S_WS+1}", f"s_mov_b32 s{S_S+3}, 0x00020000",
            [f"s_cmp_eq_u32 vcc_lo, -1", f"s_cselect_b32 s{S_F+2}, {WS_END}, 0", f"s_cselect_b32 s{S_S+2}, 0, {WS_END}"]]
    for i in range(16):
        PREP += [f"v_lshlrev_b32 v{B1F+2*i}, 16, v{B1+i}", f"v_and_b32 v{B1F+2*i+1}, 0xffff0000, v{B1+i}"]
    for e in range(32): PREP.append(f"v_mul_f32 v{B1F+e}, s{sL2E}, v{B1F+e}")
    for i in range(8):
        PREP += [f"v_lshlrev_b32 v{XF+2*i}, 16, v{XR+i}", f"v_and_b32 v{XF+2*i+1}, 0xffff0000, v{XR+i}"]
    for e in range(16): PREP.append(f"v_add_f32 v{CB1+e}, 1.0, v{CB1+e}")
    for e in range(16): PREP.append(f"v_cvt_pk_bf16_f32 v{CB1+e}, v{CB1+e}, v{CB1+e}")
    for e in range(16): PREP.append(f"v_lshlrev_b32 v{CB1+e}, 16, v{CB1+e}")
    for e in range(16): PREP.append(f"v_mul_f32 v{SB+e}, s{sL2E}, v{SB+e}")
    g = G.stream(g + 24, PREP)
    print("KC prep end", g)
    if E("KC_W1O", 4):
        gg = 10
        while nw1 < 64 and gg < lastdma:
            w = w1load(nw1); nw1 += 1
            if len(w) > 1: G.put(gg - 1, w[0], "end")
            G.put(gg, w[-1], "mem"); gg += E("KC_W1O", 4)
    gg = lastdma + 3
    while gg < E("KC_W1T", 250) and nw1 < 64:
        w = w1load(nw1); nw1 += 1
        if len(w) > 1: G.put(gg - 1, w[0], "end")
        G.put(gg, w[-1], "mem"); gg += 3
    P += [WV("S0"), I("s_barrier")] + freads(0) + freads(1) + [WL("f0")]
    P += stamp_item()
    P += G.items()
    P += stamp_item()
    if E("KC_XLIN", 0):
        P += lines(f"""
        s_lshl_b32 s{sACT}, s2, 2
        s_add_u32 s{sACT}, s{sACT}, s{sW}
        s_lshl_b32 s{sACT}, s{sACT}, 13
        s_add_u32 s{sACT}, s{sACT}, {WS_PART}
        """)
    if E("KC_XWAIT", 0):
        P += [I("s_sleep 127")] * E("KC_XWAIT", 0) + stamp_item()
    P += [I("s_nop 7"), I(f"s_add_u32 s{sT0}, s{sACT}, {4096 if E('KC_XLIN', 0) else 32768}")]
    for q, nt in ((0, 0), (1, 0), (0, 1), (1, 1)):
        for j in range(2):
            a0 = ACC + 16 * (2 * q + nt) + 8 * j
            for i in range(4): P.append(I(f"v_cvt_pk_bf16_f32 v{a0+i}, v{a0+2*i}, v{a0+2*i+1}"))
            P += st2(f"buffer_store_dwordx4 v[{a0}:{a0+3}], v1, {{srd}}, s{sACT if q == 0 else sT0} offen offset:{(2*nt+j)*1024} {{fl}}", "pst", "a")
    P += stamp_item()
    P += more(E("KC_MA", 10))
    P += [WV("pst"), I("s_barrier")] + st2(f"buffer_store_dword v{VMG}, v{VF0}, {{srd}}, s{sFA} offen {{fl}}", "fl", "a")
    P += stamp_item()
    P += more(E("KC_MB", 16))
    P += [I(f"s_and_b32 s{sT2}, s{sFL}, 0xfffffbff"), I(f"buffer_load_dword v15, v{VPL}, {WS}, s{sT2} offen sc1", "pl")]
    P += more(E("KC_MC", 4))
    P += [WV("pl")] + lines(f"""
    v_cmp_eq_u32 vcc, {MAGIC}, v15
    s_or_b32 s{sT0}, vcc_lo, s{sNZ}
    s_cmp_eq_u32 s{sT0}, -1
    s_cbranch_scc0 KC_PA_SLOW
    KC_PA_OK:
    s_barrier
    """)
    P += stamp_item()
    PR = 80
    for kq in range(4):
        for m in range(2):
            P.append(I(f"s_add_u32 s{sT0}, s{sHU}, {WS_PART+kq*2*MB+m*4096}"))
            d = PR + 8 * kq + 4 * m
            P.append(I(f"buffer_load_dwordx4 v[{d}:{d+3}], v{VCA+1}, {WS}, s{sT0} offen sc1", f"pr{kq}"))
    P += more(E("KC_MD", 6))
    for kq in range(4):
        P.append(WV(f"pr{kq}"))
        dst = ACC if kq == 0 else ACC + 16
        for i in range(8):
            P.append(I(f"v_lshlrev_b32 v{dst+2*i}, 16, v{PR+8*kq+i}"))
            P.append(I(f"v_and_b32 v{dst+2*i+1}, 0xffff0000, v{PR+8*kq+i}"))
        if kq:
            for e in range(16): P.append(I(f"v_add_f32 v{ACC+e}, v{ACC+e}, v{ACC+16+e}"))
    for e in range(16): P.append(I(f"v_fmac_f32 v{XF+e}, v{ACC+e}, v{GA+e}"))
    PK = ACC + 16
    for i in range(8): P.append(I(f"v_cvt_pk_bf16_f32 v{PK+i}, v{XF+2*i}, v{XF+2*i+1}"))
    P.append(I(f"s_add_u32 s{sT0}, s{sHU}, {WS_X2}"))
    P.append(I(f"s_add_u32 s{sT1}, s{sT0}, 4096"))
    P += st2(f"buffer_store_dwordx4 v[{PK}:{PK+3}], v{VCA+1}, {{srd}}, s{sT0} offen {{fl}}", "st1", "b")
    P += st2(f"buffer_store_dwordx4 v[{PK+4}:{PK+7}], v{VCA+1}, {{srd}}, s{sT1} offen {{fl}}", "st1", "b")
    for i in range(8):
        P.append(I(f"v_lshlrev_b32 v{XF+2*i}, 16, v{PK+i}"))
        P.append(I(f"v_and_b32 v{XF+2*i+1}, 0xffff0000, v{PK+i}"))
    Q = ACC + 32
    def red(r, t):
        return lines(f"""
        s_nop 1
        v_add_f32_dpp v{r}, v{r}, v{r} row_ror:8 row_mask:0xf bank_mask:0xf
        v_mov_b32 v{t}, v{r}
        s_nop 1
        v_permlane16_swap_b32 v{r}, v{t}
        s_nop 0
        v_add_f32 v{r}, v{r}, v{t}
        v_mov_b32 v{t}, v{r}
        s_nop 1
        v_permlane32_swap_b32 v{r}, v{t}
        s_nop 0
        v_add_f32 v{r}, v{r}, v{t}
        """)
    P.append(I(f"v_add_f32 v{Q}, v{XF}, v{XF+1}"))
    for e in range(2, 16): P.append(I(f"v_add_f32 v{Q}, v{Q}, v{XF+e}"))
    P += red(Q, Q + 2)
    P.append(I(f"v_mul_f32 v{Q}, 0x3c000000, v{Q}"))
    for e in range(16): P.append(I(f"v_sub_f32 v{Q+8+e}, v{XF+e}, v{Q}"))
    P.append(I(f"v_mul_f32 v{Q+1}, v{Q+8}, v{Q+8}"))
    for e in range(1, 16): P.append(I(f"v_fmac_f32 v{Q+1}, v{Q+8+e}, v{Q+8+e}"))
    P += red(Q + 1, Q + 2)
    P += lines(f"""
    v_and_b32 v15, 7, v2
    v_lshlrev_b32 v15, 5, v15
    v_add_u32 v15, 0x20000, v15
    s_lshl_b32 s{sT0}, s{sW}, 3
    v_add_u32 v{Q+2}, s{sT0}, v15
    """)
    P += [I(f"ds_write_b64 v{Q+2}, v[{Q}:{Q+1}]", "lw"), WL("lw"), I("s_barrier"),
          I(f"ds_read_b128 v[{Q+8}:{Q+11}], v15", "lr"), I(f"ds_read_b128 v[{Q+12}:{Q+15}], v15 offset:16", "lr")]
    P += [I(f"s_mov_b32 s{sT2}, 0x43000000"), WL("lr")]
    R_ = Q + 8
    P += lines(f"""
    v_add_f32 v{Q}, v{R_}, v{R_+2}
    v_add_f32 v{Q+1}, v{R_+4}, v{R_+6}
    v_add_f32 v{Q}, v{Q}, v{Q+1}
    v_mul_f32 v{Q}, 0.25, v{Q}
    v_sub_f32 v{R_}, v{R_}, v{Q}
    v_sub_f32 v{R_+2}, v{R_+2}, v{Q}
    v_sub_f32 v{R_+4}, v{R_+4}, v{Q}
    v_sub_f32 v{R_+6}, v{R_+6}, v{Q}
    v_mul_f32 v{R_}, v{R_}, v{R_}
    v_fmac_f32 v{R_}, v{R_+2}, v{R_+2}
    v_fmac_f32 v{R_}, v{R_+4}, v{R_+4}
    v_fmac_f32 v{R_}, v{R_+6}, v{R_+6}
    v_add_f32 v{R_+1}, v{R_+1}, v{R_+3}
    v_add_f32 v{R_+5}, v{R_+5}, v{R_+7}
    v_add_f32 v{R_+1}, v{R_+1}, v{R_+5}
    v_fma_f32 v{R_}, v{R_}, s{sT2}, v{R_+1}
    v_mov_b32 v{Q+1}, 0x3727c5ac
    v_fmac_f32 v{Q+1}, 0x3b000000, v{R_}
    v_rsq_f32 v{Q+1}, v{Q+1}
    s_add_u32 s{sT0}, s{sHU}, {WS_U}
    v_mul_f32 v{Q+1}, s{sL2E}, v{Q+1}
    s_add_u32 s{sT1}, s{sT0}, 4096
    """.replace("0.25", "0x3e800000"))
    for e in range(16): P.append(I(f"v_sub_f32 v{XF+e}, v{XF+e}, v{Q}"))
    for e in range(16): P.append(I(f"v_mul_f32 v{XF+e}, v{XF+e}, v{Q+1}"))
    for e in range(16): P.append(I(f"v_fma_f32 v{XF+e}, v{XF+e}, v{CB1+e}, v{SB+e}"))
    PH = ACC + 24
    for i in range(8): P.append(I(f"v_cvt_pk_bf16_f32 v{PH+i}, v{XF+2*i}, v{XF+2*i+1}"))
    P += st2(f"buffer_store_dwordx4 v[{PH}:{PH+3}], v{VCA+1}, {{srd}}, s{sT0} offen {{fl}}", "st1", "b")
    P += st2(f"buffer_store_dwordx4 v[{PH+4}:{PH+7}], v{VCA+1}, {{srd}}, s{sT1} offen {{fl}}", "st1", "b")
    i0 = max(i for i, it in enumerate(P) if it.s == "WAITVM" and it.tag == ("pr3",))
    seg = P[i0 + 1:]; P = P[:i0 + 1]
    cnt = 0
    for it in seg:
        P.append(it)
        if it.s.startswith("v_") and not it.s.startswith("v_permlane") and "dpp" not in it.s:
            cnt += 1
            if cnt % E("KC_EV", 16) == 0 and cnt < E("KC_EVM", 180): P += more(1)
    print("w1 at LN end", nw1)
    P += stamp_item()
    P += more(E("KC_ME", 8))
    P += lines(f"""
    s_add_u32 s{sFW}, s{sFW}, 32768
    v_and_b32 v{VPL}, 0x380, v{VPL}
    s_mul_i32 s{sWo}, s{sCB}, {112*2048}
    s_mul_i32 s{sT0}, s{sW}, {28*2048}
    s_add_u32 s{sWo}, s{sWo}, s{sT0}
    s_add_u32 s{sWo}, s{sWo}, {WS_W2F}
    s_and_b32 s{sT1}, s{sW}, 1
    s_lshl_b32 s{sT1}, s{sT1}, 10
    v_add_u32 v{VW}, s{sT1}, v1
    v_xor_b32 v{VW+1}, 0x400, v{VW}
    """)
    P += [WV("st1"), I("s_barrier")] + st2(f"buffer_store_dword v{VMG}, v{VF0}, {{srd}}, s{sFW} offen {{fl}}", "fl", "b")
    P += more(64)
    P += lines(f"""
    s_cmp_eq_u32 s{sCB}, 7
    s_cbranch_scc1 KC_SKIP2
    """)
    resolve(P, A, vm0=vmE)
    def poll(tag, base, cond, sl=None, first=None, bar=True):
        A(f"""
        s_cmp_lg_u32 s{sW}, 0
        s_cbranch_scc1 {tag}_OK
        s_mov_b32 s{sT1}, 100000
        {base}
        {'s_sleep %d' % first if first else ''}
        {tag}_L:
        buffer_load_dword v15, v{VPL}, {WS}, s{sT2} offen sc1
        s_waitcnt vmcnt(0)
        v_cmp_eq_u32 vcc, {MAGIC}, v15
        {cond}
        s_cbranch_scc1 {tag}_OK
        s_sleep {sl or E('KC_PS', 4)}
        s_sub_u32 s{sT1}, s{sT1}, 1
        s_cmp_lg_u32 s{sT1}, 0
        s_cbranch_scc1 {tag}_L
        {tag}_OK:
        """)
        if bar:
            A("s_waitcnt vmcnt(0)")
            A("s_barrier")
    ALL = "s_cmp_eq_u32 vcc_lo, -1"
    poll("KC_PB", f"s_add_u32 s{sT2}, s{sFL}, 32768", ALL, first=E("KC_FB", 4))
    ST.stamp()
    def w2reg(i, nt):
        n = 2 * i + nt
        if n < 20: return vr(144 + 4 * n, 4)
        n -= 20
        return ar(8 * n if n < 32 else 8 * (n - 32) + 4, 4)
    def w2load(n):
        i, nt = n // 2, n % 2
        post = [I(f"s_add_u32 s{sWo}, s{sWo}, 4096")] if n % 4 == 3 else []
        return [I(f"buffer_load_dwordx4 {w2reg(i,nt)}, v{VW+nt}, {WS}, s{sWo} offen offset:{(i%2)*2048}", "w2")] + post
    P = lines(f"""
    s_lshl_b32 s{sT0}, s{sRB}, 16
    s_add_u32 s{sT0}, s{sT0}, s{sM0}
    s_add_u32 s{sT0}, s{sT0}, {WS_U}
    """)
    for g in range(4):
        P.append(I(f"s_add_u32 m0, s{sM0}, {0x10000+g*16384}"))
        P.append(I(f"s_add_u32 s{sT2}, s{sT0}, {g*16384}"))
        for i in range(4):
            P.append(I(f"buffer_load_dwordx4 v1, {WS}, s{sT2} offen offset:{i*1024} sc1 lds", f"u{g}"))
    P += lines(f"""
    v_add_u32 v{VCA}, 0x10000, v1
    s_mul_i32 s{sACT}, s{sRB}, {2*112*1024}
    s_lshl_b32 s{sA}, s{sCB}, 14
    s_add_u32 s{sACT}, s{sACT}, s{sA}
    s_add_u32 s{sACT}, s{sACT}, s{sM0}
    s_add_u32 s{sACT}, s{sACT}, {WS_ACT}
    s_add_u32 s{sA}, s{sACT}, {112*1024}
    """)
    units = [(0, 0), (0, 1), (1, 0), (1, 1)]
    UF, NU, LEAD = 80, 8, 6
    mf = []; seq = []
    for nt, q in units:
        for ks in range(32):
            acc = vr(ACC + 16 * (2 * q + nt), 16)
            n = len(mf)
            mf.append(mfma(acc, ar(8 * ks + 4 * nt, 4), vr(UF + 4 * (n % NU), 4), acc if ks else vr(B1F + 16 * nt, 16)))
            seq.append((q, ks))
    NM = len(mf)
    def uread(n):
        q, ks = seq[n]
        return I(f"ds_read_b128 v[{UF+4*(n%NU)}:{UF+4*(n%NU)+3}], v{VCA} offset:{q*32768+ks*1024}", f"r{n}")
    P += [WV("u0"), I("s_barrier")] + [uread(i) for i in range(LEAD)] + [WL("r1")]
    P += stamp_item()
    G = Gaps(mf)
    for n in range(NM):
        if n + LEAD < NM:
            if n + LEAD == 16:
                G.put(n - 1, WV("u1"), "end"); G.put(n, "s_barrier", "mem")
            if n + LEAD == 32:
                G.put(n - 1, WV("u3"), "end"); G.put(n, "s_barrier", "mem")
            G.put(n, uread(n + LEAD))
        if n % 2 == 1 and n + 1 < NM: G.put(n, WL(f"r{n+2}"), "end")
    MT = 112
    def mish(nt, q):
        L = []
        for j in range(2):
            z = ACC + 16 * (2 * q + nt) + 8 * j
            t = MT + 16 * j
            for e in range(8): L.append(f"v_exp_f32 v{t+e}, v{z+e}")
            for e in range(8): L.append(f"v_fma_f32 v{t+8+e}, v{t+e}, 0.5, 1.0")
            for e in range(8): L.append(f"v_fma_f32 v{t+e}, v{t+e}, v{t+8+e}, 1.0")
            for e in range(8): L.append(f"v_rcp_f32 v{t+e}, v{t+e}")
            for e in range(8): L.append(f"v_fma_f32 v{z+e}, -v{z+e}, v{t+e}, v{z+e}")
            for i in range(4): L.append(f"v_cvt_pk_bf16_f32 v{z+i}, v{z+2*i}, v{z+2*i+1}")
            L += st2(f"buffer_store_dwordx4 v[{z}:{z+3}], v1, {{srd}}, s{sACT if q==0 else sA} offen offset:{(2*nt+j)*1024} {{fl}}", "st2", "c")
        return L
    nw2 = 0
    gg = 2
    while gg < NM and nw2 < 56:
        if nw2 >= 20: gg = max(gg, 34 + (nw2 - 20) if nw2 < 52 else 98 + nw2 - 52)
        w = w2load(nw2)
        G.put(gg, w[0], "mem")
        if len(w) > 1: G.put(gg, w[1], "end")
        nw2 += 1; gg += 2 + (nw2 % 2)
    print("w2 in stream", nw2)
    g = 0
    for ui in range(3):
        g = G.stream(max(g + 1, 32 * (ui + 1) + 5), mish(*units[ui]), cap=(28 if ui == 2 else 24))
        print("   mish end gap", g)
    P += G.items()
    P += stamp_item()
    P += [I("s_nop 7"), I("s_nop 3")] + its(mish(*units[3]))
    P.append(I(f"s_add_u32 s{sFW}, s{sFW}, 32768"))
    while nw2 < 56:
        P += w2load(nw2); nw2 += 1
    P += [WV("st2"), I("s_barrier")] + st2(f"buffer_store_dword v{VMG}, v{VF0}, {{srd}}, s{sFW} offen {{fl}}", "fl", "c")
    resolve(P, A)
    A("s_branch KC_PH3")
    A.label("KC_SKIP2")
    for n in range(56):
        for it in w2load(n): A(it.s)
    SEVEN = f"s_and_b32 s{sT0}, vcc_lo, 0x7f\ns_cmp_eq_u32 s{sT0}, 0x7f"
    poll("KC_PB7", f"s_add_u32 s{sT2}, s{sFL}, 32768", ALL, sl=16, bar=False)
    poll("KC_PC7", f"s_add_u32 s{sT2}, s{sFL}, 65536", f"s_and_b32 s{sT0}, vcc_lo, 0x7f", sl=16)
    A.label("KC_PH3")
    X2R, X, GA, T = 224, 80, 232, 248
    A(f"""
    s_mul_i32 s{sT0}, s{sTS}, {112*1024}
    s_mul_i32 s{sT1}, s{sW}, {28*1024}
    s_add_u32 s{sT0}, s{sT0}, s{sT1}
    v_add_u32 v{VA}, s{sT0}, v1
    s_xor_b32 s{sT0}, s{sTS}, 1
    s_mul_i32 s{sT0}, s{sT0}, {112*1024}
    s_add_u32 s{sT0}, s{sT0}, s{sT1}
    v_add_u32 v{VA+1}, s{sT0}, v1
    s_mov_b32 s{sA}, {WS_ACT}
    v_lshrrev_b32 v15, 5, v2
    s_lshl_b32 s{sT0}, s{sNT}, 7
    v_lshlrev_b32 v{VM}, 4, v15
    v_add_u32 v{VM}, s{sT0}, v{VM}
    s_mov_b32 s{sT1}, {5*2048}
    buffer_load_dwordx4 v[{GA}:{GA+3}], v{VM}, {WS}, s{sT1} offen
    buffer_load_dwordx4 v[{GA+4}:{GA+7}], v{VM}, {WS}, s{sT1} offen offset:32
    buffer_load_dwordx4 v[{GA+8}:{GA+11}], v{VM}, {WS}, s{sT1} offen offset:64
    buffer_load_dwordx4 v[{GA+12}:{GA+15}], v{VM}, {WS}, s{sT1} offen offset:96
    s_lshl_b32 s{sT0}, s{sTS}, 15
    s_lshl_b32 s{sT1}, s{sNT}, 11
    s_add_u32 s{sT1}, s{sT1}, s{sT0}
    s_add_u32 s{sT1}, s{sT1}, {WS_X2}
    buffer_load_dwordx4 v[{X2R}:{X2R+3}], v1, {WS}, s{sT1} offen sc1
    buffer_load_dwordx4 v[{X2R+4}:{X2R+7}], v1, {WS}, s{sT1} offen offset:1024 sc1
    s_lshl_b32 s{sT1}, s{sNT}, 6
    s_add_u32 s{sT1}, s{sT1}, s{sT0}
    v_and_b32 v{VRM}, 31, v2
    v_lshlrev_b32 v{VRM}, 10, v{VRM}
    v_lshl_add_u32 v{VRM}, v15, 4, v{VRM}
    v_add_u32 v{VRM}, s{sT1}, v{VRM}
    s_mul_i32 s{sT0}, s{sW}, 12288
    v_add_u32 v{VRR}, s{sT0}, v1
    """)
    for sp in (1, 2, 3):
        A(f"""
        s_xor_b32 s{sT0}, s{sW}, {sp}
        s_mul_i32 s{sT0}, s{sT0}, 12288
        v_add_u32 v{T+sp}, s{sT0}, v1
        """)
    poll("KC_PC", f"s_add_u32 s{sT2}, s{sFL}, 65536", SEVEN, first=E("KC_FC", 2))
    ST.stamp()
    D3, RING = 8, 80
    def aload(i):
        b = RING + 8 * (i % D3)
        post = [I(f"s_add_u32 s{sA}, s{sA}, 4096")] if i % 4 == 3 else []
        return [I(f"buffer_load_dwordx4 v[{b+4*q}:{b+4*q+3}], v{VA+q}, {WS}, s{sA} offen offset:{(i%4)*1024} sc1", f"a{i}") for q in range(2)] + post
    P = []
    for i in range(5): P += aload(i)
    for e in range(16): P.append(I(f"v_mul_f32 v{GA+e}, 0x3f317218, v{GA+e}"))
    mf = []
    for i in range(28):
        b = RING + 8 * (i % D3)
        for q, nt in ((1, 1), (1, 0), (0, 1), (0, 0)):
            acc = vr(ACC + 16 * (2 * q + nt), 16)
            mf.append(mfma(acc, w2reg(i, nt), vr(b + 4 * q, 4), acc if i else "0"))
    G = Gaps(mf)
    na = 5
    for i in range(28):
        todo = 2 if i < 2 else 1
        for t_ in range(todo):
            if na < 28:
                al = aload(na); na += 1
                G.put(4 * i + 2 * t_, al[0], "mem"); G.put(4 * i + 2 * t_ + 1, al[1], "mem")
                if len(al) > 2: G.put(4 * i + 2 * t_ + 1, al[2], "end")
        if i + 1 < 28: G.put(4 * i + 3, WV(f"a{i+1}"), "end")
    P += [WV("a0")] + G.items()
    P += stamp_item()
    P += [I("s_nop 7"), I("s_nop 1")]
    for sp in (3, 2, 1):
        for i in range(4):
            P.append(I(f"ds_write_b128 v{T+sp}, v[{ACC+16*sp+4*i}:{ACC+16*sp+4*i+3}] offset:{(sp-1)*4096+i*1024}", "rw"))
    for i in range(8):
        P.append(I(f"v_lshlrev_b32 v{X+2*i}, 16, v{X2R+i}"))
        P.append(I(f"v_and_b32 v{X+2*i+1}, 0xffff0000, v{X2R+i}"))
    P += [WL("rw"), I("s_barrier")]
    for sp in (1, 2, 3):
        for i in range(4):
            P.append(I(f"ds_read_b128 v[{ACC+16*sp+4*i}:{ACC+16*sp+4*i+3}], v{VRR} offset:{(sp-1)*4096+i*1024}", f"rr{sp}"))
    for sp in (1, 2, 3):
        P.append(WL(f"rr{sp}"))
        for e in range(16): P.append(I(f"v_add_f32 v{ACC+e}, v{ACC+e}, v{ACC+16*sp+e}"))
    for e in range(16): P.append(I(f"v_fmac_f32 v{X+e}, v{ACC+e}, v{GA+e}"))
    for i in range(8): P.append(I(f"v_cvt_pk_bf16_f32 v{PK+i}, v{X+2*i}, v{X+2*i+1}"))
    P.append(I("s_nop 0"))
    for k in range(2):
        P.append(I(f"v_permlane32_swap_b32 v{PK+4*k}, v{PK+4*k+2}"))
        P.append(I(f"v_permlane32_swap_b32 v{PK+4*k+1}, v{PK+4*k+3}"))
        P.append(I(f"buffer_store_dwordx4 v[{PK+4*k}:{PK+4*k+3}], v{VRM}, s[{S_O}:{S_O+3}], 0 offen offset:{32*k}", "o"))
    resolve(P, A)
    if STAMPS: A("s_waitcnt vmcnt(0)")
    ST.stamp()
    ST.flush(4, f"s{sW}", 4)
    A("KC_END:")
    A("s_endpgm")
    A("KC_PA_SLOW:")
    poll("KC_PAS", f"s_and_b32 s{sT2}, s{sFL}, 0xfffffbff", ALL, bar=False, first=E('KC_PS', 4))
    A("s_branch KC_PA_OK")
    if FUSED:
        for tag, va, so in (("KC_JSPIN", "v240", f"s_mov_b32 s{sT1}, {WS_FLAG+FL_W}"), ("KC_CSPIN", "v5", f"s_mov_b32 s{sT1}, s{sHU}")):
            A(f"""
            {tag}:
            s_mov_b32 s{sT2}, 200000
            {so}
            {tag}_L:
            s_sleep 4
            buffer_load_dword v241, {va}, {WS}, s{sT1} offen sc1
            s_waitcnt vmcnt(0)
            v_cmp_ne_u32 vcc, v242, v241
            s_cbranch_vccz {tag}_RET
            s_sub_u32 s{sT2}, s{sT2}, 1
            s_cmp_lg_u32 s{sT2}, 0
            s_cbranch_scc1 {tag}_L
            s_branch {tag}_RET
            """)
        A(f"""
        KC_LSPIN:
        s_mov_b32 s63, 200000
        KC_LSPIN_L:
        s_sleep 4
        buffer_load_dword v185, v184, {WS}, s62 offen sc1
        s_waitcnt vmcnt(0)
        v_cmp_ne_u32 vcc, v186, v185
        s_cbranch_vccz KC_LSPIN_RET
        s_sub_u32 s63, s63, 1
        s_cmp_lg_u32 s63, 0
        s_cbranch_scc1 KC_LSPIN_L
        s_branch KC_LSPIN_RET
        """)
        return
    A.lines.append("  .fill 5000, 4, 0xbf800000")
    A("s_endpgm")
    return name, A.text(), kernel_desc(name, 256, 256), f"grid=(256,1,1) block=(256,1,1) lds={131072+2048}"
```

```python
class Asm:
    def __init__(self):
        self.lines = []
        self._uid = 0
    def __call__(self, s):
        for l in s.split("\n"):
            l = l.strip()
            if l:
                self.lines.append(l if l.endswith(":") else "  " + l)
    def ext(self, lst):
        for s in lst:
            self(s)
    def label(self, name):
        self.lines.append(name + ":")
    def uid(self, p="L"):
        self._uid += 1
        return f"{p}_{self._uid}"
    def text(self):
        return "\n".join(self.lines) + "\n"

def vr(b, n=1):
    return f"v{b}" if n == 1 else f"v[{b}:{b+n-1}]"
def ar(b, n=1):
    return f"a{b}" if n == 1 else f"a[{b}:{b+n-1}]"
def sr(b, n=1):
    return f"s{b}" if n == 1 else f"s[{b}:{b+n-1}]"

def mfma(d, a, b, c):
    return f"v_mfma_f32_32x32x16_bf16 {d}, {a}, {b}, {c}"

def srd(A, s, base_lo, base_hi, nbytes):
    A(f"s_mov_b32 s{s}, s{base_lo}")
    A(f"s_mov_b32 s{s+1}, s{base_hi}")
    A(f"s_mov_b32 s{s+2}, {nbytes}")
    A(f"s_mov_b32 s{s+3}, 0x00020000")

def srd_off(A, s, base_lo, base_hi, off, nbytes):
    A(f"s_add_u32 s{s}, s{base_lo}, {off}")
    A(f"s_addc_u32 s{s+1}, s{base_hi}, 0")
    A(f"s_mov_b32 s{s+2}, {nbytes}")
    A(f"s_mov_b32 s{s+3}, 0x00020000")

def kernel_header(name):
    return f""".globl {name}
.p2align 8
.type {name},@function
{name}:
"""

def kernel_desc(name, vgpr, agpr, sgpr=102):
    acc = (vgpr + 3) // 4 * 4
    nfv = acc + agpr if agpr else vgpr
    return f""".p2align 6
.amdhsa_kernel {name}
  .amdhsa_next_free_vgpr {nfv}
  .amdhsa_next_free_sgpr {sgpr}
  .amdhsa_accum_offset {acc}
  .amdhsa_group_segment_fixed_size 0
  .amdhsa_kernarg_size 120
  .amdhsa_user_sgpr_count 2
  .amdhsa_user_sgpr_kernarg_segment_ptr 1
  .amdhsa_system_sgpr_workgroup_id_x 1
  .amdhsa_float_denorm_mode_32 3
  .amdhsa_float_denorm_mode_16_64 3
.end_amdhsa_kernel
"""

def cost(ins):
    op = ins.split()[0]
    if op.startswith("v_exp") or op.startswith("v_rcp") or op.startswith("v_rsq") or op.startswith("v_log") or op.startswith("v_sqrt"):
        return 8
    if op.startswith("buffer_") or op.startswith("global_"):
        return 8
    if op == "s_nop":
        return 4 * (int(ins.split()[1]) + 1)
    return 4

def is_mem(ins):
    op = ins.split()[0]
    return op.startswith("ds_") or op.startswith("buffer_") or op.startswith("global_")

def weave(A, mfmas, gaps):
    assert len(mfmas) == len(gaps)
    for m, g in zip(mfmas, gaps):
        A(m)
        for i in g:
            A(i)

KA = dict(x=0, ckv=8, wq=16, wuk=24, wuv=32, wo=40, bx=48, w1=56, b1=64, w2=72, c=80, wmod=88, out=96, dbg=104, ws=112)

MB = 1 << 20
WS_MOD = 0
WS_FLAG = 64 * 1024
FL_H, FL_KV, FL_CTX, FL_J2, FL_W, FL_C0 = 131072, 163840, 196608, 229376, 262144, 294912
WS_G = 64 * 1024
WS_STAT = 512 * 1024
import os as _os
WB = int(_os.environ.get("WSBASE", "0")) * MB
WS_H1 = WB + 1 * MB
WS_X2 = WB + 4 * MB
WS_U = WB + 6 * MB
WS_ACT = WB + 8 * MB
WS_KF = WB + 16 * MB
WS_VF = WB + 32 * MB
WS_CTX = WB + 48 * MB
WS_WOF = WB + 64 * MB
WS_W1F = WB + 68 * MB
WS_W2F = WB + 70 * MB
WS_PART = WS_KF
WS_ACT = WS_VF
WS_U = WS_VF + 8 * MB
WS_X2 = WS_VF + 10 * MB
WS_END = WB + 72 * MB
if _os.environ.get('LAY') == 'fresh':
    WS_PART = 72 * MB; WS_ACT = 80 * MB; WS_U = 88 * MB; WS_X2 = 90 * MB; WS_END = 92 * MB
if _os.environ.get('LAY') == 'hi':
    WS_PART = WS_KF + 8 * MB

import os
STAMPS = os.environ.get("STAMPS", "") != ""
WS_STAMP = 128 * MB
class Stamper:
    def __init__(self, A, kidx, base=72):
        self.A = A; self.n = 0; self.kidx = kidx; self.base = base
    def stamp(self):
        if not STAMPS: return
        b = self.base + 2 * self.n
        assert b + 1 < 100
        self.A(f"s_memtime s[{b}:{b+1}]")
        if self.n == 0:
            self.A("s_memrealtime s[66:67]")
        self.n += 1
    def flush(self, nwaves, s_wave, vtmp, nst=None):
        if not STAMPS: return
        A = self.A
        n = self.n if nst is None else nst
        A(f"s_load_dwordx2 s[68:69], s[0:1], {KA['ws']}")
        A(f"s_memrealtime s[100:101]")
        A("s_waitcnt lgkmcnt(0)")
        A(f"v_mov_b32 v{vtmp+1}, s100")
        A(f"v_mov_b32 v{vtmp+2}, s66")
        A(f"s_mov_b32 s70, {256*MB}")
        A("s_mov_b32 s71, 0x00020000")
        A(f"s_mul_i32 s100, s2, {nwaves}")
        A(f"s_add_u32 s100, s100, {s_wave}")
        A(f"s_lshl_b32 s100, s100, 6")
        A(f"s_add_u32 s100, s100, {WS_STAMP + self.kidx * MB}")
        A(f"v_mov_b32 v{vtmp}, 0")
        A(f"buffer_store_dword v{vtmp+1}, v{vtmp}, s[68:71], s100 offen offset:60")
        A(f"buffer_store_dword v{vtmp+2}, v{vtmp}, s[68:71], s100 offen offset:56")
        A("s_getreg_b32 s101, hwreg(HW_REG_XCC_ID)")
        A(f"v_mov_b32 v{vtmp+2}, s101")
        A("s_add_u32 s101, s100, 0x80000")
        A(f"buffer_store_dword v{vtmp+2}, v{vtmp}, s[68:71], s101 offen")
        for i in range(n):
            A(f"v_mov_b32 v{vtmp+1}, s{self.base+2*i}")
            A(f"buffer_store_dword v{vtmp+1}, v{vtmp}, s[68:71], s100 offen offset:{4*i}")
            A("s_nop 1")
        return 3 + n


DBGT = os.environ.get("DBGT", "") != ""
def dbg_mark(A, idx):
    if DBGT: A(f"s_memrealtime s[{70+2*idx}:{71+2*idx}]")
def dbg_flush(A, n, v):
    if not DBGT: return
    A(f"s_memrealtime s[{70+2*n}:{71+2*n}]")
    A(f"s_load_dwordx2 s[92:93], s[0:1], {KA['dbg']}")
    A("s_waitcnt lgkmcnt(0)")
    A("s_mov_b32 s94, 256"); A("s_mov_b32 s95, 0x00020000")
    A(f"v_lshlrev_b32 v{v}, 12, v0")
    for i in range(n + 1):
        A(f"v_mov_b32 v{v+1}, s{70+2*i}")
        A(f"buffer_atomic_umax v{v+1}, v{v}, s[92:95], 0 offen offset:{8+8*i}")
        A(f"v_not_b32 v{v+2}, v{v+1}")
        A(f"buffer_atomic_umax v{v+2}, v{v}, s[92:95], 0 offen offset:{12+8*i}")
        A("s_nop 1")
```

```python
from asmlib import *
from sched import *
import k2
import os, struct, math
LOG2E = 0x3fb8aa3b
QSCALE = k2.QSCALE
MAGIC = 0x5a17
def E(k, d): return int(os.environ.get(k, str(d)))
def lines(s): return [I(x.strip()) for x in s.strip().split("\n") if x.strip()]
def sl(s): return [x.strip() for x in s.strip().split("\n") if x.strip()]

def gen_front(tailfn=None, name="kf_kernel"):
    k2.rare_sites.clear()
    STF = os.environ.get("KA_ST", "sc1")
    PFN = os.environ.get("KA_PFNT", "nt")
    A = Asm()
    A.lines.append(kernel_header(name))
    A("s_getpc_b64 s[64:65]")
    A("s_cmp_ge_u32 s2, 256")
    A("s_cbranch_scc1 K2_END")
    ST = Stamper(A, 0)
    ST.stamp()
    dbg_mark(A, 0)
    if os.environ.get("PADTO"): A("s_memrealtime s[70:71]")
    VOT, VOW, VT, VW, VWH = 4, 12, 16, 20, 30
    WF, ACC, J = 32, 64, 192
    S_T, S_WK, S_WS, S_WV, S_X, S_M, S_C, S_D = 12, 16, 20, 24, 36, 40, 56, 60
    S_WQ = 24
    sW, sR, sP_, sHD, sMT = k2.sW, k2.sR, k2.sP_, k2.sHD, k2.sPR
    sXC, sJ, sT0, sT1, sM0T, sM0W, sKV = 44, 45, 46, 47, 49, 50, 51
    sA, sB, sC_, sD, sE, sF = 52, 53, 54, 55, 48, 3
    WSR = f"s[{S_WS}:{S_WS+3}]"
    A(f"""
    s_load_dwordx16 s[36:51], s[0:1], 0
    s_load_dwordx8 s[52:59], s[0:1], 64
    s_load_dwordx2 s[{S_D}:{S_D+1}], s[0:1], {KA['dbg']}
    s_load_dwordx2 s[{S_WS}:{S_WS+1}], s[0:1], {KA['ws']}
    v_lshrrev_b32 v3, 6, v0
    v_and_b32 v2, 63, v0
    v_readfirstlane_b32 s{sW}, v3
    v_lshlrev_b32 v1, 4, v2
    s_and_b32 s4, s2, 7
    s_lshr_b32 s5, s2, 3
    s_and_b32 s{sHD}, s5, 3
    s_lshl_b32 s4, s4, 2
    s_add_u32 s{sHD}, s{sHD}, s4
    s_lshr_b32 s{sMT}, s5, 2
    s_and_b32 s{sR}, s{sW}, 1
    s_lshr_b32 s{sP_}, s{sW}, 1
    v_lshrrev_b32 v22, 3, v2
    v_lshrrev_b32 v23, 4, v2
    v_and_b32 v24, 7, v2
    v_xor_b32 v25, v24, v23
    v_lshlrev_b32 v25, 4, v25
    v_lshl_add_u32 v25, v22, 10, v25
    s_lshl_b32 s4, s{sW}, 16
    v_add_u32 v25, s4, v25
    """)
    for i in range(8):
        A(f"v_add_u32 v{VOT+i}, {8*i*1024-(i%4)*1024}, v25")
        if i % 2: A(f"v_xor_b32 v{VOT+i}, 64, v{VOT+i}")
    A(f"""
    v_and_b32 v23, 1, v23
    v_lshlrev_b32 v23, 2, v23
    v_xor_b32 v25, v24, v23
    v_lshlrev_b32 v25, 4, v25
    v_lshl_add_u32 v25, v22, 13, v25
    s_lshl_b32 s4, s{sW}, 18
    v_add_u32 v25, s4, v25
    """)
    for i in range(4):
        A(f"v_add_u32 v{VOW+i}, {8*i*8192-i*1024}, v25")
    A(f"""
    v_lshlrev_b32 v22, 7, v2
    v_lshlrev_b32 v28, 13, v2
    s_lshl_b32 s4, s{sMT}, 18
    s_lshl_b32 s6, s{sHD}, 8
    s_mov_b32 s{S_T+2}, 0x40000
    s_mov_b32 s{S_T+3}, 0x00020000
    s_mov_b32 s{S_WK+2}, {511*8192+256}
    s_mov_b32 s{S_WK+3}, 0x00020000
    s_waitcnt lgkmcnt(0)
    s_add_u32 s{S_T}, s38, s4
    s_addc_u32 s{S_T+1}, s39, 0
    s_add_u32 s{S_WK}, s42, s6
    s_addc_u32 s{S_WK+1}, s43, 0
    s_cmp_eq_u32 s{sW}, 0
    s_cbranch_scc1 KA_PF0
    s_cmp_eq_u32 s{sW}, 3
    s_cbranch_scc0 KA_PF1
    s_and_b32 s7, s5, 7
    s_lshl_b32 s7, s7, 12
    v_lshrrev_b32 v22, 1, v22
    v_add_u32 v22, s7, v22
    global_load_dword v26, v22, s[64:65]
    s_branch KA_PFD
    KA_PF0:
    s_lshl_b32 s7, s{sHD}, 13
    buffer_load_dword v26, v22, s[{S_T}:{S_T+3}], s7 offen
    s_branch KA_PFD
    KA_PF1:
    s_lshl_b32 s7, s{sMT}, 19
    s_lshl_b32 s4, s{sW}, 7
    s_add_u32 s7, s7, s4
    s_sub_u32 s7, s7, 128
    buffer_load_dword v26, v28, s[{S_WK}:{S_WK+3}], s7 offen {PFN}
    KA_PFD:
    s_add_u32 s{S_WV}, s44, s6
    s_addc_u32 s{S_WV+1}, s45, 0
    s_add_u32 s8, s40, s6
    s_addc_u32 s9, s41, 0
    s_mov_b32 s4, s46
    s_mov_b32 s5, s47
    s_mov_b32 s62, s50
    s_mov_b32 s63, s51
    s_lshl_b32 s{sM0W}, s{sW}, 12
    s_lshl_b32 s{sM0T}, s{sW}, 14
    s_add_u32 s{sM0T}, s{sM0T}, 98304
    """)
    WSLOT = {0: 0, 1: 1, 2: 2, 3: 3, 4: 4, 5: 5, 6: 0, 7: 1, 8: 6, 9: 7, 10: 4, 11: 5, 12: 2, 13: 3, 14: 0, 15: 1}
    def wdma(u):
        c = u // 4
        srdr = S_WK if c < 2 else S_WV
        pre = [f"s_add_u32 m0, s{sM0W}, {WSLOT[u]*16384}", f"s_mov_b32 s{sT0}, {(u%4)*128*8192+(c&1)*128}"]
        return pre, [I(f"buffer_load_dwordx4 v{VOW+i}, s[{srdr}:{srdr+3}], s{sT0} offen offset:{i*1024} lds", f"W{u}") for i in range(4)]
    def tdma(s, grp):
        pre = [f"s_add_u32 m0, s{sM0T}, {(s%2)*8192+grp*4096}", f"s_mov_b32 s{sT0}, {s*128}"]
        return pre, [I(f"buffer_load_dwordx4 v{VOT+i}, s[{S_T}:{S_T+3}], s{sT0} offen offset:{(i%4)*1024} lds", f"T{s}") for i in range(4 * grp, 4 * grp + 4)]
    def seq(g):
        pre, d = g
        return [I(x) for x in pre] + d
    P = seq(wdma(0)) + seq(tdma(0, 0)) + seq(tdma(0, 1))
    P += lines(f"""
    s_lshl_b32 s48, s2, 2
    s_add_u32 s48, s48, s{sW}
    s_mov_b32 s6, {4096*1024}
    s_mov_b32 s7, 0x00020000
    s_cmp_ge_u32 s48, 736
    s_cselect_b32 s4, s54, s4
    s_cselect_b32 s5, s55, s5
    s_cselect_b32 s6, {1792*1024}, s6
    s_cselect_b32 s40, 736, 0
    s_cselect_b32 s28, {WS_W2F - WS_WOF}, 0
    s_mov_b32 s29, {256*2048}
    s_cselect_b32 s29, {112*2048}, s29
    s_sub_u32 s40, s48, s40
    s_lshr_b32 s41, s40, 1
    s_and_b32 s42, s40, 1
    s_mov_b32 s11, 1024
    s_sub_u32 s40, s48, 512
    s_mul_i32 s43, s40, 9363
    s_lshr_b32 s43, s43, 16
    s_mul_i32 s52, s43, 7
    s_sub_u32 s52, s40, s52
    s_cmp_lt_u32 s40, 224
    s_cselect_b32 s41, s43, s41
    s_cselect_b32 s42, s52, s42
    s_cselect_b32 s11, 3584, s11
    s_cselect_b32 s29, {32*2048}, s29
    s_cselect_b32 s28, {WS_W1F - WS_WOF}, s28
    s_cselect_b32 s4, s62, s4
    s_cselect_b32 s5, s63, s5
    s_cselect_b32 s6, {512*3584}, s6
    s_mul_i32 s10, s41, s11
    s_lshl_b32 s10, s10, 4
    s_lshl_b32 s43, s42, 9
    s_add_u32 s10, s10, s43
    s_mul_i32 s43, s42, s29
    s_lshl_b32 s43, s43, 2
    s_add_u32 s28, s28, s43
    s_lshl_b32 s43, s41, 11
    s_add_u32 s28, s28, s43
    s_add_u32 s28, s28, {WS_WOF}
    s_cmp_ge_u32 s48, 960
    s_cselect_b32 s28, 0x80000000, s28
    s_lshl_b32 s35, s{sW}, 13
    s_add_u32 s35, s35, 0x20000
    s_mov_b32 s{S_M}, s58
    s_mov_b32 s{S_M+1}, s59
    s_mov_b32 s{S_M+2}, {512*6144}
    s_mov_b32 s{S_M+3}, 0x00020000
    s_mov_b32 s{S_C+2}, 1024
    s_mov_b32 s{S_C+3}, 0x00020000
    s_mov_b32 s{S_X+2}, 0x200000
    s_mov_b32 s{S_X+3}, 0x00020000
    s_mov_b32 s{S_D+2}, 256
    s_mov_b32 s{S_D+3}, 0x00020000
    s_mov_b32 s{S_WV+2}, {511*8192+256}
    s_mov_b32 s{S_WV+3}, 0x00020000
    s_mov_b32 s{S_WS+2}, {WS_END}
    s_mov_b32 s{S_WS+3}, 0x00020000
    s_and_b32 s{sXC}, s2, 7
    s_lshr_b32 s{sJ}, s2, 3
    v_and_b32 v22, 31, v2
    v_lshrrev_b32 v23, 5, v2
    v_bfe_u32 v24, v2, 1, 3
    v_lshlrev_b32 v25, 7, v22
    v_add_u32 v25, s{sM0T}, v25
    """)
    for ks in range(4):
        P += [I(f"v_add_u32 v27, {2*ks}, v23"), I(f"v_xor_b32 v27, v27, v24"), I(f"v_lshl_add_u32 v{VT+ks}, v27, 4, v25")]
    P += lines(f"""
    v_bfe_u32 v22, v2, 2, 2
    v_lshl_add_u32 v25, v23, 3, v22
    v_lshlrev_b32 v25, 7, v25
    v_bfe_u32 v24, v2, 4, 1
    v_lshl_add_u32 v25, v24, 5, v25
    v_and_b32 v24, 3, v2
    v_lshl_add_u32 v25, v24, 3, v25
    v_lshrrev_b32 v22, 1, v22
    v_lshl_add_u32 v{VW}, v22, 6, v25
    v_xor_b32 v{VW+1}, 64, v{VW}
    v_add_u32 v{VWH}, 0x10000, v{VW}
    v_add_u32 v{VWH+1}, 0x10000, v{VW+1}
    s_lshl_b32 s{sKV}, s{sHD}, 19
    s_lshl_b32 s{sT1}, s{sMT}, 16
    s_add_u32 s{sKV}, s{sKV}, s{sT1}
    s_lshl_b32 s{sT1}, s{sW}, 14
    s_add_u32 s{sKV}, s{sKV}, s{sT1}
    v_lshrrev_b32 v22, 1, v0
    v_and_b32 v23, 1, v0
    v_mul_u32_u24 v24, 6144, v22
    v_lshl_add_u32 v24, v23, 4, v24
    s_mul_i32 s{sD}, s{sXC}, 768
    s_lshl_b32 s{sB}, s{sJ}, 5
    s_add_u32 s{sA}, s{sD}, s{sB}
    s_cmp_lt_u32 s{sJ}, 24
    s_cselect_b32 s{sA}, s{sA}, 0x40000000
    v_lshlrev_b32 v22, 1, v22
    s_mov_b32 s{sB}, s{sA}
    v_subrev_u32 v29, 128, v0
    v_and_b32 v25, 7, v29
    v_lshrrev_b32 v29, 3, v29
    v_mul_u32_u24 v29, 6144, v29
    v_lshl_add_u32 v29, v25, 7, v29
    v_cmp_lt_u32 vcc, 5, v25
    v_mov_b32 v25, 0x40000000
    s_mul_i32 s{sC_}, s{sJ}, {16*6144}
    v_cndmask_b32 v29, v29, v25, vcc
    s_add_u32 s{sC_}, s{sC_}, s{sD}
    s_cmp_ge_u32 s{sW}, 2
    s_cselect_b32 s{sC_}, s{sC_}, 0x80000000
    v_and_b32 v29, 0x4fffffff, v29
    """)
    P.append(I(f"buffer_load_dword v26, v29, s[{S_M}:{S_M+3}], s{sC_} offen {PFN}", "pf"))
    P += lines(f"""
    s_lshl_b32 s{sF}, s2, 7
    s_add_u32 s{sF}, s{sF}, {WS_FLAG}
    s_cmp_eq_u32 s{sW}, 0
    s_cselect_b32 s{sF}, s{sF}, 0x80000000
    """)
    P += seq(tdma(1, 0)) + seq(tdma(1, 1))
    def treads(s):
        return [I(f"ds_read_b128 {ar(((4*s+k)*2+q)*4,4)}, v{VT+k} offset:{(s%2)*8192+q*4096}", f"t{s}") for k in range(4) for q in range(2)]
    def wreads(gk):
        u, ksl, st = gk // 8, gk % 8, gk & 3
        s_ = WSLOT[u]
        base = VW if s_ < 4 else VWH
        return [I(f"ds_read_b64_tr_b16 v[{WF+8*st+4*nt+2*e}:{WF+8*st+4*nt+2*e+1}], v{base+nt} offset:{(s_%4)*16384+ksl*2048+e*512}", f"w{gk}")
                for nt in range(2) for e in range(2)]
    def stamp_item():
        if not STAMPS: return []
        b = ST.base + 2 * ST.n; ST.n += 1
        return [I(f"s_memtime s[{b}:{b+1}]")]
    P += [WV("W0", "T0"), I("s_barrier")] + stamp_item()
    P += wreads(0) + treads(0) + wreads(1) + [WL("w0", "t0")]
    mf = []
    for c in range(4):
        for ks in range(32):
            for nt in range(2):
                for q in range(2):
                    acc = vr(ACC + 64 * (c & 1) + 16 * (2 * q + nt), 16)
                    wf = vr(WF + 8 * (ks & 3) + 4 * nt, 4)
                    tk = ar((ks * 2 + q) * 4, 4)
                    cc = acc if ks else "0"
                    mf.append(mfma(acc, wf, tk, cc) if c < 2 else mfma(acc, tk, wf, cc))
    qa = lambda q: 64 if q == 0 else 192
    for ks in range(32):
        for dt in range(4):
            for q in range(2):
                acc = vr(qa(q) + 16 * dt, 16)
                mf.append(mfma(acc, vr(WF + 16 * (ks & 1) + 4 * dt, 4), ar(8 * ks + 4 * q, 4), acc if ks else "0"))
    G = Gaps(mf)
    busy = set()
    def put_dma(g0, grp, step=1):
        pre, d = grp
        G.put(g0 - 1, pre, "end")
        for i, x in enumerate(d): G.put(g0 + i * step, x, "mem")
        for g in range(g0, g0 + (len(d) - 1) * step + 1):
            assert g not in busy, g
            busy.add(g)
        return g0 + len(d) * step
    def BG(u): return 4 * (8 * u - 2)
    bars = []
    for gk in range(128):
        g0 = 4 * gk
        if gk + 2 < 128:
            if (gk + 2) % 8 == 0:
                G.put(g0, "s_barrier", "mem"); bars.append(g0)
            for i, r in enumerate(wreads(gk + 2)): G.put(g0 + i, r)
        if gk + 1 < 128:
            tags = [f"w{gk+1}"]
            if gk + 1 < 32 and (gk + 1) % 4 == 0: tags.append(f"t{(gk+1)//4}")
            if (gk + 3) % 8 == 0 and gk + 3 < 128: G.put(g0 + 3, WVL([f"W{(gk+3)//8}"], tags), "end")
            else: G.put(g0 + 3, WL(*tags), "end")
    for s in range(1, 8):
        g0 = 4 * (4 * s - 2)
        G.put(g0 - 1, WV(f"T{s}"), "end")
        rd = treads(s)
        for i in range(4): G.put(g0 + i, rd[2 * i:2 * i + 2])
    put_dma(1, wdma(1))
    put_dma(5, tdma(2, 0)); put_dma(9, tdma(2, 1))
    put_dma(16, tdma(3, 0)); put_dma(20, tdma(3, 1))
    put_dma(24, wdma(2))
    put_dma(32, tdma(4, 0)); put_dma(36, tdma(4, 1))
    put_dma(48, tdma(5, 0)); put_dma(52, tdma(5, 1))
    put_dma(56, wdma(3))
    put_dma(64, tdma(6, 0)); put_dma(68, tdma(6, 1))
    put_dma(80, tdma(7, 0)); put_dma(84, tdma(7, 1))
    GW6 = E("KA_GW6", 150)
    put_dma(90, wdma(4), 2); put_dma(98, wdma(5), 2); put_dma(GW6, wdma(6), 3); put_dma(GW6 + 12, wdma(7), 3)
    g = E("KA_GW8", 188)
    fa = {8: BG(4), 9: BG(4), 10: BG(6), 11: BG(7), 12: BG(4), 13: BG(5), 14: BG(8), 15: BG(9)}
    for u in range(8, 16):
        g = put_dma(max(g, fa[u] + 2), wdma(u), 3)
    gW = g
    def QG(ks): return 512 + 8 * ks
    VQR, VOQ, VH = 16, 12, 13
    def qreads(ks):
        return [I(f"ds_read_b64_tr_b16 v[{WF+16*(ks&1)+4*nt+2*e}:{WF+16*(ks&1)+4*nt+2*e+1}], v{VQR+nt} offset:{(ks%8)*4096+e*1024}", f"qw{ks}")
                for nt in range(4) for e in range(2)]
    for ks in range(32):
        g0 = QG(ks) - 8
        if ks % 8 == 0:
            G.put(g0 - 1, WV(f"Q{ks//8}"), "end"); G.put(g0, "s_barrier", "mem"); bars.append(g0)
            if ks: G.put(g0 - 2, [f"v_subrev_u32 v{VQR+i}, 0x8000, v{VQR+i}" for i in range(4)], "end")
        rd = qreads(ks)
        for i in range(4): G.put(g0 + i, rd[2 * i:2 * i + 2])
        G.put(g0 + 7, WVL([f"h{ks}"], [f"qw{ks}"]), "end")
    G.put(QG(31), "s_barrier", "mem")
    L = [f"s_lshl_b32 s{sE}, s{sMT}, 19", f"s_lshl_b32 s{sD}, s{sW}, 7", f"s_add_u32 s{sE}, s{sE}, s{sD}",
         [f"s_cmp_lt_u32 s{sW}, 2", f"s_cselect_b32 s{sE}, s{sE}, 0x80000000"]]
    G.stream(40, L)
    GB2 = E("KA_B2", 108)
    G.put(GB2, I(f"buffer_load_dword v26, v28, s[{S_WV}:{S_WV+3}], s{sE} offen", "pf"), "mem")
    L = [f"v_lshrrev_b32 v27, 2, v2", f"v_lshlrev_b32 v27, 15, v27", f"v_and_b32 v3, 3, v2", f"v_lshl_add_u32 v27, v3, 7, v27",
         [f"v_cmp_lt_u32 vcc, 35, v2", f"v_mov_b32 v3, 0", "s_nop 0", f"v_cndmask_b32 v27, v27, v25, vcc"],
         f"s_lshl_b32 s{sC_}, s{sA}, 4", f"s_add_u32 s{sC_}, s{sC_}, {WS_FLAG}",
         [f"s_cmp_lt_u32 s{sA}, 2048", f"s_cselect_b32 s{sC_}, s{sC_}, 0x80000000", f"s_cmp_eq_u32 s{sW}, 0", f"s_cselect_b32 s{sC_}, s{sC_}, 0x80000000"],
         I(f"buffer_store_dword v3, v27, {WSR}, s{sC_} offen sc1", "zf"),
         f"v_lshlrev_b32 v27, 12, v0", f"v_mov_b32 v29, 1"]
    G.stream(E("KA_ZF", 30), L)
    def epi(c):
        R = []
        base = WS_KF if c < 2 else WS_VF
        for q in range(2):
            for nt in range(2):
                for j in range(2):
                    dt = 2 * (c & 1) + nt
                    fi = (2 * dt + j) if c < 2 else (4 * j + dt)
                    off = q * 8192 + fi * 1024
                    a0 = ACC + 64 * (c & 1) + 16 * (2 * q + nt) + 8 * j
                    L = [f"v_cvt_pk_bf16_f32 v{a0+i}, v{a0+2*i}, v{a0+2*i+1}" for i in range(4)]
                    L.append(f"s_add_u32 s{sT1}, s{sKV}, {base + (off & ~4095)}")
                    L.append(I(f"buffer_store_dwordx4 v[{a0}:{a0+3}], v1, {WSR}, s{sT1} offen offset:{off & 4095} {STF}", "st" if c < 3 else "stl"))
                    R.append(L)
        return R
    ES = E("KA_ES", 12)
    for c in range(4):
        for n, L in enumerate(epi(c)):
            gl = G.stream(128 * (c + 1) + 6 + (ES if c < 3 else E("KA_ES3", 8)) * n, L)
    W4, C4, AC, T1 = J, J + 16, J + 20, J + 28
    for i in range(4):
        L = [I(f"buffer_load_dwordx4 v[{W4+4*i}:{W4+4*i+3}], v24, s[{S_M}:{S_M+3}], s{sB} offen", "j1")]
        if i < 3: L.append(f"s_add_u32 s{sB}, s{sB}, {128*6144}")
        g = G.stream(E("KA_GJ1", 4) + 8 * i, L)
    g = G.stream(g + 1, [I(f"buffer_load_ushort v{C4+i}, v22, s[{S_C}:{S_C+3}], 0 offen offset:{256*i}", "j1") for i in range(4)])
    L = [WV("j1"), f"s_mov_b32 s{sB}, {LOG2E}"]
    for op in ("v_lshlrev_b32 v{c}, 16, v{c}", "v_mul_f32 v{t}, s%d, v{c}" % sB, "v_exp_f32 v{t}, -v{t}", "v_add_f32 v{t}, 1.0, v{t}", "v_rcp_f32 v{t}, v{t}",
               "v_mul_f32 v{c}, v{c}, v{t}", "v_cvt_pk_bf16_f32 v{c}, v{c}, v{c}", "v_lshlrev_b32 v{c}, 16, v{c}"):
        L += [op.format(c=C4 + i, t=T1 + i) for i in range(4)]
    for i in range(4):
        for qd in range(4):
            w = W4 + 4 * i + qd
            op = "v_mul_f32" if i == 0 else "v_fmac_f32"
            L += [f"v_lshlrev_b32 v{T1}, 16, v{w}", f"v_and_b32 v{T1+1}, 0xffff0000, v{w}", f"{op} v{AC+2*qd}, v{C4+i}, v{T1}", f"{op} v{AC+2*qd+1}, v{C4+i}, v{T1+1}"]
    L.append("s_nop 1")
    for ror in (8, 4, 2):
        L += [f"v_add_f32_dpp v{AC+e}, v{AC+e}, v{AC+e} row_ror:{ror} row_mask:0xf bank_mask:0xf" for e in range(8)]
    L += [f"v_lshrrev_b32 v22, 4, v0", f"v_lshlrev_b32 v22, 6, v22", f"v_lshl_add_u32 v22, v23, 5, v22",
          I(f"ds_write_b128 v22, v[{AC}:{AC+3}]", "j1w"), I(f"ds_write_b128 v22, v[{AC+4}:{AC+7}] offset:16", "j1w"),
          f"v_and_b32 v22, 15, v2", f"v_lshrrev_b32 v23, 4, v2", f"v_lshlrev_b32 v23, 8, v23", f"v_lshl_add_u32 v23, v22, 2, v23",
          f"v_lshlrev_b32 v22, 2, v22", WL("j1w")]
    g = G.stream(max(g + 8, E("KA_J1", 44)), L)
    assert g > 60
    gb = min(b for b in bars if b > g)
    assert gb < GW6 - 40
    L = [I(f"ds_read_b32 v{T1+i}, v23 offset:{64*i}", "j1r") for i in range(4)]
    L += [f"s_lshl_b32 s{sB}, s{sA}, 1", [f"s_cmp_eq_u32 s{sW}, 0", f"s_cselect_b32 s{sB}, s{sB}, 0x80000000"], WL("j1r"),
          f"v_add_f32 v{T1}, v{T1}, v{T1+1}", f"v_add_f32 v{T1+2}, v{T1+2}, v{T1+3}", f"v_add_f32 v{T1}, v{T1}, v{T1+2}"]
    for sw in ("v_permlane16_swap_b32", "v_permlane32_swap_b32"):
        L += [f"v_mov_b32 v{T1+1}, v{T1}", "s_nop 1", f"{sw} v{T1}, v{T1+1}", "s_nop 0", f"v_add_f32 v{T1}, v{T1}, v{T1+1}"]
    L += [f"v_cvt_pk_bf16_f32 v{T1}, v{T1}, v{T1}", f"v_lshlrev_b32 v{T1}, 16, v{T1}",
          I(f"buffer_store_dword v{T1}, v22, {WSR}, s{sB} offen sc1", "j1s"),
          [f"s_cmp_lt_u32 s{sB}, 4096", f"s_cselect_b32 s{sC_}, 0, 0x1000"]]
    g = G.stream(gb + 1, L)
    gsig = G.stream(g + E("KA_SIGD", 24), [WV("j1s"), I(f"buffer_atomic_add v29, v27, s[{S_D}:{S_D+3}], s{sC_} offen sc1", "j1a")])
    print("J1 store", g, "signal", gsig)
    XR, F, CA, SA, T = J + 32, J + 40, J, J + 16, 4
    L = [f"v_and_b32 v{T+4}, 7, v2", f"v_lshrrev_b32 v{T+5}, 3, v2", f"v_lshlrev_b32 v{T+6}, 10, v{T+4}", f"v_lshl_add_u32 v{T+6}, v{T+5}, 4, v{T+6}",
         f"s_lshl_b32 s{sD}, s2, 13", f"s_lshl_b32 s{sA}, s{sW}, 8", f"s_add_u32 s{sD}, s{sD}, s{sA}",
         I(f"buffer_load_dwordx4 v[{XR}:{XR+3}], v{T+6}, s[{S_X}:{S_X+3}], s{sD} offen", "j3"),
         I(f"buffer_load_dwordx4 v[{XR+4}:{XR+7}], v{T+6}, s[{S_X}:{S_X+3}], s{sD} offen offset:128", "j3")]
    gx = G.stream(max(E("KA_GX", 104), g + 1), L)
    def red(r, t):
        return ["s_nop 1", f"v_add_f32_dpp v{r}, v{r}, v{r} row_ror:8 row_mask:0xf bank_mask:0xf", f"v_mov_b32 v{t}, v{r}", "s_nop 1",
                f"v_permlane16_swap_b32 v{r}, v{t}", "s_nop 0", f"v_add_f32 v{r}, v{r}, v{t}", f"v_mov_b32 v{t}, v{r}", "s_nop 1",
                f"v_permlane32_swap_b32 v{r}, v{t}", "s_nop 0", f"v_add_f32 v{r}, v{r}, v{t}"]
    L = [WV("j3")]
    for i in range(8): L += [f"v_lshlrev_b32 v{F+2*i}, 16, v{XR+i}", f"v_and_b32 v{F+2*i+1}, 0xffff0000, v{XR+i}"]
    L.append(f"v_add_f32 v{T}, v{F}, v{F+1}")
    L += [f"v_add_f32 v{T}, v{T}, v{F+e}" for e in range(2, 16)]
    L += red(T, T + 2) + [f"v_mul_f32 v{T}, 0x3c000000, v{T}"]
    L += [f"v_sub_f32 v{CA+e}, v{F+e}, v{T}" for e in range(16)]
    L.append(f"v_mul_f32 v{T+1}, v{CA}, v{CA}")
    L += [f"v_fmac_f32 v{T+1}, v{CA+e}, v{CA+e}" for e in range(1, 16)]
    L += red(T + 1, T + 2)
    L += [f"v_lshlrev_b32 v{T+7}, 5, v{T+4}", f"v_add_u32 v{T+7}, 0x20000, v{T+7}", f"s_lshl_b32 s{sA}, s{sW}, 3", f"v_add_u32 v{T+2}, s{sA}, v{T+7}",
          I(f"ds_write_b64 v{T+2}, v[{T}:{T+1}]", "lw"), f"v_mov_b32 v{T+3}, 0", f"v_lshlrev_b32 v{T+6}, 5, v{T+5}", "s_nop 3", WL("lw")]
    g = G.stream(max(gsig + 1, E("KA_J3", 186)), L)
    gb = min(b for b in bars if b > g)
    print("LN stats end", g, "bar", gb)
    gp = max(g + 1, E("KA_POLL", 226))
    G.put(gp, I(f"buffer_load_dword v{T}, v{T+3}, s[{S_D}:{S_D+3}], 0 offen sc1", "pl"), "mem")
    L = [f"s_lshl_b32 s{sD}, s{sW}, 9", [WV("pl"), f"v_readfirstlane_b32 s{sA}, v{T}"],
         [f"s_cmp_lt_u32 s{sA}, 64", "s_cbranch_scc1 KA_SPIN", "KA_SPIN_RET:"]]
    for dst, off in ((SA, 0), (CA, 2048)):
        for m in range(2):
            for hh in range(2):
                L.append(I(f"buffer_load_dwordx4 v[{dst+8*m+4*hh}:{dst+8*m+4*hh+3}], v{T+6}, {WSR}, s{sD} offen offset:{off+256*m+16*hh} sc1", "md"))
    g = G.stream(gp + 26, L)
    R_ = XR
    L = [I(f"ds_read_b128 v[{R_}:{R_+3}], v{T+7}", "lr"), I(f"ds_read_b128 v[{R_+4}:{R_+7}], v{T+7} offset:16", "lr"), f"s_mov_b32 s{sA}, 0x43000000", "s_nop 3", WL("lr")]
    L += sl(f"""
    v_add_f32 v{T}, v{R_}, v{R_+2}
    v_add_f32 v{T+1}, v{R_+4}, v{R_+6}
    v_add_f32 v{T}, v{T}, v{T+1}
    v_mul_f32 v{T}, 0x3e800000, v{T}
    v_sub_f32 v{R_}, v{R_}, v{T}
    v_sub_f32 v{R_+2}, v{R_+2}, v{T}
    v_sub_f32 v{R_+4}, v{R_+4}, v{T}
    v_sub_f32 v{R_+6}, v{R_+6}, v{T}
    v_mul_f32 v{R_}, v{R_}, v{R_}
    v_fmac_f32 v{R_}, v{R_+2}, v{R_+2}
    v_fmac_f32 v{R_}, v{R_+4}, v{R_+4}
    v_fmac_f32 v{R_}, v{R_+6}, v{R_+6}
    v_add_f32 v{R_+1}, v{R_+1}, v{R_+3}
    v_add_f32 v{R_+5}, v{R_+5}, v{R_+7}
    v_add_f32 v{R_+1}, v{R_+1}, v{R_+5}
    v_fma_f32 v{R_}, v{R_}, s{sA}, v{R_+1}
    v_mov_b32 v{T+1}, 0x3727c5ac
    v_fmac_f32 v{T+1}, 0x3b000000, v{R_}
    v_rsq_f32 v{T+1}, v{T+1}
    s_nop 0
    v_mul_f32 v{T+1}, 0x{QSCALE:x}, v{T+1}
    """)
    L += [f"v_sub_f32 v{F+e}, v{F+e}, v{T}" for e in range(16)]
    L += [f"v_mul_f32 v{F+e}, v{F+e}, v{T+1}" for e in range(16)]
    L += [f"v_lshlrev_b32 v{T+2}, 9, v{T+5}", f"v_lshl_add_u32 v{T+2}, v{T+4}, 4, v{T+2}",
          f"s_lshr_b32 s{sA}, s2, 2", f"s_lshl_b32 s{sA}, s{sA}, 15", f"s_and_b32 s{sD}, s2, 3", f"s_lshl_b32 s{sD}, s{sD}, 7", f"s_add_u32 s{sA}, s{sA}, s{sD}",
          f"s_lshl_b32 s{sD}, s{sW}, 13", f"s_add_u32 s{sA}, s{sA}, s{sD}", f"s_add_u32 s{sA}, s{sA}, {WS_H1}", f"s_add_u32 s{sD}, s{sA}, 4096"]
    g = G.stream(max(g, gb) + 1, L)
    L = [WV("md")]
    for op in ("v_add_f32 v{c}, 1.0, v{c}", "v_cvt_pk_bf16_f32 v{c}, v{c}, v{c}", "v_lshlrev_b32 v{c}, 16, v{c}"):
        L += [op.format(c=CA + e) for e in range(16)]
    L += [f"v_mul_f32 v{SA+e}, 0x{QSCALE:x}, v{SA+e}" for e in range(16)]
    L += [f"v_fma_f32 v{F+e}, v{F+e}, v{CA+e}, v{SA+e}" for e in range(16)]
    L += [f"v_cvt_pk_bf16_f32 v{XR+i}, v{F+2*i}, v{F+2*i+1}" for i in range(8)]
    L += [I(f"buffer_store_dwordx4 v[{XR}:{XR+3}], v{T+2}, {WSR}, s{sA} offen sc1", "hs"), I(f"buffer_store_dwordx4 v[{XR+4}:{XR+7}], v{T+2}, {WSR}, s{sD} offen sc1", "hs")]
    g = G.stream(g + 6, L)
    gb = min(b for b in bars if b > g + E("KA_HD", 20))
    G.put(gb - 1, WV("hs"), "end")
    G.stream(g + 1, [f"v_mov_b32 v25, {MAGIC}", f"v_min_u32 v27, 1, v2", f"v_lshlrev_b32 v27, 30, v27", f"s_add_u32 s{sA}, s{sF}, {FL_H}"])
    G.put(gb + 1, I(f"buffer_store_dword v25, v27, {WSR}, s{sA} offen sc1", "fl"), "mem")
    print("h stored", g, "flag", gb + 1)
    gh = gb + 1
    L = [[f"s_mov_b32 s{S_WQ}, s8", f"s_mov_b32 s{S_WQ+1}, s9"],
         I(f"buffer_load_dword v26, v28, s[{S_WQ}:{S_WQ+3}], s{sE} offen", "pf"),
         f"v_lshrrev_b32 v22, 4, v2", f"v_and_b32 v23, 15, v2", f"v_lshlrev_b32 v24, 2, v22", f"v_xor_b32 v23, v23, v24", f"v_lshlrev_b32 v23, 4, v23",
         f"v_lshl_add_u32 v23, v22, 13, v23", f"s_lshl_b32 s{sB}, s{sW}, 15", f"v_add_u32 v{VOQ}, s{sB}, v23",
         f"s_sub_u32 s{sB}, 15, s{sMT}", [f"s_cmp_eq_u32 s{sP_}, 0", f"s_cselect_b32 s{sB}, s{sB}, s{sMT}"], f"s_lshl_b32 s{sB}, s{sB}, 1", f"s_add_u32 s{sB}, s{sB}, s{sR}",
         f"s_lshl_b32 s{sC_}, s{sB}, 10", f"s_add_u32 s{sC_}, s{sC_}, {WS_FLAG+FL_H}",
         f"s_lshl_b32 s{sB}, s{sB}, 16", f"s_add_u32 s{sB}, s{sB}, {WS_H1}", f"v_add_u32 v{VH}, s{sB}, v1", f"v_add_u32 v{VH+1}, 32768, v{VH}",
         f"v_bfe_u32 v22, v2, 2, 2", f"v_lshrrev_b32 v23, 5, v2", f"v_lshl_add_u32 v23, v23, 3, v22", f"v_lshlrev_b32 v23, 8, v23",
         f"v_bfe_u32 v24, v2, 4, 1", f"v_lshl_add_u32 v23, v24, 5, v23", f"v_and_b32 v24, 3, v2", f"v_lshl_add_u32 v23, v24, 3, v23", f"v_add_u32 v23, 0x20000, v23"]
    for nt in range(4): L += [f"v_xor_b32 v24, {nt}, v22", f"v_lshl_add_u32 v{VQR+nt}, v24, 6, v23"]
    L += [f"v_and_b32 v15, 7, v2", f"v_lshlrev_b32 v15, 7, v15", f"s_lshl_b32 s{sM0T}, s{sW}, 10"]
    g = G.stream(max(gW + 1, E("KA_PFG", 300)), L)
    print("q setup end", g)
    gq = max(g + 2, gh + 2, E("KA_GQ", 366))
    qfree = lambda ks: BG(4) if ks < 8 else BG(10) if ks < 12 else BG(11) if ks < 16 else BG(12) if ks < 20 else BG(13) if ks < 24 else BG(14) if ks < 28 else BG(15)
    QS = E("KA_QS", 4)
    for ks in range(32):
        gq = max(gq, qfree(ks) + 2)
        put_dma(gq, ([f"s_add_u32 m0, s{sM0T}, {131072-32768*(ks//8)+(ks%8)*4096}", f"s_mov_b32 s{sT0}, {ks*16*8192}"],
                     [I(f"buffer_load_dwordx4 v{VOQ}, s[{S_WQ}:{S_WQ+3}], s{sT0} offen lds", f"Q{ks//8}")]))
        gq += QS
    print("W_q dma end", gq)
    gp = E("KA_HP", 420)
    G.put(gp, I(f"buffer_load_dword v22, v15, {WSR}, s{sC_} offen sc1", "hp"), "mem")
    g = G.stream(gp + 24, [[WV("hp"), f"v_cmp_ne_u32 vcc, v25, v22"], ["s_cbranch_vccnz KA_HSPIN", "KA_HSPIN_RET:"]])
    g += 1
    n = 0
    for ks in range(32):
        for q in range(2):
            g = max(g, 384 + 4 * ks + 4)
            while g in busy: g += 1
            if ks % 4 == 0 and q == 0: G.put(g - 1, f"s_mov_b32 s{sB}, {(ks//4)*4096}", "end")
            G.put(g, I(f"buffer_load_dwordx4 {ar(8*ks+4*q,4)}, v{VH+q}, {WSR}, s{sB} offen offset:{(ks%4)*1024} sc1", f"h{ks}"), "mem")
            assert g < QG(ks) - 12, (ks, g)
            g += E("KA_HS", 4) if g < gq else 3
    print("h loads end", g)
    ghl = g
    L = sl(f"""
    v_lshrrev_b32 v24, 5, v2
    v_mul_lo_u32 v29, v24, s11
    v_and_b32 v23, 31, v2
    v_lshl_add_u32 v29, v23, 4, v29
    s_lshl_b32 s11, s11, 1
    v_bfe_u32 v23, v2, 2, 2
    v_lshl_add_u32 v23, v24, 2, v23
    v_lshlrev_b32 v23, 9, v23
    v_bfe_u32 v24, v2, 4, 1
    v_lshl_add_u32 v23, v24, 5, v23
    v_and_b32 v24, 3, v2
    v_lshl_add_u32 v23, v24, 3, v23
    v_add_u32 v26, s35, v23
    """)
    g = G.stream(470, L)
    gj = max(E("KA_GJ2", 0), ghl)
    assert gj > QG(16) - 8
    for i in range(8):
        while G.mem[gj] and any("buffer_" in x.s for x in G.mem[gj]): gj += 1
        put_dma(gj, ([f"s_add_u32 m0, s35, {i*1024}"], [I(f"buffer_load_dwordx4 v29, s[4:7], s10 offen {os.environ.get('KA_J2F', 'nt')} lds", "j2")]))
        G.put(gj, "s_add_u32 s10, s10, s11", "end")
        gj += 2
    L = [WV("j2")]
    for f in range(8):
        for e in range(2):
            L.append(I(f"ds_read_b64_tr_b16 v[{160+4*f+2*e}:{161+4*f+2*e}], v26 offset:{e*4096+f*64}", "j2r"))
    g = G.stream(E("KA_J2R", 747), L)
    assert g < QG(31) - 2, g
    G.put(QG(31) - 1, WL("j2r"), "end")
    print("J2 dma", gj, "reads end", g)
    gb = min(b for b in bars if b > gl + E("KA_KD", 30))
    G.put(gb - 2, WV("stl"), "end")
    G.put(gb - 2, f"s_add_u32 s{sA}, s{sF}, {FL_KV}", "end")
    G.put(gb + 1, I(f"buffer_store_dword v25, v27, {WSR}, s{sA} offen sc1", "fl"), "mem")
    print("kv flag", gb + 1)
    K = k2
    L = sl(f"""
    s_and_b32 s{sC_}, s2, 31
    s_lshl_b32 s{sC_}, s{sC_}, 7
    s_add_u32 s{sC_}, s{sC_}, {WS_FLAG+FL_KV}
    v_lshlrev_b32 v15, 5, v15
    v_mov_b32 v28, v2
    s_lshl_b32 s{sD}, s{sHD}, 19
    s_add_u32 s{sE}, s{sD}, {WS_KF}
    """) + [[f"s_add_u32 s{K.S_K}, s{S_WS}, s{sE}", f"s_addc_u32 s{K.S_K+1}, s{S_WS+1}, 0"], f"s_add_u32 s{sE}, s{sD}, {WS_VF}",
            [f"s_add_u32 s{K.S_V}, s{S_WS}, s{sE}", f"s_addc_u32 s{K.S_V+1}, s{S_WS+1}, 0"]] + sl(f"""
    s_mov_b32 s{K.S_V+2}, 0x80000
    s_lshl_b32 s{sD}, s{K.sPR}, 1
    s_sub_u32 s{K.sN}, 32, s{sD}
    s_lshl_b32 s{K.sKEND}, s{K.sN}, 14
    s_mov_b32 s{K.S_K+2}, s{K.sKEND}
    s_add_u32 s{K.sN2B}, s{sD}, 2
    s_lshl_b32 s{K.sN2B}, s{K.sN2B}, 14
    s_mov_b32 s{K.sKOFF}, 0
    s_lshl_b32 s{K.sKDST}, s{sW}, 12
    s_mov_b32 s{K.sBLK}, 0
    s_sub_u32 s{K.sQB}, 15, s{K.sPR}
    v_add_u32 v{K.V_DMA}, s{K.sKDST}, v1
    s_lshl_b32 s{sD}, s{sP_}, 13
    v_add_u32 v{K.V_KADDR}, s{sD}, v1
    v_mov_b32 v{K.V_NINF}, 0xff800000
    s_lshl_b32 s{sE}, s{sR}, 14
    s_add_u32 s{sE}, s{sE}, s{sD}
    v_add_u32 v{K.V_QA}, s{sE}, v1
    v_xor_b32 v{K.V_QA+1}, 0x2000, v{K.V_QA}
    v_and_b32 v23, 31, v28
    v_lshrrev_b32 v24, 5, v28
    v_lshlrev_b32 v24, 2, v24
    v_sub_u32 v23, v23, v24
    """)
    for z in range(2):
        for q in range(2):
            L += [f"s_xor_b32 s{sD}, s{sP_}, {q}", f"s_lshl_b32 s{sE}, s{sR}, 1", f"s_add_u32 s{sD}, s{sD}, s{sE}", f"s_sub_u32 s{sD}, s{sD}, s{sP_}",
                  f"s_sub_u32 s{sD}, s{sD}, {2*z}", f"s_lshl_b32 s{sD}, s{sD}, 5", f"v_add_u32 v{K.V_LIM+2*z+q}, s{sD}, v23"]
    g = G.stream(530, L)
    print("attn setup end", g)
    gp = max(E("KA_KP", 736), g + 1, ghl)
    G.put(gp, I(f"buffer_load_dword v22, v15, {WSR}, s{sC_} offen sc1", "kp"), "mem")
    g = G.stream(gp + 22, [[WV("kp"), f"v_cmp_ne_u32 vcc, v25, v22"], ["s_cbranch_vccnz KA_KSPIN", "KA_KSPIN_RET:"]])
    items = P + G.items()
    print("front gaps over cap:", [(g, u) for g, u in enumerate(G.used) if u > 24][:20])
    if STAMPS:
        pos = [i for i, it in enumerate(items) if it.s.startswith("v_mfma")]
        stg = [int(x) for x in os.environ.get("STG", "128,512").split(",")]
        for k in range(len(stg) - 1, -1, -1):
            b = ST.base + 2 * (ST.n + k)
            items.insert(pos[stg[k]], I(f"s_memtime s[{b}:{b+1}]"))
        ST.n += len(stg)
    if DBGT:
        pos = [i for i, it in enumerate(items) if it.s.startswith("v_mfma")]
        items.insert(pos[512], I("s_memrealtime s[76:77]")); items.insert(pos[128], I("s_memrealtime s[74:75]")); items.insert(pos[0], I("s_memrealtime s[72:73]"))
    resolve(items, A, vm0=["pf"])
    if os.environ.get("STG"):
        import asmlib
        class Dummy:
            base = 100; n = 0
            def stamp(self): pass
            def flush(self, *a, **k): return ST.flush(*a, **k)
        class D2(Dummy):
            @property
            def n(self): return 0
            @n.setter
            def n(self, v): pass
        ST.stamp()
        k2.gen_attn(A, D2(), qa, tailfn=tailfn)
    else:
        k2.gen_attn(A, ST, qa, tailfn=tailfn)
    A(f"""
    KA_SPIN:
    s_mov_b32 s{sB}, 200000
    KA_SPIN_L:
    s_sleep 8
    buffer_load_dword v{T}, v{T+3}, s[{S_D}:{S_D+3}], 0 offen sc1
    s_waitcnt vmcnt(0)
    v_readfirstlane_b32 s{sA}, v{T}
    s_cmp_ge_u32 s{sA}, 64
    s_cbranch_scc1 KA_SPIN_RET
    s_sub_u32 s{sB}, s{sB}, 1
    s_cmp_lg_u32 s{sB}, 0
    s_cbranch_scc1 KA_SPIN_L
    s_branch KA_SPIN_RET
    """)
    for tag in ("KA_HSPIN", "KA_KSPIN"):
        A(f"""
        {tag}:
        s_mov_b32 s{sD}, 200000
        {tag}_L:
        s_sleep 4
        buffer_load_dword v22, v15, {WSR}, s{sC_} offen sc1
        s_waitcnt vmcnt(0)
        v_cmp_ne_u32 vcc, v25, v22
        s_cbranch_vccz {tag}_RET
        s_sub_u32 s{sD}, s{sD}, 1
        s_cmp_lg_u32 s{sD}, 0
        s_cbranch_scc1 {tag}_L
        s_branch {tag}_RET
        """)
    return name, A.text(), kernel_desc(name, 256, 256), "grid=(256,1,1) block=(256,1,1) lds=163840"
```

```python
from asmlib import *
from sched import *
import os
LOG2E = 0x3fb8aa3b
MAGIC = 0x5a17
def E(k, d): return int(os.environ.get(k, str(d)))
def lines(s):
    return [I(x.strip()) for x in s.strip().split("\n") if x.strip()]
def its(L):
    return [x if isinstance(x, Item) else I(x) for x in L]

def gen_kc(A=None, vmE=None):
    FUSED = A is not None
    name = "kc_kernel"
    if not FUSED:
        A = Asm()
        A.lines.append(kernel_header(name))
        A("s_cmp_ge_u32 s2, 256")
        A("s_cbranch_scc1 KC_END")
    else:
        A("KC_START:")
        dbg_mark(A, 4)
    ST = Stamper(A, 2 if os.environ.get('NOFUSE') else 1)
    ST.stamp()
    def stamp_item():
        if not STAMPS: return []
        b = ST.base + 2 * ST.n; ST.n += 1
        return [I(f"s_memtime s[{b}:{b+1}]")]
    S_WS, S_X, S_O, S_B = 20, 16, 12, 24
    sW, sRB, sCB, sTS, sNT = 30, 31, 32, 33, 34
    sA, sWo, sT0, sT1, sT2, sM0, sFL = 35, 36, 37, 38, 39, 40, 41
    sW1, sACT, sFW, sL2E, sPT, sKQ, sHU, sNZ = 42, 43, 44, 45, 46, 47, 48, 49
    VA, VW, VM, VRM, VMG, VRR, VCA, VPL, VF0 = 4, 6, 8, 9, 10, 11, 12, 14, 3
    ACC, FR, T = 16, 80, 192
    WS = f"s[{S_WS}:{S_WS+3}]"
    S_F, S_S, sXC = 52, 56, 50
    sRG, sCG2, sFA = 51, 60, 61
    OMAP = E('KC_OMAP', 1)
    FAST = os.environ.get("KC_FAST", "bc")
    LOCAL = E("KC_LOCAL", 0)
    def st2(txt, tag, cls):
        if cls not in FAST: return [I(txt.format(srd=WS, fl='sc1'), tag)]
        return [I(txt.format(srd=f's[{S_F}:{S_F+3}]', fl='').rstrip(), tag), I(txt.format(srd=f's[{S_S}:{S_S+3}]', fl='sc1'), tag)]
    MAP = f"""s_bfe_u32 s{sT0}, s2, 0x20001
    s_lshl_b32 s{sT0}, s{sT0}, 2
    s_add_u32 s{sT0}, s{sT0}, s{sT1}
    s_and_b32 s{sT1}, s2, 1""" if not LOCAL else f"""s_and_b32 s{sT0}, s2, 7
    s_lshl_b32 s{sT0}, s{sT0}, 1
    s_lshr_b32 s{sT2}, s{sT1}, 1
    s_add_u32 s{sT0}, s{sT0}, s{sT2}
    s_and_b32 s{sT1}, s{sT1}, 1"""
    if OMAP == 0:
        OROLE = f"""s_lshl_b32 s{sKQ}, s{sT1}, 1
        s_and_b32 s{sT1}, s{sCB}, 1
        s_add_u32 s{sKQ}, s{sKQ}, s{sT1}
        s_mov_b32 s{sRG}, s{sT0}
        s_and_b32 s{sCG2}, s{sCB}, 6"""
    else:
        OROLE = f"""s_bfe_u32 s{sKQ}, s2, 0x20001
        s_lshr_b32 s{sRG}, s2, 5
        s_and_b32 s{sT1}, s2, 1
        {"s_lshl_b32 s%d, s%d, 1" % (sRG, sRG) if OMAP == 1 else "s_lshl_b32 s%d, s%d, 3" % (sT1, sT1)}
        s_add_u32 s{sRG}, s{sRG}, s{sT1}
        s_bfe_u32 s{sCG2}, s2, 0x20003
        s_lshl_b32 s{sCG2}, s{sCG2}, 1"""
    A(f"""
    {"" if FUSED else "s_load_dwordx2 s[%d:%d], s[0:1], %d" % (S_WS, S_WS+1, KA['ws'])}
    s_load_dwordx2 s[{S_X}:{S_X+1}], s[0:1], {KA['x']}
    s_load_dwordx2 s[{S_O}:{S_O+1}], s[0:1], {KA['out']}
    s_load_dwordx2 s[{S_B}:{S_B+1}], s[0:1], {KA['b1']}
    v_lshrrev_b32 v3, 6, v0
    v_and_b32 v2, 63, v0
    v_readfirstlane_b32 s{sW}, v3
    v_lshlrev_b32 v1, 4, v2
    s_lshr_b32 s{sT1}, s2, 3
    s_and_b32 s{sCB}, s{sT1}, 7
    s_lshr_b32 s{sT1}, s{sT1}, 3
    {MAP}
    s_lshl_b32 s{sRB}, s{sT0}, 1
    s_add_u32 s{sRB}, s{sRB}, s{sT1}
    {OROLE}
    s_mov_b32 s{sT0}, s{sRG}
    s_lshl_b32 s{sA}, s{sT0}, 2
    s_add_u32 s{sA}, s{sA}, s{sW}
    s_lshl_b32 s{sA}, s{sA}, 18
    s_lshl_b32 s{sT1}, s{sKQ}, 16
    s_add_u32 s{sA}, s{sA}, s{sT1}
    s_add_u32 s{sA}, s{sA}, {WS_CTX}
    s_lshl_b32 s{sPT}, s{sT0}, 17
    s_mov_b32 s{sWo}, s{sCG2}
    s_lshr_b32 s{sT1}, s{sW}, 1
    s_add_u32 s{sWo}, s{sWo}, s{sT1}
    s_lshl_b32 s{sWo}, s{sWo}, 19
    s_lshl_b32 s{sT1}, s{sKQ}, 17
    s_add_u32 s{sWo}, s{sWo}, s{sT1}
    s_and_b32 s{sT1}, s{sW}, 1
    s_lshl_b32 s{sT1}, s{sT1}, 12
    s_add_u32 s{sWo}, s{sWo}, s{sT1}
    s_add_u32 s{sWo}, s{sWo}, {WS_WOF}
    s_lshl_b32 s{sM0}, s{sW}, 12
    s_mov_b32 s{S_WS+2}, {WS_END}
    s_mov_b32 s{S_WS+3}, 0x00020000
    s_waitcnt lgkmcnt(0)
    """)
    def sdma(slot, tag):
        c = [I(f"buffer_load_dwordx4 v1, {WS}, s{sA} offen offset:{i*1024} lds", tag) for i in range(4)]
        w = [I(f"buffer_load_dwordx4 v1, {WS}, s{sWo} offen offset:{i*1024} lds", tag) for i in range(4)]
        return ([f"s_add_u32 m0, s{sM0}, {slot*32768}"], c, [f"s_add_u32 s{sA}, s{sA}, 4096"]), \
               ([f"s_add_u32 m0, s{sM0}, {slot*32768+16384}"], w, [f"s_add_u32 s{sWo}, s{sWo}, 8192"])
    P = []
    nw1 = 0
    def w1load(n):
        nt, ks = n // 32, n % 32
        pre = []
        if n == 32: pre = [I(f"s_sub_u32 s{sW1}, s{sW1}, {15*4096}")]
        elif ks % 2 == 0 and ks: pre = [I(f"s_add_u32 s{sW1}, s{sW1}, 4096")]
        return pre + [I(f"buffer_load_dwordx4 {ar(8*ks+4*nt,4)}, v1, {WS}, s{sW1} offen offset:{(ks%2)*2048+nt*1024}", f"w1_{n}")]
    def more(n):
        nonlocal nw1
        R = []
        for _ in range(n):
            if nw1 < 64:
                R += w1load(nw1); nw1 += 1
        return R
    W1SET = [f"s_lshl_b32 s{sW1}, s{sCB}, 2", f"s_add_u32 s{sW1}, s{sW1}, s{sW}", f"s_lshl_b32 s{sW1}, s{sW1}, 16", f"s_add_u32 s{sW1}, s{sW1}, {WS_W1F}",
             f"s_cmp_eq_u32 s{sCB}, 7", f"s_cselect_b32 s{sW1}, 0x80000000, s{sW1}"]
    NPW = E("KC_NPW", 4) if FUSED else 2
    if not FUSED:
        for st in range(2):
            for pre, d, post in sdma(st, f"S{st}"):
                P += its(pre) + [I("s_nop 0")] + d + its(post)
        P += its(W1SET)
    else:
        P += its(W1SET) + lines(f"""
        s_sub_u32 s{sT1}, 15, s{sRG}
        s_cmp_lt_u32 s{sRG}, 8
        s_cselect_b32 s{sT1}, s{sRG}, s{sT1}
        s_cselect_b32 s{sHU}, 0, {FL_J2-FL_CTX}
        s_lshl_b32 s{sT1}, s{sT1}, 12
        s_lshl_b32 s{sT2}, s{sKQ}, 8
        s_add_u32 s{sT1}, s{sT1}, s{sT2}
        s_add_u32 s{sHU}, s{sHU}, s{sT1}
        s_add_u32 s{sHU}, s{sHU}, {WS_FLAG+FL_CTX}
        v_and_b32 v5, 3, v2
        v_bfe_u32 v6, v2, 2, 1
        v_lshlrev_b32 v5, 10, v5
        v_lshl_add_u32 v5, v6, 7, v5
        s_add_u32 s{sT0}, s3, {FL_CTX}
        """)
        P += [WV("jp")] + lines("""
        v_cmp_ne_u32 vcc, v242, v241
        s_cbranch_vccnz KC_JSPIN
        KC_JSPIN_RET:
        s_barrier
        """)
        for st in range(NPW):
            pre, d, post = sdma(st, f"S{st}")[1]
            P += its(pre) + [I("s_nop 0")] + d + its(post)
            if st == E("KC_FLS", 1):
                P += [WV("cst"), I("s_barrier"), I(f"buffer_store_dword v242, v243, {WS}, s{sT0} offen sc1", "fl")]
        P += more(E("KC_P1", 4))
        P.append(I(f"buffer_load_dword v241, v5, {WS}, s{sHU} offen sc1", "cp"))
        P += more(E("KC_P2", 2))
    P += lines(f"""
    s_getreg_b32 s{sXC}, hwreg(HW_REG_XCC_ID, 0, 4)
    s_add_u32 s{sXC}, s{sXC}, {MAGIC}
    s_lshl_b32 s{sFL}, s{sRB}, 10
    s_add_u32 s{sFL}, s{sFL}, {WS_FLAG}
    s_lshl_b32 s{sFW}, s{sCB}, 7
    s_add_u32 s{sFW}, s{sFW}, s{sFL}
    s_lshl_b32 s{sFA}, s{sRG}, 11
    s_lshl_b32 s{sT0}, s{sKQ}, 9
    s_add_u32 s{sFA}, s{sFA}, s{sT0}
    s_lshl_b32 s{sT0}, s{sCG2}, 6
    s_add_u32 s{sFA}, s{sFA}, s{sT0}
    s_add_u32 s{sFA}, s{sFA}, {WS_FLAG}
    s_cmp_eq_u32 s{sW}, 0
    s_cselect_b32 s{sFW}, s{sFW}, 0x80000000
    s_cselect_b32 s{sFA}, s{sFA}, 0x80000000
    v_mov_b32 v{VMG}, s{sXC}
    v_lshlrev_b32 v{VF0}, 28, v2
    v_lshrrev_b32 v15, 4, v2
    v_lshlrev_b32 v15, 28, v15
    v_or_b32 v{VF0}, v{VF0}, v15
    v_lshrrev_b32 v{VF0}, 1, v{VF0}
    v_and_b32 v{VPL}, 15, v2
    v_lshlrev_b32 v{VPL}, 7, v{VPL}
    s_add_u32 s{sT0}, s{sFW}, 98304
    """)
    P.append(I(f"buffer_store_dword v{VMG}, v{VF0}, {WS}, s{sT0} offen sc1", "xc"))
    if FUSED:
        P += [WV("cp")] + lines("""
        v_cmp_ne_u32 vcc, v242, v241
        s_cbranch_vccnz KC_CSPIN
        KC_CSPIN_RET:
        """) + stamp_item()
        for st in range(2):
            pre, d, post = sdma(st, f"S{st}")[0]
            P += its(pre) + [I("s_nop 0")] + d + its(post)
    P += lines(f"""
    s_lshr_b32 s{sT0}, s{sW}, 1
    s_lshl_b32 s{sT0}, s{sT0}, 13
    v_add_u32 v{VA}, s{sT0}, v1
    v_add_u32 v{VA+1}, 0x10000, v{VA}
    s_and_b32 s{sT0}, s{sW}, 1
    s_lshl_b32 s{sT0}, s{sT0}, 13
    s_add_u32 s{sT0}, s{sT0}, 16384
    v_add_u32 v{VW}, s{sT0}, v1
    v_add_u32 v{VW+1}, 0x10000, v{VW}
    """)
    NS = 4
    def freads(k):
        st, ks = k // 4, k % 4
        slot = st % 4
        b = FR + 16 * (k % NS)
        hi, off = slot // 2, (slot % 2) * 32768
        return [I(f"ds_read_b128 v[{b}:{b+3}], v{VA+hi} offset:{off+ks*1024}", f"f{k}"),
                I(f"ds_read_b128 v[{b+8}:{b+11}], v{VW+hi} offset:{off+ks*2048}", f"f{k}"),
                I(f"ds_read_b128 v[{b+4}:{b+7}], v{VA+hi} offset:{off+4096+ks*1024}", f"f{k}"),
                I(f"ds_read_b128 v[{b+12}:{b+15}], v{VW+hi} offset:{off+ks*2048+1024}", f"f{k}")]
    mf = []
    for k in range(64):
        b = FR + 16 * (k % NS)
        for q, nt in ((0, 0), (1, 0), (0, 1), (1, 1)):
            acc = vr(ACC + 16 * (2 * q + nt), 16)
            mf.append(mfma(acc, vr(b + 8 + 4 * nt, 4), vr(b + 4 * q, 4), acc if k else "0"))
    G = Gaps(mf)
    for k in range(64):
        g0 = 4 * k
        if k + 2 < 64:
            if (k + 2) % 4 == 0: G.put(g0, "s_barrier", "mem")
            for i, r in enumerate(freads(k + 2)): G.put(g0 + i, r)
        if k + 1 < 64:
            if (k + 3) % 4 == 0 and k + 3 < 64:
                G.put(g0 + 3, WVL([f"S{(k+3)//4}"], [f"f{k+1}"]), "end")
            else:
                G.put(g0 + 3, WL(f"f{k+1}"), "end")
    def place(g, grp, step):
        pre, d, post = grp
        G.put(g - 1, pre, "end")
        for i, x in enumerate(d): G.put(g + i * step, x, "mem")
        G.put(g + 3 * step, post, "oth")
    c, w = sdma(2, "S2"); place(1, c, 1)
    if NPW <= 2: place(5, w, 1)
    for st in range(3, 16):
        gb = 4 * (4 * (st - 2) - 2) + E("KC_OD", 0)
        c, w = sdma(st % 4, f"S{st}")
        place(gb + 1, c, 2)
        if st >= NPW: place(gb + 9, w, 2)
    lastdma = 4 * (4 * 13 - 2) + 15 + E('KC_OD', 0)
    XR, GA, CB1, SB, B1 = 144, 152, 168, T, T + 16
    B1F = T + 32
    SET = [f"s_mov_b32 s{S_X+2}, 0x200000", f"s_mov_b32 s{S_X+3}, 0x00020000", f"s_mov_b32 s{S_O+2}, 0x200000", f"s_mov_b32 s{S_O+3}, 0x00020000",
           f"s_mov_b32 s{S_B+2}, 3584", f"s_mov_b32 s{S_B+3}, 0x00020000", f"s_mov_b32 s{sL2E}, {LOG2E}",
           f"v_lshrrev_b32 v15, 4, v2", f"v_bfe_u32 v{VCA}, v2, 3, 1", f"v_lshlrev_b32 v{VM}, 6, v15", f"v_lshl_add_u32 v{VM}, v{VCA}, 4, v{VM}",
           f"s_lshl_b32 s{sT0}, s{sW}, 9", f"v_add_u32 v{VM}, s{sT0}, v{VM}",
           f"v_and_b32 v{VCA+1}, 7, v2", f"v_lshrrev_b32 v{VRM}, 1, v{VM}", f"v_lshl_add_u32 v{VRM}, v{VCA+1}, 10, v{VRM}",
           f"s_lshl_b32 s{sT0}, s{sRB}, 3", f"s_add_u32 s{sT0}, s{sT0}, s{sCB}", f"s_lshl_b32 s{sT0}, s{sT0}, 13"]
    for m in range(2):
        for qd in range(2):
            SET.append(I(f"buffer_load_dwordx2 v[{XR+4*m+2*qd}:{XR+4*m+2*qd+1}], v{VRM}, s[{S_X}:{S_X+3}], s{sT0} offen offset:{128*m+16*qd}", "sm"))
    for dst, idx in ((GA, 2), (CB1, 4), (SB, 3)):
        SET.append(f"s_mov_b32 s{sT1}, {idx*2048}")
        for m in range(2):
            for qd in range(2):
                SET.append(I(f"buffer_load_dwordx4 v[{dst+8*m+4*qd}:{dst+8*m+4*qd+3}], v{VM}, {WS}, s{sT1} offen offset:{256*m+32*qd}", "sm"))
    SET += [f"v_lshlrev_b32 v{VCA}, 9, v{VCA}", f"v_lshl_add_u32 v{VCA}, v{VCA+1}, 4, v{VCA}",
            f"v_lshl_add_u32 v{VCA+1}, v15, 10, v{VCA}",
            f"s_lshl_b32 s{sT0}, s{sCB}, 2", f"s_add_u32 s{sT0}, s{sT0}, s{sW}", f"s_lshl_b32 s{sT0}, s{sT0}, 7",
            f"v_lshrrev_b32 v15, 5, v2", f"v_lshlrev_b32 v15, 3, v15"]
    for nt in range(2):
        for i in range(4):
            SET.append(I(f"buffer_load_dwordx2 v[{B1+8*nt+2*i}:{B1+8*nt+2*i+1}], v15, s[{S_B}:{S_B+3}], s{sT0} offen offset:{64*nt+16*i}", "sm"))
    SET += [
            (f"s_and_b32 s{sT2}, s{sFL}, 0xfffffbff" if "a" in FAST else f"s_mov_b32 s{sT2}, s{sFL}"), f"s_add_u32 s{sT2}, s{sT2}, 98304",
            f"v_and_b32 v15, {'0x780' if 'a' in FAST else '0x380'}, v{VPL}",
            I(f"buffer_load_dword v{VRR}, v15, {WS}, s{sT2} offen sc1", "sm"),
            [f"s_cmp_eq_u32 s{sW}, 0", f"s_cselect_b32 s{sFL}, s{sFL}, 0x80000000", f"s_cselect_b32 s{sNZ}, 0, -1"],
            f"v_mov_b32 v{VMG}, {MAGIC}",
            f"s_lshr_b32 s{sT0}, s{sW}, 1", f"s_lshl_b32 s{sTS}, s{sRB}, 1", f"s_add_u32 s{sTS}, s{sTS}, s{sT0}",
            f"s_and_b32 s{sT1}, s{sW}, 1", f"s_lshl_b32 s{sNT}, s{sCB}, 1", f"s_add_u32 s{sNT}, s{sNT}, s{sT1}",
            f"s_lshl_b32 s{sACT}, s{sKQ}, 21", f"s_add_u32 s{sACT}, s{sACT}, s{sPT}", f"s_lshl_b32 s{sT0}, s{sT0}, 16", f"s_add_u32 s{sACT}, s{sACT}, s{sT0}",
            f"s_add_u32 s{sT0}, s{sCG2}, s{sT1}", f"s_lshl_b32 s{sT0}, s{sT0}, 12", f"s_add_u32 s{sACT}, s{sACT}, s{sT0}",
            f"s_add_u32 s{sACT}, s{sACT}, {WS_PART}",
            f"s_lshr_b32 s{sT0}, s{sCB}, 2", f"s_lshl_b32 s{sT1}, s{sRB}, 1", f"s_add_u32 s{sT0}, s{sT0}, s{sT1}",
            f"s_and_b32 s{sT1}, s{sCB}, 3", f"s_lshl_b32 s{sT1}, s{sT1}, 7",
            f"s_lshl_b32 s{sHU}, s{sT0}, 15", f"s_add_u32 s{sHU}, s{sHU}, s{sT1}", f"s_lshl_b32 s{sT2}, s{sW}, 13", f"s_add_u32 s{sHU}, s{sHU}, s{sT2}"]
    if FUSED:
        G.stream(40, ["v_lshlrev_b32 v184, 7, v0", f"v_mov_b32 v186, {MAGIC}", f"s_mov_b32 s62, {WS_FLAG+FL_J2}"])
        G.put(168, I(f"buffer_load_dword v185, v184, {WS}, s62 offen sc1", "lp"), "mem")
        gl_ = G.stream(210, [[WV("lp"), "v_cmp_ne_u32 vcc, v186, v185"], ["s_cbranch_vccnz KC_LSPIN", "KC_LSPIN_RET:"]])
        assert gl_ < 232
    g = G.stream(E("KC_SETG", 120), SET)
    print("KC set end", g)
    X = 184 - 40
    XF = T + 16
    PREP = [WV("sm"), f"v_cmp_eq_u32 vcc, s{sXC}, v{VRR}", f"s_mov_b32 s{S_F}, s{S_WS}", f"s_mov_b32 s{S_F+1}, s{S_WS+1}", f"s_mov_b32 s{S_F+3}, 0x00020000",
            f"s_mov_b32 s{S_S}, s{S_WS}", f"s_mov_b32 s{S_S+1}, s{S_WS+1}", f"s_mov_b32 s{S_S+3}, 0x00020000",
            [f"s_cmp_eq_u32 vcc_lo, -1", f"s_cselect_b32 s{S_F+2}, {WS_END}, 0", f"s_cselect_b32 s{S_S+2}, 0, {WS_END}"]]
    for i in range(16):
        PREP += [f"v_lshlrev_b32 v{B1F+2*i}, 16, v{B1+i}", f"v_and_b32 v{B1F+2*i+1}, 0xffff0000, v{B1+i}"]
    for e in range(32): PREP.append(f"v_mul_f32 v{B1F+e}, s{sL2E}, v{B1F+e}")
    for i in range(8):
        PREP += [f"v_lshlrev_b32 v{XF+2*i}, 16, v{XR+i}", f"v_and_b32 v{XF+2*i+1}, 0xffff0000, v{XR+i}"]
    for e in range(16): PREP.append(f"v_add_f32 v{CB1+e}, 1.0, v{CB1+e}")
    for e in range(16): PREP.append(f"v_cvt_pk_bf16_f32 v{CB1+e}, v{CB1+e}, v{CB1+e}")
    for e in range(16): PREP.append(f"v_lshlrev_b32 v{CB1+e}, 16, v{CB1+e}")
    for e in range(16): PREP.append(f"v_mul_f32 v{SB+e}, s{sL2E}, v{SB+e}")
    g = G.stream(g + 24, PREP)
    print("KC prep end", g)
    if E("KC_W1O", 4):
        gg = 10
        while nw1 < 64 and gg < lastdma:
            w = w1load(nw1); nw1 += 1
            if len(w) > 1: G.put(gg - 1, w[0], "end")
            G.put(gg, w[-1], "mem"); gg += E("KC_W1O", 4)
    gg = lastdma + 3
    while gg < E("KC_W1T", 250) and nw1 < 64:
        w = w1load(nw1); nw1 += 1
        if len(w) > 1: G.put(gg - 1, w[0], "end")
        G.put(gg, w[-1], "mem"); gg += 3
    P += [WV("S0"), I("s_barrier")] + freads(0) + freads(1) + [WL("f0")]
    P += stamp_item()
    P += G.items()
    P += stamp_item()
    if DBGT: P.append(I("s_memrealtime s[80:81]"))
    if E("KC_XLIN", 0):
        P += lines(f"""
        s_lshl_b32 s{sACT}, s2, 2
        s_add_u32 s{sACT}, s{sACT}, s{sW}
        s_lshl_b32 s{sACT}, s{sACT}, 13
        s_add_u32 s{sACT}, s{sACT}, {WS_PART}
        """)
    if E("KC_XWAIT", 0):
        P += [I("s_sleep 127")] * E("KC_XWAIT", 0) + stamp_item()
    P += [I("s_nop 7"), I(f"s_add_u32 s{sT0}, s{sACT}, {4096 if E('KC_XLIN', 0) else 32768}")]
    for q, nt in ((0, 0), (1, 0), (0, 1), (1, 1)):
        for j in range(2):
            a0 = ACC + 16 * (2 * q + nt) + 8 * j
            for i in range(4): P.append(I(f"v_cvt_pk_bf16_f32 v{a0+i}, v{a0+2*i}, v{a0+2*i+1}"))
            P += st2(f"buffer_store_dwordx4 v[{a0}:{a0+3}], v1, {{srd}}, s{sACT if q == 0 else sT0} offen offset:{(2*nt+j)*1024} {{fl}}", "pst", "a")
    P += stamp_item()
    P += more(E("KC_MA", 10))
    P += [WV("pst"), I("s_barrier")] + st2(f"buffer_store_dword v{VMG}, v{VF0}, {{srd}}, s{sFA} offen {{fl}}", "fl", "a")
    P += stamp_item()
    P += more(E("KC_MB", 16))
    P += [I(f"s_and_b32 s{sT2}, s{sFL}, 0xfffffbff"), I(f"buffer_load_dword v15, v{VPL}, {WS}, s{sT2} offen sc1", "pl")]
    P += more(E("KC_MC", 4))
    P += [WV("pl")] + lines(f"""
    v_cmp_eq_u32 vcc, {MAGIC}, v15
    s_or_b32 s{sT0}, vcc_lo, s{sNZ}
    s_cmp_eq_u32 s{sT0}, -1
    s_cbranch_scc0 KC_PA_SLOW
    KC_PA_OK:
    s_barrier
    """)
    P += stamp_item()
    PR = 80
    for kq in range(4):
        for m in range(2):
            P.append(I(f"s_add_u32 s{sT0}, s{sHU}, {WS_PART+kq*2*MB+m*4096}"))
            d = PR + 8 * kq + 4 * m
            P.append(I(f"buffer_load_dwordx4 v[{d}:{d+3}], v{VCA+1}, {WS}, s{sT0} offen sc1", f"pr{kq}"))
    P += more(E("KC_MD", 6))
    for kq in range(4):
        P.append(WV(f"pr{kq}"))
        dst = ACC if kq == 0 else ACC + 16
        for i in range(8):
            P.append(I(f"v_lshlrev_b32 v{dst+2*i}, 16, v{PR+8*kq+i}"))
            P.append(I(f"v_and_b32 v{dst+2*i+1}, 0xffff0000, v{PR+8*kq+i}"))
        if kq:
            for e in range(16): P.append(I(f"v_add_f32 v{ACC+e}, v{ACC+e}, v{ACC+16+e}"))
    for e in range(16): P.append(I(f"v_fmac_f32 v{XF+e}, v{ACC+e}, v{GA+e}"))
    PK = ACC + 16
    for i in range(8): P.append(I(f"v_cvt_pk_bf16_f32 v{PK+i}, v{XF+2*i}, v{XF+2*i+1}"))
    P.append(I(f"s_add_u32 s{sT0}, s{sHU}, {WS_X2}"))
    P.append(I(f"s_add_u32 s{sT1}, s{sT0}, 4096"))
    P += st2(f"buffer_store_dwordx4 v[{PK}:{PK+3}], v{VCA+1}, {{srd}}, s{sT0} offen {{fl}}", "st1", "b")
    P += st2(f"buffer_store_dwordx4 v[{PK+4}:{PK+7}], v{VCA+1}, {{srd}}, s{sT1} offen {{fl}}", "st1", "b")
    for i in range(8):
        P.append(I(f"v_lshlrev_b32 v{XF+2*i}, 16, v{PK+i}"))
        P.append(I(f"v_and_b32 v{XF+2*i+1}, 0xffff0000, v{PK+i}"))
    Q = ACC + 32
    def red(r, t):
        return lines(f"""
        s_nop 1
        v_add_f32_dpp v{r}, v{r}, v{r} row_ror:8 row_mask:0xf bank_mask:0xf
        v_mov_b32 v{t}, v{r}
        s_nop 1
        v_permlane16_swap_b32 v{r}, v{t}
        s_nop 0
        v_add_f32 v{r}, v{r}, v{t}
        v_mov_b32 v{t}, v{r}
        s_nop 1
        v_permlane32_swap_b32 v{r}, v{t}
        s_nop 0
        v_add_f32 v{r}, v{r}, v{t}
        """)
    P.append(I(f"v_add_f32 v{Q}, v{XF}, v{XF+1}"))
    for e in range(2, 16): P.append(I(f"v_add_f32 v{Q}, v{Q}, v{XF+e}"))
    P += red(Q, Q + 2)
    P.append(I(f"v_mul_f32 v{Q}, 0x3c000000, v{Q}"))
    for e in range(16): P.append(I(f"v_sub_f32 v{Q+8+e}, v{XF+e}, v{Q}"))
    P.append(I(f"v_mul_f32 v{Q+1}, v{Q+8}, v{Q+8}"))
    for e in range(1, 16): P.append(I(f"v_fmac_f32 v{Q+1}, v{Q+8+e}, v{Q+8+e}"))
    P += red(Q + 1, Q + 2)
    P += lines(f"""
    v_and_b32 v15, 7, v2
    v_lshlrev_b32 v15, 5, v15
    v_add_u32 v15, 0x20000, v15
    s_lshl_b32 s{sT0}, s{sW}, 3
    v_add_u32 v{Q+2}, s{sT0}, v15
    """)
    P += [I(f"ds_write_b64 v{Q+2}, v[{Q}:{Q+1}]", "lw"), WL("lw"), I("s_barrier"),
          I(f"ds_read_b128 v[{Q+8}:{Q+11}], v15", "lr"), I(f"ds_read_b128 v[{Q+12}:{Q+15}], v15 offset:16", "lr")]
    P += [I(f"s_mov_b32 s{sT2}, 0x43000000"), WL("lr")]
    R_ = Q + 8
    P += lines(f"""
    v_add_f32 v{Q}, v{R_}, v{R_+2}
    v_add_f32 v{Q+1}, v{R_+4}, v{R_+6}
    v_add_f32 v{Q}, v{Q}, v{Q+1}
    v_mul_f32 v{Q}, 0.25, v{Q}
    v_sub_f32 v{R_}, v{R_}, v{Q}
    v_sub_f32 v{R_+2}, v{R_+2}, v{Q}
    v_sub_f32 v{R_+4}, v{R_+4}, v{Q}
    v_sub_f32 v{R_+6}, v{R_+6}, v{Q}
    v_mul_f32 v{R_}, v{R_}, v{R_}
    v_fmac_f32 v{R_}, v{R_+2}, v{R_+2}
    v_fmac_f32 v{R_}, v{R_+4}, v{R_+4}
    v_fmac_f32 v{R_}, v{R_+6}, v{R_+6}
    v_add_f32 v{R_+1}, v{R_+1}, v{R_+3}
    v_add_f32 v{R_+5}, v{R_+5}, v{R_+7}
    v_add_f32 v{R_+1}, v{R_+1}, v{R_+5}
    v_fma_f32 v{R_}, v{R_}, s{sT2}, v{R_+1}
    v_mov_b32 v{Q+1}, 0x3727c5ac
    v_fmac_f32 v{Q+1}, 0x3b000000, v{R_}
    v_rsq_f32 v{Q+1}, v{Q+1}
    s_add_u32 s{sT0}, s{sHU}, {WS_U}
    v_mul_f32 v{Q+1}, s{sL2E}, v{Q+1}
    s_add_u32 s{sT1}, s{sT0}, 4096
    """.replace("0.25", "0x3e800000"))
    for e in range(16): P.append(I(f"v_sub_f32 v{XF+e}, v{XF+e}, v{Q}"))
    for e in range(16): P.append(I(f"v_mul_f32 v{XF+e}, v{XF+e}, v{Q+1}"))
    for e in range(16): P.append(I(f"v_fma_f32 v{XF+e}, v{XF+e}, v{CB1+e}, v{SB+e}"))
    PH = ACC + 24
    for i in range(8): P.append(I(f"v_cvt_pk_bf16_f32 v{PH+i}, v{XF+2*i}, v{XF+2*i+1}"))
    P += st2(f"buffer_store_dwordx4 v[{PH}:{PH+3}], v{VCA+1}, {{srd}}, s{sT0} offen {{fl}}", "st1", "b")
    P += st2(f"buffer_store_dwordx4 v[{PH+4}:{PH+7}], v{VCA+1}, {{srd}}, s{sT1} offen {{fl}}", "st1", "b")
    i0 = max(i for i, it in enumerate(P) if it.s == "WAITVM" and it.tag == ("pr3",))
    seg = P[i0 + 1:]; P = P[:i0 + 1]
    cnt = 0
    for it in seg:
        P.append(it)
        if it.s.startswith("v_") and not it.s.startswith("v_permlane") and "dpp" not in it.s:
            cnt += 1
            if cnt % E("KC_EV", 16) == 0 and cnt < E("KC_EVM", 180): P += more(1)
    print("w1 at LN end", nw1)
    P += stamp_item()
    P += more(E("KC_ME", 8))
    P += lines(f"""
    s_add_u32 s{sFW}, s{sFW}, 32768
    v_and_b32 v{VPL}, 0x380, v{VPL}
    s_mul_i32 s{sWo}, s{sCB}, {112*2048}
    s_mul_i32 s{sT0}, s{sW}, {28*2048}
    s_add_u32 s{sWo}, s{sWo}, s{sT0}
    s_add_u32 s{sWo}, s{sWo}, {WS_W2F}
    s_and_b32 s{sT1}, s{sW}, 1
    s_lshl_b32 s{sT1}, s{sT1}, 10
    v_add_u32 v{VW}, s{sT1}, v1
    v_xor_b32 v{VW+1}, 0x400, v{VW}
    """)
    P += [WV("st1"), I("s_barrier")] + st2(f"buffer_store_dword v{VMG}, v{VF0}, {{srd}}, s{sFW} offen {{fl}}", "fl", "b")
    P += more(64)
    P += lines(f"""
    s_cmp_eq_u32 s{sCB}, 7
    s_cbranch_scc1 KC_SKIP2
    """)
    resolve(P, A, vm0=vmE)
    def poll(tag, base, cond, sl=None, first=None, bar=True):
        A(f"""
        s_cmp_lg_u32 s{sW}, 0
        s_cbranch_scc1 {tag}_OK
        s_mov_b32 s{sT1}, 100000
        {base}
        {'s_sleep %d' % first if first else ''}
        {tag}_L:
        buffer_load_dword v15, v{VPL}, {WS}, s{sT2} offen sc1
        s_waitcnt vmcnt(0)
        v_cmp_eq_u32 vcc, {MAGIC}, v15
        {cond}
        s_cbranch_scc1 {tag}_OK
        s_sleep {sl or E('KC_PS', 4)}
        s_sub_u32 s{sT1}, s{sT1}, 1
        s_cmp_lg_u32 s{sT1}, 0
        s_cbranch_scc1 {tag}_L
        {tag}_OK:
        """)
        if bar:
            A("s_waitcnt vmcnt(0)")
            A("s_barrier")
    ALL = "s_cmp_eq_u32 vcc_lo, -1"
    poll("KC_PB", f"s_add_u32 s{sT2}, s{sFL}, 32768", ALL, first=E("KC_FB", 4))
    ST.stamp()
    def w2reg(i, nt):
        n = 2 * i + nt
        if n < 20: return vr(144 + 4 * n, 4)
        n -= 20
        return ar(8 * n if n < 32 else 8 * (n - 32) + 4, 4)
    def w2load(n):
        i, nt = n // 2, n % 2
        post = [I(f"s_add_u32 s{sWo}, s{sWo}, 4096")] if n % 4 == 3 else []
        return [I(f"buffer_load_dwordx4 {w2reg(i,nt)}, v{VW+nt}, {WS}, s{sWo} offen offset:{(i%2)*2048}", "w2")] + post
    P = lines(f"""
    s_lshl_b32 s{sT0}, s{sRB}, 16
    s_add_u32 s{sT0}, s{sT0}, s{sM0}
    s_add_u32 s{sT0}, s{sT0}, {WS_U}
    """)
    for g in range(4):
        P.append(I(f"s_add_u32 m0, s{sM0}, {0x10000+g*16384}"))
        P.append(I(f"s_add_u32 s{sT2}, s{sT0}, {g*16384}"))
        for i in range(4):
            P.append(I(f"buffer_load_dwordx4 v1, {WS}, s{sT2} offen offset:{i*1024} sc1 lds", f"u{g}"))
    P += lines(f"""
    v_add_u32 v{VCA}, 0x10000, v1
    s_mul_i32 s{sACT}, s{sRB}, {2*112*1024}
    s_lshl_b32 s{sA}, s{sCB}, 14
    s_add_u32 s{sACT}, s{sACT}, s{sA}
    s_add_u32 s{sACT}, s{sACT}, s{sM0}
    s_add_u32 s{sACT}, s{sACT}, {WS_ACT}
    s_add_u32 s{sA}, s{sACT}, {112*1024}
    """)
    units = [(0, 0), (0, 1), (1, 0), (1, 1)]
    UF, NU, LEAD = 80, 8, 6
    mf = []; seq = []
    for nt, q in units:
        for ks in range(32):
            acc = vr(ACC + 16 * (2 * q + nt), 16)
            n = len(mf)
            mf.append(mfma(acc, ar(8 * ks + 4 * nt, 4), vr(UF + 4 * (n % NU), 4), acc if ks else vr(B1F + 16 * nt, 16)))
            seq.append((q, ks))
    NM = len(mf)
    def uread(n):
        q, ks = seq[n]
        return I(f"ds_read_b128 v[{UF+4*(n%NU)}:{UF+4*(n%NU)+3}], v{VCA} offset:{q*32768+ks*1024}", f"r{n}")
    P += [WV("u0"), I("s_barrier")] + [uread(i) for i in range(LEAD)] + [WL("r1")]
    P += stamp_item()
    G = Gaps(mf)
    for n in range(NM):
        if n + LEAD < NM:
            if n + LEAD == 16:
                G.put(n - 1, WV("u1"), "end"); G.put(n, "s_barrier", "mem")
            if n + LEAD == 32:
                G.put(n - 1, WV("u3"), "end"); G.put(n, "s_barrier", "mem")
            G.put(n, uread(n + LEAD))
        if n % 2 == 1 and n + 1 < NM: G.put(n, WL(f"r{n+2}"), "end")
    MT = 112
    def mish(nt, q):
        L = []
        for j in range(2):
            z = ACC + 16 * (2 * q + nt) + 8 * j
            t = MT + 16 * j
            for e in range(8): L.append(f"v_exp_f32 v{t+e}, v{z+e}")
            for e in range(8): L.append(f"v_fma_f32 v{t+8+e}, v{t+e}, 0.5, 1.0")
            for e in range(8): L.append(f"v_fma_f32 v{t+e}, v{t+e}, v{t+8+e}, 1.0")
            for e in range(8): L.append(f"v_rcp_f32 v{t+e}, v{t+e}")
            for e in range(8): L.append(f"v_fma_f32 v{z+e}, -v{z+e}, v{t+e}, v{z+e}")
            for i in range(4): L.append(f"v_cvt_pk_bf16_f32 v{z+i}, v{z+2*i}, v{z+2*i+1}")
            L += st2(f"buffer_store_dwordx4 v[{z}:{z+3}], v1, {{srd}}, s{sACT if q==0 else sA} offen offset:{(2*nt+j)*1024} {{fl}}", "st2", "c")
        return L
    nw2 = 0
    gg = 2
    while gg < NM and nw2 < 56:
        if nw2 >= 20: gg = max(gg, 34 + (nw2 - 20) if nw2 < 52 else 98 + nw2 - 52)
        w = w2load(nw2)
        G.put(gg, w[0], "mem")
        if len(w) > 1: G.put(gg, w[1], "end")
        nw2 += 1; gg += 2 + (nw2 % 2)
    print("w2 in stream", nw2)
    g = 0
    for ui in range(3):
        g = G.stream(max(g + 1, 32 * (ui + 1) + 5), mish(*units[ui]), cap=(28 if ui == 2 else 24))
        print("   mish end gap", g)
    P += G.items()
    P += stamp_item()
    P += [I("s_nop 7"), I("s_nop 3")] + its(mish(*units[3]))
    P.append(I(f"s_add_u32 s{sFW}, s{sFW}, 32768"))
    while nw2 < 56:
        P += w2load(nw2); nw2 += 1
    P += [WV("st2"), I("s_barrier")] + st2(f"buffer_store_dword v{VMG}, v{VF0}, {{srd}}, s{sFW} offen {{fl}}", "fl", "c")
    resolve(P, A)
    A("s_branch KC_PH3")
    A.label("KC_SKIP2")
    for n in range(56):
        for it in w2load(n): A(it.s)
    SEVEN = f"s_and_b32 s{sT0}, vcc_lo, 0x7f\ns_cmp_eq_u32 s{sT0}, 0x7f"
    poll("KC_PB7", f"s_add_u32 s{sT2}, s{sFL}, 32768", ALL, sl=16, bar=False)
    poll("KC_PC7", f"s_add_u32 s{sT2}, s{sFL}, 65536", f"s_and_b32 s{sT0}, vcc_lo, 0x7f", sl=16)
    A.label("KC_PH3")
    X2R, X, GA, T = 224, 80, 232, 248
    A(f"""
    s_mul_i32 s{sT0}, s{sTS}, {112*1024}
    s_mul_i32 s{sT1}, s{sW}, {28*1024}
    s_add_u32 s{sT0}, s{sT0}, s{sT1}
    v_add_u32 v{VA}, s{sT0}, v1
    s_xor_b32 s{sT0}, s{sTS}, 1
    s_mul_i32 s{sT0}, s{sT0}, {112*1024}
    s_add_u32 s{sT0}, s{sT0}, s{sT1}
    v_add_u32 v{VA+1}, s{sT0}, v1
    s_mov_b32 s{sA}, {WS_ACT}
    v_lshrrev_b32 v15, 5, v2
    s_lshl_b32 s{sT0}, s{sNT}, 7
    v_lshlrev_b32 v{VM}, 4, v15
    v_add_u32 v{VM}, s{sT0}, v{VM}
    s_mov_b32 s{sT1}, {5*2048}
    buffer_load_dwordx4 v[{GA}:{GA+3}], v{VM}, {WS}, s{sT1} offen
    buffer_load_dwordx4 v[{GA+4}:{GA+7}], v{VM}, {WS}, s{sT1} offen offset:32
    buffer_load_dwordx4 v[{GA+8}:{GA+11}], v{VM}, {WS}, s{sT1} offen offset:64
    buffer_load_dwordx4 v[{GA+12}:{GA+15}], v{VM}, {WS}, s{sT1} offen offset:96
    s_lshl_b32 s{sT0}, s{sTS}, 15
    s_lshl_b32 s{sT1}, s{sNT}, 11
    s_add_u32 s{sT1}, s{sT1}, s{sT0}
    s_add_u32 s{sT1}, s{sT1}, {WS_X2}
    buffer_load_dwordx4 v[{X2R}:{X2R+3}], v1, {WS}, s{sT1} offen sc1
    buffer_load_dwordx4 v[{X2R+4}:{X2R+7}], v1, {WS}, s{sT1} offen offset:1024 sc1
    s_lshl_b32 s{sT1}, s{sNT}, 6
    s_add_u32 s{sT1}, s{sT1}, s{sT0}
    v_and_b32 v{VRM}, 31, v2
    v_lshlrev_b32 v{VRM}, 10, v{VRM}
    v_lshl_add_u32 v{VRM}, v15, 4, v{VRM}
    v_add_u32 v{VRM}, s{sT1}, v{VRM}
    s_mul_i32 s{sT0}, s{sW}, 12288
    v_add_u32 v{VRR}, s{sT0}, v1
    """)
    for sp in (1, 2, 3):
        A(f"""
        s_xor_b32 s{sT0}, s{sW}, {sp}
        s_mul_i32 s{sT0}, s{sT0}, 12288
        v_add_u32 v{T+sp}, s{sT0}, v1
        """)
    poll("KC_PC", f"s_add_u32 s{sT2}, s{sFL}, 65536", SEVEN, first=E("KC_FC", 2))
    ST.stamp()
    D3, RING = 8, 80
    def aload(i):
        b = RING + 8 * (i % D3)
        post = [I(f"s_add_u32 s{sA}, s{sA}, 4096")] if i % 4 == 3 else []
        return [I(f"buffer_load_dwordx4 v[{b+4*q}:{b+4*q+3}], v{VA+q}, {WS}, s{sA} offen offset:{(i%4)*1024} sc1", f"a{i}") for q in range(2)] + post
    P = []
    for i in range(5): P += aload(i)
    for e in range(16): P.append(I(f"v_mul_f32 v{GA+e}, 0x3f317218, v{GA+e}"))
    mf = []
    for i in range(28):
        b = RING + 8 * (i % D3)
        for q, nt in ((1, 1), (1, 0), (0, 1), (0, 0)):
            acc = vr(ACC + 16 * (2 * q + nt), 16)
            mf.append(mfma(acc, w2reg(i, nt), vr(b + 4 * q, 4), acc if i else "0"))
    G = Gaps(mf)
    na = 5
    for i in range(28):
        todo = 2 if i < 2 else 1
        for t_ in range(todo):
            if na < 28:
                al = aload(na); na += 1
                G.put(4 * i + 2 * t_, al[0], "mem"); G.put(4 * i + 2 * t_ + 1, al[1], "mem")
                if len(al) > 2: G.put(4 * i + 2 * t_ + 1, al[2], "end")
        if i + 1 < 28: G.put(4 * i + 3, WV(f"a{i+1}"), "end")
    P += [WV("a0")] + G.items()
    P += stamp_item()
    P += [I("s_nop 7"), I("s_nop 1")]
    for sp in (3, 2, 1):
        for i in range(4):
            P.append(I(f"ds_write_b128 v{T+sp}, v[{ACC+16*sp+4*i}:{ACC+16*sp+4*i+3}] offset:{(sp-1)*4096+i*1024}", "rw"))
    for i in range(8):
        P.append(I(f"v_lshlrev_b32 v{X+2*i}, 16, v{X2R+i}"))
        P.append(I(f"v_and_b32 v{X+2*i+1}, 0xffff0000, v{X2R+i}"))
    P += [WL("rw"), I("s_barrier")]
    for sp in (1, 2, 3):
        for i in range(4):
            P.append(I(f"ds_read_b128 v[{ACC+16*sp+4*i}:{ACC+16*sp+4*i+3}], v{VRR} offset:{(sp-1)*4096+i*1024}", f"rr{sp}"))
    for sp in (1, 2, 3):
        P.append(WL(f"rr{sp}"))
        for e in range(16): P.append(I(f"v_add_f32 v{ACC+e}, v{ACC+e}, v{ACC+16*sp+e}"))
    for e in range(16): P.append(I(f"v_fmac_f32 v{X+e}, v{ACC+e}, v{GA+e}"))
    for i in range(8): P.append(I(f"v_cvt_pk_bf16_f32 v{PK+i}, v{X+2*i}, v{X+2*i+1}"))
    P.append(I("s_nop 0"))
    for k in range(2):
        P.append(I(f"v_permlane32_swap_b32 v{PK+4*k}, v{PK+4*k+2}"))
        P.append(I(f"v_permlane32_swap_b32 v{PK+4*k+1}, v{PK+4*k+3}"))
        P.append(I(f"buffer_store_dwordx4 v[{PK+4*k}:{PK+4*k+3}], v{VRM}, s[{S_O}:{S_O+3}], 0 offen offset:{32*k}", "o"))
    resolve(P, A)
    if STAMPS: A("s_waitcnt vmcnt(0)")
    ST.stamp()
    ST.flush(4, f"s{sW}", 4)
    dbg_flush(A, 6, 4)
    if os.environ.get("PADTO"):
        A(f"""
        KC_PAD:
        s_memrealtime s[72:73]
        s_waitcnt lgkmcnt(0)
        s_sub_u32 s72, s72, s70
        s_cmp_lt_u32 s72, {int(os.environ["PADTO"])*100}
        s_cbranch_scc1 KC_PAD
        """)
    A("KC_END:")
    A("s_endpgm")
    A("KC_PA_SLOW:")
    poll("KC_PAS", f"s_and_b32 s{sT2}, s{sFL}, 0xfffffbff", ALL, bar=False, first=E('KC_PS', 4))
    A("s_branch KC_PA_OK")
    if FUSED:
        for tag, va, so in (("KC_JSPIN", "v240", f"s_mov_b32 s{sT1}, {WS_FLAG+FL_W}"), ("KC_CSPIN", "v5", f"s_mov_b32 s{sT1}, s{sHU}")):
            A(f"""
            {tag}:
            s_mov_b32 s{sT2}, 200000
            {so}
            {tag}_L:
            s_sleep 4
            buffer_load_dword v241, {va}, {WS}, s{sT1} offen sc1
            s_waitcnt vmcnt(0)
            v_cmp_ne_u32 vcc, v242, v241
            s_cbranch_vccz {tag}_RET
            s_sub_u32 s{sT2}, s{sT2}, 1
            s_cmp_lg_u32 s{sT2}, 0
            s_cbranch_scc1 {tag}_L
            s_branch {tag}_RET
            """)
        A(f"""
        KC_LSPIN:
        s_mov_b32 s63, 200000
        KC_LSPIN_L:
        s_sleep 4
        buffer_load_dword v185, v184, {WS}, s62 offen sc1
        s_waitcnt vmcnt(0)
        v_cmp_ne_u32 vcc, v186, v185
        s_cbranch_vccz KC_LSPIN_RET
        s_sub_u32 s63, s63, 1
        s_cmp_lg_u32 s63, 0
        s_cbranch_scc1 KC_LSPIN_L
        s_branch KC_LSPIN_RET
        """)
        return
    A.lines.append("  .fill 5000, 4, 0xbf800000")
    A("s_endpgm")
    return name, A.text(), kernel_desc(name, 256, 256), f"grid=(256,1,1) block=(256,1,1) lds={131072+2048}"
```

```python
from asmlib import *
from sched import *
import k2
import os, struct, math
LOG2E = 0x3fb8aa3b
QSCALE = k2.QSCALE
MAGIC = 0x5a17
def E(k, d): return int(os.environ.get(k, str(d)))
def lines(s): return [I(x.strip()) for x in s.strip().split("\n") if x.strip()]
def sl(s): return [x.strip() for x in s.strip().split("\n") if x.strip()]

def gen_front(tailfn=None, name="kf_kernel"):
    k2.rare_sites.clear()
    STF = os.environ.get("KA_ST", "sc1")
    PFN = os.environ.get("KA_PFNT", "nt")
    A = Asm()
    A.lines.append(kernel_header(name))
    A("s_getpc_b64 s[64:65]")
    A("s_cmp_ge_u32 s2, 256")
    A("s_cbranch_scc1 K2_END")
    ST = Stamper(A, 0)
    ST.stamp()
    dbg_mark(A, 0)
    if os.environ.get("PADTO"): A("s_memrealtime s[70:71]")
    VOT, VOW, VT, VW, VWH = 4, 12, 16, 20, 30
    WF, ACC, J = 32, 64, 192
    S_T, S_WK, S_WS, S_WV, S_X, S_M, S_C, S_D = 12, 16, 20, 24, 36, 40, 56, 60
    S_WQ = 24
    sW, sR, sP_, sHD, sMT = k2.sW, k2.sR, k2.sP_, k2.sHD, k2.sPR
    sXC, sJ, sT0, sT1, sM0T, sM0W, sKV = 44, 45, 46, 47, 49, 50, 51
    sA, sB, sC_, sD, sE, sF = 52, 53, 54, 55, 48, 3
    WSR = f"s[{S_WS}:{S_WS+3}]"
    A(f"""
    s_load_dwordx16 s[36:51], s[0:1], 0
    s_load_dwordx8 s[52:59], s[0:1], 64
    s_load_dwordx2 s[{S_D}:{S_D+1}], s[0:1], {KA['dbg']}
    s_load_dwordx2 s[{S_WS}:{S_WS+1}], s[0:1], {KA['ws']}
    v_lshrrev_b32 v3, 6, v0
    v_and_b32 v2, 63, v0
    v_readfirstlane_b32 s{sW}, v3
    v_lshlrev_b32 v1, 4, v2
    s_and_b32 s4, s2, 7
    s_lshr_b32 s5, s2, 3
    s_and_b32 s{sHD}, s5, 3
    s_lshl_b32 s4, s4, 2
    s_add_u32 s{sHD}, s{sHD}, s4
    s_lshr_b32 s{sMT}, s5, 2
    s_and_b32 s{sR}, s{sW}, 1
    s_lshr_b32 s{sP_}, s{sW}, 1
    v_lshrrev_b32 v22, 3, v2
    v_lshrrev_b32 v23, 4, v2
    v_and_b32 v24, 7, v2
    v_xor_b32 v25, v24, v23
    v_lshlrev_b32 v25, 4, v25
    v_lshl_add_u32 v25, v22, 10, v25
    s_lshl_b32 s4, s{sW}, 16
    v_add_u32 v25, s4, v25
    """)
    for i in range(8):
        A(f"v_add_u32 v{VOT+i}, {8*i*1024-(i%4)*1024}, v25")
        if i % 2: A(f"v_xor_b32 v{VOT+i}, 64, v{VOT+i}")
    A(f"""
    v_and_b32 v23, 1, v23
    v_lshlrev_b32 v23, 2, v23
    v_xor_b32 v25, v24, v23
    v_lshlrev_b32 v25, 4, v25
    v_lshl_add_u32 v25, v22, 13, v25
    s_lshl_b32 s4, s{sW}, 18
    v_add_u32 v25, s4, v25
    """)
    for i in range(4):
        A(f"v_add_u32 v{VOW+i}, {8*i*8192-i*1024}, v25")
    A(f"""
    v_lshlrev_b32 v22, 7, v2
    v_lshlrev_b32 v28, 13, v2
    s_lshl_b32 s4, s{sMT}, 18
    s_lshl_b32 s6, s{sHD}, 8
    s_mov_b32 s{S_T+2}, 0x40000
    s_mov_b32 s{S_T+3}, 0x00020000
    s_mov_b32 s{S_WK+2}, {511*8192+256}
    s_mov_b32 s{S_WK+3}, 0x00020000
    s_waitcnt lgkmcnt(0)
    s_add_u32 s{S_T}, s38, s4
    s_addc_u32 s{S_T+1}, s39, 0
    s_add_u32 s{S_WK}, s42, s6
    s_addc_u32 s{S_WK+1}, s43, 0
    s_cmp_eq_u32 s{sW}, 0
    s_cbranch_scc1 KA_PF0
    s_cmp_eq_u32 s{sW}, 3
    s_cbranch_scc0 KA_PF1
    s_and_b32 s7, s5, 7
    s_lshl_b32 s7, s7, 12
    v_lshrrev_b32 v22, 1, v22
    v_add_u32 v22, s7, v22
    global_load_dword v26, v22, s[64:65]
    s_branch KA_PFD
    KA_PF0:
    s_lshl_b32 s7, s{sHD}, 13
    buffer_load_dword v26, v22, s[{S_T}:{S_T+3}], s7 offen
    s_branch KA_PFD
    KA_PF1:
    s_lshl_b32 s7, s{sMT}, 19
    s_lshl_b32 s4, s{sW}, 7
    s_add_u32 s7, s7, s4
    s_sub_u32 s7, s7, 128
    buffer_load_dword v26, v28, s[{S_WK}:{S_WK+3}], s7 offen {PFN}
    KA_PFD:
    s_add_u32 s{S_WV}, s44, s6
    s_addc_u32 s{S_WV+1}, s45, 0
    s_add_u32 s8, s40, s6
    s_addc_u32 s9, s41, 0
    s_mov_b32 s4, s46
    s_mov_b32 s5, s47
    s_mov_b32 s62, s50
    s_mov_b32 s63, s51
    s_lshl_b32 s{sM0W}, s{sW}, 12
    s_lshl_b32 s{sM0T}, s{sW}, 14
    s_add_u32 s{sM0T}, s{sM0T}, 98304
    """)
    WSLOT = {0: 0, 1: 1, 2: 2, 3: 3, 4: 4, 5: 5, 6: 0, 7: 1, 8: 6, 9: 7, 10: 4, 11: 5, 12: 2, 13: 3, 14: 0, 15: 1}
    def wdma(u):
        c = u // 4
        srdr = S_WK if c < 2 else S_WV
        pre = [f"s_add_u32 m0, s{sM0W}, {WSLOT[u]*16384}", f"s_mov_b32 s{sT0}, {(u%4)*128*8192+(c&1)*128}"]
        return pre, [I(f"buffer_load_dwordx4 v{VOW+i}, s[{srdr}:{srdr+3}], s{sT0} offen offset:{i*1024} lds", f"W{u}") for i in range(4)]
    def tdma(s, grp):
        pre = [f"s_add_u32 m0, s{sM0T}, {(s%2)*8192+grp*4096}", f"s_mov_b32 s{sT0}, {s*128}"]
        return pre, [I(f"buffer_load_dwordx4 v{VOT+i}, s[{S_T}:{S_T+3}], s{sT0} offen offset:{(i%4)*1024} lds", f"T{s}") for i in range(4 * grp, 4 * grp + 4)]
    def seq(g):
        pre, d = g
        return [I(x) for x in pre] + d
    P = seq(wdma(0)) + seq(tdma(0, 0)) + seq(tdma(0, 1))
    P += lines(f"""
    s_lshl_b32 s48, s2, 2
    s_add_u32 s48, s48, s{sW}
    s_mov_b32 s6, {4096*1024}
    s_mov_b32 s7, 0x00020000
    s_cmp_ge_u32 s48, 736
    s_cselect_b32 s4, s54, s4
    s_cselect_b32 s5, s55, s5
    s_cselect_b32 s6, {1792*1024}, s6
    s_cselect_b32 s40, 736, 0
    s_cselect_b32 s28, {WS_W2F - WS_WOF}, 0
    s_mov_b32 s29, {256*2048}
    s_cselect_b32 s29, {112*2048}, s29
    s_sub_u32 s40, s48, s40
    s_lshr_b32 s41, s40, 2
    s_and_b32 s42, s40, 3
    s_mov_b32 s11, 1024
    s_sub_u32 s40, s48, 512
    s_mul_i32 s43, s40, 9363
    s_lshr_b32 s43, s43, 17
    s_mul_i32 s52, s43, 14
    s_sub_u32 s52, s40, s52
    s_cmp_lt_u32 s40, 224
    s_cselect_b32 s41, s43, s41
    s_cselect_b32 s42, s52, s42
    s_cselect_b32 s11, 3584, s11
    s_cselect_b32 s29, {32*2048}, s29
    s_cselect_b32 s28, {WS_W1F - WS_WOF}, s28
    s_cselect_b32 s4, s62, s4
    s_cselect_b32 s5, s63, s5
    s_cselect_b32 s6, {512*3584}, s6
    s_mul_i32 s10, s41, s11
    s_lshl_b32 s10, s10, 5
    s_lshl_b32 s43, s42, 8
    s_add_u32 s10, s10, s43
    s_mul_i32 s43, s42, s29
    s_lshl_b32 s43, s43, 1
    s_add_u32 s28, s28, s43
    s_lshl_b32 s43, s41, 12
    s_add_u32 s28, s28, s43
    s_add_u32 s28, s28, {WS_WOF}
    s_cmp_ge_u32 s48, 960
    s_cselect_b32 s28, 0x80000000, s28
    s_lshl_b32 s35, s{sW}, 13
    s_add_u32 s35, s35, 0x20000
    s_mov_b32 s{S_M}, s58
    s_mov_b32 s{S_M+1}, s59
    s_mov_b32 s{S_M+2}, {512*6144}
    s_mov_b32 s{S_M+3}, 0x00020000
    s_mov_b32 s{S_C+2}, 1024
    s_mov_b32 s{S_C+3}, 0x00020000
    s_mov_b32 s{S_X+2}, 0x200000
    s_mov_b32 s{S_X+3}, 0x00020000
    s_mov_b32 s{S_D+2}, 256
    s_mov_b32 s{S_D+3}, 0x00020000
    s_mov_b32 s{S_WV+2}, {511*8192+256}
    s_mov_b32 s{S_WV+3}, 0x00020000
    s_mov_b32 s{S_WS+2}, {WS_END}
    s_mov_b32 s{S_WS+3}, 0x00020000
    s_and_b32 s{sXC}, s2, 7
    s_lshr_b32 s{sJ}, s2, 3
    v_and_b32 v22, 31, v2
    v_lshrrev_b32 v23, 5, v2
    v_bfe_u32 v24, v2, 1, 3
    v_lshlrev_b32 v25, 7, v22
    v_add_u32 v25, s{sM0T}, v25
    """)
    for ks in range(4):
        P += [I(f"v_add_u32 v27, {2*ks}, v23"), I(f"v_xor_b32 v27, v27, v24"), I(f"v_lshl_add_u32 v{VT+ks}, v27, 4, v25")]
    P += lines(f"""
    v_bfe_u32 v22, v2, 2, 2
    v_lshl_add_u32 v25, v23, 3, v22
    v_lshlrev_b32 v25, 7, v25
    v_bfe_u32 v24, v2, 4, 1
    v_lshl_add_u32 v25, v24, 5, v25
    v_and_b32 v24, 3, v2
    v_lshl_add_u32 v25, v24, 3, v25
    v_lshrrev_b32 v22, 1, v22
    v_lshl_add_u32 v{VW}, v22, 6, v25
    v_xor_b32 v{VW+1}, 64, v{VW}
    v_add_u32 v{VWH}, 0x10000, v{VW}
    v_add_u32 v{VWH+1}, 0x10000, v{VW+1}
    s_lshl_b32 s{sKV}, s{sHD}, 19
    s_lshl_b32 s{sT1}, s{sMT}, 16
    s_add_u32 s{sKV}, s{sKV}, s{sT1}
    s_lshl_b32 s{sT1}, s{sW}, 14
    s_add_u32 s{sKV}, s{sKV}, s{sT1}
    v_lshrrev_b32 v22, 1, v0
    v_and_b32 v23, 1, v0
    v_mul_u32_u24 v24, 6144, v22
    v_lshl_add_u32 v24, v23, 4, v24
    s_mul_i32 s{sD}, s{sXC}, 768
    s_lshl_b32 s{sB}, s{sJ}, 5
    s_add_u32 s{sA}, s{sD}, s{sB}
    s_cmp_lt_u32 s{sJ}, 24
    s_cselect_b32 s{sA}, s{sA}, 0x40000000
    v_lshlrev_b32 v22, 1, v22
    s_mov_b32 s{sB}, s{sA}
    v_subrev_u32 v29, 128, v0
    v_and_b32 v25, 7, v29
    v_lshrrev_b32 v29, 3, v29
    v_mul_u32_u24 v29, 6144, v29
    v_lshl_add_u32 v29, v25, 7, v29
    v_cmp_lt_u32 vcc, 5, v25
    v_mov_b32 v25, 0x40000000
    s_mul_i32 s{sC_}, s{sJ}, {16*6144}
    v_cndmask_b32 v29, v29, v25, vcc
    s_add_u32 s{sC_}, s{sC_}, s{sD}
    s_cmp_ge_u32 s{sW}, 2
    s_cselect_b32 s{sC_}, s{sC_}, 0x80000000
    v_and_b32 v29, 0x4fffffff, v29
    """)
    LATE = E("KA_LATE", 0)
    PFM = I(f"buffer_load_dword v26, v29, s[{S_M}:{S_M+3}], s{sC_} offen {PFN}", "pf")
    if not LATE: P.append(PFM)
    P += lines(f"""
    s_lshl_b32 s{sF}, s2, 7
    s_add_u32 s{sF}, s{sF}, {WS_FLAG}
    s_cmp_eq_u32 s{sW}, 0
    s_cselect_b32 s{sF}, s{sF}, 0x80000000
    """)
    P += seq(tdma(1, 0)) + seq(tdma(1, 1))
    def treads(s):
        return [I(f"ds_read_b128 {ar(((4*s+k)*2+q)*4,4)}, v{VT+k} offset:{(s%2)*8192+q*4096}", f"t{s}") for k in range(4) for q in range(2)]
    def wreads(gk):
        u, ksl, st = gk // 8, gk % 8, gk & 3
        s_ = WSLOT[u]
        base = VW if s_ < 4 else VWH
        return [I(f"ds_read_b64_tr_b16 v[{WF+8*st+4*nt+2*e}:{WF+8*st+4*nt+2*e+1}], v{base+nt} offset:{(s_%4)*16384+ksl*2048+e*512}", f"w{gk}")
                for nt in range(2) for e in range(2)]
    def stamp_item():
        if not STAMPS: return []
        b = ST.base + 2 * ST.n; ST.n += 1
        return [I(f"s_memtime s[{b}:{b+1}]")]
    P += [WV("W0", "T0"), I("s_barrier")] + stamp_item()
    P += wreads(0) + treads(0) + wreads(1) + [WL("w0", "t0")]
    mf = []
    for c in range(4):
        for ks in range(32):
            for nt in range(2):
                for q in range(2):
                    acc = vr(ACC + 64 * (c & 1) + 16 * (2 * q + nt), 16)
                    wf = vr(WF + 8 * (ks & 3) + 4 * nt, 4)
                    tk = ar((ks * 2 + q) * 4, 4)
                    cc = acc if ks else "0"
                    mf.append(mfma(acc, wf, tk, cc) if c < 2 else mfma(acc, tk, wf, cc))
    qa = lambda q: 64 if q == 0 else 192
    for ks in range(32):
        for dt in range(4):
            for q in range(2):
                acc = vr(qa(q) + 16 * dt, 16)
                mf.append(mfma(acc, vr(WF + 16 * (ks & 1) + 4 * dt, 4), ar(8 * ks + 4 * q, 4), acc if ks else "0"))
    G = Gaps(mf, cap=E('FCAP', 24))
    busy = set()
    def put_dma(g0, grp, step=1):
        pre, d = grp
        G.put(g0 - 1, pre, "end")
        for i, x in enumerate(d): G.put(g0 + i * step, x, "mem")
        for g in range(g0, g0 + (len(d) - 1) * step + 1):
            assert g not in busy, g
            busy.add(g)
        return g0 + len(d) * step
    def BG(u): return 4 * (8 * u - 2)
    bars = []
    for gk in range(128):
        g0 = 4 * gk
        if gk + 2 < 128:
            if (gk + 2) % 8 == 0:
                G.put(g0, "s_barrier", "mem"); bars.append(g0)
            for i, r in enumerate(wreads(gk + 2)): G.put(g0 + i, r)
        if gk + 1 < 128:
            tags = [f"w{gk+1}"]
            if gk + 1 < 32 and (gk + 1) % 4 == 0: tags.append(f"t{(gk+1)//4}")
            if (gk + 3) % 8 == 0 and gk + 3 < 128: G.put(g0 + 3, WVL([f"W{(gk+3)//8}"], tags), "end")
            else: G.put(g0 + 3, WL(*tags), "end")
    for s in range(1, 8):
        g0 = 4 * (4 * s - 2)
        G.put(g0 - 1, WV(f"T{s}"), "end")
        rd = treads(s)
        for i in range(4): G.put(g0 + i, rd[2 * i:2 * i + 2])
    put_dma(1, wdma(1))
    put_dma(5, tdma(2, 0)); put_dma(9, tdma(2, 1))
    put_dma(16, tdma(3, 0)); put_dma(20, tdma(3, 1))
    put_dma(24, wdma(2))
    put_dma(32, tdma(4, 0)); put_dma(36, tdma(4, 1))
    put_dma(48, tdma(5, 0)); put_dma(52, tdma(5, 1))
    put_dma(56, wdma(3))
    put_dma(64, tdma(6, 0)); put_dma(68, tdma(6, 1))
    put_dma(80, tdma(7, 0)); put_dma(84, tdma(7, 1))
    GW6 = E("KA_GW6", 150)
    put_dma(90, wdma(4), 2); put_dma(98, wdma(5), 2); put_dma(GW6, wdma(6), 3); put_dma(GW6 + 12, wdma(7), 3)
    g = E("KA_GW8", 188)
    fa = {8: BG(4), 9: BG(4), 10: BG(6), 11: BG(7), 12: BG(4), 13: BG(5), 14: BG(8), 15: BG(9)}
    for u in range(8, 16):
        g = put_dma(max(g, fa[u] + 2), wdma(u), 3)
    gW = g
    def QG(ks): return 512 + 8 * ks
    VQR, VOQ, VH = 16, 12, 13
    def qreads(ks):
        return [I(f"ds_read_b64_tr_b16 v[{WF+16*(ks&1)+4*nt+2*e}:{WF+16*(ks&1)+4*nt+2*e+1}], v{VQR+nt} offset:{(ks%8)*4096+e*1024}", f"qw{ks}")
                for nt in range(4) for e in range(2)]
    for ks in range(32):
        g0 = QG(ks) - 8
        if ks % 8 == 0:
            G.put(g0 - 1, WV(f"Q{ks//8}"), "end"); G.put(g0, "s_barrier", "mem"); bars.append(g0)
            if ks: G.put(g0 - 2, [f"v_subrev_u32 v{VQR+i}, 0x8000, v{VQR+i}" for i in range(4)], "end")
        rd = qreads(ks)
        for i in range(4): G.put(g0 + i, rd[2 * i:2 * i + 2])
        G.put(g0 + 7, WVL([f"h{ks}"], [f"qw{ks}"]), "end")
    G.put(QG(31), "s_barrier", "mem")
    L = [f"s_lshl_b32 s{sE}, s{sMT}, 19", f"s_lshl_b32 s{sD}, s{sW}, 7", f"s_add_u32 s{sE}, s{sE}, s{sD}",
         [f"s_cmp_lt_u32 s{sW}, 2", f"s_cselect_b32 s{sE}, s{sE}, 0x80000000"]]
    G.stream(40, L)
    GB2 = E("KA_B2", 108)
    G.put(GB2, I(f"buffer_load_dword v26, v28, s[{S_WV}:{S_WV+3}], s{sE} offen", "pf"), "mem")
    L = [f"v_lshrrev_b32 v27, 2, v2", f"v_lshlrev_b32 v27, 15, v27", f"v_and_b32 v3, 3, v2", f"v_lshl_add_u32 v27, v3, 7, v27",
         [f"v_cmp_lt_u32 vcc, 39, v2", f"v_mov_b32 v3, 0", "s_nop 0", f"v_cndmask_b32 v27, v27, v25, vcc"],
         f"s_lshl_b32 s{sC_}, s{sA}, 4", f"s_add_u32 s{sC_}, s{sC_}, {WS_FLAG}",
         [f"s_cmp_lt_u32 s{sA}, 2048", f"s_cselect_b32 s{sC_}, s{sC_}, 0x80000000", f"s_cmp_eq_u32 s{sW}, 0", f"s_cselect_b32 s{sC_}, s{sC_}, 0x80000000"],
         I(f"buffer_store_dword v3, v27, {WSR}, s{sC_} offen sc1", "zf"),
         f"v_lshlrev_b32 v27, 12, v0", f"v_mov_b32 v29, 1"]
    if LATE: G.put(LATE, PFM, "mem")
    G.stream(max(E("KA_ZF", 30), LATE + 1), L)
    def epi(c):
        R = []
        base = WS_KF if c < 2 else WS_VF
        for q in range(2):
            for nt in range(2):
                for j in range(2):
                    dt = 2 * (c & 1) + nt
                    fi = (2 * dt + j) if c < 2 else (4 * j + (dt ^ (2 * q)))
                    off = q * 8192 + fi * 1024
                    a0 = ACC + 64 * (c & 1) + 16 * (2 * q + nt) + 8 * j
                    L = [f"v_cvt_pk_bf16_f32 v{a0+i}, v{a0+2*i}, v{a0+2*i+1}" for i in range(4)]
                    L.append(f"s_add_u32 s{sT1}, s{sKV}, {base + (off & ~4095)}")
                    L.append(I(f"buffer_store_dwordx4 v[{a0}:{a0+3}], v1, {WSR}, s{sT1} offen offset:{off & 4095} {STF}", "st" if c < 3 else "stl"))
                    R.append(L)
        return R
    ES = E("KA_ES", 12)
    for c in range(4):
        for n, L in enumerate(epi(c)):
            gl = G.stream(128 * (c + 1) + 6 + (ES if c < 3 else E("KA_ES3", 8)) * n, L)
    W4, C4, AC, T1 = J, J + 16, J + 20, J + 28
    SCR = 0x20400 if E("KA_J1", 44) > 100 else 0
    for i in range(4):
        L = [I(f"buffer_load_dwordx4 v[{W4+4*i}:{W4+4*i+3}], v24, s[{S_M}:{S_M+3}], s{sB} offen", "j1")]
        if E("KA_XJ1", 0): L = [I(f"buffer_load_dwordx4 v[{W4+4*i}:{W4+4*i+3}], v1, s[{S_M}:{S_M+3}], 0 offen", "j1")]
        if i < 3: L.append(f"s_add_u32 s{sB}, s{sB}, {128*6144}")
        g = G.stream(E("KA_GJ1", 4) + E("KA_JS", 8) * i, L)
    g = G.stream(g + 1, [I(f"buffer_load_ushort v{C4+i}, v22, s[{S_C}:{S_C+3}], 0 offen offset:{256*i}", "j1") for i in range(4)])
    L = [WV("j1"), f"s_mov_b32 s{sB}, {LOG2E}"]
    for op in ("v_lshlrev_b32 v{c}, 16, v{c}", "v_mul_f32 v{t}, s%d, v{c}" % sB, "v_exp_f32 v{t}, -v{t}", "v_add_f32 v{t}, 1.0, v{t}", "v_rcp_f32 v{t}, v{t}",
               "v_mul_f32 v{c}, v{c}, v{t}", "v_cvt_pk_bf16_f32 v{c}, v{c}, v{c}", "v_lshlrev_b32 v{c}, 16, v{c}"):
        L += [op.format(c=C4 + i, t=T1 + i) for i in range(4)]
    for i in range(4):
        for qd in range(4):
            w = W4 + 4 * i + qd
            op = "v_mul_f32" if i == 0 else "v_fmac_f32"
            L += [f"v_lshlrev_b32 v{T1}, 16, v{w}", f"v_and_b32 v{T1+1}, 0xffff0000, v{w}", f"{op} v{AC+2*qd}, v{C4+i}, v{T1}", f"{op} v{AC+2*qd+1}, v{C4+i}, v{T1+1}"]
    L.append("s_nop 1")
    for ror in (8, 4, 2):
        L += [f"v_add_f32_dpp v{AC+e}, v{AC+e}, v{AC+e} row_ror:{ror} row_mask:0xf bank_mask:0xf" for e in range(8)]
    L += [f"v_lshrrev_b32 v22, 4, v0", f"v_lshlrev_b32 v22, 6, v22", f"v_lshl_add_u32 v22, v23, 5, v22", f"v_add_u32 v22, {SCR}, v22",
          I(f"ds_write_b128 v22, v[{AC}:{AC+3}]", "j1w"), I(f"ds_write_b128 v22, v[{AC+4}:{AC+7}] offset:16", "j1w"),
          f"v_and_b32 v22, 15, v2", f"v_lshrrev_b32 v23, 4, v2", f"v_lshlrev_b32 v23, 8, v23", f"v_lshl_add_u32 v23, v22, 2, v23", f"v_add_u32 v23, {SCR}, v23",
          f"v_lshlrev_b32 v22, 2, v22", WL("j1w")]
    g = G.stream(max(g + 8, E("KA_J1", 44)), L, cap=28)
    assert g > 60
    gb = min(b for b in bars if b > g)
    assert SCR or gb < GW6 - 40
    assert not SCR or g > 124
    L = [I(f"ds_read_b32 v{T1+i}, v23 offset:{64*i}", "j1r") for i in range(4)]
    L += [f"s_lshl_b32 s{sB}, s{sA}, 1", [f"s_cmp_eq_u32 s{sW}, 0", f"s_cselect_b32 s{sB}, s{sB}, 0x80000000"], WL("j1r"),
          f"v_add_f32 v{T1}, v{T1}, v{T1+1}", f"v_add_f32 v{T1+2}, v{T1+2}, v{T1+3}", f"v_add_f32 v{T1}, v{T1}, v{T1+2}"]
    for sw in ("v_permlane16_swap_b32", "v_permlane32_swap_b32"):
        L += [f"v_mov_b32 v{T1+1}, v{T1}", "s_nop 1", f"{sw} v{T1}, v{T1+1}", "s_nop 0", f"v_add_f32 v{T1}, v{T1}, v{T1+1}"]
    L += [f"v_cvt_pk_bf16_f32 v{T1}, v{T1}, v{T1}", f"v_lshlrev_b32 v{T1}, 16, v{T1}",
          I(f"buffer_store_dword v{T1}, v22, {WSR}, s{sB} offen sc1", "j1s"),
          [f"s_cmp_lt_u32 s{sB}, 4096", f"s_cselect_b32 s{sC_}, 0, 0x1000"]]
    g = G.stream(gb + 1, L)
    gsig = G.stream(g + E("KA_SIGD", 24), [WV("j1s"), I(f"buffer_atomic_add v29, v27, s[{S_D}:{S_D+3}], s{sC_} offen sc1", "j1a")])
    print("J1 store", g, "signal", gsig)
    XR, F, CA, SA, T = J + 32, J + 40, J, J + 16, 4
    L = [f"v_and_b32 v{T+4}, 7, v2", f"v_lshrrev_b32 v{T+5}, 3, v2", f"v_lshlrev_b32 v{T+6}, 10, v{T+4}", f"v_lshl_add_u32 v{T+6}, v{T+5}, 4, v{T+6}",
         f"s_lshl_b32 s{sD}, s2, 5", f"s_add_u32 s{sD}, s{sD}, s{sW}", f"s_lshl_b32 s{sD}, s{sD}, 8",
         I(f"buffer_load_dwordx4 v[{XR}:{XR+3}], v{T+6}, s[{S_X}:{S_X+3}], s{sD} offen", "j3"),
         I(f"buffer_load_dwordx4 v[{XR+4}:{XR+7}], v{T+6}, s[{S_X}:{S_X+3}], s{sD} offen offset:128", "j3")]
    gx = G.stream(E("KA_GX", 104), L)
    def red(r, t):
        return ["s_nop 1", f"v_add_f32_dpp v{r}, v{r}, v{r} row_ror:8 row_mask:0xf bank_mask:0xf", f"v_mov_b32 v{t}, v{r}", "s_nop 1",
                f"v_permlane16_swap_b32 v{r}, v{t}", "s_nop 0", f"v_add_f32 v{r}, v{r}, v{t}", f"v_mov_b32 v{t}, v{r}", "s_nop 1",
                f"v_permlane32_swap_b32 v{r}, v{t}", "s_nop 0", f"v_add_f32 v{r}, v{r}, v{t}"]
    L = [WV("j3")]
    for i in range(8): L += [f"v_lshlrev_b32 v{F+2*i}, 16, v{XR+i}", f"v_and_b32 v{F+2*i+1}, 0xffff0000, v{XR+i}"]
    L.append(f"v_add_f32 v{T}, v{F}, v{F+1}")
    L += [f"v_add_f32 v{T}, v{T}, v{F+e}" for e in range(2, 16)]
    L += red(T, T + 2) + [f"v_mul_f32 v{T}, 0x3c000000, v{T}"]
    L += [f"v_sub_f32 v{CA+e}, v{F+e}, v{T}" for e in range(16)]
    L.append(f"v_mul_f32 v{T+1}, v{CA}, v{CA}")
    L += [f"v_fmac_f32 v{T+1}, v{CA+e}, v{CA+e}" for e in range(1, 16)]
    L += red(T + 1, T + 2)
    L += [f"v_lshlrev_b32 v{T+7}, 5, v{T+4}", f"v_add_u32 v{T+7}, 0x20000, v{T+7}", f"s_lshl_b32 s{sA}, s{sW}, 3", f"v_add_u32 v{T+2}, s{sA}, v{T+7}",
          I(f"ds_write_b64 v{T+2}, v[{T}:{T+1}]", "lw"), f"v_mov_b32 v{T+3}, 0", f"v_lshlrev_b32 v{T+6}, 5, v{T+5}", "s_nop 3", WL("lw")]
    g = G.stream(max(g + 1, E("KA_J3", 186)), L)
    gb = min(b for b in bars if b > g)
    print("LN stats end", g, "bar", gb)
    gp = max(g + 1, E("KA_POLL", 226))
    G.put(gp, I(f"buffer_load_dword v{T}, v{T+3}, s[{S_D}:{S_D+3}], 0 offen sc1", "pl"), "mem")
    L = [f"s_lshl_b32 s{sD}, s{sW}, 9", [WV("pl"), f"v_readfirstlane_b32 s{sA}, v{T}"],
         [f"s_cmp_lt_u32 s{sA}, 64", "s_cbranch_scc1 KA_SPIN", "KA_SPIN_RET:"]]
    for dst, off in ((SA, 0), (CA, 2048)):
        for m in range(2):
            for hh in range(2):
                L.append(I(f"buffer_load_dwordx4 v[{dst+8*m+4*hh}:{dst+8*m+4*hh+3}], v{T+6}, {WSR}, s{sD} offen offset:{off+256*m+16*hh} sc1", "md"))
    g = G.stream(gp + 26, L)
    R_ = XR
    L = [I(f"ds_read_b128 v[{R_}:{R_+3}], v{T+7}", "lr"), I(f"ds_read_b128 v[{R_+4}:{R_+7}], v{T+7} offset:16", "lr"), f"s_mov_b32 s{sA}, 0x43000000", "s_nop 3", WL("lr")]
    L += sl(f"""
    v_add_f32 v{T}, v{R_}, v{R_+2}
    v_add_f32 v{T+1}, v{R_+4}, v{R_+6}
    v_add_f32 v{T}, v{T}, v{T+1}
    v_mul_f32 v{T}, 0x3e800000, v{T}
    v_sub_f32 v{R_}, v{R_}, v{T}
    v_sub_f32 v{R_+2}, v{R_+2}, v{T}
    v_sub_f32 v{R_+4}, v{R_+4}, v{T}
    v_sub_f32 v{R_+6}, v{R_+6}, v{T}
    v_mul_f32 v{R_}, v{R_}, v{R_}
    v_fmac_f32 v{R_}, v{R_+2}, v{R_+2}
    v_fmac_f32 v{R_}, v{R_+4}, v{R_+4}
    v_fmac_f32 v{R_}, v{R_+6}, v{R_+6}
    v_add_f32 v{R_+1}, v{R_+1}, v{R_+3}
    v_add_f32 v{R_+5}, v{R_+5}, v{R_+7}
    v_add_f32 v{R_+1}, v{R_+1}, v{R_+5}
    v_fma_f32 v{R_}, v{R_}, s{sA}, v{R_+1}
    v_mov_b32 v{T+1}, 0x3727c5ac
    v_fmac_f32 v{T+1}, 0x3b000000, v{R_}
    v_rsq_f32 v{T+1}, v{T+1}
    s_nop 0
    v_mul_f32 v{T+1}, 0x{QSCALE:x}, v{T+1}
    """)
    L += [f"v_sub_f32 v{F+e}, v{F+e}, v{T}" for e in range(16)]
    L += [f"v_mul_f32 v{F+e}, v{F+e}, v{T+1}" for e in range(16)]
    L += [f"v_lshlrev_b32 v{T+2}, 9, v{T+5}", f"v_lshl_add_u32 v{T+2}, v{T+4}, 4, v{T+2}",
          f"s_lshr_b32 s{sA}, s2, 2", f"s_lshl_b32 s{sA}, s{sA}, 15", f"s_and_b32 s{sD}, s2, 3", f"s_lshl_b32 s{sD}, s{sD}, 7", f"s_add_u32 s{sA}, s{sA}, s{sD}",
          f"s_lshl_b32 s{sD}, s{sW}, 13", f"s_add_u32 s{sA}, s{sA}, s{sD}", f"s_add_u32 s{sA}, s{sA}, {WS_H1}", f"s_add_u32 s{sD}, s{sA}, 4096"]
    g = G.stream(max(g, gb) + 1, L)
    L = [WV("md")]
    for op in ("v_add_f32 v{c}, 1.0, v{c}", "v_cvt_pk_bf16_f32 v{c}, v{c}, v{c}", "v_lshlrev_b32 v{c}, 16, v{c}"):
        L += [op.format(c=CA + e) for e in range(16)]
    L += [f"v_mul_f32 v{SA+e}, 0x{QSCALE:x}, v{SA+e}" for e in range(16)]
    L += [f"v_fma_f32 v{F+e}, v{F+e}, v{CA+e}, v{SA+e}" for e in range(16)]
    L += [f"v_cvt_pk_bf16_f32 v{XR+i}, v{F+2*i}, v{F+2*i+1}" for i in range(8)]
    L += [I(f"buffer_store_dwordx4 v[{XR}:{XR+3}], v{T+2}, {WSR}, s{sA} offen sc1", "hs"), I(f"buffer_store_dwordx4 v[{XR+4}:{XR+7}], v{T+2}, {WSR}, s{sD} offen sc1", "hs")]
    g = G.stream(g + 6, L)
    gb = min(b for b in bars if b > g + E("KA_HD", 20))
    G.put(gb - 1, WV("hs"), "end")
    G.stream(g + 1, [f"v_mov_b32 v25, {MAGIC}", f"v_min_u32 v27, 1, v2", f"v_lshlrev_b32 v27, 30, v27", f"s_add_u32 s{sA}, s{sF}, {FL_H}"])
    G.put(gb + 1, I(f"buffer_store_dword v25, v27, {WSR}, s{sA} offen sc1", "fl"), "mem")
    print("h stored", g, "flag", gb + 1)
    gh = gb + 1
    L = [[f"s_mov_b32 s{S_WQ}, s8", f"s_mov_b32 s{S_WQ+1}, s9"],
         I(f"buffer_load_dword v26, v28, s[{S_WQ}:{S_WQ+3}], s{sE} offen", "pf"),
         f"v_lshrrev_b32 v22, 4, v2", f"v_and_b32 v23, 15, v2", f"v_lshlrev_b32 v24, 2, v22", f"v_xor_b32 v23, v23, v24", f"v_lshlrev_b32 v23, 4, v23",
         f"v_lshl_add_u32 v23, v22, 13, v23", f"s_lshl_b32 s{sB}, s{sW}, 15", f"v_add_u32 v{VOQ}, s{sB}, v23",
         f"s_sub_u32 s{sB}, 15, s{sMT}", [f"s_cmp_eq_u32 s{sP_}, 0", f"s_cselect_b32 s{sB}, s{sB}, s{sMT}"],
         f"s_lshl_b32 s{sC_}, s{sB}, 11", f"s_add_u32 s{sC_}, s{sC_}, {WS_FLAG+FL_H}",
         f"s_lshl_b32 s{sB}, s{sB}, 17", f"s_add_u32 s{sB}, s{sB}, {WS_H1}", f"v_add_u32 v{VH+1}, s{sB}, v1", f"s_lshl_b32 s{sB}, s{sR}, 15",
         f"v_add_u32 v{VH}, s{sB}, v{VH+1}", f"v_subrev_u32 v{VH+1}, s{sB}, v{VH+1}", f"v_add_u32 v{VH+1}, {3*32768}, v{VH+1}",
         f"v_bfe_u32 v22, v2, 2, 2", f"v_lshrrev_b32 v23, 5, v2", f"v_lshl_add_u32 v23, v23, 3, v22", f"v_lshlrev_b32 v23, 8, v23",
         f"v_bfe_u32 v24, v2, 4, 1", f"v_lshl_add_u32 v23, v24, 5, v23", f"v_and_b32 v24, 3, v2", f"v_lshl_add_u32 v23, v24, 3, v23", f"v_add_u32 v23, 0x20000, v23"]
    for nt in range(4): L += [f"v_xor_b32 v24, {nt}, v22", f"v_lshl_add_u32 v{VQR+nt}, v24, 6, v23"]
    L += [f"v_and_b32 v15, 15, v2", f"v_lshlrev_b32 v15, 7, v15", f"s_lshl_b32 s{sM0T}, s{sW}, 10"]
    g = G.stream(max(gW + 1, E("KA_PFG", 300)), L)
    print("q setup end", g)
    gq = max(g + 2, gh + 2, E("KA_GQ", 366))
    qfree = lambda ks: BG(4) if ks < 8 else BG(10) if ks < 12 else BG(11) if ks < 16 else BG(12) if ks < 20 else BG(13) if ks < 24 else BG(14) if ks < 28 else BG(15)
    QS = E("KA_QS", 4)
    for ks in range(32):
        gq = max(gq, qfree(ks) + 2)
        put_dma(gq, ([f"s_add_u32 m0, s{sM0T}, {131072-32768*(ks//8)+(ks%8)*4096}", f"s_mov_b32 s{sT0}, {ks*16*8192}"],
                     [I(f"buffer_load_dwordx4 v{VOQ}, s[{S_WQ}:{S_WQ+3}], s{sT0} offen lds", f"Q{ks//8}")]))
        gq += QS
    print("W_q dma end", gq)
    gp = E("KA_HP", 420)
    G.put(gp, I(f"buffer_load_dword v22, v15, {WSR}, s{sC_} offen sc1", "hp"), "mem")
    g = G.stream(gp + 24, [[WV("hp"), f"v_cmp_ne_u32 vcc, v25, v22"], ["s_cbranch_vccnz KA_HSPIN", "KA_HSPIN_RET:"]])
    g += 1
    n = 0
    for ks in range(32):
        for q in range(2):
            g = max(g, 384 + 4 * ks + 4)
            while g in busy: g += 1
            if ks % 4 == 0 and q == 0: G.put(g - 1, f"s_mov_b32 s{sB}, {(ks//4)*4096}", "end")
            G.put(g, I(f"buffer_load_dwordx4 {ar(8*ks+4*q,4)}, v{VH+q}, {WSR}, s{sB} offen offset:{(ks%4)*1024} sc1", f"h{ks}"), "mem")
            assert g < QG(ks) - 6, (ks, g)
            g += E("KA_HS", 4) if g < gq else E("KA_HS2", 3)
    print("h loads end", g)
    ghl = g
    L = sl(f"""
    v_lshrrev_b32 v24, 4, v2
    v_mul_lo_u32 v29, v24, s11
    v_and_b32 v23, 15, v2
    v_lshl_add_u32 v29, v23, 4, v29
    s_lshl_b32 s11, s11, 2
    v_bfe_u32 v23, v2, 2, 2
    v_lshl_add_u32 v23, v24, 2, v23
    v_lshlrev_b32 v23, 8, v23
    v_and_b32 v24, 3, v2
    v_lshl_add_u32 v23, v24, 3, v23
    v_add_u32 v23, s35, v23
    v_lshrrev_b32 v24, 5, v2
    """) + [[f"s_cmp_lt_u32 s2, 128", f"s_cselect_b32 s{sA}, 2048, 0"], f"v_mul_u32_u24 v24, s{sA}, v24", f"v_add_u32 v26, v23, v24",
            f"s_sub_u32 s{sA}, 4096, s{sA}", f"v_add_u32 v3, s{sA}, v26"]
    g = G.stream(470, L)
    gj = max(E("KA_GJ2", 636), ghl)
    assert gj > QG(16) - 8
    for i in range(8):
        while G.mem[gj] and any("buffer_" in x.s for x in G.mem[gj]): gj += 1
        put_dma(gj, ([f"s_add_u32 m0, s35, {i*1024}"], [I(f"buffer_load_dwordx4 v29, s[4:7], s10 offen {os.environ.get('KA_J2F', 'nt')} lds", "j2")]))
        G.put(gj, "s_add_u32 s10, s10, s11", "end")
        gj += 2
    L = [WV("j2")]
    for f in range(8):
        for e in range(2):
            L.append(I(f"ds_read_b64_tr_b16 v[{160+4*f+2*e}:{161+4*f+2*e}], v{26 if e == 0 else 3} offset:{f*32}", "j2r"))
    g = G.stream(E("KA_J2R", 747), L)
    assert g < QG(31) - 2, g
    G.put(QG(31) - 1, WL("j2r"), "end")
    print("J2 dma", gj, "reads end", g)
    gb = min(b for b in bars if b > gl + E("KA_KD", 30))
    G.put(gb - 2, WV("stl"), "end")
    G.put(gb - 2, f"s_add_u32 s{sA}, s{sF}, {FL_KV}", "end")
    G.put(gb + 1, I(f"buffer_store_dword v25, v27, {WSR}, s{sA} offen sc1", "fl"), "mem")
    print("kv flag", gb + 1)
    K = k2
    L = sl(f"""
    s_and_b32 s{sC_}, s2, 31
    s_lshl_b32 s{sC_}, s{sC_}, 7
    s_add_u32 s{sC_}, s{sC_}, {WS_FLAG+FL_KV}
    v_and_b32 v15, 0x380, v15
    v_lshlrev_b32 v15, 5, v15
    v_mov_b32 v28, v2
    s_lshl_b32 s{sD}, s{sHD}, 19
    s_add_u32 s{sE}, s{sD}, {WS_KF}
    """) + [[f"s_add_u32 s{K.S_K}, s{S_WS}, s{sE}", f"s_addc_u32 s{K.S_K+1}, s{S_WS+1}, 0"], f"s_add_u32 s{sE}, s{sD}, {WS_VF}",
            [f"s_add_u32 s{K.S_V}, s{S_WS}, s{sE}", f"s_addc_u32 s{K.S_V+1}, s{S_WS+1}, 0"]] + sl(f"""
    s_mov_b32 s{K.S_V+2}, 0x80000
    s_lshl_b32 s{sD}, s{K.sPR}, 1
    s_sub_u32 s{K.sN}, 32, s{sD}
    s_lshl_b32 s{K.sKEND}, s{K.sN}, 14
    s_mov_b32 s{K.S_K+2}, s{K.sKEND}
    s_add_u32 s{K.sN2B}, s{sD}, 2
    s_lshl_b32 s{K.sN2B}, s{K.sN2B}, 14
    s_mov_b32 s{K.sKOFF}, 0
    s_lshl_b32 s{K.sKDST}, s{sW}, 12
    s_mov_b32 s{K.sBLK}, 0
    s_sub_u32 s{K.sQB}, 15, s{K.sPR}
    v_add_u32 v{K.V_DMA}, s{K.sKDST}, v1
    s_lshl_b32 s{sD}, s{sP_}, 13
    v_add_u32 v{K.V_KADDR}, s{sD}, v1
    v_mov_b32 v{K.V_NINF}, 0xff800000
    s_lshl_b32 s{sE}, s{sR}, 14
    v_add_u32 v{K.V_QA}, s{sE}, v1
    v_xor_b32 v{K.V_QA+1}, 0x2000, v{K.V_QA}
    v_and_b32 v23, 31, v28
    v_lshrrev_b32 v24, 5, v28
    v_lshlrev_b32 v24, 2, v24
    v_sub_u32 v23, v23, v24
    """)
    L += [f"v_bfe_u32 v24, v28, 4, 1", f"v_lshlrev_b32 v{K.V_CST}, 10, v24", f"v_lshrrev_b32 v24, 5, v28", f"v_lshl_add_u32 v{K.V_CST}, v24, 8, v{K.V_CST}",
          f"v_and_b32 v24, 15, v28", f"v_lshl_add_u32 v{K.V_CST}, v24, 4, v{K.V_CST}"]
    for z, q in ((0, 0), (0, 1), (1, 1)):
        L += [f"s_mov_b32 s{sD}, s{sR}" if q == 0 else f"s_sub_u32 s{sD}, {3-2*z}, s{sR}", f"s_sub_u32 s{sD}, s{sD}, s{sP_}",
              f"s_lshl_b32 s{sD}, s{sD}, 5", f"v_add_u32 v{K.V_LIM+2*z+q}, s{sD}, v23"]
    g = G.stream(530, L)
    print("attn setup end", g)
    gp = max(E("KA_KP", 736), g + 1, ghl)
    G.put(gp, I(f"buffer_load_dword v22, v15, {WSR}, s{sC_} offen sc1", "kp"), "mem")
    g = G.stream(gp + 22, [[WV("kp"), f"v_cmp_ne_u32 vcc, v25, v22"], ["s_cbranch_vccnz KA_KSPIN", "KA_KSPIN_RET:"]])
    G.hack16 = 'f' in os.environ.get('HACK16', '')
    items = P + G.items()
    print("front gaps over cap:", [(g, u) for g, u in enumerate(G.used) if u > 24][:20])
    if STAMPS:
        pos = [i for i, it in enumerate(items) if it.s.startswith("v_mfma")]
        stg = [int(x) for x in os.environ.get("STG", "128,512").split(",")]
        for k in range(len(stg) - 1, -1, -1):
            b = ST.base + 2 * (ST.n + k)
            items.insert(pos[stg[k]], I(f"s_memtime s[{b}:{b+1}]"))
        ST.n += len(stg)
    if DBGT:
        pos = [i for i, it in enumerate(items) if it.s.startswith("v_mfma")]
        items.insert(pos[512], I("s_memrealtime s[76:77]")); items.insert(pos[128], I("s_memrealtime s[74:75]")); items.insert(pos[0], I("s_memrealtime s[72:73]"))
    resolve(items, A, vm0=["pf"])
    if os.environ.get("STG"):
        import asmlib
        class Dummy:
            base = 100; n = 0
            def stamp(self): pass
            def flush(self, *a, **k): return ST.flush(*a, **k)
        class D2(Dummy):
            @property
            def n(self): return 0
            @n.setter
            def n(self, v): pass
        ST.stamp()
        k2.gen_attn(A, D2(), qa, tailfn=tailfn)
    else:
        k2.gen_attn(A, ST, qa, tailfn=tailfn)
    A(f"""
    KA_SPIN:
    s_mov_b32 s{sB}, 100000
    KA_SPIN_L:
    s_sleep 24
    buffer_load_dword v{T}, v{T+3}, s[{S_D}:{S_D+3}], 0 offen sc1
    s_waitcnt vmcnt(0)
    v_readfirstlane_b32 s{sA}, v{T}
    s_cmp_ge_u32 s{sA}, 64
    s_cbranch_scc1 KA_SPIN_RET
    s_sub_u32 s{sB}, s{sB}, 1
    s_cmp_lg_u32 s{sB}, 0
    s_cbranch_scc1 KA_SPIN_L
    s_branch KA_SPIN_RET
    """)
    for tag in ("KA_HSPIN", "KA_KSPIN"):
        A(f"""
        {tag}:
        s_mov_b32 s{sD}, 200000
        {tag}_L:
        s_sleep 4
        buffer_load_dword v22, v15, {WSR}, s{sC_} offen sc1
        s_waitcnt vmcnt(0)
        v_cmp_ne_u32 vcc, v25, v22
        s_cbranch_vccz {tag}_RET
        s_sub_u32 s{sD}, s{sD}, 1
        s_cmp_lg_u32 s{sD}, 0
        s_cbranch_scc1 {tag}_L
        s_branch {tag}_RET
        """)
    return name, A.text(), kernel_desc(name, 256, 256), "grid=(256,1,1) block=(256,1,1) lds=163840"
```

```python
from asmlib import *
from sched import *
import k2
import os, struct, math
LOG2E = 0x3fb8aa3b
QSCALE = k2.QSCALE
MAGIC = 0x5a17
def E(k, d): return int(os.environ.get(k, str(d)))
def E2(k, d): return 2 * int(os.environ.get(k, str(d)))
def m16(d, a, b, c): return f"v_mfma_f32_16x16x32_bf16 {d}, {a}, {b}, {c}"
def lines(s): return [I(x.strip()) for x in s.strip().split("\n") if x.strip()]
def sl(s): return [x.strip() for x in s.strip().split("\n") if x.strip()]

def gen_front(tailfn=None, name="kf_kernel"):
    k2.rare_sites.clear()
    STF = os.environ.get("KA_ST", "sc1")
    PFN = os.environ.get("KA_PFNT", "nt")
    A = Asm()
    A.lines.append(kernel_header(name))
    A("s_getpc_b64 s[64:65]")
    A("s_cmp_ge_u32 s2, 256")
    A("s_cbranch_scc1 K2_END")
    ST = Stamper(A, 0)
    ST.stamp()
    dbg_mark(A, 0)
    if os.environ.get("PADTO"): A("s_memrealtime s[70:71]")
    VOT, VOW, VT, VW, VST = 4, 12, 16, 18, 30
    WF, ACC, J = 32, 64, 192
    S_T, S_WK, S_WS, S_WV, S_X, S_M, S_C, S_D = 12, 16, 20, 24, 36, 40, 56, 60
    S_WQ = 24
    sW, sR, sP_, sHD, sMT = k2.sW, k2.sR, k2.sP_, k2.sHD, k2.sPR
    sXC, sJ, sT0, sT1, sM0T, sM0W, sKV = 44, 45, 46, 47, 49, 50, 51
    sA, sB, sC_, sD, sE, sF = 52, 53, 54, 55, 48, 3
    WSR = f"s[{S_WS}:{S_WS+3}]"
    A(f"""
    s_load_dwordx16 s[36:51], s[0:1], 0
    s_load_dwordx8 s[52:59], s[0:1], 64
    s_load_dwordx2 s[{S_D}:{S_D+1}], s[0:1], {KA['dbg']}
    s_load_dwordx2 s[{S_WS}:{S_WS+1}], s[0:1], {KA['ws']}
    v_lshrrev_b32 v3, 6, v0
    v_and_b32 v2, 63, v0
    v_readfirstlane_b32 s{sW}, v3
    v_lshlrev_b32 v1, 4, v2
    s_and_b32 s4, s2, 7
    s_lshr_b32 s5, s2, 3
    s_and_b32 s{sHD}, s5, 3
    s_lshl_b32 s4, s4, 2
    s_add_u32 s{sHD}, s{sHD}, s4
    s_lshr_b32 s{sMT}, s5, 2
    s_and_b32 s{sR}, s{sW}, 1
    s_lshr_b32 s{sP_}, s{sW}, 1
    v_lshrrev_b32 v22, 3, v2
    v_lshrrev_b32 v23, 4, v2
    v_and_b32 v24, 7, v2
    v_xor_b32 v25, v24, v23
    v_lshlrev_b32 v25, 4, v25
    v_lshl_add_u32 v25, v22, 10, v25
    s_lshl_b32 s4, s{sW}, 16
    v_add_u32 v25, s4, v25
    """)
    for i in range(8):
        A(f"v_add_u32 v{VOT+i}, {8*i*1024-(i%4)*1024}, v25")
        if i % 2: A(f"v_xor_b32 v{VOT+i}, 64, v{VOT+i}")
    A(f"""
    v_and_b32 v23, 1, v23
    v_lshlrev_b32 v23, 1, v23
    v_xor_b32 v25, v24, v23
    v_lshlrev_b32 v25, 4, v25
    v_lshl_add_u32 v25, v22, 13, v25
    s_lshl_b32 s4, s{sW}, 18
    v_add_u32 v25, s4, v25
    """)
    for i in range(4):
        A(f"v_add_u32 v{VOW+i}, {8*i*8192-i*1024}, v25")
        if i % 2: A(f"v_xor_b32 v{VOW+i}, 64, v{VOW+i}")
    A(f"""
    v_lshlrev_b32 v22, 7, v2
    v_lshlrev_b32 v28, 13, v2
    s_lshl_b32 s4, s{sMT}, 18
    s_lshl_b32 s6, s{sHD}, 8
    s_mov_b32 s{S_T+2}, 0x40000
    s_mov_b32 s{S_T+3}, 0x00020000
    s_mov_b32 s{S_WK+2}, {511*8192+256}
    s_mov_b32 s{S_WK+3}, 0x00020000
    s_waitcnt lgkmcnt(0)
    s_add_u32 s{S_T}, s38, s4
    s_addc_u32 s{S_T+1}, s39, 0
    s_add_u32 s{S_WK}, s42, s6
    s_addc_u32 s{S_WK+1}, s43, 0
    s_cmp_eq_u32 s{sW}, 0
    s_cbranch_scc1 KA_PF0
    s_cmp_eq_u32 s{sW}, 3
    s_cbranch_scc0 KA_PF1
    s_and_b32 s7, s5, 15
    s_lshl_b32 s7, s7, 12
    v_lshrrev_b32 v22, 1, v22
    v_add_u32 v22, s7, v22
    global_load_dword v26, v22, s[64:65]
    s_branch KA_PFD
    KA_PF0:
    s_lshl_b32 s7, s{sHD}, 13
    buffer_load_dword v26, v22, s[{S_T}:{S_T+3}], s7 offen
    s_branch KA_PFD
    KA_PF1:
    s_lshl_b32 s7, s{sMT}, 19
    s_lshl_b32 s4, s{sW}, 7
    s_add_u32 s7, s7, s4
    s_sub_u32 s7, s7, 128
    buffer_load_dword v26, v28, s[{S_WK}:{S_WK+3}], s7 offen {PFN}
    KA_PFD:
    s_add_u32 s{S_WV}, s44, s6
    s_addc_u32 s{S_WV+1}, s45, 0
    s_add_u32 s8, s40, s6
    s_addc_u32 s9, s41, 0
    s_mov_b32 s4, s46
    s_mov_b32 s5, s47
    s_mov_b32 s62, s50
    s_mov_b32 s63, s51
    s_lshl_b32 s{sM0W}, s{sW}, 12
    s_lshl_b32 s{sM0T}, s{sW}, 14
    s_add_u32 s{sM0T}, s{sM0T}, 98304
    """)
    WSLOT = {0: 0, 1: 1, 2: 2, 3: 3, 4: 4, 5: 5, 6: 0, 7: 1, 8: 6, 9: 7, 10: 4, 11: 5, 12: 2, 13: 3, 14: 0, 15: 1}
    def wdma(u):
        c = u // 4
        srdr = S_WK if c < 2 else S_WV
        pre = [f"s_add_u32 m0, s{sM0W}, {WSLOT[u]*16384}", f"s_mov_b32 s{sT0}, {(u%4)*128*8192+(c&1)*128}"]
        return pre, [I(f"buffer_load_dwordx4 v{VOW+i}, s[{srdr}:{srdr+3}], s{sT0} offen offset:{i*1024} lds", f"W{u}") for i in range(4)]
    def tdma(s, grp):
        pre = [f"s_add_u32 m0, s{sM0T}, {(s%2)*8192+grp*4096}", f"s_mov_b32 s{sT0}, {s*128}"]
        return pre, [I(f"buffer_load_dwordx4 v{VOT+i}, s[{S_T}:{S_T+3}], s{sT0} offen offset:{(i%4)*1024} lds", f"T{s}") for i in range(4 * grp, 4 * grp + 4)]
    def seq(g):
        pre, d = g
        return [I(x) for x in pre] + d
    P = seq(wdma(0)) + seq(tdma(0, 0)) + seq(tdma(0, 1))
    P += lines(f"""
    s_lshl_b32 s48, s2, 2
    s_add_u32 s48, s48, s{sW}
    s_mov_b32 s6, {4096*1024}
    s_mov_b32 s7, 0x00020000
    s_cmp_ge_u32 s48, 736
    s_cselect_b32 s4, s54, s4
    s_cselect_b32 s5, s55, s5
    s_cselect_b32 s6, {1792*1024}, s6
    s_cselect_b32 s40, 736, 0
    s_cselect_b32 s28, {WS_W2F - WS_WOF}, 0
    s_mov_b32 s29, {256*2048}
    s_cselect_b32 s29, {112*2048}, s29
    s_sub_u32 s40, s48, s40
    s_lshr_b32 s41, s40, 2
    s_and_b32 s42, s40, 3
    s_mov_b32 s11, 1024
    s_sub_u32 s40, s48, 512
    s_mul_i32 s43, s40, 9363
    s_lshr_b32 s43, s43, 17
    s_mul_i32 s52, s43, 14
    s_sub_u32 s52, s40, s52
    s_cmp_lt_u32 s40, 224
    s_cselect_b32 s41, s43, s41
    s_cselect_b32 s42, s52, s42
    s_cselect_b32 s11, 3584, s11
    s_cselect_b32 s29, {32*2048}, s29
    s_cselect_b32 s28, {WS_W1F - WS_WOF}, s28
    s_cselect_b32 s4, s62, s4
    s_cselect_b32 s5, s63, s5
    s_cselect_b32 s6, {512*3584}, s6
    s_mul_i32 s10, s41, s11
    s_lshl_b32 s10, s10, 5
    s_lshl_b32 s43, s42, 8
    s_add_u32 s10, s10, s43
    s_mul_i32 s43, s42, s29
    s_lshl_b32 s43, s43, 1
    s_add_u32 s28, s28, s43
    s_lshl_b32 s43, s41, 12
    s_add_u32 s28, s28, s43
    s_add_u32 s28, s28, {WS_WOF}
    s_cmp_ge_u32 s48, 960
    s_cselect_b32 s28, 0x80000000, s28
    s_lshl_b32 s35, s{sW}, 13
    s_add_u32 s35, s35, 0x20000
    s_mov_b32 s{S_M}, s58
    s_mov_b32 s{S_M+1}, s59
    s_mov_b32 s{S_M+2}, {512*6144}
    s_mov_b32 s{S_M+3}, 0x00020000
    s_mov_b32 s{S_C+2}, 1024
    s_mov_b32 s{S_C+3}, 0x00020000
    s_mov_b32 s{S_X+2}, 0x200000
    s_mov_b32 s{S_X+3}, 0x00020000
    s_mov_b32 s{S_D+2}, 256
    s_mov_b32 s{S_D+3}, 0x00020000
    s_mov_b32 s{S_WV+2}, {511*8192+256}
    s_mov_b32 s{S_WV+3}, 0x00020000
    s_mov_b32 s{S_WS+2}, {WS_END}
    s_mov_b32 s{S_WS+3}, 0x00020000
    s_and_b32 s{sXC}, s2, 7
    s_lshr_b32 s{sJ}, s2, 3
    v_and_b32 v22, 7, v2
    v_bfe_u32 v23, v2, 3, 1
    v_lshl_add_u32 v22, v23, 4, v22
    v_lshrrev_b32 v23, 4, v2
    v_lshlrev_b32 v{VST}, 4, v22
    v_lshl_add_u32 v{VST}, v23, 9, v{VST}
    v_bfe_u32 v24, v22, 1, 3
    v_xor_b32 v24, v24, v23
    v_lshlrev_b32 v25, 7, v22
    v_add_u32 v25, s{sM0T}, v25
    v_lshl_add_u32 v{VT}, v24, 4, v25
    v_xor_b32 v{VT+1}, 64, v{VT}
    v_bfe_u32 v22, v2, 2, 2
    v_lshl_add_u32 v25, v23, 3, v22
    v_lshlrev_b32 v25, 7, v25
    v_and_b32 v24, 3, v2
    v_lshl_add_u32 v25, v24, 3, v25
    v_lshrrev_b32 v22, 1, v22
    v_and_b32 v23, 1, v23
    v_lshl_add_u32 v22, v23, 1, v22
    v_lshl_add_u32 v{VW}, v22, 5, v25
    v_xor_b32 v{VW+1}, 32, v{VW}
    v_xor_b32 v{VW+2}, 64, v{VW}
    v_xor_b32 v{VW+3}, 96, v{VW}
    s_lshl_b32 s{sKV}, s{sHD}, 19
    s_lshl_b32 s{sT1}, s{sMT}, 16
    s_add_u32 s{sKV}, s{sKV}, s{sT1}
    s_lshl_b32 s{sT1}, s{sW}, 14
    s_add_u32 s{sKV}, s{sKV}, s{sT1}
    v_lshrrev_b32 v22, 1, v0
    v_and_b32 v23, 1, v0
    v_mul_u32_u24 v24, 6144, v22
    v_lshl_add_u32 v24, v23, 4, v24
    s_mul_i32 s{sD}, s{sXC}, 768
    s_lshl_b32 s{sB}, s{sJ}, 5
    s_add_u32 s{sA}, s{sD}, s{sB}
    s_cmp_lt_u32 s{sJ}, 24
    s_cselect_b32 s{sA}, s{sA}, 0x40000000
    v_lshlrev_b32 v22, 1, v22
    s_mov_b32 s{sB}, s{sA}
    v_subrev_u32 v29, 128, v0
    v_and_b32 v25, 7, v29
    v_lshrrev_b32 v29, 3, v29
    v_mul_u32_u24 v29, 6144, v29
    v_lshl_add_u32 v29, v25, 7, v29
    v_cmp_lt_u32 vcc, 5, v25
    v_mov_b32 v25, 0x40000000
    s_mul_i32 s{sC_}, s{sJ}, {16*6144}
    v_cndmask_b32 v29, v29, v25, vcc
    s_add_u32 s{sC_}, s{sC_}, s{sD}
    s_cmp_ge_u32 s{sW}, 2
    s_cselect_b32 s{sC_}, s{sC_}, 0x80000000
    v_and_b32 v29, 0x4fffffff, v29
    """)
    LATE = E("KA_LATE", 0)
    PFM = I(f"buffer_load_dword v26, v29, s[{S_M}:{S_M+3}], s{sC_} offen {PFN}", "pf")
    if not LATE: P.append(PFM)
    P += lines(f"""
    s_lshl_b32 s{sF}, s2, 7
    s_add_u32 s{sF}, s{sF}, {WS_FLAG}
    s_cmp_eq_u32 s{sW}, 0
    s_cselect_b32 s{sF}, s{sF}, 0x80000000
    """)
    P += seq(tdma(1, 0)) + seq(tdma(1, 1))
    def treads(s):
        return [I(f"ds_read_b128 {ar(((2*s+k)*4+t)*4,4)}, v{VT+(k^(t&1))} offset:{(s%2)*8192+(t//2)*4096+(t&1)*1024}", f"t{s}") for k in range(2) for t in range(4)]
    def wreads(gk):
        u, ksl, st = gk // 4, gk % 4, gk & 1
        s_ = WSLOT[u]
        return [I(f"ds_read_b64_tr_b16 v[{WF+16*st+4*n+2*e}:{WF+16*st+4*n+2*e+1}], v{VW+n} offset:{(s_%4)*16384+ksl*4096+e*512}", f"w{gk}")
                for n in range(4) for e in range(2)]
    def stamp_item():
        if not STAMPS: return []
        b = ST.base + 2 * ST.n; ST.n += 1
        return [I(f"s_memtime s[{b}:{b+1}]")]
    P += [WV("W0", "T0"), I("s_barrier")] + stamp_item()
    P += wreads(0) + treads(0) + [WL("w0", "t0")]
    mf = []
    def kacc(c, t, n): return ACC + 64 * (c & 1) + (16 * t + 4 * n if c < 2 else 32 * (t // 2) + 8 * n + 4 * (t & 1))
    for c in range(4):
        for ks in range(16):
            for n in range(4):
                for t in range(4):
                    acc = vr(kacc(c, t, n), 4)
                    wf = vr(WF + 16 * (ks & 1) + 4 * n, 4)
                    tk = ar((ks * 4 + t) * 4, 4)
                    cc = acc if ks else "0"
                    mf.append(m16(acc, wf, tk, cc) if c < 2 else m16(acc, tk, wf, cc))
    qa = lambda q: 64 if q == 0 else 192
    for ks in range(16):
        for n in range(8):
            for t in range(4):
                acc = vr(qa(t // 2) + 32 * (t & 1) + 4 * n, 4)
                mf.append(m16(acc, vr(WF + 4 * n, 4), ar((ks * 4 + t) * 4, 4), acc if ks else "0"))
    G = Gaps(mf, cap=E('FCAP', 8)); G.tight = E('TIGHT', 1) == 1
    busy = set()
    def put_dma(g0, grp, step=1):
        pre, d = grp
        G.put(g0 - 1, pre, "end")
        for i, x in enumerate(d): G.put(g0 + i * step, x, "mem")
        for g in range(g0, g0 + (len(d) - 1) * step + 1):
            assert g not in busy, g
            busy.add(g)
        return g0 + len(d) * step
    def BG(u): return 16 * (4 * u - 1)
    bars = []
    for gk in range(63):
        g0 = 16 * gk
        o = 0
        if (gk + 1) % 4 == 0:
            u = (gk + 1) // 4
            G.put(g0, "s_barrier", "mem"); bars.append(g0); o = 1
            if (WSLOT[u] < 4) != (WSLOT[u - 1] < 4):
                G.put(g0 - 3, [f"v_xor_b32 v{VW+i}, 0x10000, v{VW+i}" for i in range(2)], "end")
                G.put(g0 - 2, [f"v_xor_b32 v{VW+i}, 0x10000, v{VW+i}" for i in range(2, 4)], "end")
        for i, r in enumerate(wreads(gk + 1)): G.put(g0 + o + i, r)
        tags = [f"w{gk+1}"]
        if gk + 1 < 16 and (gk + 1) % 2 == 0: tags.append(f"t{(gk+1)//2}")
        if (gk + 2) % 4 == 0 and gk + 2 < 64: G.put(g0 + 15, WVL([f"W{(gk+2)//4}"], tags), "mem")
        else: G.put(g0 + 15, WL(*tags), "mem")
    for s in range(1, 8):
        g0 = 32 * s - 16
        G.put(g0 - 1, WV(f"T{s}"), "end")
        for i, r in enumerate(treads(s)): G.put(g0 + 1 + i, r)
    put_dma(2, wdma(1), 2)
    put_dma(10, tdma(2, 0), 2); put_dma(18, tdma(2, 1), 2)
    put_dma(32, tdma(3, 0), 2); put_dma(40, tdma(3, 1), 2)
    put_dma(48, wdma(2), 2)
    put_dma(64, tdma(4, 0), 2); put_dma(72, tdma(4, 1), 2)
    put_dma(96, tdma(5, 0), 2); put_dma(104, tdma(5, 1), 2)
    put_dma(112, wdma(3), 2)
    put_dma(128, tdma(6, 0), 2); put_dma(136, tdma(6, 1), 2)
    put_dma(160, tdma(7, 0), 2); put_dma(168, tdma(7, 1), 2)
    def freegaps(g, n, step):
        out = []
        while len(out) < n:
            while G.mem[g] or G.used[g] > (0 if STRICT else 4): g += 1
            out.append(g); g += step
        return out
    def put_dma2(g, grp, step):
        pre, d = grp
        gs = freegaps(g, len(d), step)
        G.put(gs[0] - 2, pre[:1], "end"); G.put(gs[0] - 1, pre[1:], "end")
        for g_, x in zip(gs, d):
            G.put(g_, x, "mem")
            if STRICT: G.used[g_] = 8
        for k in range(gs[0] - 2, gs[-1] + 1):
            assert k not in busy or k < gs[0], k
            busy.add(k)
        return gs[-1] + max(step, 3)
    GW6 = E2("KA_GW6", 150)
    g = put_dma2(180, wdma(4), 2); put_dma2(g, wdma(5), 2); g = put_dma2(GW6, wdma(6), 4); put_dma2(g, wdma(7), 4)
    g = E2("KA_GW8", 188)
    fa = {8: BG(4), 9: BG(4), 10: BG(6), 11: BG(7), 12: BG(4), 13: BG(5), 14: BG(8), 15: BG(9)}
    for u in range(8, 16):
        g = put_dma2(max(g, fa[u] + 4), wdma(u), 4)
    gW = g
    def QG(ks): return 1024 + 32 * ks
    VQR, VOQ, VH = 4, 12, 13
    for i in range(128):
        ks, n = i // 8, i % 8
        g = 1024 + 4 * (i - 4)
        o = 0
        if n == 0 and ks % 4 == 0:
            G.put(g - 1, WV(f"Q{ks//4}"), "end"); G.put(g, "s_barrier", "mem"); bars.append(g); o = 1
        if ks % 4 == 0 and ks: G.put(g - 4, f"v_subrev_u32 v{VQR+n}, 0x8000, v{VQR+n}", "end")
        for e in range(2):
            G.put(g + o + e, I(f"ds_read_b64_tr_b16 v[{WF+4*n+2*e}:{WF+4*n+2*e+1}], v{VQR+n} offset:{(ks%4)*8192+e*1024}", f"qw{i}"), "mem")
        if i % 2 == 0:
            G.put(1024 + 4 * i - 1, WVL([f"h{ks}"], [f"qw{i+1}"]) if n == 0 else WL(f"qw{i+1}"), "mem")
    GFB = 1024 + 4 * 126
    G.put(GFB, "s_barrier", "mem")
    L = [f"s_lshl_b32 s{sE}, s{sMT}, 19", f"s_lshl_b32 s{sD}, s{sW}, 7", f"s_add_u32 s{sE}, s{sE}, s{sD}",
         [f"s_cmp_lt_u32 s{sW}, 2", f"s_cselect_b32 s{sE}, s{sE}, 0x80000000"]]
    G.stream(80, L)
    GB2 = freegaps(E2("KA_B2", 108), 1, 1)[0]
    G.put(GB2, I(f"buffer_load_dword v26, v28, s[{S_WV}:{S_WV+3}], s{sE} offen", "pf"), "mem")
    L = [f"v_lshrrev_b32 v27, 2, v2", f"v_lshlrev_b32 v27, 15, v27", f"v_and_b32 v3, 3, v2", f"v_lshl_add_u32 v27, v3, 7, v27",
         [f"v_cmp_lt_u32 vcc, 39, v2", f"v_mov_b32 v3, 0", "s_nop 0", f"v_cndmask_b32 v27, v27, v25, vcc"],
         f"s_lshl_b32 s{sC_}, s{sA}, 4", f"s_add_u32 s{sC_}, s{sC_}, {WS_FLAG}",
         [f"s_cmp_lt_u32 s{sA}, 2048", f"s_cselect_b32 s{sC_}, s{sC_}, 0x80000000", f"s_cmp_eq_u32 s{sW}, 0", f"s_cselect_b32 s{sC_}, s{sC_}, 0x80000000"],
         I(f"buffer_store_dword v3, v27, {WSR}, s{sC_} offen sc1", "zf"),
         f"v_lshlrev_b32 v27, 12, v0", f"v_mov_b32 v29, 1",
         f"s_lshr_b32 s{sXC}, s{sA}, 10", [f"s_cmp_eq_u32 s{sXC}, 0", f"s_cselect_b32 s{sJ}, 0x{QSCALE:x}, 1.0"], [f"s_cmp_eq_u32 s{sXC}, 1", f"s_cselect_b32 s{sXC}, 1.0, 0"]]
    G.stream(E2("KA_ZF", 24), L, cap=16)
    def epi(c):
        R = []
        for q in range(2):
            for x in range(4):
                if c < 2:
                    t1, pp = x // 2, x % 2
                    a0 = kacc(c, 2 * q + t1, 2 * pp); off = WS_KF + q * 8192 + (2 * c + pp) * 2048 + t1 * 128
                else:
                    a0 = kacc(c, 2 * q, x); off = WS_VF + q * 8192 + ((2 * (c & 1) + x // 2) ^ (2 * q)) * 1024 + (x & 1) * 256
                L = [f"v_cvt_pk_bf16_f32 v{a0+i}, v{a0+2*i}, v{a0+2*i+1}" for i in range(4)]
                L.append(f"s_add_u32 s{sT1}, s{sKV}, {off & ~4095}")
                L.append(I(f"buffer_store_dwordx4 v[{a0}:{a0+3}], v{VST if c < 2 else VST+1}, {WSR}, s{sT1} offen offset:{off & 4095} {STF}", "st" if c < 3 else "stl"))
                R.append(L)
        return R
    ES = E2("KA_ES", 12)
    for c in range(4):
        for n, L in enumerate(epi(c)):
            gl = G.stream(256 * (c + 1) + 12 + (ES if c < 3 else E2("KA_ES3", 8)) * n, L)
    G.stream(260, [f"v_lshrrev_b32 v16, 5, v2", f"v_lshlrev_b32 v{VST+1}, 12, v16", f"v_bfe_u32 v16, v2, 4, 1", f"v_lshl_add_u32 v{VST+1}, v16, 9, v{VST+1}",
                   f"v_and_b32 v16, 15, v2", f"v_lshl_add_u32 v{VST+1}, v16, 4, v{VST+1}"])
    W4, C4, AC, T1 = J, J + 16, J + 20, J + 28
    SCR = 0
    for i in range(4):
        L = [I(f"buffer_load_dwordx4 v[{W4+4*i}:{W4+4*i+3}], v24, s[{S_M}:{S_M+3}], s{sB} offen", "j1")]
        if E("KA_XJ1", 0): L = [I(f"buffer_load_dwordx4 v[{W4+4*i}:{W4+4*i+3}], v1, s[{S_M}:{S_M+3}], 0 offen", "j1")]
        if i < 3: L.append(f"s_add_u32 s{sB}, s{sB}, {128*6144}")
        g = G.stream(E2("KA_GJ1", 4) + 1 + E2("KA_JS", 8) * i, L, cap=16)
    g = G.stream(g + 1, [I(f"buffer_load_ushort v{C4+i}, v22, s[{S_C}:{S_C+3}], 0 offen offset:{256*i}", "j1") for i in range(4)], cap=16)
    L = [WV("j1"), f"s_mov_b32 s{sB}, {LOG2E}"]
    for op in ("v_lshlrev_b32 v{c}, 16, v{c}", "v_mul_f32 v{t}, s%d, v{c}" % sB, "v_exp_f32 v{t}, -v{t}", "v_add_f32 v{t}, 1.0, v{t}", "v_rcp_f32 v{t}, v{t}",
               "v_mul_f32 v{c}, v{c}, v{t}", "v_cvt_pk_bf16_f32 v{c}, v{c}, v{c}", "v_lshlrev_b32 v{c}, 16, v{c}"):
        L += [op.format(c=C4 + i, t=T1 + i) for i in range(4)]
    for i in range(4):
        for qd in range(4):
            w = W4 + 4 * i + qd
            op = "v_mul_f32" if i == 0 else "v_fmac_f32"
            L += [f"v_lshlrev_b32 v{T1}, 16, v{w}", f"v_and_b32 v{T1+1}, 0xffff0000, v{w}", f"{op} v{AC+2*qd}, v{C4+i}, v{T1}", f"{op} v{AC+2*qd+1}, v{C4+i}, v{T1+1}"]
    L.append("s_nop 1")
    for ror in (8, 4, 2):
        L += [f"v_add_f32_dpp v{AC+e}, v{AC+e}, v{AC+e} row_ror:{ror} row_mask:0xf bank_mask:0xf" for e in range(8)]
    L += [f"v_lshrrev_b32 v22, 4, v0", f"v_lshlrev_b32 v22, 6, v22", f"v_lshl_add_u32 v22, v23, 5, v22", f"v_add_u32 v22, {SCR}, v22",
          I(f"ds_write_b128 v22, v[{AC}:{AC+3}]", "j1w"), I(f"ds_write_b128 v22, v[{AC+4}:{AC+7}] offset:16", "j1w"),
          f"v_and_b32 v22, 15, v2", f"v_lshrrev_b32 v23, 4, v2", f"v_lshlrev_b32 v23, 8, v23", f"v_lshl_add_u32 v23, v22, 2, v23", f"v_add_u32 v23, {SCR}, v23",
          f"v_lshlrev_b32 v22, 2, v22", WL("j1w")]
    g = G.stream(max(g + 16, E2("KA_J1", 42)), L, cap=E("KA_J1C", 12))
    assert g > 120
    gb = min(b for b in bars if b > g)
    assert gb < GW6 - 80, (g, gb)
    L = [I(f"ds_read_b32 v{T1+i}, v23 offset:{64*i}", "j1r") for i in range(4)]
    L += [f"s_lshl_b32 s{sB}, s{sA}, 1", [f"s_cmp_eq_u32 s{sW}, 0", f"s_cselect_b32 s{sB}, s{sB}, 0x80000000"], WL("j1r"),
          f"v_add_f32 v{T1}, v{T1}, v{T1+1}", f"v_add_f32 v{T1+2}, v{T1+2}, v{T1+3}", f"v_add_f32 v{T1}, v{T1}, v{T1+2}"]
    for sw in ("v_permlane16_swap_b32", "v_permlane32_swap_b32"):
        L += [f"v_mov_b32 v{T1+1}, v{T1}", "s_nop 1", f"{sw} v{T1}, v{T1+1}", "s_nop 0", f"v_add_f32 v{T1}, v{T1}, v{T1+1}"]
    L += [f"v_cvt_pk_bf16_f32 v{T1}, v{T1}, v{T1}", f"v_lshlrev_b32 v{T1}, 16, v{T1}",
          f"v_add_f32 v{T1}, s{sXC}, v{T1}", f"v_cvt_pk_bf16_f32 v{T1}, v{T1}, v{T1}", f"v_lshlrev_b32 v{T1}, 16, v{T1}", f"v_mul_f32 v{T1}, s{sJ}, v{T1}",
          I(f"buffer_store_dword v{T1}, v22, {WSR}, s{sB} offen sc1", "j1s"),
          [f"s_cmp_lt_u32 s{sB}, 4096", f"s_cselect_b32 s{sC_}, 0, 0x1000"]]
    g = G.stream(gb + 1, L)
    gsig = G.stream(g + E2("KA_SIGD", 24), [WV("j1s"), I(f"buffer_atomic_add v29, v27, s[{S_D}:{S_D+3}], s{sC_} offen sc1", "j1a")])
    print("J1 store", g, "signal", gsig)
    XR, F, CA, SA, T = J + 32, J + 40, J, J + 16, 4
    L = [f"v_and_b32 v{T+4}, 7, v2", f"v_lshrrev_b32 v{T+5}, 3, v2", f"v_lshlrev_b32 v{T+6}, 10, v{T+4}", f"v_lshl_add_u32 v{T+6}, v{T+5}, 4, v{T+6}",
         f"s_lshl_b32 s{sD}, s2, 5", f"s_add_u32 s{sD}, s{sD}, s{sW}", f"s_lshl_b32 s{sD}, s{sD}, 8",
         I(f"buffer_load_dwordx4 v[{XR}:{XR+3}], v{T+6}, s[{S_X}:{S_X+3}], s{sD} offen", "j3"),
         I(f"buffer_load_dwordx4 v[{XR+4}:{XR+7}], v{T+6}, s[{S_X}:{S_X+3}], s{sD} offen offset:128", "j3")]
    gx = G.stream(E2("KA_GX", 104), L)
    def red(r, t):
        return ["s_nop 1", f"v_add_f32_dpp v{r}, v{r}, v{r} row_ror:8 row_mask:0xf bank_mask:0xf", f"v_mov_b32 v{t}, v{r}", "s_nop 1",
                f"v_permlane16_swap_b32 v{r}, v{t}", "s_nop 0", f"v_add_f32 v{r}, v{r}, v{t}", f"v_mov_b32 v{t}, v{r}", "s_nop 1",
                f"v_permlane32_swap_b32 v{r}, v{t}", "s_nop 0", f"v_add_f32 v{r}, v{r}, v{t}"]
    L = [WV("j3")]
    for i in range(8): L += [f"v_lshlrev_b32 v{F+2*i}, 16, v{XR+i}", f"v_and_b32 v{F+2*i+1}, 0xffff0000, v{XR+i}"]
    L.append(f"v_add_f32 v{T}, v{F}, v{F+1}")
    L += [f"v_add_f32 v{T}, v{T}, v{F+e}" for e in range(2, 16)]
    L += red(T, T + 2) + [f"v_mul_f32 v{T}, 0x3c000000, v{T}"]
    L += [f"v_sub_f32 v{CA+e}, v{F+e}, v{T}" for e in range(16)]
    L.append(f"v_mul_f32 v{T+1}, v{CA}, v{CA}")
    L += [f"v_fmac_f32 v{T+1}, v{CA+e}, v{CA+e}" for e in range(1, 16)]
    L += red(T + 1, T + 2)
    L += [f"v_lshlrev_b32 v{T+7}, 5, v{T+4}", f"v_add_u32 v{T+7}, 0x20000, v{T+7}", f"s_lshl_b32 s{sA}, s{sW}, 3", f"v_add_u32 v{T+2}, s{sA}, v{T+7}",
          I(f"ds_write_b64 v{T+2}, v[{T}:{T+1}]", "lw"), f"v_mov_b32 v{T+3}, 0", f"v_lshlrev_b32 v{T+6}, 5, v{T+5}", "s_nop 1", "s_nop 1", "s_nop 1", WL("lw")]
    g = G.stream(max(g + 1, E2("KA_J3", 168)), L)
    gb = min(b for b in bars if b > g)
    print("LN stats end", g, "bar", gb)
    gp = freegaps(max(g + 1, E2("KA_POLL", 226)), 1, 1)[0]
    G.put(gp, I(f"buffer_load_dword v24, v{T+3}, s[{S_D}:{S_D+3}], 0 offen sc1", "pl"), "mem")
    L = [[WV("pl"), f"v_readfirstlane_b32 s{sB}, v24"],
         [f"s_cmp_lt_u32 s{sB}, 64", "s_cbranch_scc1 KA_SPIN", "KA_SPIN_RET:"], f"s_lshl_b32 s{sB}, s{sW}, 9"]
    for dst, off in ((SA, 0), (CA, 2048)):
        for m in range(2):
            for hh in range(2):
                L.append(I(f"buffer_load_dwordx4 v[{dst+8*m+4*hh}:{dst+8*m+4*hh+3}], v{T+6}, {WSR}, s{sB} offen offset:{off+256*m+16*hh} sc1", "md"))
    gmd = G.stream(gp + E2('KA_PD', 24), L)
    R_ = XR
    L = [I(f"ds_read_b128 v[{R_}:{R_+3}], v{T+7}", "lr"), I(f"ds_read_b128 v[{R_+4}:{R_+7}], v{T+7} offset:16", "lr"), f"s_mov_b32 s{sA}, 0x43000000", "s_nop 1", "s_nop 1", "s_nop 1", WL("lr")]
    L += sl(f"""
    v_add_f32 v{T}, v{R_}, v{R_+2}
    v_add_f32 v{T+1}, v{R_+4}, v{R_+6}
    v_add_f32 v{T}, v{T}, v{T+1}
    v_mul_f32 v{T}, 0x3e800000, v{T}
    v_sub_f32 v{R_}, v{R_}, v{T}
    v_sub_f32 v{R_+2}, v{R_+2}, v{T}
    v_sub_f32 v{R_+4}, v{R_+4}, v{T}
    v_sub_f32 v{R_+6}, v{R_+6}, v{T}
    v_mul_f32 v{R_}, v{R_}, v{R_}
    v_fmac_f32 v{R_}, v{R_+2}, v{R_+2}
    v_fmac_f32 v{R_}, v{R_+4}, v{R_+4}
    v_fmac_f32 v{R_}, v{R_+6}, v{R_+6}
    v_add_f32 v{R_+1}, v{R_+1}, v{R_+3}
    v_add_f32 v{R_+5}, v{R_+5}, v{R_+7}
    v_add_f32 v{R_+1}, v{R_+1}, v{R_+5}
    v_fma_f32 v{R_}, v{R_}, s{sA}, v{R_+1}
    v_mov_b32 v{T+1}, 0x3727c5ac
    v_fmac_f32 v{T+1}, 0x3b000000, v{R_}
    v_rsq_f32 v{T+1}, v{T+1}
    s_nop 0
    v_mul_f32 v{T+1}, 0x{QSCALE:x}, v{T+1}
    """)
    L += [f"v_sub_f32 v{F+e}, v{F+e}, v{T}" for e in range(16)]
    L += [f"v_mul_f32 v{F+e}, v{F+e}, v{T+1}" for e in range(16)]
    L += [f"v_and_b32 v{T+2}, 3, v{T+5}", f"v_lshlrev_b32 v{T+2}, 8, v{T+2}", f"v_lshl_add_u32 v{T+2}, v{T+4}, 4, v{T+2}",
          f"v_lshrrev_b32 v23, 5, v2", f"v_lshl_add_u32 v{T+2}, v23, 11, v{T+2}",
          f"s_lshr_b32 s{sA}, s2, 2", f"s_lshl_b32 s{sA}, s{sA}, 15", f"s_and_b32 s{sD}, s2, 1", f"s_lshl_b32 s{sD}, s{sD}, 7", f"s_add_u32 s{sA}, s{sA}, s{sD}",
          f"s_bfe_u32 s{sD}, s2, 0x10001", f"s_lshl_b32 s{sD}, s{sD}, 10", f"s_add_u32 s{sA}, s{sA}, s{sD}",
          f"s_lshl_b32 s{sD}, s{sW}, 13", f"s_add_u32 s{sA}, s{sA}, s{sD}", f"s_add_u32 s{sA}, s{sA}, {WS_H1}", f"s_add_u32 s{sD}, s{sA}, 4096"]
    g = G.stream(gb + 1, L)
    g = max(g, gmd + E2('KA_MDD', 20))
    L = [WV("md")]
    L += [f"v_fma_f32 v{F+e}, v{F+e}, v{CA+e}, v{SA+e}" for e in range(16)]
    L += [f"v_cvt_pk_bf16_f32 v{XR+i}, v{F+2*i}, v{F+2*i+1}" for i in range(8)]
    L += [I(f"buffer_store_dwordx4 v[{XR}:{XR+3}], v{T+2}, {WSR}, s{sA} offen sc1", "hs"), I(f"buffer_store_dwordx4 v[{XR+4}:{XR+7}], v{T+2}, {WSR}, s{sD} offen sc1", "hs")]
    g = G.stream(g + 1, L)
    ghs = g
    gb = min(b for b in bars if b > g + E2("KA_HD", 20))
    G.put(gb - 1, WV("hs"), "end")
    G.stream(g + 1, [f"v_mov_b32 v25, {MAGIC}", f"v_min_u32 v27, 1, v2", f"v_lshlrev_b32 v27, 30, v27", f"s_add_u32 s{sA}, s{sF}, {FL_H}"])
    G.put(gb + 9, I(f"buffer_store_dword v25, v27, {WSR}, s{sA} offen sc1", "fl"), "mem")
    print("h stored", g, "flag", gb + 1)
    gh = gb + 9
    L = [[f"s_mov_b32 s{S_WQ}, s8", f"s_mov_b32 s{S_WQ+1}, s9"],
         I(f"buffer_load_dword v26, v28, s[{S_WQ}:{S_WQ+3}], s{sE} offen", "pf"),
         f"v_lshrrev_b32 v22, 4, v2", f"v_and_b32 v23, 15, v2", f"v_lshlrev_b32 v24, 1, v22", f"v_xor_b32 v23, v23, v24", f"s_lshl_b32 s{sB}, s{sP_}, 3", f"v_xor_b32 v23, s{sB}, v23", f"v_lshlrev_b32 v23, 4, v23",
         f"v_lshl_add_u32 v23, v22, 13, v23", f"s_lshl_b32 s{sB}, s{sW}, 15", f"v_add_u32 v{VOQ}, s{sB}, v23",
         f"s_sub_u32 s{sB}, 15, s{sMT}", [f"s_cmp_eq_u32 s{sP_}, 0", f"s_cselect_b32 s{sB}, s{sB}, s{sMT}"],
         f"s_lshl_b32 s{sC_}, s{sB}, 11", f"s_add_u32 s{sC_}, s{sC_}, {WS_FLAG+FL_H}",
         f"s_lshl_b32 s{sB}, s{sB}, 17", f"s_add_u32 s{sB}, s{sB}, {WS_H1}", f"v_add_u32 v{VH+1}, s{sB}, v1", f"s_lshl_b32 s{sB}, s{sR}, 15",
         f"v_add_u32 v{VH}, s{sB}, v{VH+1}", f"v_subrev_u32 v{VH+1}, s{sB}, v{VH+1}", f"v_add_u32 v{VH+1}, {3*32768}, v{VH+1}",
         f"v_and_b32 v15, 15, v2", f"v_lshlrev_b32 v15, 7, v15", f"s_lshl_b32 s{sM0T}, s{sW}, 10"]
    g = G.stream(max(gW + 1, ghs + 1, E2("KA_PFG", 300)), L)
    L = [f"v_bfe_u32 v22, v2, 2, 2", f"v_lshrrev_b32 v24, 4, v2", f"v_lshl_add_u32 v23, v24, 3, v22", f"v_lshlrev_b32 v23, 8, v23",
         f"v_and_b32 v24, 1, v24", f"v_lshl_add_u32 v22, v24, 2, v22", f"v_lshl_add_u32 v23, v22, 5, v23",
         f"v_and_b32 v24, 3, v2", f"v_lshl_add_u32 v23, v24, 3, v23", f"v_add_u32 v{VQR}, 0x20000, v23"]
    L += [f"v_xor_b32 v{VQR+n}, {32*n}, v{VQR}" for n in range(1, 8)]
    g = G.stream(max(g, ghs) + 2, L)
    print("q setup end", g)
    gq = max(g + 4, gh + 4, E2("KA_GQ", 366))
    qfree = lambda ks: BG(4) if ks < 8 else BG(10) if ks < 12 else BG(11) if ks < 16 else BG(12) if ks < 20 else BG(13) if ks < 24 else BG(14) if ks < 28 else BG(15)
    QS = E2("KA_QS", 4)
    for ks in range(32):
        gq = put_dma2(max(gq, qfree(ks) + 4), ([f"s_add_u32 m0, s{sM0T}, {131072-32768*(ks//8)+(ks%8)*4096}", f"s_mov_b32 s{sT0}, {ks*16*8192}"],
                     [I(f"buffer_load_dwordx4 v{VOQ}, s[{S_WQ}:{S_WQ+3}], s{sT0} offen lds", f"Q{ks//8}")]), 4 if ks % 2 == 0 else QS)
    print("W_q dma end", gq)
    gp = freegaps(E2("KA_HP", 420), 1, 1)[0]
    G.put(gp, I(f"buffer_load_dword v22, v15, {WSR}, s{sC_} offen sc1", "hp"), "mem")
    g = G.stream(gp + 48, [[WV("hp"), f"v_cmp_ne_u32 vcc, v25, v22"], ["s_cbranch_vccnz KA_HSPIN", "KA_HSPIN_RET:"]])
    g += 2
    for ks in range(16):
        for t in range(4):
            g = freegaps(max(g, 768 + 16 * ks + 16), 1, 1)[0]
            if ks % 2 == 0 and t == 0: G.put(g - 1, f"s_mov_b32 s{sB}, {(ks//2)*4096}", "end")
            G.put(g, I(f"buffer_load_dwordx4 {ar((ks*4+t)*4,4)}, v{VH+t//2}, {WSR}, s{sB} offen offset:{(ks%2)*2048+(t%2)*1024} sc1", f"h{ks}"), "mem")
            if STRICT: G.used[g] = 8
            assert g < QG(ks) - 12, (ks, g)
            g += E("KA_HS", 3) if g < 1024 else (E("KA_HS2", 4) if t % 2 else E("KA_HS3", 8))
    print("h loads end", g)
    ghl = g
    L = sl(f"""
    v_lshrrev_b32 v24, 4, v2
    v_mul_lo_u32 v29, v24, s11
    v_and_b32 v23, 15, v2
    v_lshlrev_b32 v16, 1, v24
    v_xor_b32 v23, v23, v16
    v_lshl_add_u32 v29, v23, 4, v29
    v_xor_b32 v17, 0x80, v29
    s_lshl_b32 s11, s11, 2
    v_bfe_u32 v23, v2, 2, 2
    v_lshl_add_u32 v23, v24, 2, v23
    v_and_b32 v16, 7, v23
    v_lshlrev_b32 v23, 8, v23
    v_lshl_add_u32 v23, v16, 5, v23
    v_and_b32 v24, 3, v2
    v_lshl_add_u32 v23, v24, 3, v23
    v_add_u32 v23, s35, v23
    v_lshrrev_b32 v24, 5, v2
    """) + [[f"s_cmp_lt_u32 s2, 128", f"s_cselect_b32 s{sA}, 2048, 0"], f"v_mul_u32_u24 v24, s{sA}, v24", f"v_add_u32 v26, v23, v24",
            f"s_sub_u32 s{sA}, 4096, s{sA}", f"v_add_u32 v3, s{sA}, v26"]
    g = G.stream(940, L)
    gj = max(QG(8) - 8, ghl)
    for i in range(8):
        gj = put_dma2(gj, ([f"s_add_u32 m0, s35, {i*1024}", "s_add_u32 s10, s10, s11" if i else "s_nop 0"], [I(f"buffer_load_dwordx4 v{29 if i % 2 == 0 else 17}, s[4:7], s10 offen nt lds", "j2")]), 4)
    L = [WV("j2")]
    gray = [0, 1, 3, 2, 6, 7, 5, 4]
    for k_, f in enumerate(gray):
        if k_: L.append([f"v_xor_b32 v26, {32*(f^gray[k_-1])}, v26", f"v_xor_b32 v3, {32*(f^gray[k_-1])}, v3"])
        for e in range(2):
            L.append(I(f"ds_read_b64_tr_b16 v[{160+4*f+2*e}:{161+4*f+2*e}], v{26 if e == 0 else 3}", "j2r"))
    g = G.stream(E2("KA_J2R", 746), L)
    assert g < GFB - 4, g
    G.put(GFB - 1, WL("j2r"), "end")
    print("J2 dma", gj, "reads end", g)
    gb = min(b for b in bars if b > gl + E2("KA_KD", 30))
    G.put(gb - 2, WV("stl"), "end")
    G.put(gb - 2, f"s_add_u32 s{sA}, s{sF}, {FL_KV}", "end")
    G.put(gb + 6, I(f"buffer_store_dword v25, v27, {WSR}, s{sA} offen sc1", "fl"), "mem")
    print("kv flag", gb + 1)
    K = k2
    L = sl(f"""
    s_and_b32 s{sC_}, s2, 31
    s_lshl_b32 s{sC_}, s{sC_}, 7
    s_add_u32 s{sC_}, s{sC_}, {WS_FLAG+FL_KV}
    v_and_b32 v15, 0x380, v15
    v_lshlrev_b32 v15, 5, v15
    v_mov_b32 v28, v2
    s_lshl_b32 s{sD}, s{sHD}, 19
    s_add_u32 s{sE}, s{sD}, {WS_KF}
    """) + [[f"s_add_u32 s{K.S_K}, s{S_WS}, s{sE}", f"s_addc_u32 s{K.S_K+1}, s{S_WS+1}, 0"], f"s_add_u32 s{sE}, s{sD}, {WS_VF}",
            [f"s_add_u32 s{K.S_V}, s{S_WS}, s{sE}", f"s_addc_u32 s{K.S_V+1}, s{S_WS+1}, 0"]] + sl(f"""
    s_mov_b32 s{K.S_V+2}, 0x80000
    s_lshl_b32 s{sD}, s{K.sPR}, 1
    s_sub_u32 s{K.sN}, 32, s{sD}
    s_lshl_b32 s{K.sKEND}, s{K.sN}, 14
    s_mov_b32 s{K.S_K+2}, s{K.sKEND}
    s_add_u32 s{K.sN2B}, s{sD}, 2
    s_lshl_b32 s{K.sN2B}, s{K.sN2B}, 14
    s_mov_b32 s{K.sKOFF}, 0
    s_lshl_b32 s{K.sKDST}, s{sW}, 12
    s_mov_b32 s{K.sBLK}, 0
    s_sub_u32 s{K.sQB}, 15, s{K.sPR}
    v_add_u32 v{K.V_DMA}, s{K.sKDST}, v1
    s_lshl_b32 s{sD}, s{sP_}, 13
    v_add_u32 v{K.V_KADDR}, s{sD}, v1
    v_mov_b32 v{K.V_NINF}, 0xff800000
    s_lshl_b32 s{sE}, s{sR}, 14
    v_add_u32 v{K.V_QA}, s{sE}, v1
    v_xor_b32 v{K.V_QA+1}, 0x2000, v{K.V_QA}
    v_and_b32 v23, 31, v28
    v_lshrrev_b32 v24, 5, v28
    v_lshlrev_b32 v24, 2, v24
    v_sub_u32 v23, v23, v24
    """)
    L += [f"v_bfe_u32 v24, v28, 4, 1", f"v_lshlrev_b32 v{K.V_CST}, 10, v24", f"v_lshrrev_b32 v24, 5, v28", f"v_lshl_add_u32 v{K.V_CST}, v24, 8, v{K.V_CST}",
          f"v_and_b32 v24, 15, v28", f"v_lshl_add_u32 v{K.V_CST}, v24, 4, v{K.V_CST}"]
    for z, q in ((0, 0), (0, 1), (1, 1)):
        L += [f"s_mov_b32 s{sD}, s{sR}" if q == 0 else f"s_sub_u32 s{sD}, {3-2*z}, s{sR}", f"s_sub_u32 s{sD}, s{sD}, s{sP_}",
              f"s_lshl_b32 s{sD}, s{sD}, 5", f"v_add_u32 v{K.V_LIM+2*z+q}, s{sD}, v23"]
    import re
    def remap(x):
        if isinstance(x, list): return [remap(y) for y in x]
        return re.sub(r"\bv(4|5|6|7|8|9|10|11)\b", lambda m_: f"v{128+int(m_.group(1))}", x)
    L = [remap(x) for x in L]
    L += [f"v_lshrrev_b32 v24, 4, v28", f"v_lshlrev_b32 v128, 9, v24", f"v_and_b32 v24, 15, v28", f"v_lshl_add_u32 v128, v24, 4, v128"]
    g = G.stream(gl + 4, L)
    print("attn setup end", g)
    gp = freegaps(max(E2("KA_KP", 736), g + 1, ghl), 1, 1)[0]
    G.put(gp, I(f"buffer_load_dword v22, v15, {WSR}, s{sC_} offen sc1", "kp"), "mem")
    g = G.stream(gp + 44, [[WV("kp"), f"v_cmp_ne_u32 vcc, v25, v22"], ["s_cbranch_vccnz KA_KSPIN", "KA_KSPIN_RET:"]])
    G.stream(GFB + 1, [f"v_mov_b32 v{i}, v{128+i}" for i in range(4, 12)])
    items = P + G.items()
    print("front gaps over cap:", [(g, u) for g, u in enumerate(G.used) if u > 8][:12])
    if STAMPS:
        pos = [i for i, it in enumerate(items) if it.s.startswith("v_mfma")]
        stg = [int(x) for x in os.environ.get("STG", "256,1024").split(",")]
        for k in range(len(stg) - 1, -1, -1):
            b = ST.base + 2 * (ST.n + k)
            items.insert(pos[stg[k]], I(f"s_memtime s[{b}:{b+1}]"))
        ST.n += len(stg)
    if DBGT:
        pos = [i for i, it in enumerate(items) if it.s.startswith("v_mfma")]
        items.insert(pos[1024], I("s_memrealtime s[76:77]")); items.insert(pos[256], I("s_memrealtime s[74:75]")); items.insert(pos[0], I("s_memrealtime s[72:73]"))
    resolve(items, A, vm0=["pf"])
    if os.environ.get("STG"):
        import asmlib
        class Dummy:
            base = 100; n = 0
            def stamp(self): pass
            def flush(self, *a, **k): return ST.flush(*a, **k)
        class D2(Dummy):
            @property
            def n(self): return 0
            @n.setter
            def n(self, v): pass
        ST.stamp()
        k2.gen_attn(A, D2(), qa, tailfn=tailfn, q16=True)
    else:
        k2.gen_attn(A, ST, qa, tailfn=tailfn, q16=True)
    A(f"""
    KA_SPIN:
    s_mov_b32 s{sC_}, 100000
    KA_SPIN_L:
    s_sleep 24
    buffer_load_dword v24, v{T+3}, s[{S_D}:{S_D+3}], 0 offen sc1
    s_waitcnt vmcnt(0)
    v_readfirstlane_b32 s{sB}, v24
    s_cmp_ge_u32 s{sB}, 64
    s_cbranch_scc1 KA_SPIN_RET
    s_sub_u32 s{sC_}, s{sC_}, 1
    s_cmp_lg_u32 s{sC_}, 0
    s_cbranch_scc1 KA_SPIN_L
    s_branch KA_SPIN_RET
    """)
    for tag in ("KA_HSPIN", "KA_KSPIN"):
        A(f"""
        {tag}:
        s_mov_b32 s{sD}, 200000
        {tag}_L:
        s_sleep 4
        buffer_load_dword v22, v15, {WSR}, s{sC_} offen sc1
        s_waitcnt vmcnt(0)
        v_cmp_ne_u32 vcc, v25, v22
        s_cbranch_vccz {tag}_RET
        s_sub_u32 s{sD}, s{sD}, 1
        s_cmp_lg_u32 s{sD}, 0
        s_cbranch_scc1 {tag}_L
        s_branch {tag}_RET
        """)
    return name, A.text(), kernel_desc(name, 256, 256), "grid=(256,1,1) block=(256,1,1) lds=163840"
```

```python
from asmlib import *
from sched import I, WV, WL, WVL, Item, resolve, Gaps

QSCALE = 0x3e0293ee
import struct, math, os
QSCALE = struct.unpack("<I", struct.pack("<f", math.log2(math.e) / math.sqrt(128.0)))[0]
THR = struct.unpack("<I", struct.pack("<f", 2.0 ** 40))[0]
NEGBIG = struct.unpack("<I", struct.pack("<f", -1e30))[0]

AO, AQ, AK, AV = 0, 128, 192, 224
V_LANE16 = 1
V_KADDR = 2
V_VADDR = 3
V_DMA = 4
V_NINF = 5
V_LIM = 6
V_QA = 10
V_T0 = 12
VS = 16
VP = 80
VN = 112
VL = 144
VE = 148
VX = 156
V_J2 = 250
V_CST = 8
def S(par, q, e=None):
    b = VS + 32 * par + 16 * q
    return vr(b, 16) if e is None else f"v{b+e}"
def P(par, q, ks=None, i=None):
    b = VP + 16 * par + 8 * q
    if i is not None: return f"v{b+i}"
    return vr(b + 4 * ks, 4)
def L(par, q): return f"v{VL+2*par+q}"
def OB(q, dt): return AO + 64 * (dt >> 1) + 32 * q + 16 * (dt & 1)
def O(q, dt): return ar(OB(q, dt), 16)

S_K, S_V, S_WS, S_WQ = 12, 16, 20, 24
sW, sR, sP_, sHD, sPR = 30, 31, 32, 33, 34
sKOFF, sKEND, sN2B, sKDST, sVOFF = 36, 37, 38, 39, 40
sCNT, sTHR, sBLK, sQB, sN = 41, 42, 43, 44, 45
sT0, sT1, sT2 = 46, 47, 48
MASKP = [52, 54, 56, 58]

def kdma():
    pre = [f"s_and_b32 m0, s{sKDST}, 0xffff"]
    d = [f"buffer_load_dwordx4 v{V_DMA}, s[{S_K}:{S_K+3}], s{sKOFF} offen offset:{i*1024} lds" for i in range(4)]
    post = [f"s_add_u32 s{sKDST}, s{sKDST}, 16384",
            f"s_add_u32 s{sKOFF}, s{sKOFF}, 16384",
            f"s_cmp_eq_u32 s{sKOFF}, s{sKEND}",
            f"s_cselect_b32 s{sKOFF}, 0, s{sKOFF}",
            f"s_cselect_b32 s{S_K+2}, s{sN2B}, s{S_K+2}"]
    return pre, d, post
def vdma():
    pre = [f"s_and_b32 s{sT2}, s{sVOFF}, 0xffff", f"s_or_b32 m0, s{sT2}, 0x10000"]
    d = [f"buffer_load_dwordx4 v{V_LANE16}, s[{S_V}:{S_V+3}], s{sVOFF} offen offset:{i*1024} lds" for i in range(4)]
    post = [f"s_add_u32 s{sVOFF}, s{sVOFF}, 16384"]
    return pre, d, post

def kread(kk, odd):
    return f"ds_read_b128 {ar(AK+4*kk,4)}, v{V_KADDR} offset:{odd*16384+kk*1024}"
def vread(f, odd):
    return f"ds_read_b128 {ar(AV+4*f,4)}, v{V_VADDR} offset:{odd*16384+f*1024}"

def qk_mfmas(dst_par, czero=False):
    out = []
    for kk in range(8):
        for q in range(2):
            c = S(dst_par, q) if kk else ("0" if czero else vr(VN + 16 * q, 16))
            out.append(mfma(S(dst_par, q), ar(AK + 4 * kk, 4), ar(AQ + 32 * q + 4 * kk, 4), c))
    return out
def pv_mfmas(src_par, last=False):
    out = []
    if last:
        for f in (2, 3, 6, 7, 0, 1, 4, 5):
            ks, dt = f // 4, f % 4
            out.append(mfma(O(1, dt), ar(AV + 4 * f, 4), P(src_par, 1, ks), O(1, dt)))
    else:
        for f in range(8):
            ks, dt = f // 4, f % 4
            for q in range(2):
                out.append(mfma(O(q, dt), ar(AV + 4 * f, 4), P(src_par, q, ks), O(q, dt)))
    return out

def rho(e):
    return 8 * (e >> 2) + (e & 3)

def mask_stream(par, z):
    out = []
    els = [(q, e) for q in range(2) for e in range(16)]
    def cmp(i):
        q, e = els[i]
        mp = MASKP[i % 4]
        return f"v_cmp_le_i32 s[{mp}:{mp+1}], {rho(e)}, v{V_LIM+2*z+q}"
    def cnd(i):
        q, e = els[i]
        mp = MASKP[i % 4]
        return f"v_cndmask_b32 {S(par,q,e)}, v{V_NINF}, {S(par,q,e)}, s[{mp}:{mp+1}]"
    out += [cmp(0), cmp(1), cmp(2)]
    for i in range(32):
        out.append(cnd(i))
        if i + 3 < 32: out.append(cmp(i + 3))
    return out

def sm_stream(par, z=None, qs=(0, 1)):
    out = []
    els = [(q, e) for q in qs for e in range(16)]
    NE = len(els)
    def cmp(i):
        q, e = els[i]
        mp = MASKP[i % 4]
        return f"v_cmp_le_i32 s[{mp}:{mp+1}], {rho(e)}, v{V_LIM+2*z+q}"
    def cnd(i):
        q, e = els[i]
        mp = MASKP[i % 4]
        return f"v_cndmask_b32 {S(par,q,e)}, v{V_NINF}, {S(par,q,e)}, s[{mp}:{mp+1}]"
    def ex(i):
        q, e = els[i]
        return f"v_exp_f32 v{VE+i%8}, {S(par,q,e)}"
    def add(i):
        q, e = els[i]
        src = L(1 - par, q) if e == 0 else L(par, q)
        return f"v_add_f32 {L(par,q)}, {src}, v{VE+i%8}"
    def cvt(i):
        q, e = els[i]
        return f"v_cvt_pk_bf16_f32 {P(par,q,i=e//2)}, v{VE+(i-1)%8}, v{VE+i%8}"
    if z is not None:
        out += [cmp(0), cmp(1), cmp(2), cnd(0)]
    for i in range(NE):
        if z is not None:
            if i + 3 < NE: out.append(cmp(i + 3))
            if i + 1 < NE: out.append(cnd(i + 1))
        out.append(ex(i))
        if i >= 1:
            out.append(add(i - 1))
            if (i - 1) % 2 == 1:
                out.append(cvt(i - 1))
    out.append("s_nop 0")
    out.append(add(NE - 1))
    out.append(cvt(NE - 1))
    return out

def check_stream(par, label, half=False):
    return [f"v_add_f32 v{V_T0}, {L(par,0) if not half else 0}, {L(par,1)}",
            f"v_cmp_nle_f32 vcc, v{V_T0}, v{V_T0+1}",
            f"s_cbranch_vccnz {label}",
            f"{label}_ret:"]

def pack(ngaps, fixed, stream, last_gap, cap=24):
    gaps = [list(fixed.get(g, [])) for g in range(ngaps)]
    used = [sum(cost(i) for i in g) for g in gaps]
    total = sum(cost(i) for i in stream)
    while True:
        u = list(used); placed = [[] for _ in range(ngaps)]
        g = 0; ok = True
        for ins in stream:
            c = cost(ins)
            while g <= last_gap and u[g] + c > cap:
                g += 1
            if g > last_gap:
                ok = False; break
            placed[g].append(ins); u[g] += c
        if ok: break
        cap += 4
    res = []
    for g in range(ngaps):
        mem = [i for i in gaps[g] if is_mem(i) or i.startswith("s_barrier")]
        oth = [i for i in gaps[g] if not (is_mem(i) or i.startswith("s_barrier"))]
        res.append(mem + placed[g] + oth)
    return res, cap

def add_fixed(fx, g, ins):
    fx.setdefault(g, [])
    if isinstance(ins, list): fx[g] += ins
    else: fx[g].append(ins)

def place_dma(fx, grp, gaps4):
    pre, d, post = grp
    add_fixed(fx, gaps4[0] - 1, pre)
    for g, i in zip(gaps4, d):
        add_fixed(fx, g, i)
    g = gaps4[3]
    if len(post) == 5:
        add_fixed(fx, g, post[:2]); add_fixed(fx, g + 1, post[2:])
    else:
        add_fixed(fx, g, post)

rare_sites = []

def gen_rare(A, label, par, has_next):
    A.label(label)
    A("s_nop 15"); A("s_nop 7")
    T, T2 = 252, 253
    qs = (0, 1) if has_next else (1,)
    for q in qs:
        A(f"v_max3_f32 v{T}, {S(par,q,0)}, {S(par,q,1)}, {S(par,q,2)}")
        for e in range(3, 15, 2):
            A(f"v_max3_f32 v{T}, v{T}, {S(par,q,e)}, {S(par,q,e+1)}")
        A(f"v_max3_f32 v{T}, v{T}, {S(par,q,15)}, 0")
        A(f"v_mov_b32 v{T2}, v{T}")
        A("s_nop 1")
        A(f"v_permlane32_swap_b32 v{T}, v{T2}")
        A("s_nop 1")
        A(f"v_max_f32 v{T}, v{T}, v{T2}")
        A(f"v_exp_f32 v{T2}, -v{T}")
        for e in range(16):
            A(f"v_sub_f32 v{VN+16*q+e}, v{VN+16*q+e}, v{T}")
            A(f"v_sub_f32 {S(par,q,e)}, {S(par,q,e)}, v{T}")
            if has_next:
                A(f"v_sub_f32 {S(1-par,q,e)}, {S(1-par,q,e)}, v{T}")
        A(f"v_mul_f32 {L(1-par,q)}, {L(1-par,q)}, v{T2}")
        for i in [OB(q, dt) + k for dt in range(4) for k in range(0, 16, 4)]:
            for j in range(4):
                A(f"v_accvgpr_read_b32 v{VX+j}, a{i+j}")
            for j in range(4):
                A(f"v_mul_f32 v{VX+j}, v{VX+j}, v{T2}")
            for j in range(4):
                A(f"v_accvgpr_write_b32 a{i+j}, v{VX+j}")
    A.ext(sm_stream(par, qs=qs))
    A("s_nop 3")
    A(f"s_branch {label}_ret")

def gen_k2():
    rare_sites.clear()
    A = Asm()
    name = "k2attn_kernel"
    A.lines.append(kernel_header(name))
    A("""
    s_cmp_ge_u32 s2, 256
    s_cbranch_scc1 K2_END
    """)
    for _ in range(int(os.environ.get("K2_XPRE", "0"))): A("s_sleep 127")
    ST = Stamper(A, 1)
    ST.stamp()
    A(f"""
    s_load_dwordx2 s[4:5], s[0:1], {KA['wq']}
    s_load_dwordx2 s[8:9], s[0:1], {KA['ws']}
    s_load_dwordx2 s[52:53], s[0:1], {KA['wo']}
    s_load_dwordx2 s[54:55], s[0:1], {KA['w1']}
    s_load_dwordx2 s[56:57], s[0:1], {KA['w2']}
    v_lshrrev_b32 v12, 6, v0
    v_and_b32 v13, 63, v0
    v_readfirstlane_b32 s{sW}, v12
    v_lshlrev_b32 v{V_LANE16}, 4, v13
    s_and_b32 s{sT0}, s2, 7
    s_lshr_b32 s{sT1}, s2, 3
    s_and_b32 s{sHD}, s{sT1}, 3
    s_lshl_b32 s{sT0}, s{sT0}, 2
    s_add_u32 s{sHD}, s{sHD}, s{sT0}
    s_lshr_b32 s{sPR}, s{sT1}, 2
    s_and_b32 s{sR}, s{sW}, 1
    s_lshr_b32 s{sP_}, s{sW}, 1
    """)
    QA = 16
    WF = 144
    VOW = 176
    VWR = 184
    VH = 188
    def hreg(ks, q):
        return ar(8 * ks + 4 * q, 4)
    A(f"""
    v_lshrrev_b32 v14, 4, v13
    v_and_b32 v15, 15, v13
    v_lshlrev_b32 v12, 2, v14
    v_xor_b32 v15, v15, v12
    v_lshlrev_b32 v15, 4, v15
    v_lshl_add_u32 v15, v14, 13, v15
    s_lshl_b32 s{sT0}, s{sW}, 15
    v_add_u32 v{VOW}, s{sT0}, v15
    """)
    A(f"""
    s_sub_u32 s{sQB}, 15, s{sPR}
    s_cmp_eq_u32 s{sP_}, 0
    s_cselect_b32 s{sT0}, s{sQB}, s{sPR}
    s_lshl_b32 s{sT0}, s{sT0}, 2
    s_lshl_b32 s{sT1}, s{sR}, 1
    s_add_u32 s{sT0}, s{sT0}, s{sT1}
    s_lshl_b32 s{sT0}, s{sT0}, 15
    s_add_u32 s{sT0}, s{sT0}, {WS_H1}
    v_add_u32 v{VH}, s{sT0}, v{V_LANE16}
    v_add_u32 v{VH+1}, 32768, v{VH}
    s_waitcnt lgkmcnt(0)
    s_lshl_b32 s{sT0}, s{sHD}, 8
    s_add_u32 s{S_WQ}, s4, s{sT0}
    s_addc_u32 s{S_WQ+1}, s5, 0
    s_mov_b32 s{S_WQ+2}, {511*8192+256}
    s_mov_b32 s{S_WQ+3}, 0x00020000
    """)
    srd(A, S_WS, 8, 9, WS_END)
    A(f"s_lshl_b32 s60, s{sW}, 10")
    def qloads(ks):
        return [([f"s_mov_b32 s61, {ks*16*8192}", f"s_add_u32 m0, s60, {32768+ks*4096}"],
                 I(f"buffer_load_dwordx4 v{VOW}, s[{S_WQ}:{S_WQ+3}], s61 offen lds", f"q{ks}")),
                ([f"s_mov_b32 s62, {(ks//4)*4096}"] if ks % 4 == 0 else [],
                 I(f"buffer_load_dwordx4 {hreg(ks,0)}, v{VH}, s[{S_WS}:{S_WS+3}], s62 offen offset:{(ks%4)*1024}", f"q{ks}")),
                ([], I(f"buffer_load_dwordx4 {hreg(ks,1)}, v{VH+1}, s[{S_WS}:{S_WS+3}], s62 offen offset:{(ks%4)*1024}", f"q{ks}"))]
    NPRE = int(os.environ.get("K2_NPRE", "3"))
    vm0 = []
    for ks in range(NPRE):
        for pre, ld in qloads(ks):
            A.ext(pre)
            if pre: A("s_nop 0")
            A(ld.s); vm0.append(ld.tag)
    ST.stamp()
    A(f"""
    s_lshl_b32 s{sT0}, s{sHD}, 19
    s_add_u32 s{sT1}, s{sT0}, {WS_KF}
    s_add_u32 s{S_K}, s8, s{sT1}
    s_addc_u32 s{S_K+1}, s9, 0
    s_mov_b32 s{S_K+3}, 0x00020000
    s_add_u32 s{sT1}, s{sT0}, {WS_VF}
    s_add_u32 s{S_V}, s8, s{sT1}
    s_addc_u32 s{S_V+1}, s9, 0
    s_mov_b32 s{S_V+2}, 0x80000
    s_mov_b32 s{S_V+3}, 0x00020000
    s_lshl_b32 s{sT0}, s{sPR}, 1
    s_sub_u32 s{sN}, 32, s{sT0}
    s_lshl_b32 s{sKEND}, s{sN}, 14
    s_mov_b32 s{S_K+2}, s{sKEND}
    s_add_u32 s{sN2B}, s{sT0}, 2
    s_lshl_b32 s{sN2B}, s{sN2B}, 14
    s_mov_b32 s{sKOFF}, 0
    s_lshl_b32 s{sKDST}, s{sW}, 12
    s_mov_b32 s{sBLK}, 0
    v_add_u32 v{V_DMA}, s{sKDST}, v{V_LANE16}
    s_lshl_b32 s{sT0}, s{sP_}, 13
    v_add_u32 v{V_KADDR}, s{sT0}, v{V_LANE16}
    v_mov_b32 v{V_NINF}, 0xff800000
    s_lshl_b32 s{sT1}, s{sR}, 14
    s_add_u32 s{sT1}, s{sT1}, s{sT0}
    v_add_u32 v{V_QA}, s{sT1}, v{V_LANE16}
    v_xor_b32 v{V_QA+1}, 0x2000, v{V_QA}
    v_and_b32 v12, 31, v13
    v_lshrrev_b32 v14, 5, v13
    v_lshlrev_b32 v14, 2, v14
    v_sub_u32 v12, v12, v14
    """)
    A(f"""
    s_lshl_b32 s49, s2, 2
    s_add_u32 s49, s49, s{sW}
    s_mov_b32 s4, s52
    s_mov_b32 s5, s53
    s_mov_b32 s6, {4096*1024}
    s_mov_b32 s7, 0x00020000
    s_cmp_ge_u32 s49, 736
    s_cselect_b32 s4, s56, s4
    s_cselect_b32 s5, s57, s5
    s_cselect_b32 s6, {1792*1024}, s6
    s_cselect_b32 s50, 736, 0
    s_cselect_b32 s28, {WS_W2F - WS_WOF}, 0
    s_mov_b32 s29, {256*2048}
    s_cselect_b32 s29, {112*2048}, s29
    s_sub_u32 s50, s49, s50
    s_lshr_b32 s52, s50, 1
    s_and_b32 s53, s50, 1
    s_mov_b32 s11, 1024
    s_sub_u32 s50, s49, 512
    s_mul_i32 s56, s50, 9363
    s_lshr_b32 s56, s56, 16
    s_mul_i32 s57, s56, 7
    s_sub_u32 s57, s50, s57
    s_cmp_lt_u32 s50, 224
    s_cselect_b32 s52, s56, s52
    s_cselect_b32 s53, s57, s53
    s_cselect_b32 s11, 3584, s11
    s_cselect_b32 s29, {32*2048}, s29
    s_cselect_b32 s28, {WS_W1F - WS_WOF}, s28
    s_cselect_b32 s4, s54, s4
    s_cselect_b32 s5, s55, s5
    s_cselect_b32 s6, {512*3584}, s6
    s_mul_i32 s10, s52, s11
    s_lshl_b32 s10, s10, 4
    s_lshl_b32 s56, s53, 9
    s_add_u32 s10, s10, s56
    s_mul_i32 s56, s53, s29
    s_lshl_b32 s56, s56, 2
    s_add_u32 s28, s28, s56
    s_lshl_b32 s56, s52, 11
    s_add_u32 s28, s28, s56
    s_add_u32 s28, s28, {WS_WOF}
    s_cmp_ge_u32 s49, 960
    s_cselect_b32 s28, 0x80000000, s28
    v_lshrrev_b32 v15, 5, v13
    v_mul_lo_u32 v{V_J2}, v15, s11
    v_and_b32 v14, 31, v13
    v_lshl_add_u32 v{V_J2}, v14, 4, v{V_J2}
    s_lshl_b32 s11, s11, 1
    v_bfe_u32 v14, v13, 2, 2
    v_lshl_add_u32 v14, v15, 2, v14
    v_lshlrev_b32 v14, 9, v14
    v_bfe_u32 v15, v13, 4, 1
    v_lshl_add_u32 v14, v15, 5, v14
    v_and_b32 v15, 3, v13
    v_lshl_add_u32 v14, v15, 3, v14
    s_lshl_b32 s35, s{sW}, 13
    s_add_u32 s35, s35, 0x20000
    v_add_u32 v{V_J2+1}, s35, v14
    """)
    for z in range(2):
        for q in range(2):
            A(f"s_xor_b32 s{sT0}, s{sP_}, {q}")
            A(f"s_lshl_b32 s{sT1}, s{sR}, 1")
            A(f"s_add_u32 s{sT0}, s{sT0}, s{sT1}")
            A(f"s_sub_u32 s{sT0}, s{sT0}, s{sP_}")
            A(f"s_sub_u32 s{sT0}, s{sT0}, {2*z}")
            A(f"s_lshl_b32 s{sT0}, s{sT0}, 5")
            A(f"v_add_u32 v{V_LIM+2*z+q}, s{sT0}, v12")
    A(f"""
    v_bfe_u32 v12, v13, 2, 2
    v_lshrrev_b32 v14, 5, v13
    v_lshl_add_u32 v14, v14, 3, v12
    v_lshlrev_b32 v14, 8, v14
    v_bfe_u32 v15, v13, 4, 1
    v_lshl_add_u32 v14, v15, 5, v14
    v_and_b32 v15, 3, v13
    v_lshl_add_u32 v14, v15, 3, v14
    v_add_u32 v14, 0x8000, v14
    """)
    for nt in range(4):
        A(f"v_xor_b32 v15, {nt}, v12")
        A(f"v_lshl_add_u32 v{VWR+nt}, v15, 6, v14")
    for nt in range(4):
        A(f"v_add_u32 v{VWR+8+nt}, 0x10000, v{VWR+nt}")
    def wreads(ks):
        s = ks & 1
        L_ = []
        for nt in range(4):
            for e in range(2):
                b = WF + 16 * s + 4 * nt + 2 * e
                base = VWR + nt if ks < 16 else VWR + 8 + nt
                L_.append(I(f"ds_read_b64_tr_b16 v[{b}:{b+1}], v{base} offset:{(ks%16)*4096+e*1024}", f"w{ks}"))
        return L_
    mf = []
    for ks in range(32):
        for dt in range(4):
            for q in range(2):
                acc = vr(QA + 64 * q + 16 * dt, 16)
                mf.append(mfma(acc, vr(WF + 16 * (ks & 1) + 4 * dt, 4), hreg(ks, q), acc if ks else "0"))
    G = Gaps(mf)
    for ks in range(32):
        g0 = 8 * ks
        if ks % 2 == 0 or ks == 31:
            G.put(g0, "s_barrier", "mem")
        if ks + 1 < 32:
            rd = wreads(ks + 1)
            for i in range(4): G.put(g0 + i, rd[2 * i:2 * i + 2])
            if (ks + 1) % 2 == 0:
                G.put(g0 + 7, WVL([f"q{min(ks+3,31)}"], [f"w{ks+1}"]), "end")
            else:
                G.put(g0 + 7, WL(f"w{ks+1}"), "end")
    pend = []
    for ks in range(NPRE, 32): pend += qloads(ks)
    lastpost = []
    for t in range(2):
        pre, d, post = kdma()
        pend.append((lastpost + pre, I(d[0], "K")))
        pend += [([], I(x, "K")) for x in d[1:]]
        lastpost = post
    LD = int(os.environ.get("K2_LD", "6"))
    g = 1; n = 0
    while pend:
        ksn = NPRE + n // 3
        if ksn < 32 and g < 8 * (ksn - LD): g = 8 * (ksn - LD)
        pre, ld = pend.pop(0)
        G.put(g - 1, pre, "end"); G.put(g, ld, "mem")
        n += 1
        g += 1 if ksn <= LD else 2
    G.put(g - 1, lastpost, "end")
    print("K2 qproj last load gap", g)
    assert g < 246
    PP = [WV("q0"), I("s_barrier")]
    if STAMPS:
        b_ = ST.base + 2 * ST.n; ST.n += 1
        PP.append(I(f"s_memtime s[{b_}:{b_+1}]"))
    PP += wreads(0) + [WVL(["q2"], ["w0"])] + G.items()
    resolve(PP, A, vm0=vm0)
    ST.stamp()
    gen_attn(A, ST, lambda q: QA + 64 * q)
    return name, A.text(), kernel_desc(name, 256, 256), "grid=(256,1,1) block=(256,1,1) lds=163840"

def gen_attn(A, ST, qa, j2src=None, tailfn=None, q16=False):
    FUSE = tailfn is not None
    A(f"""
    s_lshl_b32 s{sT1}, s{sP_}, 15
    s_lshl_b32 s{sT0}, s{sR}, 14
    s_add_u32 s{sT1}, s{sT1}, s{sT0}
    s_add_u32 s{sT1}, s{sT1}, 98304
    v_add_u32 v12, s{sT1}, v{128 if q16 else V_LANE16}
    s_lshl_b32 s{sVOFF}, s{sW}, 12
    """)
    dl = []
    for grp in (kdma(), kdma(), vdma(), vdma()):
        pre, d, post = grp
        dl += [(pre if i == 0 else [], x, post if i == 3 else []) for i, x in enumerate(d)]
    if FUSE:
        k01 = []
        for grp in (kdma(), kdma()):
            pre, d, post = grp
            k01 += [(pre, d[0] + "\n" + d[1], []), ([], d[2] + "\n" + d[3], post)]
        dl = k01 + [([], "", [])] * 4 + dl[:4] + [([], "", [])] * 4
    n = 0
    for dt in range(4):
        for q in range(2):
            for j in range(2):
                a0 = qa(q) + 16 * dt + 8 * j if not q16 else qa(q) + 32 * j + 8 * dt
                pre, x, post = dl[n]; n += 1
                A.ext(pre)
                for i in range(4):
                    A(f"v_cvt_pk_bf16_f32 v{a0+i}, v{a0+2*i}, v{a0+2*i+1}")
                A(f"ds_write_b128 v12, v[{a0}:{a0+3}] offset:{(q*8+2*dt+j)*1024 if not q16 else q*8192+dt*2048+j*256}")
                A(x); A.ext(post)
    if j2src is not None:
        A(f"v_mov_b32 v14, v{j2src}"); A(f"v_mov_b32 v15, v{j2src+1}")
    A(f"""
    v_add_u32 v12, 98304, v{V_QA}
    v_add_u32 v13, 98304, v{V_QA+1}
    v_add_u32 v{V_QA}, 0x20000, v{V_QA}
    v_add_u32 v{V_QA+1}, 0x20000, v{V_QA+1}
    s_waitcnt vmcnt({4 if FUSE else 16}) lgkmcnt(0)
    s_barrier
    """)
    if j2src is not None:
        A(f"v_mov_b32 v{V_J2}, v14"); A(f"v_mov_b32 v{V_J2+1}, v15")
    PP = []
    if FUSE:
        PP += [I("v_mov_b32 v248, v25"), I("v_mov_b32 v249, v27")]
    for kk in range(8):
        PP.append(I(kread(kk, 0), f"a{kk}"))
        PP.append(I(f"ds_read_b128 {ar(AQ+4*kk,4)}, v12 offset:{kk*1024}", f"a{kk}"))
    for kk in range(8):
        PP.append(I(f"ds_read_b128 {ar(AQ+32+4*kk,4)}, v13 offset:{kk*1024}", "qb"))
    def stamp_item():
        if not STAMPS: return []
        b_ = ST.base + 2 * ST.n; ST.n += 1
        return [I(f"s_memtime s[{b_}:{b_+1}]")]
    PP += stamp_item()
    VZ = 244
    for x in f"""
    s_lshl_b32 s{sT0}, s{sP_}, 13
    s_add_u32 s{sT0}, s{sT0}, 0x18000
    v_add_u32 v{V_VADDR}, s{sT0}, v{V_LANE16}
    v_mov_b32 {L(1,0)}, 0
    v_mov_b32 {L(1,1)}, 0
    s_lshr_b32 s{sCNT}, s{sN}, 1
    s_sub_u32 s{sCNT}, s{sCNT}, 1
    v_mov_b32 v{VZ}, 0
    v_mov_b32 v{VZ+1}, 0
    v_mov_b32 v{VZ+2}, 0
    v_mov_b32 v{VZ+3}, 0
    s_mov_b32 s{sTHR}, {NEGBIG}
    """.strip().split("\n"): PP.append(I(x.strip()))
    def qk_q(dst_par, q, czero):
        return [mfma(S(dst_par, q), ar(AK + 4 * kk, 4), ar(AQ + 32 * q + 4 * kk, 4),
                     S(dst_par, q) if kk else ("0" if czero else vr(VN + 16 * q, 16))) for kk in range(8)]
    def zero_mfmas(hs=(0, 1)):
        return [mfma(ar(AO + 64 * h_ + 16 * k, 16), vr(VZ, 4), vr(VZ, 4), "0") for h_ in hs for k in range(4)]
    def init_q(q):
        T = VX + q
        R = [f"v_max3_f32 v{T}, {S(0,q,0)}, {S(0,q,1)}, {S(0,q,2)}", f"v_max3_f32 v{T+2}, {S(0,q,3)}, {S(0,q,4)}, {S(0,q,5)}"]
        for e in range(6, 14, 4):
            R.append(f"v_max3_f32 v{T}, v{T}, {S(0,q,e)}, {S(0,q,e+1)}")
            R.append(f"v_max3_f32 v{T+2}, v{T+2}, {S(0,q,e+2)}, {S(0,q,e+3)}")
        R += [f"v_max3_f32 v{T}, v{T}, {S(0,q,14)}, {S(0,q,15)}", f"v_max3_f32 v{T}, v{T}, v{T+2}, s{sTHR}",
              f"v_mov_b32 v{T+2}, v{T}", "s_nop 1", f"v_permlane32_swap_b32 v{T}, v{T+2}", "s_nop 0", f"v_max_f32 v{T}, v{T}, v{T+2}"]
        R += [f"v_sub_f32 v{VN+16*q+e}, 0, v{T}" for e in range(16)]
        return R
    def sm0_stream():
        subs = [f"v_sub_f32 {S(0,q,e)}, {S(0,q,e)}, v{VX+q}" for q in range(2) for e in range(16)]
        stream = subs[:2]; si = 2
        for ins in sm_stream(0):
            stream.append(ins)
            if ins.startswith("v_exp") and si < 32:
                stream.append(subs[si]); si += 1
        return stream
    def gdma(G, grp, gaps4, tag):
        pre, d, post = grp
        G.put(gaps4[0] - 1, pre, "end")
        for g, x in zip(gaps4, d): G.put(g, I(x, tag), "mem")
        G.put(gaps4[3], I("\n".join(post)), "end"); G.used[gaps4[3]] += 4 * (len(post) - 1)
    def fit(G, start, stream, last, cap0=24):
        import copy
        cap = cap0
        while True:
            H = copy.deepcopy(G)
            try:
                g = H.stream(start, stream, cap=cap)
                if g <= last: break
            except IndexError:
                pass
            cap += 4
        G.stream(start, stream, cap=cap)
        return cap
    G = Gaps(qk_q(0, 0, True) + qk_q(0, 1, True) + zero_mfmas() + qk_q(1, 0, False) + qk_q(1, 1, False))
    PP.append(WL("a0"))
    for kk in range(7): G.put(kk, WL(f"a{kk+1}"), "end")
    G.put(7, WL("qb"), "end")
    G.put(0, f"v_mov_b32 v{V_T0+1}, {THR}", "end")
    for kk in range(8): G.put(8 + kk, I(kread(kk, 1), "k1"))
    G.put(20, f"v_xor_b32 v{V_KADDR}, 0x8000, v{V_KADDR}", "end")
    G.put(22, WVL(["K2"], ["k1"]), "end")
    G.put(23, "s_barrier", "mem")
    for kk in range(8): G.put(32 + kk, I(kread(kk, 0), "k2"))
    if FUSE:
        gdma(G, kdma(), [1, 2, 3, 4], "K3"); gdma(G, vdma(), [6, 7, 9, 11], "V0"); gdma(G, vdma(), [16, 17, 18, 19], "V1")
    gdma(G, kdma(), [24, 25, 26, 27], "K4"); gdma(G, kdma(), [29, 30, 31, 32], "K5"); gdma(G, vdma(), [34, 35, 36, 37], "V2")
    for g in range(8, 12): G.put(g, "s_nop 0", "end")
    g = G.stream(12, init_q(0)); assert g <= 21, g
    g = G.stream(max(g, 19), init_q(1)); assert g <= 29, g
    cap = fit(G, g, sm0_stream(), 39)
    print("P0 cap", cap)
    PP += G.items() + [WVL(["V0"], ["*"])]
    resolve(PP, A, vm0=["K2"] * 4 + ([] if FUSE else ["K3"] * 4 + ["V0"] * 4 + ["V1"] * 4))

    def full_step(par, lab, tail=None, extra=None):
        fx = {}
        add_fixed(fx, 0, "s_barrier")
        if par == 1:
            add_fixed(fx, 0, f"v_xor_b32 v{V_VADDR}, 0x8000, v{V_VADDR}")
        for f in range(8):
            add_fixed(fx, 1 + f, vread(f, 1 - par))
        add_fixed(fx, 15, "s_waitcnt lgkmcnt(0)")
        if par == 0:
            add_fixed(fx, 12, f"v_xor_b32 v{V_KADDR}, 0x8000, v{V_KADDR}")
        for kk in range(8):
            add_fixed(fx, 16 + kk, kread(kk, par))
        place_dma(fx, kdma(), [2, 6, 10, 13])
        place_dma(fx, vdma(), [18, 22, 25, 28])
        for g_, l_ in (extra or {}).items(): add_fixed(fx, g_, l_)
        rare_sites.append((lab, par, True))
        chk = check_stream(par, lab)
        add_fixed(fx, 30, chk[:2] + (tail or []))
        add_fixed(fx, 31, chk[2:] + [f"s_waitcnt vmcnt(16) lgkmcnt(0)"])
        gaps, cap = pack(32, fx, sm_stream(par), 30)
        print(lab, "cap", cap)
        weave(A, qk_mfmas(1 - par) + pv_mfmas(1 - par), gaps)

    ST.stamp()
    A.lines.append(".p2align 3")
    A.label("K2_LOOP")
    full_step(1, "K2_RARE_O", tail=[f"s_sub_u32 s{sCNT}, s{sCNT}, 1", f"s_cmp_eq_u32 s{sCNT}, 0"])
    A("s_cbranch_scc1 K2_X")
    CPF = os.environ.get("K2_CPF", "1") == "1"
    full_step(0, "K2_RARE_E", extra=({9: [f"s_cmp_eq_u32 s{sCNT}, 1", "s_cbranch_scc1 K2_CPFS", "K2_CPFS_ret:"]} if CPF else None))
    A("s_branch K2_LOOP")
    A.label("K2_X")
    A(f"s_cmp_eq_u32 s{sBLK}, 0")
    A("s_cbranch_scc0 K2_NM2")
    ST.stamp()
    def chk_put(G, par, lab, hn, gv, gb):
        rare_sites.append((lab, par, hn))
        chk = check_stream(par, lab, half=not hn)
        G.put(gv, chk[:2], "end"); G.put(gb, chk[2:], "end")
    PP = []
    G = Gaps(qk_q(1, 1, False) + pv_mfmas(1))
    G.put(0, "s_barrier", "mem")
    for f in range(8): G.put(1 + f // 2, I(vread(f, 1), f"v1{f//4}"))
    G.put(7, WL("v10"), "end"); G.put(15, WL("v11"), "end")
    G.put(6, f"v_xor_b32 v{V_KADDR}, 0x8000, v{V_KADDR}", "end")
    for kk in range(8):
        G.put(8 + kk, I(kread(kk, 0), "t1r"))
    for i in range(16):
        q, kk = i // 8, i % 8
        G.put(5 + i, I(f"ds_read_b128 {ar(AQ+32*q+4*kk,4)}, v{V_QA+q} offset:{kk*1024}", "t1r"))
    gdma(G, kdma(), [2, 5, 7, 9], "KB3")
    G.put(11, I(f"s_sub_u32 s{S_V}, s{S_V}, s{sKEND}\ns_subb_u32 s{S_V+1}, s{S_V+1}, 0\ns_add_u32 s{S_V+2}, s{S_V+2}, s{sKEND}"), "end")
    gdma(G, vdma(), [13, 16, 18, 21], "VB0")
    chk_put(G, 0, "K2_RARE_T1", True, 23, 23)
    G.put(23, WVL(["VAl"], ["*"]), "end")
    print("T1 cap", fit(G, 0, sm_stream(0, 0), 23))
    PP += G.items()
    G = Gaps(qk_mfmas(0, czero=True) + pv_mfmas(0))
    G.put(0, "s_barrier", "mem")
    G.put(0, f"v_xor_b32 v{V_VADDR}, 0x8000, v{V_VADDR}", "end")
    for f in range(8): G.put(1 + f, I(vread(f, 0), "v2"))
    G.put(15, WL("v2"), "end")
    for kk in range(8):
        G.put(16 + 2 * kk, I(kread(kk, 1), "t2r"))
        G.put(17 + 2 * kk, I(vread(kk, 1), f"t2v{kk}"))
    gdma(G, kdma(), [2, 6, 10, 13], "KB4")
    gdma(G, vdma(), [18, 22, 26, 28], "VB1")
    if FUSE:
        for f, g_ in enumerate((9, 11, 12, 14, 20, 24, 27, 29)):
            G.put(g_, I(f"buffer_store_dwordx4 v[{160+4*f}:{163+4*f}], v{V_LANE16}, s[{S_WS}:{S_WS+3}], s28 offen offset:{(f&3)*1024} sc1", "j2s"), "mem")
            if f == 3: G.put(g_, "s_add_u32 s28, s28, s29", "end")
    chk_put(G, 1, "K2_RARE_T2", False, 30, 31)
    G.put(31, [f"s_cmp_lg_u32 s{sN2B}, 0x8000", "s_cbranch_scc1 K2_NOMASK0"], "end")
    print("T2 cap", fit(G, 0, sm_stream(1, 1, qs=(1,)), 30))
    PP += G.items() + [I(x) for x in mask_stream(0, 0)] + [I("K2_NOMASK0:")]
    PP += stamp_item()
    PO = 176
    XM = VX + 4
    def lsum_save():
        return [f"v_mov_b32 v{XM+1}, {L(0,0)}", f"v_mov_b32 v{XM+3}, {L(1,1)}", f"v_mov_b32 v{XM}, v{VN}", f"v_mov_b32 v{XM+2}, v{VN+16}",
                f"v_permlane32_swap_b32 {L(0,0)}, v{XM+1}", f"v_permlane32_swap_b32 {L(1,1)}, v{XM+3}", "s_nop 0",
                f"v_add_f32 v{XM+1}, v{XM+1}, {L(0,0)}", f"v_add_f32 v{XM+3}, v{XM+3}, {L(1,1)}"]
    def ctx_addr():
        return [f"s_lshl_b32 s{sT0}, s{sQB}, 20", f"s_lshl_b32 s{sT1}, s{sHD}, 13", f"s_add_u32 s{sT0}, s{sT0}, s{sT1}",
                f"s_lshl_b32 s{sT1}, s{sP_}, 12", f"s_add_u32 s{sT0}, s{sT0}, s{sT1}", f"s_add_u32 s{sT0}, s{sT0}, {WS_CTX}",
                f"s_lshl_b32 s{sT1}, s{sR}, 18", f"s_add_u32 s63, s{sT0}, s{sT1}", f"s_sub_u32 s64, s{sT0}, s{sT1}", f"s_add_u32 s64, s64, {3<<18}"]
    FA = 252
    def factors():
        R = []
        t = lambda q: XM + 12 + q
        R += [f"v_min_f32 v{t(q)}, v{XM+2*q}, v{XM+4+2*q}" for q in range(2)]
        for q in range(2): R += [f"v_sub_f32 v{FA+2*q}, v{t(q)}, v{XM+2*q}", f"v_sub_f32 v{FA+2*q+1}, v{t(q)}, v{XM+4+2*q}"]
        R += [f"v_exp_f32 v{FA+i}, v{FA+i}" for i in range(4)]
        for q in range(2): R += [f"v_mul_f32 v{t(q)}, v{FA+2*q}, v{XM+1+2*q}"]
        for q in range(2): R += [f"v_fmac_f32 v{t(q)}, v{FA+2*q+1}, v{XM+5+2*q}"]
        R += [f"v_rcp_f32 v{t(q)}, v{t(q)}" for q in range(2)]
        for q in range(2): R += [f"v_mul_f32 v{FA+2*q}, v{FA+2*q}, v{t(q)}", f"v_mul_f32 v{FA+2*q+1}, v{FA+2*q+1}, v{t(q)}"]
        return R
    CST = os.environ.get("K2_CST", "sc1")
    def combine(fi, tmp):
        F = FA + 2 * (fi // 4) - 1
        R = []
        for e in range(8): R.append(f"v_accvgpr_read_b32 v{tmp+e}, a{AO+8*fi+e}")
        for e in range(8): R.append(f"v_mul_f32 v{PO+8*fi+e}, v{PO+8*fi+e}, v{F+2}")
        for e in range(8): R.append(f"v_fmac_f32 v{PO+8*fi+e}, v{tmp+e}, v{F+1}")
        for i in range(4): R.append(f"v_cvt_pk_bf16_f32 v{PO+8*fi+i}, v{PO+8*fi+2*i}, v{PO+8*fi+2*i+1}")
        R.append(I(f"buffer_store_dwordx4 v[{PO+8*fi}:{PO+8*fi+3}], v{V_CST}, s[{S_WS}:{S_WS+3}], s{63+fi//4} offen offset:{((fi%4)//2)*2048+(fi%2)*512} {CST}", "cst"))
        return R
    PP.append(WL("t2v3"))
    G = Gaps(pv_mfmas(1, last=True) + qk_q(1, 0, False) + qk_q(1, 1, False) + zero_mfmas((1,)))
    G.put(1, WL("t2v7"), "end")
    G.put(2, "s_barrier", "mem")
    addr = [f"s_and_b32 s{sT0}, s{sVOFF}, 0x8000", f"s_or_b32 s{sT0}, s{sT0}, 0x10000",
            [f"s_cmp_eq_u32 s{sP_}, 0", f"s_cselect_b32 s{sT1}, s{sT0}, 0x20000", f"s_cselect_b32 s{sT0}, 0x20000, s{sT0}"],
            f"s_lshl_b32 s{sT2}, s{sR}, 14", f"s_add_u32 s{sT1}, s{sT1}, s{sT2}", f"s_add_u32 s{sT0}, s{sT0}, s{sT2}",
            f"v_add_u32 v{XM+8}, s{sT1}, v{V_LANE16}", f"v_add_u32 v{XM+9}, s{sT0}, v{V_LANE16}",
            f"s_and_b32 s{sT0}, s{sKDST}, 0xffff", f"v_add_u32 v{XM+10}, s{sT0}, v{V_LANE16}", f"v_xor_b32 v{XM+11}, 0x2000, v{XM+10}"]
    for i in range(16):
        G.put(5 + i, I(f"ds_write_b128 v{XM+8}, {ar(AO+64+4*i,4)} offset:{i*1024}", "xw"), "mem")
    G.put(21, I(f"ds_write_b128 v{XM+10}, v[{XM}:{XM+3}]", "xw"), "mem")
    G.put(12, f"v_xor_b32 v{V_KADDR}, 0x8000, v{V_KADDR}", "end")
    for kk in range(8): G.put(16 + kk, I(kread(kk, 0), "t3k"))
    G.put(23, WL("xw"), "end")
    G.put(24, "s_barrier", "mem")
    G.put(24, I(f"ds_read_b128 v[{XM+4}:{XM+7}], v{XM+11}", "xr"), "mem")
    for i in range(16):
        G.put(24 + i // 4, I(f"ds_read_b128 v[{PO+4*i}:{PO+4*i+3}], v{XM+9} offset:{i*1024}", "xr"), "mem")
    C3 = int(os.environ.get("K2_C3", "44"))
    g = G.stream(0, addr + lsum_save() + [f"v_mov_b32 {L(1,0)}, 0", f"v_mov_b32 {L(1,1)}, 0"], cap=C3); assert g <= 3, g
    g = G.stream(g, init_q(0), cap=C3); assert g <= 6, g
    g = G.stream(g, init_q(1), cap=C3); assert g <= 14, g
    sm0 = sm0_stream()
    NH = int(os.environ.get("K2_T3H", "100"))
    print("T3 cap", fit(G, g, sm0[:NH], 27))
    PP += G.items() + [I(x) for x in sm0[NH:] + ctx_addr()]
    if FUSE:
        PP += [I(f"s_add_u32 s{sT0}, s3, {FL_W}"), WVL(["j2s"], ["*"]), I("s_barrier"), I(f"buffer_store_dword v248, v249, s[{S_WS}:{S_WS+3}], s{sT0} offen sc1", "fl")]
    else:
        PP += [WL("*"), I("s_barrier")]
    misc = []
    for grp, tag in ((kdma(), "KB5"), (vdma(), "VB2")):
        pre, d, post = grp
        misc.append([I(x) for x in pre] + [I("s_nop 0"), I(d[0], tag), I(d[1], tag)])
        misc.append([I(d[2], tag), I(d[3], tag)] + [I(x) for x in post])
    for i in range(0, 8, 2):
        grp = []
        for k in (i, i + 1):
            grp += [I(f"s_add_u32 m0, s35, {k*1024}"), I("s_nop 0"), I(f"buffer_load_dwordx4 v{V_J2}, s[4:7], s10 offen lds", "j2"), I("s_add_u32 s10, s10, s11")]
        misc.append(grp)
    if FUSE: misc = misc[:4]
    PP += misc[0] + misc[1]
    PP += [I(x) for x in factors()]
    for fi in range(8):
        PP += [x if isinstance(x, Item) else I(x) for x in combine(fi, VP + 16 + 8 * (fi % 2))]
        if fi + 2 < len(misc): PP += misc[fi + 2]
        if fi % 2 == 1: PP.append(I(mfma(ar(AO + 16 * (fi // 2), 16), vr(VZ, 4), vr(VZ, 4), "0")))
    for x in f"""
    s_getpc_b64 s[52:53]
    s_add_u32 s52, s52, {'KC_START' if FUSE else 'kc_kernel'}-.
    s_addc_u32 s53, s53, 0
    v_lshlrev_b32 v240, 6, v0
    global_load_dword v241, v240, s[52:53]
    s_mov_b32 s{sBLK}, 1
    s_mov_b32 s{sQB}, s{sPR}
    s_mov_b32 s{sCNT}, s{sPR}
    s_cmp_eq_u32 s{sPR}, 0
    """.strip().split("\n"): PP.append(I(x.strip()))
    PP.append(WV("VB1"))
    PP += stamp_item()
    resolve(PP, A, vm0=["KB1"] * 4 + ["VAm"] * 4 + ["KB2"] * 4 + ["VAl"] * 4)
    A("s_cbranch_scc0 K2_LOOP")
    A("s_waitcnt vmcnt(0)")
    A("s_branch K2_LAST")
    A.label("K2_NM2")
    ST.stamp()
    G = Gaps(qk_q(1, 1, False) + pv_mfmas(1))
    G.put(0, "s_barrier", "mem")
    for f in range(8): G.put(1 + f // 2, I(vread(f, 1), f"v1{f//4}"))
    G.put(7, WL("v10"), "end"); G.put(15, WL("v11"), "end")
    chk_put(G, 0, "K2_RARE_M", True, 23, 23)
    G.put(23, WV("*"), "end")
    print("NM2 cap", fit(G, 0, sm_stream(0, 0), 23))
    resolve(G.items(), A)
    A.label("K2_LAST")
    PP = [I("s_barrier"), I(f"v_xor_b32 v{V_VADDR}, 0x8000, v{V_VADDR}")]
    PP += [I(vread(f, 0), "v2") for f in range(8)]
    if FUSE:
        PP += [I(f"v_mov_b32 v242, 0x5a17"), I(f"v_min_u32 v243, 1, v{V_LANE16}"), I("v_lshlrev_b32 v243, 30, v243"), I(f"s_add_u32 s{sT0}, s3, {FL_J2}"),
               I(f"buffer_store_dword v242, v243, s[{S_WS}:{S_WS+3}], s{sT0} offen sc1", "fl")]
    for f in range(8):
        for e in range(2):
            if not FUSE: PP.append(I(f"ds_read_b64_tr_b16 {ar(AQ+4*f+2*e,2)}, v{V_J2+1} offset:{e*4096+f*64}", "j2r"))
    sm = sm_stream(1, 1, qs=(1,))
    PP += [I(x) for x in sm[:20]] + [WL("v2")]
    G = Gaps(pv_mfmas(0))
    for f in range(8): G.put(2 * f + 1, I(vread(f, 1), "v3"))
    if not FUSE: G.put(1, WL("j2r"), "end")
    for f in range(8):
        if FUSE: break
        G.put(2 * f + 2 if f < 7 else 15, I(f"buffer_store_dwordx4 {ar(AQ+4*f,4)}, v{V_LANE16}, s[{S_WS}:{S_WS+3}], s28 offen offset:{(f&1)*1024} {CST}", "j2s"), "mem")
        if f & 1 and f < 7: G.put(2 * f + 2, "s_add_u32 s28, s28, s29", "end")
    chk_put(G, 1, "K2_RARE_L", False, 15, 15)
    G.put(15, WL("v3"), "end")
    addr = [f"s_lshl_b32 s{sT0}, s{sW}, 14", f"v_add_u32 v{XM+8}, s{sT0}, v{V_LANE16}", f"v_xor_b32 v{XM+9}, 0x8000, v{XM+8}",
            f"v_add_u32 v{XM+10}, s35, v{V_LANE16}", f"v_xor_b32 v{XM+11}, 0x4000, v{XM+10}"]
    print("LAST cap", fit(G, 0, sm[20:] + addr + ctx_addr(), 15))
    PP += G.items()
    PP += stamp_item()
    G = Gaps(pv_mfmas(1, last=True))
    g = G.stream(0, lsum_save()); assert g <= 2, g
    for i in range(6):
        G.put(2 + i, I(f"ds_write_b128 v{XM+8}, {ar(AO+64+4*i,4)} offset:{i*1024}", "xw"), "mem")
        G.put(2 + i, "s_nop 1", "end")
    PP += G.items()
    PP.append(I(f"ds_write_b128 v{XM+10}, v[{XM}:{XM+3}]", "xw"))
    for i in range(6, 16):
        PP.append(I(f"ds_write_b128 v{XM+8}, {ar(AO+64+4*i,4)} offset:{i*1024}", "xw"))
    PP += [WL("xw"), I("s_barrier"), I(f"ds_read_b128 v[{XM+4}:{XM+7}], v{XM+11}", "ml")]
    for i in range(16):
        PP.append(I(f"ds_read_b128 v[{PO+4*i}:{PO+4*i+3}], v{XM+9} offset:{i*1024}", f"x{i//2}"))
    PP += stamp_item()
    if FUSE:
        PP += [I("v_lshlrev_b32 v240, 7, v0"), I(f"s_mov_b32 s{sT0}, {WS_FLAG+FL_W}"), I(f"buffer_load_dword v241, v240, s[{S_WS}:{S_WS+3}], s{sT0} offen sc1", "jp")]
    PP.append(WL("ml"))
    PP += [I(x) for x in factors()]
    for fi in range(8):
        c = combine(fi, VP + 8 * (fi % 2))
        PP += [I(x) for x in c[:8]] + [WL(f"x{fi}")] + [x if isinstance(x, Item) else I(x) for x in c[8:]]
    vmE, lgE = resolve(PP, A)
    ST.stamp()
    if FUSE:
        if STAMPS:
            vmE = vmE + ["stamp"] * ST.flush(4, f"s{sW}", 12)
        tailfn(A, vmE)
    else:
        if STAMPS: A("s_waitcnt vmcnt(0)")
        ST.stamp()
        ST.flush(4, f"s{sW}", 12)
    A("K2_END:")
    A("s_endpgm")
    if CPF:
        A(f"""
        K2_CPFS:
        s_getpc_b64 s[52:53]
        s_sub_u32 s52, s52, .-K2_X
        s_subb_u32 s53, s53, 0
        s_mul_i32 s54, s{sBLK}, K2_NM2-K2_X
        s_add_u32 s52, s52, s54
        s_addc_u32 s53, s53, 0
        v_lshlrev_b32 v240, 5, v0
        v_add_u32 v240, v240, v0
        v_lshlrev_b32 v240, 0, v240
        v_and_b32 v240, 0xffffffe0, v240
        global_load_dword v242, v240, s[52:53]
        s_branch K2_CPFS_ret
        """)
    for lab, par, hn in rare_sites:
        gen_rare(A, lab, par, hn)
```

```python
from asmlib import *
from sched import *
import os
LOG2E = 0x3fb8aa3b
MAGIC = 0x5a17
def E(k, d): return int(os.environ.get(k, str(d)))
def lines(s): return [I(x.strip()) for x in s.strip().split("\n") if x.strip()]
def its(L): return [x if isinstance(x, Item) else I(x) for x in L]
def m16(d, a, b, c): return f"v_mfma_f32_16x16x32_bf16 {d}, {a}, {b}, {c}"

def gen_kc(A, vmE):
    A("KC_START:")
    dbg_mark(A, 4)
    ST = Stamper(A, 1)
    ST.stamp()
    def stamp_item():
        if not STAMPS: return []
        b = ST.base + 2 * ST.n; ST.n += 1
        return [I(f"s_memtime s[{b}:{b+1}]")]
    S_WS, S_X, S_O, S_B, S_F, S_S = 20, 16, 12, 24, 52, 56
    sW, sRB, sCB, sTS, sNT = 30, 31, 32, 33, 34
    sA, sWo, sT0, sT1, sT2, sM0, sFL = 35, 36, 37, 38, 39, 40, 41
    sW1, sACT, sFW, sL2E, sPT, sKQ, sHU, sNZ, sXC, sRG, sCG2, sFA = 42, 43, 44, 45, 46, 47, 48, 49, 50, 51, 60, 61
    VA, VW, VM, VRM, VMG, VRR, VCA, VPL, VF0 = 4, 6, 8, 9, 10, 11, 12, 14, 3
    ACC, FR, T = 16, 80, 192
    WS = f"s[{S_WS}:{S_WS+3}]"
    FAST = os.environ.get("KC_FAST", "b")
    def st2(txt, tag, cls):
        if cls not in FAST: return [I(txt.format(srd=WS, fl='sc1'), tag)]
        return [I(txt.format(srd=f's[{S_F}:{S_F+3}]', fl='').rstrip(), tag), I(txt.format(srd=f's[{S_S}:{S_S+3}]', fl='sc1'), tag)]
    A(f"""
    s_load_dwordx2 s[{S_X}:{S_X+1}], s[0:1], {KA['x']}
    s_load_dwordx2 s[{S_O}:{S_O+1}], s[0:1], {KA['out']}
    s_load_dwordx2 s[{S_B}:{S_B+1}], s[0:1], {KA['b1']}
    v_and_b32 v2, 63, v0
    s_lshr_b32 s{sT1}, s2, 3
    s_and_b32 s{sCB}, s{sT1}, 7
    s_lshr_b32 s{sT1}, s{sT1}, 3
    s_and_b32 s{sRB}, s2, 7
    s_lshl_b32 s{sRB}, s{sRB}, 2
    s_add_u32 s{sRB}, s{sRB}, s{sT1}
    s_bfe_u32 s{sKQ}, s2, 0x20001
    s_lshr_b32 s{sRG}, s2, 5
    s_and_b32 s{sT1}, s2, 1
    s_lshl_b32 s{sRG}, s{sRG}, 1
    s_add_u32 s{sRG}, s{sRG}, s{sT1}
    s_bfe_u32 s{sCG2}, s2, 0x20003
    s_lshl_b32 s{sCG2}, s{sCG2}, 1
    s_lshl_b32 s{sA}, s{sRG}, 2
    s_add_u32 s{sA}, s{sA}, s{sW}
    s_lshl_b32 s{sA}, s{sA}, 18
    s_lshl_b32 s{sT1}, s{sKQ}, 16
    s_add_u32 s{sA}, s{sA}, s{sT1}
    s_add_u32 s{sA}, s{sA}, {WS_CTX}
    s_lshr_b32 s{sT1}, s{sW}, 1
    s_add_u32 s{sWo}, s{sCG2}, s{sT1}
    s_lshl_b32 s{sWo}, s{sWo}, 19
    s_lshl_b32 s{sT1}, s{sKQ}, 17
    s_add_u32 s{sWo}, s{sWo}, s{sT1}
    s_and_b32 s{sT1}, s{sW}, 1
    s_lshl_b32 s{sT1}, s{sT1}, 12
    s_add_u32 s{sWo}, s{sWo}, s{sT1}
    s_add_u32 s{sWo}, s{sWo}, {WS_WOF}
    s_lshl_b32 s{sM0}, s{sW}, 12
    """)
    def sdma(slot, tag):
        c = [I(f"buffer_load_dwordx4 v1, {WS}, s{sA} offen offset:{i*1024} lds", tag) for i in range(4)]
        w = [I(f"buffer_load_dwordx4 v1, {WS}, s{sWo} offen offset:{i*1024} lds", tag) for i in range(4)]
        return ([f"s_add_u32 m0, s{sM0}, {slot*32768}"], c, [f"s_add_u32 s{sA}, s{sA}, 4096"]), \
               ([f"s_add_u32 m0, s{sM0}, {slot*32768+16384}"], w, [f"s_add_u32 s{sWo}, s{sWo}, 8192"])
    nw1 = 0
    def w1reg(ks, n): return ar(16 * ks + 4 * n, 4)
    def w1load(i):
        np_, ks, n1 = i // 32, (i % 32) // 2, i % 2
        pre = []
        if i == 32: pre = [I(f"s_sub_u32 s{sW1}, s{sW1}, {15*4096}")]
        elif n1 == 0 and ks: pre = [I(f"s_add_u32 s{sW1}, s{sW1}, 4096")]
        return pre + [I(f"buffer_load_dwordx4 {w1reg(ks, 2*np_+n1)}, v1, {WS}, s{sW1} offen offset:{(2*np_+n1)*1024}", f"w1_{i}")]
    def more(n):
        nonlocal nw1
        R = []
        for _ in range(n):
            if nw1 < 64:
                R += w1load(nw1); nw1 += 1
        return R
    NPW = E("KC_NPW", 4)
    P = lines(f"""
    s_lshl_b32 s{sW1}, s{sCB}, 2
    s_add_u32 s{sW1}, s{sW1}, s{sW}
    s_lshl_b32 s{sW1}, s{sW1}, 16
    s_add_u32 s{sW1}, s{sW1}, {WS_W1F}
    s_cmp_eq_u32 s{sCB}, 7
    s_cselect_b32 s{sW1}, 0x80000000, s{sW1}
    s_sub_u32 s{sT1}, 15, s{sRG}
    s_cmp_lt_u32 s{sRG}, 8
    s_cselect_b32 s{sT1}, s{sRG}, s{sT1}
    s_cselect_b32 s{sHU}, 0, {FL_J2-FL_CTX}
    s_lshl_b32 s{sT1}, s{sT1}, 12
    s_lshl_b32 s{sT2}, s{sKQ}, 8
    s_add_u32 s{sT1}, s{sT1}, s{sT2}
    s_add_u32 s{sHU}, s{sHU}, s{sT1}
    s_add_u32 s{sHU}, s{sHU}, {WS_FLAG+FL_CTX}
    v_and_b32 v5, 3, v2
    v_bfe_u32 v6, v2, 2, 1
    v_lshlrev_b32 v5, 10, v5
    v_lshl_add_u32 v5, v6, 7, v5
    s_add_u32 s{sT0}, s3, {FL_CTX}
    """)
    P += [WV("jp")] + lines("""
    v_cmp_ne_u32 vcc, v242, v241
    s_cbranch_vccnz KC_JSPIN
    KC_JSPIN_RET:
    """)
    P += [WV("cst"), I("s_barrier"), I(f"buffer_store_dword v242, v243, {WS}, s{sT0} offen sc1", "fl")]
    for st in range(NPW):
        pre, d, post = sdma(st, f"S{st}")[1]
        P += its(pre) + [I("s_nop 0")] + d + its(post)
    P.append(I("s_waitcnt lgkmcnt(0)"))
    P += more(E("KC_P1", 4))
    P.append(I(f"buffer_load_dword v241, v5, {WS}, s{sHU} offen sc1", "cp"))
    P += more(E("KC_P2", 2))
    P += lines(f"""
    s_getreg_b32 s{sXC}, hwreg(HW_REG_XCC_ID, 0, 4)
    s_add_u32 s{sXC}, s{sXC}, {MAGIC}
    s_lshl_b32 s{sFL}, s{sRB}, 10
    s_add_u32 s{sFL}, s{sFL}, {WS_FLAG}
    s_lshl_b32 s{sFW}, s{sCB}, 7
    s_add_u32 s{sFW}, s{sFW}, s{sFL}
    s_lshl_b32 s{sFA}, s{sRG}, 11
    s_lshl_b32 s{sT0}, s{sKQ}, 9
    s_add_u32 s{sFA}, s{sFA}, s{sT0}
    s_lshl_b32 s{sT0}, s{sCG2}, 6
    s_add_u32 s{sFA}, s{sFA}, s{sT0}
    s_add_u32 s{sFA}, s{sFA}, {WS_FLAG}
    s_cmp_eq_u32 s{sW}, 0
    s_cselect_b32 s{sFW}, s{sFW}, 0x80000000
    s_cselect_b32 s{sFA}, s{sFA}, 0x80000000
    v_mov_b32 v{VMG}, s{sXC}
    v_mov_b32 v{VF0}, v243
    v_and_b32 v{VPL}, 15, v2
    v_lshlrev_b32 v{VPL}, 7, v{VPL}
    s_add_u32 s{sT0}, s{sFW}, 98304
    """)
    P.append(I(f"buffer_store_dword v{VMG}, v{VF0}, {WS}, s{sT0} offen sc1", "xc"))
    P += [WV("cp")] + lines("""
    v_cmp_ne_u32 vcc, v242, v241
    s_cbranch_vccnz KC_CSPIN
    KC_CSPIN_RET:
    """) + stamp_item()
    for st in range(2):
        pre, d, post = sdma(st, f"S{st}")[0]
        P += its(pre) + [I("s_nop 0")] + d + its(post)
    P += lines(f"""
    s_lshr_b32 s{sT0}, s{sW}, 1
    s_lshl_b32 s{sT0}, s{sT0}, 13
    v_add_u32 v{VA}, s{sT0}, v1
    v_add_u32 v{VA+1}, 0x10000, v{VA}
    s_and_b32 s{sT0}, s{sW}, 1
    s_lshl_b32 s{sT0}, s{sT0}, 13
    s_add_u32 s{sT0}, s{sT0}, 16384
    v_add_u32 v{VW}, s{sT0}, v1
    v_add_u32 v{VW+1}, 0x10000, v{VW}
    """)
    def freads(k):
        slot, ks = (k // 2) % 4, k % 2
        b = FR + 32 * (k % 2)
        hi, off = slot // 2, (slot % 2) * 32768
        c = [I(f"ds_read_b128 v[{b+4*t}:{b+4*t+3}], v{VA+hi} offset:{off+(t//2)*4096+ks*2048+(t%2)*1024}", f"f{k}") for t in range(4)]
        w = [I(f"ds_read_b128 v[{b+16+4*n}:{b+19+4*n}], v{VW+hi} offset:{off+ks*4096+n*1024}", f"f{k}") for n in range(4)]
        return c + w
    mf = []
    for k in range(32):
        b = FR + 32 * (k % 2)
        for n in range(4):
            for t in range(4):
                acc = vr(ACC + 16 * t + 4 * n, 4)
                mf.append(m16(acc, vr(b + 16 + 4 * n, 4), vr(b + 4 * t, 4), acc if k else "0"))
    G = Gaps(mf, cap=8)
    for k in range(31):
        g0 = 16 * k
        o = 0
        if k % 2 == 1:
            G.put(g0, "s_barrier", "mem"); o = 1
        for i, r in enumerate(freads(k + 1)): G.put(g0 + o + i, r)
        if k % 2 == 0 and k + 2 < 32: G.put(g0 + 15, WVL([f"S{k//2+1}"], [f"f{k+1}"]), "mem")
        else: G.put(g0 + 15, WL(f"f{k+1}"), "mem")
    def place(gs, grp):
        pre, d, post = grp
        G.put(gs[0] - 1, pre, "end")
        for g_, x in zip(gs, d): G.put(g_, x, "mem")
        G.put(gs[3], post, "end")
    c, w = sdma(2, "S2"); place([8, 10, 12, 14], c)
    assert NPW >= 3
    for st in range(3, 16):
        gb = 16 * (2 * (st - 2) - 1)
        c, w = sdma(st % 4, f"S{st}")
        place([gb + 9, gb + 11, gb + 12, gb + 14], c)
        if st >= NPW: place([gb + 24, gb + 26, gb + 28, gb + 30], w)
    lastdma = 16 * (2 * 13 - 1) + 30
    gg = lastdma + 4
    while gg < 500 and nw1 < 64:
        while G.mem[gg]: gg += 1
        w = w1load(nw1); nw1 += 1
        if len(w) > 1: G.put(gg - 1, w[0], "end")
        G.put(gg, w[-1], "mem"); gg += 5
    G.stream(60, ["v_lshlrev_b32 v184, 7, v0", f"v_mov_b32 v186, {MAGIC}", f"s_mov_b32 s62, {WS_FLAG+FL_J2}"])
    G.put(346, I(f"buffer_load_dword v185, v184, {WS}, s62 offen sc1", "lp"), "mem")
    gl_ = G.stream(420, [[WV("lp"), "v_cmp_ne_u32 vcc, v186, v185"], ["s_cbranch_vccnz KC_LSPIN", "KC_LSPIN_RET:"]])
    assert gl_ < 16 * 29
    XR, GA, CB1, SB, XF, B1, B1F = 144, 152, 168, T, T + 16, T + 32, T + 48
    SET = [f"s_mov_b32 s{S_X+2}, 0x200000", f"s_mov_b32 s{S_X+3}, 0x00020000", f"s_mov_b32 s{S_O+2}, 0x200000", f"s_mov_b32 s{S_O+3}, 0x00020000",
           f"s_mov_b32 s{S_B+2}, 3584", f"s_mov_b32 s{S_B+3}, 0x00020000", f"s_mov_b32 s{sL2E}, {LOG2E}",
           f"v_lshrrev_b32 v15, 5, v2", f"v_bfe_u32 v{VCA}, v2, 3, 2", f"v_lshlrev_b32 v{VM}, 7, v15", f"v_lshl_add_u32 v{VM}, v{VCA}, 4, v{VM}",
           f"s_lshl_b32 s{sT0}, s{sW}, 9", f"v_add_u32 v{VM}, s{sT0}, v{VM}",
           f"v_and_b32 v{VCA+1}, 7, v2", f"v_lshrrev_b32 v{VRM}, 1, v{VM}", f"v_lshl_add_u32 v{VRM}, v{VCA+1}, 10, v{VRM}",
           f"s_lshl_b32 s{sT0}, s{sRB}, 3", f"s_add_u32 s{sT0}, s{sT0}, s{sCB}", f"s_lshl_b32 s{sT0}, s{sT0}, 13"]
    for m in range(2):
        for qd in range(2):
            SET.append(I(f"buffer_load_dwordx2 v[{XR+4*m+2*qd}:{XR+4*m+2*qd+1}], v{VRM}, s[{S_X}:{S_X+3}], s{sT0} offen offset:{128*m+32*qd}", "sm"))
    for dst, idx in ((GA, 2), (CB1, 4), (SB, 3)):
        SET.append(f"s_mov_b32 s{sT1}, {idx*2048}")
        for m in range(2):
            for qd in range(2):
                SET.append(I(f"buffer_load_dwordx4 v[{dst+8*m+4*qd}:{dst+8*m+4*qd+3}], v{VM}, {WS}, s{sT1} offen offset:{256*m+64*qd}", "sm"))
    SET += [f"v_lshlrev_b32 v{VCA}, 8, v{VCA}", f"v_lshl_add_u32 v{VCA}, v{VCA+1}, 4, v{VCA}", f"v_lshl_add_u32 v{VCA+1}, v15, 11, v{VCA}",
            f"s_lshl_b32 s{sT0}, s{sCB}, 2", f"s_add_u32 s{sT0}, s{sT0}, s{sW}", f"s_lshl_b32 s{sT0}, s{sT0}, 7",
            f"v_lshrrev_b32 v15, 4, v2", f"v_lshlrev_b32 v15, 3, v15"]
    for n in range(4):
        SET.append(I(f"buffer_load_dwordx2 v[{B1+2*n}:{B1+2*n+1}], v15, s[{S_B}:{S_B+3}], s{sT0} offen offset:{32*n}", "sm"))
    SET += [f"s_add_u32 s{sT2}, s{sFL}, 98304", f"v_and_b32 v15, 0x380, v{VPL}",
            I(f"buffer_load_dword v{VRR}, v15, {WS}, s{sT2} offen sc1", "sm"),
            I(f"s_cmp_eq_u32 s{sW}, 0\ns_cselect_b32 s{sFL}, s{sFL}, 0x80000000\ns_cselect_b32 s{sNZ}, 0, -1"),
            f"v_mov_b32 v{VMG}, {MAGIC}",
            f"s_lshr_b32 s{sT0}, s{sW}, 1", f"s_lshl_b32 s{sTS}, s{sRB}, 1", f"s_add_u32 s{sTS}, s{sTS}, s{sT0}",
            f"s_and_b32 s{sT1}, s{sW}, 1", f"s_lshl_b32 s{sNT}, s{sCB}, 1", f"s_add_u32 s{sNT}, s{sNT}, s{sT1}",
            f"s_lshl_b32 s{sACT}, s{sKQ}, 21", f"s_lshl_b32 s{sT2}, s{sRG}, 17", f"s_add_u32 s{sACT}, s{sACT}, s{sT2}", f"s_lshl_b32 s{sT0}, s{sT0}, 16", f"s_add_u32 s{sACT}, s{sACT}, s{sT0}",
            f"s_add_u32 s{sT0}, s{sCG2}, s{sT1}", f"s_lshl_b32 s{sT0}, s{sT0}, 12", f"s_add_u32 s{sACT}, s{sACT}, s{sT0}", f"s_add_u32 s{sACT}, s{sACT}, {WS_PART}",
            f"s_lshr_b32 s{sT0}, s{sCB}, 2", f"s_lshl_b32 s{sT1}, s{sRB}, 1", f"s_add_u32 s{sT0}, s{sT0}, s{sT1}", f"s_lshl_b32 s{sHU}, s{sT0}, 15",
            f"s_bfe_u32 s{sT1}, s{sCB}, 0x10001", f"s_lshl_b32 s{sT1}, s{sT1}, 10", f"s_add_u32 s{sHU}, s{sHU}, s{sT1}",
            f"s_and_b32 s{sT1}, s{sCB}, 1", f"s_lshl_b32 s{sT1}, s{sT1}, 7", f"s_add_u32 s{sHU}, s{sHU}, s{sT1}",
            f"s_lshl_b32 s{sT2}, s{sW}, 13", f"s_add_u32 s{sHU}, s{sHU}, s{sT2}"]
    g = G.stream(E("KC_SETG", 150), SET)
    print("KC set end", g)
    PREP = [WV("sm"), f"v_cmp_eq_u32 vcc, s{sXC}, v{VRR}", f"s_mov_b32 s{S_F}, s{S_WS}", f"s_mov_b32 s{S_F+1}, s{S_WS+1}", f"s_mov_b32 s{S_F+3}, 0x00020000",
            f"s_mov_b32 s{S_S}, s{S_WS}", f"s_mov_b32 s{S_S+1}, s{S_WS+1}", f"s_mov_b32 s{S_S+3}, 0x00020000",
            I(f"s_cmp_eq_u32 vcc_lo, -1\ns_cselect_b32 s{S_F+2}, {WS_END}, 0\ns_cselect_b32 s{S_S+2}, 0, {WS_END}")]
    for i in range(8): PREP += [f"v_lshlrev_b32 v{B1F+2*i}, 16, v{B1+i}", f"v_and_b32 v{B1F+2*i+1}, 0xffff0000, v{B1+i}"]
    PREP += [f"v_mul_f32 v{B1F+e}, s{sL2E}, v{B1F+e}" for e in range(16)]
    for i in range(8): PREP += [f"v_lshlrev_b32 v{XF+2*i}, 16, v{XR+i}", f"v_and_b32 v{XF+2*i+1}, 0xffff0000, v{XR+i}"]
    for op in ("v_add_f32 v{c}, 1.0, v{c}", "v_cvt_pk_bf16_f32 v{c}, v{c}, v{c}", "v_lshlrev_b32 v{c}, 16, v{c}"):
        PREP += [op.format(c=CB1 + e) for e in range(16)]
    PREP += [f"v_mul_f32 v{SB+e}, s{sL2E}, v{SB+e}" for e in range(16)]
    PREP += [f"v_and_b32 v187, 7, v2", f"v_lshlrev_b32 v187, 5, v187", f"v_add_u32 v187, 0x20000, v187", f"s_lshl_b32 s{sT0}, s{sW}, 3", f"v_add_u32 v188, s{sT0}, v187"]
    g = G.stream(g + 40, PREP)
    print("KC prep end", g)
    assert g < 415
    P += [WV("S0"), I("s_barrier")] + freads(0) + [WL("f0")]
    P += stamp_item()
    P += G.items()
    P += stamp_item()
    if DBGT: P.append(I("s_memrealtime s[80:81]"))
    P.append(I(f"s_add_u32 s{sT0}, s{sACT}, 32768"))
    for pp in range(2):
        for t in range(4):
            a0 = ACC + 16 * t + 8 * pp
            for i in range(4): P.append(I(f"v_cvt_pk_bf16_f32 v{a0+i}, v{a0+2*i}, v{a0+2*i+1}"))
            P.append(I(f"buffer_store_dwordx4 v[{a0}:{a0+3}], v1, {WS}, s{sACT if t < 2 else sT0} offen offset:{pp*2048+(t%2)*1024} sc1", "pst"))
    P += stamp_item()
    P += lines(f"""
    s_mul_i32 s{sWo}, s{sCB}, {56*4096}
    s_mul_i32 s{sT0}, s{sW}, {14*4096}
    s_add_u32 s{sWo}, s{sWo}, s{sT0}
    s_add_u32 s{sWo}, s{sWo}, {WS_W2F}
    s_and_b32 s{sT1}, s{sW}, 1
    s_lshl_b32 s{sT1}, s{sT1}, 11
    v_add_u32 v{VW}, s{sT1}, v1
    v_xor_b32 v{VW+1}, 0x800, v{VW}
    """)
    P += more(E("KC_MA", 10))
    P += [WV("pst"), I("s_barrier"), I(f"buffer_store_dword v{VMG}, v{VF0}, {WS}, s{sFA} offen sc1", "fl")]
    P += stamp_item()
    P += more(E("KC_MB", 16))
    P += [I(f"s_and_b32 s{sT2}, s{sFL}, 0xfffffbff"), I(f"buffer_load_dword v15, v{VPL}, {WS}, s{sT2} offen sc1", "pl")]
    P += more(E("KC_MC", 4))
    P += [WV("pl")] + lines(f"""
    v_cmp_eq_u32 vcc, {MAGIC}, v15
    s_or_b32 s{sT0}, vcc_lo, s{sNZ}
    s_cmp_eq_u32 s{sT0}, -1
    s_cbranch_scc0 KC_PA_SLOW
    KC_PA_OK:
    s_barrier
    """)
    P += stamp_item()
    PR = 80
    for kq in range(4):
        for m in range(2):
            P.append(I(f"s_add_u32 s{sT0}, s{sHU}, {WS_PART+kq*2*MB+m*4096}"))
            d = PR + 8 * kq + 4 * m
            P.append(I(f"buffer_load_dwordx4 v[{d}:{d+3}], v{VCA+1}, {WS}, s{sT0} offen sc1", f"pr{kq}"))
    P += more(E("KC_MD", 6))
    for kq in range(4):
        P.append(WV(f"pr{kq}"))
        dst = ACC if kq == 0 else ACC + 16
        for i in range(8):
            P.append(I(f"v_lshlrev_b32 v{dst+2*i}, 16, v{PR+8*kq+i}"))
            P.append(I(f"v_and_b32 v{dst+2*i+1}, 0xffff0000, v{PR+8*kq+i}"))
        if kq:
            for e in range(16): P.append(I(f"v_add_f32 v{ACC+e}, v{ACC+e}, v{ACC+16+e}"))
    V = [I(f"v_fmac_f32 v{XF+e}, v{ACC+e}, v{GA+e}") for e in range(16)]
    PK = ACC + 16
    V += [I(f"v_cvt_pk_bf16_f32 v{PK+i}, v{XF+2*i}, v{XF+2*i+1}") for i in range(8)]
    for i in range(8): V += [I(f"v_lshlrev_b32 v{XF+2*i}, 16, v{PK+i}"), I(f"v_and_b32 v{XF+2*i+1}, 0xffff0000, v{PK+i}")]
    Q = ACC + 32
    def red(r, t):
        return lines(f"""
        s_nop 1
        v_add_f32_dpp v{r}, v{r}, v{r} row_ror:8 row_mask:0xf bank_mask:0xf
        v_mov_b32 v{t}, v{r}
        s_nop 1
        v_permlane16_swap_b32 v{r}, v{t}
        s_nop 0
        v_add_f32 v{r}, v{r}, v{t}
        v_mov_b32 v{t}, v{r}
        s_nop 1
        v_permlane32_swap_b32 v{r}, v{t}
        s_nop 0
        v_add_f32 v{r}, v{r}, v{t}
        """)
    V.append(I(f"v_add_f32 v{Q}, v{XF}, v{XF+1}"))
    V += [I(f"v_add_f32 v{Q}, v{Q}, v{XF+e}") for e in range(2, 16)]
    V += red(Q, Q + 2) + [I(f"v_mul_f32 v{Q}, 0x3c000000, v{Q}")]
    V += [I(f"v_sub_f32 v{XF+e}, v{XF+e}, v{Q}") for e in range(16)]
    V.append(I(f"v_mul_f32 v{Q+1}, v{XF}, v{XF}"))
    V += [I(f"v_fmac_f32 v{Q+1}, v{XF+e}, v{XF+e}") for e in range(1, 16)]
    V += red(Q + 1, Q + 2)
    V += [I(f"ds_write_b64 v188, v[{Q}:{Q+1}]", "lw"), I(f"s_add_u32 s{sT0}, s{sHU}, {WS_X2}"), I(f"s_add_u32 s{sT1}, s{sT0}, 4096"), WL("lw"), I("s_barrier"),
          I(f"ds_read_b128 v[{Q+8}:{Q+11}], v187", "lr"), I(f"ds_read_b128 v[{Q+12}:{Q+15}], v187 offset:16", "lr")]
    V += st2(f"buffer_store_dwordx4 v[{PK}:{PK+3}], v{VCA+1}, {{srd}}, s{sT0} offen {{fl}}", "st1", "b")
    V += st2(f"buffer_store_dwordx4 v[{PK+4}:{PK+7}], v{VCA+1}, {{srd}}, s{sT1} offen {{fl}}", "st1", "b")
    V += [I(f"s_mov_b32 s{sT2}, 0x43000000"), WL("lr")]
    R_ = Q + 8
    V += lines(f"""
    v_add_f32 v{Q+2}, v{R_}, v{R_+2}
    v_add_f32 v{Q+1}, v{R_+4}, v{R_+6}
    v_add_f32 v{Q+2}, v{Q+2}, v{Q+1}
    v_mul_f32 v{Q+2}, 0x3e800000, v{Q+2}
    v_sub_f32 v{R_}, v{R_}, v{Q+2}
    v_sub_f32 v{R_+2}, v{R_+2}, v{Q+2}
    v_sub_f32 v{R_+4}, v{R_+4}, v{Q+2}
    v_sub_f32 v{R_+6}, v{R_+6}, v{Q+2}
    v_mul_f32 v{R_}, v{R_}, v{R_}
    v_fmac_f32 v{R_}, v{R_+2}, v{R_+2}
    v_fmac_f32 v{R_}, v{R_+4}, v{R_+4}
    v_fmac_f32 v{R_}, v{R_+6}, v{R_+6}
    v_add_f32 v{R_+1}, v{R_+1}, v{R_+3}
    v_add_f32 v{R_+5}, v{R_+5}, v{R_+7}
    v_add_f32 v{R_+1}, v{R_+1}, v{R_+5}
    v_fma_f32 v{R_}, v{R_}, s{sT2}, v{R_+1}
    v_mov_b32 v{Q+1}, 0x3727c5ac
    v_fmac_f32 v{Q+1}, 0x3b000000, v{R_}
    v_rsq_f32 v{Q+1}, v{Q+1}
    v_sub_f32 v{Q}, v{Q}, v{Q+2}
    v_mul_f32 v{Q+1}, s{sL2E}, v{Q+1}
    s_add_u32 s{sT0}, s{sHU}, {WS_U}
    v_mul_f32 v{Q}, v{Q}, v{Q+1}
    s_add_u32 s{sT1}, s{sT0}, 4096
    """)
    PH = ACC + 24
    for m in range(2):
        V += [I(f"v_fma_f32 v{XF+e}, v{XF+e}, v{Q+1}, v{Q}") for e in range(8 * m, 8 * m + 8)]
        V += [I(f"v_fma_f32 v{XF+e}, v{XF+e}, v{CB1+e}, v{SB+e}") for e in range(8 * m, 8 * m + 8)]
        V += [I(f"v_cvt_pk_bf16_f32 v{PH+i}, v{XF+2*i}, v{XF+2*i+1}") for i in range(4 * m, 4 * m + 4)]
        V += st2(f"buffer_store_dwordx4 v[{PH+4*m}:{PH+4*m+3}], v{VCA+1}, {{srd}}, s{sT0 if m == 0 else sT1} offen {{fl}}", "st1", "b")
    cnt = 0
    for it in V:
        P.append(it)
        if it.s.startswith("v_") and not it.s.startswith("v_permlane") and "dpp" not in it.s:
            cnt += 1
            if cnt % E("KC_EV", 12) == 0 and cnt < E("KC_EVM", 130): P += more(1)
    print("w1 at LN end", nw1)
    P += stamp_item()
    P += more(E("KC_ME", 8))
    P += lines(f"""
    s_add_u32 s{sFW}, s{sFW}, 32768
    v_and_b32 v{VPL}, 0x380, v{VPL}
    """)
    P += [WV("st1"), I("s_barrier")] + st2(f"buffer_store_dword v{VMG}, v{VF0}, {{srd}}, s{sFW} offen {{fl}}", "fl", "b")
    P += more(64)
    P += lines(f"""
    s_cmp_eq_u32 s{sCB}, 7
    s_cbranch_scc1 KC_SKIP2
    """)
    resolve(P, A, vm0=vmE)
    def poll(tag, base, cond, sl=None, first=None, bar=True):
        A(f"""
        s_cmp_lg_u32 s{sW}, 0
        s_cbranch_scc1 {tag}_OK
        s_mov_b32 s{sT1}, 100000
        {base}
        {'s_branch %s_S' % tag if first else ''}
        {tag}_L:
        buffer_load_dword v15, v{VPL}, {WS}, s{sT2} offen sc1
        s_waitcnt vmcnt(0)
        v_cmp_eq_u32 vcc, {MAGIC}, v15
        {cond}
        s_cbranch_scc1 {tag}_OK
        {tag}_S:
        s_sleep {sl or E('KC_PS', 4)}
        s_sub_u32 s{sT1}, s{sT1}, 1
        s_cmp_lg_u32 s{sT1}, 0
        s_cbranch_scc1 {tag}_L
        {tag}_OK:
        """)
        if bar:
            A("s_waitcnt vmcnt(0)")
            A("s_barrier")
    ALL = "s_cmp_eq_u32 vcc_lo, -1"
    poll("KC_PB", f"s_add_u32 s{sT2}, s{sFL}, 32768", ALL, first=E("KC_FB", 1))
    ST.stamp()
    order = [i for i in range(14) if i % 2 == 0] + [i for i in range(14) if i % 2 == 1]
    def w2slot(x):
        if x < 20: return vr(144 + 4 * x, 4)
        x -= 20
        if x < 32: return w1reg(x // 2, x % 2)
        x -= 32
        return w1reg(x // 2, 2 + x % 2)
    def w2load(x):
        i, n = order[x // 4], x % 4
        pre = [I(f"s_add_u32 s{sRG}, s{sWo}, {i*4096}")] if n == 0 else []
        return pre + [I(f"buffer_load_dwordx4 {w2slot(x)}, v{VW+n//2}, {WS}, s{sRG} offen offset:{(n%2)*1024}", "w2")]
    P = lines(f"""
    s_lshl_b32 s{sT0}, s{sRB}, 16
    s_add_u32 s{sT0}, s{sT0}, s{sM0}
    s_add_u32 s{sT0}, s{sT0}, {WS_U}
    """)
    for g in range(4):
        P.append(I(f"s_add_u32 m0, s{sM0}, {0x10000+g*16384}"))
        P.append(I(f"s_add_u32 s{sT2}, s{sT0}, {g*16384}"))
        for i in range(4):
            P.append(I(f"buffer_load_dwordx4 v1, {WS}, s{sT2} offen offset:{i*1024} sc1 lds", f"u{g}"))
    P += lines(f"""
    v_add_u32 v{VCA}, 0x10000, v1
    s_mul_i32 s{sACT}, s{sRB}, {2*112*1024}
    s_lshl_b32 s{sA}, s{sCB}, 14
    s_add_u32 s{sACT}, s{sACT}, s{sA}
    s_add_u32 s{sACT}, s{sACT}, s{sM0}
    s_add_u32 s{sACT}, s{sACT}, {WS_ACT}
    s_add_u32 s{sA}, s{sACT}, {112*1024}
    """)
    units = [(0, 0), (0, 1), (1, 0), (1, 1)]
    UF, NU, LEAD = 80, 8, 6
    mf = []; seq = []
    for np_, q in units:
        for ks in range(16):
            for hf in range(2):
                u = len(seq); seq.append((q, ks, hf))
                for n1 in range(2):
                    n = 2 * np_ + n1
                    acc = vr(ACC + 16 * (2 * q + np_) + 8 * hf + 4 * n1, 4)
                    mf.append(m16(acc, w1reg(ks, n), vr(UF + 4 * (u % NU), 4), acc if ks else vr(B1F + 4 * n, 4)))
    NM = len(mf)
    def uread(u):
        q, ks, hf = seq[u]
        return I(f"ds_read_b128 v[{UF+4*(u%NU)}:{UF+4*(u%NU)+3}], v{VCA} offset:{q*32768+ks*2048+hf*1024}", f"r{u}")
    P += [WV("u0"), I("s_barrier")] + [uread(i) for i in range(LEAD)] + [WL("r1")]
    P += stamp_item()
    G = Gaps(mf, cap=8)
    for u in range(128):
        if u + LEAD < 128:
            if u + LEAD in (16, 32):
                G.put(2 * u - 1, WV("u1" if u + LEAD == 16 else "u3"), "end"); G.put(2 * u, "s_barrier", "mem")
            G.put(2 * u, uread(u + LEAD))
        if u % 2 == 1 and u + 1 < 128: G.put(2 * u + 1, WL(f"r{u+2}"), "mem")
    MT = 112
    def mish(np_, q):
        L = []
        for j in range(2):
            z = ACC + 16 * (2 * q + np_) + 8 * j
            t = MT + 16 * j
            for e in range(8): L.append(f"v_exp_f32 v{t+e}, v{z+e}")
            for e in range(8): L.append(f"v_fma_f32 v{t+8+e}, v{t+e}, 0.5, 1.0")
            for e in range(8): L.append(f"v_fma_f32 v{t+e}, v{t+e}, v{t+8+e}, 1.0")
            for e in range(8): L.append(f"v_rcp_f32 v{t+e}, v{t+e}")
            for e in range(8): L.append(f"v_fma_f32 v{z+e}, -v{z+e}, v{t+e}, v{z+e}")
            for i in range(4): L.append(f"v_cvt_pk_bf16_f32 v{z+i}, v{z+2*i}, v{z+2*i+1}")
            L += st2(f"buffer_store_dwordx4 v[{z}:{z+3}], v1, {{srd}}, s{sACT if q==0 else sA} offen offset:{np_*2048+j*1024} {{fl}}", f"st2_{np_}", "c")
        return L
    gg = 5
    nw2 = 0
    for x in range(56):
        lim = 0 if x < 20 else 64 + 4 * ((x - 20) // 2) + 5 if x < 52 else 192 + 4 * ((x - 52) // 2) + 5
        gg = max(gg, lim)
        while gg % 4 != 1: gg += 1
        if gg >= NM: break
        w = w2load(x)
        if len(w) > 1: G.put(gg - 1, w[0], "end")
        G.put(gg, w[-1], "mem"); G.used[gg] -= 4 * E("KC_CH", 1)
        gg += 4; nw2 = x + 1
    print("w2 in stream", nw2)
    X2R, X, GA, T = 224, 80, 232, 248
    sP3, sXA, sFP = sPT, sHU, sKQ
    SET3 = [x.s for x in lines(f"""
    s_mul_i32 s{sT0}, s{sTS}, {112*1024}
    s_mul_i32 s{sT1}, s{sW}, {28*1024}
    s_add_u32 s{sT0}, s{sT0}, s{sT1}
    v_add_u32 v{VA}, s{sT0}, v1
    s_xor_b32 s{sT0}, s{sTS}, 1
    s_mul_i32 s{sT0}, s{sT0}, {112*1024}
    s_add_u32 s{sT0}, s{sT0}, s{sT1}
    v_add_u32 v{VA+1}, s{sT0}, v1
    v_lshrrev_b32 v15, 4, v2
    s_lshl_b32 s{sT0}, s{sNT}, 7
    v_lshlrev_b32 v{VM}, 4, v15
    v_add_u32 v{VM}, s{sT0}, v{VM}
    s_lshl_b32 s{sT0}, s{sTS}, 15
    s_lshl_b32 s{sT1}, s{sNT}, 11
    s_add_u32 s{sT1}, s{sT1}, s{sT0}
    s_add_u32 s{sXA}, s{sT1}, {WS_X2}
    s_lshl_b32 s{sT1}, s{sNT}, 6
    s_add_u32 s{sT1}, s{sT1}, s{sT0}
    v_and_b32 v{VRM}, 15, v2
    v_lshlrev_b32 v{VRM}, 10, v{VRM}
    v_and_b32 v15, 1, v15
    v_lshl_add_u32 v{VRM}, v15, 5, v{VRM}
    v_lshrrev_b32 v15, 5, v2
    v_lshl_add_u32 v{VRM}, v15, 4, v{VRM}
    v_add_u32 v{VRM}, s{sT1}, v{VRM}
    s_mul_i32 s{sT0}, s{sW}, 12288
    v_add_u32 v{VRR}, s{sT0}, v1
    v_min_u32 v{VCA+1}, 0x300, v{VPL}
    s_lshl_b32 s{sFP}, s{sRB}, 10
    s_add_u32 s{sFP}, s{sFP}, {WS_FLAG+FL_C0}
    """)]
    G.stream(2, SET3)
    g = 0
    rest = []
    for ui in range(3):
        L = mish(*units[ui])
        start = max(g + 1, 64 * (ui + 1) + 5)
        k = 0
        while k < len(L) and start < NM:
            try: g2 = G.stream(start, [L[k]], cap=E("KC_CAP2", 12))
            except IndexError: break
            start = g2 + 1 if (k + 1 < len(L) and isinstance(L[k + 1], Item)) else g2
            g = g2; k += 1
        rest = L[k:]
        assert not rest or ui == 2
        print("   mish end gap", g, "left", len(rest))
        if ui == 1:
            gc = g + E("KC_C0D", 24)
            G.put(gc - 2, f"s_add_u32 s{sT2}, s{sFW}, {FL_C0-32768}", "end")
            G.put(gc - 1, WV("st2_0"), "end"); G.put(gc, "s_barrier", "mem")
            for k_, x in enumerate(st2(f"buffer_store_dword v{VMG}, v{VF0}, {{srd}}, s{sT2} offen {{fl}}", "fl", "c")): G.put(gc + 1 + k_, x, "mem")
    D3, RING = 4, 80
    def aload(n):
        b = RING + 16 * (n % D3)
        return [I(f"s_mov_b32 s{sP3}, {WS_ACT+order[n]*2048}")] + \
               [I(f"buffer_load_dwordx4 v[{b+4*t}:{b+4*t+3}], v{VA+t//2}, {WS}, s{sP3} offen offset:{(t%2)*1024} sc1", f"a{n}") for t in range(4)]
    P += G.items()
    P += stamp_item()
    while nw2 < 56:
        P += w2load(nw2); nw2 += 1
    m3 = its(rest + ["s_nop 7"] + mish(*units[3]))
    NP0 = len(m3) - E("KC_NP0", 82)
    NP1 = len(m3) - E("KC_NP1", 22)
    P += m3[:NP0] + [I(f"buffer_load_dword v15, v{VCA+1}, {WS}, s{sFP} offen sc1", "c0")] + m3[NP0:NP1]
    P += [WV("c0")] + lines(f"""
    v_cmp_ne_u32 vcc, v{VMG}, v15
    s_cbranch_vccnz KC_C0SPIN
    KC_C0SPIN_RET:
    """)
    for n in range(2): P += aload(n)
    P += m3[NP1:]
    vmB, lgB = resolve(P, A)
    A("s_branch KC_PH3")
    A.label("KC_SKIP2")
    for x in range(56):
        for it in w2load(x): A(it.s)
    A.ext(SET3)
    SEVEN = f"s_and_b32 s{sT0}, vcc_lo, 0x7f\ns_cmp_eq_u32 s{sT0}, 0x7f"
    poll("KC_PC7", f"s_add_u32 s{sT2}, s{sFL}, {FL_C0}", SEVEN, sl=8)
    for n in range(2):
        for it in aload(n): A(it.s)
    nyoung = len(vmB) - 1 - max(i for i, t in enumerate(vmB) if t == "a1")
    for _ in range(nyoung):
        A(f"buffer_load_dword v15, v{VCA+1}, {WS}, s{sFP} offen sc1")
    A.label("KC_PH3")
    ST.stamp()
    P = aload(2) + aload(3)
    P += [I(f"s_add_u32 s{sFW}, s{sFW}, 32768"), I(f"s_add_u32 s{sFP}, s{sFP}, {(65536-FL_C0) & 0xffffffff}"), I(f"s_mov_b32 s{sT1}, {5*2048}")]
    NL = E("KC_NL", 2)
    subs = (3, 2, 1, 0)
    seq3 = [(n, sp) for n in range(14 - NL) for sp in subs] + [(n, sp) for sp in subs for n in range(14 - NL, 14)]
    mf = []; first = {}
    for n, sp in seq3:
        first.setdefault(n, len(mf))
        q, np_ = sp // 2, sp % 2
        for n1 in range(2):
            for hf in range(2):
                acc = vr(ACC + 16 * sp + 8 * hf + 4 * n1, 4)
                mf.append(m16(acc, w2slot(4 * n + 2 * np_ + n1), vr(RING + 16 * (n % D3) + 8 * q + 4 * hf, 4), acc if n else "0"))
    G = Gaps(mf, cap=8)
    for n in range(1, 14): G.put(first[n] - 1, WV(f"a{n}"), "end")
    gf = E("KC_GF", 6)
    G.put(gf - 1, WV("st2_1"), "end"); G.put(gf, "s_barrier", "mem")
    for k_, x in enumerate(st2(f"buffer_store_dword v{VMG}, v{VF0}, {{srd}}, s{sFW} offen {{fl}}", "fl", "c")): G.put(gf + 1 + k_, x, "mem")
    gp = E("KC_GP", 60); gk = gp + E("KC_GK", 26)
    G.put(gp, I(f"buffer_load_dword v15, v{VCA+1}, {WS}, s{sFP} offen sc1", "c1"), "mem")
    G.put(gk, [WV("c1"), f"v_cmp_ne_u32 vcc, v{VMG}, v15", "s_cbranch_vccnz KC_C1SPIN", "KC_C1SPIN_RET:"], "oth")
    g = 0
    for n in range(4, 14):
        g = max(g, 16 * (n - 3), gk + 2 if n >= 7 else 0)
        al = aload(n)
        G.put(g - 1, al[0], "end")
        for k_ in range(4): G.put(g + 2 * k_, al[1 + k_], "mem")
        g += 8
        assert g < first[n], (n, g)
    for k_, x in enumerate([I(f"buffer_load_dwordx4 v[{GA+4*i}:{GA+4*i+3}], v{VM}, {WS}, s{sT1} offen offset:{64*i}", "gb") for i in range(2)] +
                           [I(f"buffer_load_dwordx4 v[{X2R}:{X2R+3}], v1, {WS}, s{sXA} offen sc1", "gb"), I(f"buffer_load_dwordx4 v[{X2R+4}:{X2R+7}], v1, {WS}, s{sXA} offen offset:1024 sc1", "gb")]):
        G.put(gp + 2 + 2 * k_, x, "mem")
    L = [WV("gb")] + [f"v_mul_f32 v{GA+e}, 0x3f317218, v{GA+e}" for e in range(8)]
    for sp in (1, 2, 3): L += [f"s_xor_b32 s{sT0}, s{sW}, {sp}", f"s_mul_i32 s{sT0}, s{sT0}, 12288", f"v_add_u32 v{T+sp}, s{sT0}, v1"]
    L.append(f"s_mov_b32 s{sT2}, 16384")
    G.stream(132, L)
    base = 16 * (14 - NL)
    wr = [(sp, i) for sp in (3, 2, 1) for i in range(4)]
    g = 0; nwr = 0
    while nwr < 12:
        sp, i = wr[nwr]
        g = max(g, base + 4 * NL * (4 - sp) + 8)
        if g >= len(mf): break
        G.put(g, I(f"ds_write_b128 v{T+sp}, v[{ACC+16*sp+4*i}:{ACC+16*sp+4*i+3}] offset:{(sp-1)*4096+i*1024}", "rw"), "mem")
        nwr += 1; g += 3
    print("early reduce writes", nwr)
    P += [WV("a0")] + G.items()
    P += stamp_item()
    for sp, i in wr[nwr:]:
        P.append(I(f"ds_write_b128 v{T+sp}, v[{ACC+16*sp+4*i}:{ACC+16*sp+4*i+3}] offset:{(sp-1)*4096+i*1024}", "rw"))
    for i in range(8):
        P.append(I(f"v_lshlrev_b32 v{X+2*i}, 16, v{X2R+i}"))
        P.append(I(f"v_and_b32 v{X+2*i+1}, 0xffff0000, v{X2R+i}"))
    P += [WL("rw"), I("s_barrier")]
    for sp in (1, 2, 3):
        for i in range(4):
            P.append(I(f"ds_read_b128 v[{ACC+16*sp+4*i}:{ACC+16*sp+4*i+3}], v{VRR} offset:{(sp-1)*4096+i*1024}", f"rr{sp}"))
    for sp in (1, 2, 3):
        P.append(WL(f"rr{sp}"))
        for e in range(16): P.append(I(f"v_add_f32 v{ACC+e}, v{ACC+e}, v{ACC+16*sp+e}"))
    for e in range(16): P.append(I(f"v_fmac_f32 v{X+e}, v{ACC+e}, v{GA+e%8}"))
    for i in range(8): P.append(I(f"v_cvt_pk_bf16_f32 v{PK+i}, v{X+2*i}, v{X+2*i+1}"))
    P.append(I("s_nop 0"))
    for k in range(2):
        P.append(I(f"v_permlane16_swap_b32 v{PK+4*k}, v{PK+4*k+2}"))
        P.append(I(f"v_permlane16_swap_b32 v{PK+4*k+1}, v{PK+4*k+3}"))
        P.append(I(f"buffer_store_dwordx4 v[{PK+4*k}:{PK+4*k+3}], v{VRM}, s[{S_O}:{S_O+3}], {'0' if k == 0 else 's%d' % sT2} offen", "o"))
    resolve(P, A, vm0=vmB)
    if STAMPS: A("s_waitcnt vmcnt(0)")
    ST.stamp()
    ST.flush(4, f"s{sW}", 4)
    dbg_flush(A, 6, 4)
    A("s_endpgm")
    A("KC_PA_SLOW:")
    poll("KC_PAS", f"s_and_b32 s{sT2}, s{sFL}, 0xfffffbff", ALL, bar=False, first=1)
    A("s_branch KC_PA_OK")
    def spin(tag, vd, vm, va, so, cnt, sl, setup=""):
        A(f"""
        {tag}:
        s_mov_b32 {cnt}, 100000
        {setup}
        {tag}_L:
        s_sleep {sl}
        buffer_load_dword {vd}, {va}, {WS}, {so} offen sc1
        s_waitcnt vmcnt(0)
        v_cmp_ne_u32 vcc, {vm}, {vd}
        s_cbranch_vccz {tag}_RET
        s_sub_u32 {cnt}, {cnt}, 1
        s_cmp_lg_u32 {cnt}, 0
        s_cbranch_scc1 {tag}_L
        s_branch {tag}_RET
        """)
    spin("KC_C0SPIN", "v15", f"v{VMG}", f"v{VCA+1}", f"s{sFP}", f"s{sT2}", 1)
    spin("KC_C1SPIN", "v15", f"v{VMG}", f"v{VCA+1}", f"s{sFP}", f"s{sT2}", 1)
    spin("KC_JSPIN", "v241", "v242", "v240", f"s{sT1}", f"s{sT2}", 4, f"s_mov_b32 s{sT1}, {WS_FLAG+FL_W}")
    spin("KC_CSPIN", "v241", "v242", "v5", f"s{sHU}", f"s{sT2}", 4)
    spin("KC_LSPIN", "v185", "v186", "v184", "s62", "s63", 4)
```

```python
from asmlib import *

import os
FREESLOT = os.environ.get("FREESLOT", "1") == "1"
STRICT = os.environ.get('STRICT', '0') == '1'
class Item:
    __slots__ = ("s", "tag")
    def __init__(self, s, tag=None):
        self.s = s; self.tag = tag

def I(s, tag=None): return Item(s, tag)
def WV(*tags): return Item("WAITVM", tuple(tags))
def WL(*tags): return Item("WAITLG", tuple(tags))
def WVL(vt, lt): return Item("WAITBOTH", (tuple(vt), tuple(lt)))

def icost(it):
    if it.s.startswith("WAIT"): return 4
    if it.s.endswith(":"): return 0
    return cost(it.s)
def imem(it):
    return (not it.s.startswith("WAIT")) and (is_mem(it.s) or it.s == "s_barrier")

def is_vm(s):
    op = s.split()[0]
    return op.startswith("buffer_") or op.startswith("global_")
def is_lg(s):
    return s.split()[0].startswith("ds_")

def resolve(items, A, vm0=None, lg0=None):
    vm = list(vm0 or []); lg = list(lg0 or [])
    waited = set()
    for it in items:
        if it.s.startswith("WAIT"):
            vt, lt = ((it.tag, ()) if it.s == "WAITVM" else ((), it.tag) if it.s == "WAITLG" else it.tag)
            waited |= {("v", t) for t in vt} | {("l", t) for t in lt}
        elif it.tag is not None and not it.s.endswith(":"):
            k = "v" if is_vm(it.s) else "l"
            assert (k, it.tag) not in waited, f"op with tag {it.tag} issued after wait: {it.s}"
    def cnt(lst, tags, cap):
        last = -1
        for i, t in enumerate(lst):
            if t in tags: last = i
        if last < 0: return None
        return min(len(lst) - 1 - last, cap)
    for it in items:
        s = it.s
        if s.startswith("WAIT"):
            vt, lt = ((it.tag, ()) if s == "WAITVM" else ((), it.tag) if s == "WAITLG" else it.tag)
            parts = []
            if vt:
                n = 0 if "*" in vt else cnt(vm, vt, 63)
                if n is not None:
                    parts.append(f"vmcnt({n})"); vm = vm[len(vm) - n:] if n else []
            if lt:
                n = 0 if "*" in lt else cnt(lg, lt, 15)
                if n is not None:
                    parts.append(f"lgkmcnt({n})"); lg = lg[len(lg) - n:] if n else []
            if parts: A("s_waitcnt " + " ".join(parts))
            else: A("s_nop 0")
            continue
        A(s)
        if s.endswith(":"): continue
        if is_vm(s): vm.append(it.tag)
        elif is_lg(s): lg.append(it.tag)
    return vm, lg

class Gaps:
    def __init__(self, mfmas, cap=24):
        self.m = mfmas; n = len(mfmas)
        self.mem = [[] for _ in range(n)]
        self.oth = [[] for _ in range(n)]
        self.end = [[] for _ in range(n)]
        self.used = [0] * n
        self.cap = cap
    def _it(self, x): return x if isinstance(x, Item) else Item(x)
    def put(self, g, x, where=None):
        xs = x if isinstance(x, list) else [x]
        for y in xs:
            y = self._it(y)
            w = where or ("mem" if imem(y) else "end")
            c = icost(y)
            if w == "mem" and not self.mem[g] and FREESLOT: c -= 4
            getattr(self, w)[g].append(y)
            self.used[g] += c
    def stream(self, start, xs, cap=None):
        cap = cap or self.cap
        g = start
        placed_here = False
        tight = getattr(self, 'tight', False)
        for x in xs:
            grp = [self._it(y) for y in (x if isinstance(x, list) else [x])]
            c = sum(icost(y) for y in grp)
            ismem = imem(grp[0])
            if ismem and placed_here:
                g += 1; placed_here = False
            if tight and len(grp) == 1:
                y = grp[0]
                if ismem and is_vm(y.s) and cap <= 12:
                    st = "store" in y.s or STRICT
                    while self.mem[g] or self.used[g] > (0 if st else 4): g += 1
                    self.mem[g].append(y); self.used[g] = cap if st else self.used[g] + 4; placed_here = False
                    continue
                scal = y.s.startswith("WAIT") or (y.s.startswith("s_") and "\n" not in y.s and not y.s.startswith("s_nop") and not y.s.startswith("s_cbranch"))
                if (scal or ismem):
                    if placed_here and self.used[g] + c > cap:
                        g += 1; placed_here = False
                    if not placed_here and not self.mem[g]:
                        self.mem[g].append(y); continue
            while self.used[g] + c > cap and not (self.used[g] <= 4 and c > cap - 4 and (not tight or self.used[g] == 0)):
                g += 1; placed_here = False
            if ismem:
                self.mem[g].append(grp[0]); self.oth[g] = self.oth[g] + grp[1:]
                if len(grp) > 1: placed_here = True
            else:
                self.oth[g] += grp; placed_here = True
            self.used[g] += c
        return g
    def items(self):
        out = []
        if getattr(self, "hack16", False):
            import re
            cnt = {}
            prevA = None
            for g, m in enumerate(self.m):
                mm = re.match(r"v_mfma_f32_32x32x16_bf16 ([av])\[(\d+):\d+\], (\S+), (\S+), (\S+)$", m)
                t, d, a, b, c = mm.group(1), int(mm.group(2)), mm.group(3), mm.group(4), mm.group(5)
                if c != f"{t}[{d}:{d+15}]": cnt[(t, d)] = 0
                k = cnt.get((t, d), 2); cnt[(t, d)] = k + 1
                def one(off, a_, b_):
                    r = f"{t}[{d+off}:{d+off+3}]"
                    return Item(f"v_mfma_f32_16x16x32_bf16 {r}, {a_}, {b_}, {r if k >= 2 else 0}")
                o = 8 * (k & 1)
                fl = self.mem[g] + self.oth[g] + self.end[g]
                tot = sum(icost(x) for x in fl); acc = 0; i = 0
                while i < len(fl) and acc + icost(fl[i]) <= (tot + 4) // 2 + 0:
                    acc += icost(fl[i]); i += 1
                out += [one(o, a, b)] + fl[:i] + [one(o + 4, b, a)] + fl[i:]
            return out
        for g, m in enumerate(self.m):
            out.append(Item(m))
            out += self.mem[g] + self.oth[g] + self.end[g]
        return out
```

```python
import sys, os
from asmlib import *

HEADER = open("adaLN_cond__compressed_kv_cla__dense_activation_mish__prompt.s.ref").read().split("; Override launch")[0]

def build(kernels, path):
    out = HEADER
    for name, body, desc, launch in kernels:
        if len(kernels) == 1 and name.startswith("adaLN"): out += f"; @launch {launch}\n"
        else: out += f"; @launch kernel={name} {launch}\n"
    out += '.amdgcn_target "amdgcn-amd-amdhsa--gfx950"\n.text\n'
    for name, body, desc, launch in kernels:
        out += body
    out += '.section .rodata,"a"\n'
    for name, body, desc, launch in kernels:
        out += desc
    open(path, "w").write(out)

if __name__ == "__main__":
    import k2
    if not os.environ.get("KA3"):
        import ka
    else:
        import ka3 as ka
    if os.environ.get("KCOLD"):
        import kc
    else:
        import kc3 as kc
    if os.environ.get('NOFUSE'):
        ks = [ka.gen_ka(), k2.gen_k2(), kc.gen_kc()]
    else:
        if os.environ.get('F32'):
            import front
        else:
            import front16 as front
        if os.environ.get('NOFUSE2'):
            ks = [front.gen_front(), kc.gen_kc()]
        else:
            ks = [front.gen_front(tailfn=kc.gen_kc, name=('adaLN_cond__compressed_kv_cla__dense_activation_mish__prompt_kernel' if os.environ.get('CANON') else 'kf_kernel'))]
    path = sys.argv[1] if len(sys.argv) > 1 else "adaLN_cond__compressed_kv_cla__dense_activation_mish__prompt.s"
    build(ks, path)
    print("wrote", path)
```
